```python
import torch

def _softmax(x, axis=-1):
    return torch.softmax(x, dim=axis)

def _gelu(x):
    return torch.nn.functional.gelu(x, approximate='tanh')

def _silu(x):
    return torch.nn.functional.silu(x)

def _sigmoid(x):
    return torch.sigmoid(x)

def _layernorm(x, axis=-1, eps=1e-05):
    m = x.mean(dim=axis, keepdim=True)
    v = x.var(dim=axis, keepdim=True, unbiased=False)
    return (x - m) / torch.sqrt(v + eps)

def _scatter_add(tgt, idx, src, axis=0):
    return tgt.clone().index_add_(axis, idx, src)

def _segment_sum(src, seg, n):
    out = torch.zeros((n,) + src.shape[1:], dtype=src.dtype)
    return out.index_add_(0, seg, src)

def _pad(x, pw):
    flat = tuple((v for pair in reversed(pw) for v in pair))
    return torch.nn.functional.pad(x, flat)
kernel_name = 'standalone__kv_cache_quant_pre_rope_vs_post_rope__prompt'

def setup_inputs():

    _w = lambda a: (lambda t: t.to(torch.bfloat16) if t.is_floating_point() else t)(torch.as_tensor(a))
    B, Sq, Skv = (1, 2048, 2048)
    H, Dh0 = (4, 128)
    G = 128 if 128 > 0 else Dh0
    G = max(2, G // 2 * 2)
    Dh = max(G, Dh0 // G * G)
    Skv = max(Skv, Sq)
    ng = Dh // G
    bits = 2 if 2 > 1 else 4
    bits = max(2, min(8, bits))
    qmax = (1 << bits) - 1
    half = Dh // 2
    inv = 1.0 / 10000.0 ** (torch.arange(half) / max(1, half))
    ang_k = torch.arange(Skv)[:, None] * inv[None, :]
    ang_q = torch.arange(Skv - Sq, Skv)[:, None] * inv[None, :]
    kc = torch.cat([torch.cos(ang_k), torch.cos(ang_k)], dim=-1)
    ks = torch.cat([torch.sin(ang_k), torch.sin(ang_k)], dim=-1)
    qc = torch.cat([torch.cos(ang_q), torch.cos(ang_q)], dim=-1)
    qs = torch.cat([torch.sin(ang_q), torch.sin(ang_q)], dim=-1)
    qk_i = torch.randint(0, qmax + 1, (B, H, Skv, Dh)).to(torch.int32)
    qv_i = torch.randint(0, qmax + 1, (B, H, Skv, Dh)).to(torch.int32)
    ksc = torch.abs((lambda *s: torch.randn(*s, dtype=torch.bfloat16) * 0.4)(B, H, Skv, ng)) * 0.1 + 0.01
    kzp = torch.full((B, H, Skv, ng), qmax / 2.0)
    vsc = torch.abs((lambda *s: torch.randn(*s, dtype=torch.bfloat16) * 0.4)(B, H, Skv, ng)) * 0.1 + 0.01
    vzp = torch.full((B, H, Skv, ng), qmax / 2.0)
    return {'q': _w((lambda *s: torch.randn(*s, dtype=torch.bfloat16) * 6.4)(B, H, Sq, Dh) * 0.5), 'qk': _w(qk_i), 'k_scales': _w(ksc), 'k_zeros': _w(kzp), 'qv': _w(qv_i), 'v_scales': _w(vsc), 'v_zeros': _w(vzp), 'q_cos': _w(qc), 'q_sin': _w(qs), 'k_cos': _w(kc), 'k_sin': _w(ks)}

def reference(q, qk, k_scales, k_zeros, qv, v_scales, v_zeros, q_cos, q_sin, k_cos, k_sin):
    B, H, Sq, Dh = q.shape
    ng = k_scales.shape[-1]
    G = Dh // ng
    half = Dh // 2
    ks = (lambda x, n, axis: torch.repeat_interleave(x, n, dim=axis))(k_scales, G, axis=-1)
    kz = (lambda x, n, axis: torch.repeat_interleave(x, n, dim=axis))(k_zeros, G, axis=-1)
    k = ((lambda x, dt: x.to(dt))(qk, q.dtype) - kz) * ks
    vs = (lambda x, n, axis: torch.repeat_interleave(x, n, dim=axis))(v_scales, G, axis=-1)
    vz = (lambda x, n, axis: torch.repeat_interleave(x, n, dim=axis))(v_zeros, G, axis=-1)
    v = ((lambda x, dt: x.to(dt))(qv, q.dtype) - vz) * vs
    k1 = k[..., :half].clone()
    k2 = k[..., half:].clone()
    krh = torch.concatenate([-k2, k1], axis=-1)
    kr = k * k_cos[None, None, :, :] + krh * k_sin[None, None, :, :]
    q1 = q[..., :half].clone()
    q2 = q[..., half:].clone()
    qrh = torch.concatenate([-q2, q1], axis=-1)
    qr = q * q_cos[None, None, :, :] + qrh * q_sin[None, None, :, :]
    logits = torch.einsum('bhqd,bhkd->bhqk', qr, kr) * float(Dh) ** (-0.5)
    attn = _softmax(logits, axis=-1)
    out = torch.einsum('bhqk,bhkd->bhqd', attn, v)
    return out
```

```python
NAME = "standalone__kv_cache_quant_pre_rope_vs_post_rope__prompt"

def kd(label, vgpr, sgpr=96, accum=None, wgy=False):
    if accum is None:
        accum = (vgpr + 3) // 4 * 4
    s = f""".section .rodata,"a"
.p2align 6
.amdhsa_kernel {label}
  .amdhsa_next_free_vgpr {vgpr}
  .amdhsa_next_free_sgpr {sgpr}
  .amdhsa_accum_offset {accum}
  .amdhsa_group_segment_fixed_size 0
  .amdhsa_kernarg_size 112
  .amdhsa_user_sgpr_count 2
  .amdhsa_user_sgpr_kernarg_segment_ptr 1
  .amdhsa_system_sgpr_workgroup_id_x 1
  .amdhsa_float_denorm_mode_32 3
  .amdhsa_float_denorm_mode_16_64 3
  .amdhsa_ieee_mode 0
  .amdhsa_dx10_clamp 0
.end_amdhsa_kernel
"""
    return s

def head(label):
    return f""".text
.globl {label}
.p2align 8
.type {label},@function
{label}:
"""
TARGET = '.amdgcn_target "amdgcn-amd-amdhsa--gfx950"\n'
```

```python
import re, sys
TRANS = ("v_exp_f32","v_log_f32","v_rcp_f32","v_rsq_f32","v_sqrt_f32","v_sin_f32","v_cos_f32")
def regs(tok):
    tok = tok.strip().lstrip("-").replace("abs(","").replace("|","").rstrip(")")
    m = re.fullmatch(r"([vas])\[(\d+):(\d+)\]", tok)
    if m: return {(m.group(1), i) for i in range(int(m.group(2)), int(m.group(3))+1)}
    m = re.fullmatch(r"([vas])(\d+)", tok)
    if m: return {(m.group(1), int(m.group(2)))}
    if tok == "vcc": return {("s","vcc")}
    if tok == "exec": return {("s","exec")}
    if tok == "m0": return {("s","m0")}
    return set()
def parse(line):
    line = line.split(";")[0].strip()
    if not line or line.endswith(":") or line.startswith("."): return None
    p = line.split(None, 1)
    op = p[0]; ops = []
    if len(p) > 1:
        ops = [x.strip() for x in re.split(r",\s*(?![^\[]*\])", p[1])]
        if ops:
            last = ops[-1].split()
            ops[-1] = last[0] if last else ""
    I = dict(op=op, text=line, w=set(), r=set(), kind="other", states=1, srcC=set(), srcAB=set(), sdata=set())
    R = [regs(x) for x in ops]
    if op == "s_nop": I["states"] = int(ops[0], 0) + 1; I["kind"]="salu"
    elif op.startswith("v_mfma"):
        I["kind"]="mfma"; I["w"]=R[0]; I["srcAB"]=R[1]|R[2]; I["srcC"]=R[3]; I["r"]=R[1]|R[2]|R[3]
        I["passes"] = 8 if "32x32" in op else 4
    elif op.startswith("v_"):
        I["kind"]="valu"
        base = op.replace("_e32","").replace("_e64","")
        if base.startswith("v_cmp"):
            I["w"]=R[0]; I["r"]=set().union(*R[1:])
            if base.startswith("v_cmpx"): I["w"] |= {("s","exec")}
        elif base.startswith("v_permlane") and "swap" in base:
            I["w"]=R[0]|R[1]; I["r"]=R[0]|R[1]; I["perm"]=True
        elif base in ("v_readfirstlane_b32","v_readlane_b32"):
            I["w"]=R[0]; I["r"]=set().union(*R[1:]); I["rl"]=True
        elif "_co_" in base:
            I["w"]=R[0]|R[1]; I["r"]=set().union(*R[2:])
        else:
            I["w"]=R[0]; I["r"]=set().union(*R[1:]) if len(R)>1 else set()
            if base in ("v_fmac_f32","v_dot2c_f32_bf16","v_pk_fmac_f16"): I["r"] |= R[0]
            if base == "v_cndmask_b32" and len(R) == 3: I["r"] |= {("s","vcc")}
        if base in TRANS: I["trans"]=True
        if base.startswith("v_dot"): I["dl"]=True
        if base == "v_writelane_b32": I["r"] |= R[0]
        if "dpp" in line or "row_" in line or "quad_perm" in line: I["dpp"]=True
    elif op.startswith(("buffer_","global_","flat_")):
        I["kind"]="vmem"
        if "load" in op and " lds" not in line and "_lds_" not in op:
            I["w"]=R[0]; I["r"]=set().union(*R[1:])
        else:
            I["r"]=set().union(*R) if R else set()
            if "store" in op and ("x3" in op or "x4" in op):
                I["sdata"] = R[0] if op.startswith("buffer") else R[1]
            if "atomic" in op and "sc0" in line: I["w"] = R[0]
        if " lds" in line or "_lds_" in op: I["r"] |= {("s","m0")}; I["ldsdma"]=True
    elif op.startswith("ds_"):
        I["kind"]="ds"
        if "read" in op or "permute" in op or "swizzle" in op: I["w"]=R[0]; I["r"]=set().union(*R[1:])
        else: I["r"]=set().union(*R)
    elif op.startswith("s_"):
        I["kind"]="salu"
        if op.startswith(("s_cmp","s_waitcnt","s_barrier","s_cbranch","s_branch","s_endpgm","s_setprio","s_sleep")):
            I["r"]=set().union(*R) if R else set()
        else:
            I["w"]=R[0] if R else set(); I["r"]=set().union(*R[1:]) if len(R)>1 else set()
            if "saveexec" in op: I["w"] |= {("s","exec")}
    return I
def fix(text):
    out = []; ins = []
    nfix = 0
    for line in text.split("\n"):
        c = parse(line)
        if c is None:
            out.append(line); continue
        short = shortfall(ins, c)
        if short > 0:
            nl = f"  s_nop {short-1}"
            out.append(nl); ins.append(parse(nl)); nfix += 1
        out.append(line); ins.append(c)
    return "\n".join(out), nfix
def shortfall(ins, c):
    return max([0] + [n - d for n, d, _, _ in pairs(ins + [c], len(ins))])
def check(text):
    ins = [x for x in map(parse, text.split("\n")) if x]
    bad = 0
    for j, c in enumerate(ins):
        for need, dist, why, p in pairs(ins, j):
            bad += 1
            print(f"HAZARD {why}: need {need} have {dist}\n    {p['text']}\n    {c['text']}")
    return bad
def pairs(ins, j):
    res = []
    c = ins[j]
    if True:
        dist = 0
        for i in range(j-1, max(-1, j-25), -1):
            p = ins[i]
            need = 0; why = ""
            vw = {x for x in p["w"] if x[0] in "va"}; sw = {x for x in p["w"] if x[0]=="s"}
            if p["kind"]=="valu":
                if c["kind"]=="mfma" and vw & c["r"]: need, why = 2, "valu->mfma"
                if c["kind"]=="mfma" and ("s","exec") in sw: need, why = 4, "valu exec->mfma"
                if p.get("trans") and c["kind"]=="valu" and not c.get("trans") and vw & c["r"]: need, why = max(need,1), "trans->valu"
                if c.get("perm") and vw & c["r"]: need, why = 2, "valu->permlane"
                if c.get("dpp") and vw & c["r"]: need, why = 2, "valu->dpp"
                if c.get("rl") and vw & c["r"]: need, why = max(need,1), "valu->readlane"
                if c["kind"]=="vmem" and sw & c["r"]: need, why = 5, "valu sgpr->vmem"
                if c["kind"]=="valu" and (sw - {("s","exec")}) & c["r"]: need, why = max(need,2), "valu sgpr->valu"
                if ("s","exec") in sw and c.get("rl"): need, why = 4, "exec->readlane"
                if p.get("dl") and c["kind"] in ("valu","vmem","ds","mfma") and vw & (c["r"]|c["w"]): need, why = max(need,3), "dot->use"
            if p["kind"]=="mfma":
                P = p["passes"]; full = {4:8, 8:12}[P]; part = {4:6, 8:10}[P]; war = {4:3, 8:7}[P]
                if c["kind"]=="mfma":
                    if vw & c["srcAB"]: need, why = full, "mfma->mfma AB"
                    elif vw & c["srcC"] and not (vw == c["srcC"] and c["passes"]==P): need, why = part, "mfma->mfma C overlap"
                    elif vw & c["w"] and not (vw == c["srcC"]): need, why = part, "mfma WAW (new C) conservative"
                elif c["kind"] in ("valu","vmem","ds"):
                    if vw & (c["r"]|c["w"]): need, why = full, "mfma->valu/mem"
                    if c["kind"]=="valu" and p["srcC"] & c["w"]: need, why = max(need,war), why or "mfma C WAR"
            if p["sdata"] and c["kind"] in ("valu","vmem","ds","mfma") and p["sdata"] & c["w"]: need, why = max(need,2), "store data WAR"
            if p["kind"]=="salu" and ("s","m0") in sw and c.get("ldsdma"): need, why = max(need,1), "m0->ldsdma"
            if need > dist:
                res.append((need, dist, why, p))
            dist += p["states"]
    return res
if __name__ == "__main__":
    n = check(open(sys.argv[1]).read())
    print("hazards:", n)
```

```python
import sys, math, struct
from asmlib import *

def f2u(x): return struct.unpack("<I", struct.pack("<f", x))[0]

KV_OFF = 0
Q_OFF  = 4 << 20
X_OFF  = 6 << 20
F_OFF  = 15 << 20
ST_OFF = 16 << 20
SCALE = math.log2(math.e) / math.sqrt(128.0)

class Asm:
    def __init__(self):
        self.o = []
        self.vm = []
        self.lg = []
    def __call__(self, s):
        for l in s.strip("\n").split("\n"):
            self.o.append("  " + l.strip() + "\n")
    def label(self, l): self.o.append(l + ":\n")
    def raw(self, s): self.o.append(s)
    def vmem(self, s, tag=None):
        self(s); self.vm.append(tag)
        assert len(self.vm) <= 63, "vmcnt overflow"
    def ds(self, s, tag=None):
        self(s); self.lg.append(tag)
        assert len(self.lg) <= 15, "lgkmcnt overflow"
    nowait = False
    def need(self, vtags=(), ltags=(), force=False):
        parts = []
        iv = max([i for i, t in enumerate(self.vm) if t in vtags], default=-1)
        if iv >= 0:
            n = len(self.vm) - 1 - iv
            parts.append(f"vmcnt({n})"); self.vm = self.vm[iv+1:]
        il = max([i for i, t in enumerate(self.lg) if t in ltags], default=-1)
        if il >= 0:
            n = len(self.lg) - 1 - il
            parts.append(f"lgkmcnt({n})"); self.lg = self.lg[il+1:]
        if parts and not (self.nowait and not force): self("s_waitcnt " + " ".join(parts))
    def drain(self, vm=True, lg=True):
        p = []
        if vm: p.append("vmcnt(0)"); self.vm = []
        if lg: p.append("lgkmcnt(0)"); self.lg = []
        self("s_waitcnt " + " ".join(p))
    def text(self): return "".join(self.o)

def code_prefetch(A, nbytes, vreg, dst, spair="s[40:41]"):
    A(f"s_getpc_b64 {spair}")
    A(f"v_and_b32 v{vreg}, 63, v0")
    A(f"v_lshlrev_b32 v{vreg}, 7, v{vreg}")
    n = (nbytes + 8191) // 8192
    for i in range(n):
        A(f"global_load_dword v{dst}, v{vreg}, {spair}")
        if i + 1 < n: A(f"v_add_u32 v{vreg}, 0x2000, v{vreg}")

def gen_prep(opt):
    A = Asm()
    A.raw(head("prep_kernel"))
    A("""
    s_cmp_ge_u32 s2, 256
    s_cbranch_scc1 P_end
    s_load_dwordx16 s[4:19], s[0:1], 0
    s_load_dwordx8 s[20:27], s[0:1], 64
    s_load_dwordx2 s[28:29], s[0:1], 104
    v_lshrrev_b32 v1, 6, v0
    v_and_b32 v2, 63, v0
    v_readfirstlane_b32 s30, v1
    s_lshr_b32 s31, s2, 3
    s_and_b32 s32, s31, 3
    s_lshr_b32 s33, s31, 2
    s_lshl_b32 s33, s33, 3
    s_and_b32 s34, s2, 7
    s_add_u32 s33, s33, s34
    s_and_b32 s35, s30, 3
    s_lshr_b32 s36, s30, 2
    """)
    A("""
    s_cmp_eq_u32 s36, 2
    s_cbranch_scc1 P_V
    s_lshl_b32 s37, s33, 5
    s_lshl_b32 s38, s35, 3
    s_add_u32 s37, s37, s38
    v_lshrrev_b32 v3, 3, v2
    v_and_b32 v4, 7, v2
    v_add_u32 v5, s37, v3
    s_lshl_b32 s39, s32, 11
    v_add_u32 v6, s39, v5
    v_lshlrev_b32 v7, 8, v5
    v_lshl_add_u32 v7, v4, 4, v7
    v_lshrrev_b32 v8, 1, v4
    v_lshlrev_b32 v8, 10, v8
    v_and_b32 v9, 1, v4
    v_lshlrev_b32 v9, 9, v9
    v_add_u32 v8, v8, v9
    v_add_u32 v9, s38, v3
    v_lshl_add_u32 v8, v9, 4, v8
    s_cmp_eq_u32 s36, 1
    s_cbranch_scc1 P_Q
    """)
    A("""
    v_lshlrev_b32 v10, 9, v6
    v_lshl_add_u32 v10, v4, 5, v10
    v_lshlrev_b32 v11, 1, v6
    s_waitcnt lgkmcnt(0)
    global_load_ushort v12, v11, s[8:9]
    global_load_ushort v13, v11, s[10:11]
    global_load_dwordx4 v[16:19], v10, s[6:7]
    global_load_dwordx4 v[20:23], v10, s[6:7] offset:16
    global_load_dwordx4 v[24:27], v10, s[6:7] offset:256
    global_load_dwordx4 v[28:31], v10, s[6:7] offset:272
    global_load_dwordx4 v[32:35], v7, s[22:23]
    global_load_dwordx4 v[36:39], v7, s[24:25]
    global_load_dwordx4 v[40:43], v7, s[22:23] offset:128
    global_load_dwordx4 v[44:47], v7, s[24:25] offset:128
    ; dest: KV_OFF + ((h*16 + T/4)*4 + T%4)*16384 = (h*64+T)*16384
    s_lshl_b32 s40, s32, 6
    s_add_u32 s40, s40, s33
    s_lshl_b32 s40, s40, 14
    v_add_u32 v8, s40, v8
    s_waitcnt vmcnt(8)
    v_lshlrev_b32 v12, 16, v12
    v_lshlrev_b32 v13, 16, v13
    v_mul_f32 v13, v13, v12
    s_waitcnt vmcnt(4)
    """)
    for j in range(16):
        A(f"v_cvt_f32_i32 v{16+j}, v{16+j}")
    for j in range(16):
        A(f"v_fma_f32 v{16+j}, v{16+j}, v12, -v13")
    def rope(x1, x2, c1, s1, c2, s2, t, o, waits):
        A(waits[0])
        for p in range(4):
            A(f"v_lshlrev_b32 v{t}, 16, v{c1+p}")
            A(f"v_and_b32 v{t+1}, 0xffff0000, v{c1+p}")
            A(f"v_lshlrev_b32 v{t+2}, 16, v{s1+p}")
            A(f"v_and_b32 v{t+3}, 0xffff0000, v{s1+p}")
            A(f"v_mul_f32 v{t}, v{x1+2*p}, v{t}")
            A(f"v_mul_f32 v{t+1}, v{x1+2*p+1}, v{t+1}")
            A(f"v_fma_f32 v{t}, -v{x2+2*p}, v{t+2}, v{t}")
            A(f"v_fma_f32 v{t+1}, -v{x2+2*p+1}, v{t+3}, v{t+1}")
            A(f"v_cvt_pk_bf16_f32 v{o+p}, v{t}, v{t+1}")
        A(waits[1])
        for p in range(4):
            A(f"v_lshlrev_b32 v{t}, 16, v{c2+p}")
            A(f"v_and_b32 v{t+1}, 0xffff0000, v{c2+p}")
            A(f"v_lshlrev_b32 v{t+2}, 16, v{s2+p}")
            A(f"v_and_b32 v{t+3}, 0xffff0000, v{s2+p}")
            A(f"v_mul_f32 v{t}, v{x2+2*p}, v{t}")
            A(f"v_mul_f32 v{t+1}, v{x2+2*p+1}, v{t+1}")
            A(f"v_fmac_f32 v{t}, v{x1+2*p}, v{t+2}")
            A(f"v_fmac_f32 v{t+1}, v{x1+2*p+1}, v{t+3}")
            A(f"v_cvt_pk_bf16_f32 v{o+4+p}, v{t}, v{t+1}")
    st = opt.get("prep_st", "")
    rope(16, 24, 32, 36, 40, 44, 48, 52, ["s_waitcnt vmcnt(2)", "s_waitcnt vmcnt(0)"])
    A(f"""
    v_add_u32 v9, 4096, v8
    global_store_dwordx4 v8, v[52:55], s[28:29] {st}
    global_store_dwordx4 v9, v[56:59], s[28:29] {st}
    """)
    A(f"""
    s_cmp_lg_u32 s35, 0
    s_cbranch_scc1 P_end
    s_cmp_ge_u32 s2, 128
    s_cbranch_scc1 P_end
    s_lshl_b32 s41, s2, 9
    s_add_u32 s41, s41, {F_OFF}
    v_lshlrev_b32 v3, 7, v2
    v_add_u32 v3, s41, v3
    v_mov_b32 v4, 0
    v_cmp_gt_u32 vcc, 4, v2
    s_and_saveexec_b64 s[42:43], vcc
    global_store_dword v3, v4, s[28:29]
    s_endpgm
    """)
    A.label("P_Q")
    A(f"""
    v_lshlrev_b32 v10, 8, v6
    v_lshl_add_u32 v10, v4, 4, v10
    s_waitcnt lgkmcnt(0)
    global_load_dwordx4 v[60:63], v10, s[4:5]
    global_load_dwordx4 v[64:67], v10, s[4:5] offset:128
    global_load_dwordx4 v[32:35], v7, s[18:19]
    global_load_dwordx4 v[36:39], v7, s[20:21]
    global_load_dwordx4 v[40:43], v7, s[18:19] offset:128
    global_load_dwordx4 v[44:47], v7, s[20:21] offset:128
    s_lshl_b32 s40, s32, 6
    s_add_u32 s40, s40, s33
    s_lshl_b32 s40, s40, 13
    s_add_u32 s40, s40, {Q_OFF}
    v_add_u32 v8, s40, v8
    s_mov_b32 s41, {hex(f2u(SCALE))}
    s_waitcnt vmcnt(4)
    """)
    for p in range(8):
        A(f"v_lshlrev_b32 v{16+2*p}, 16, v{60+p}")
        A(f"v_and_b32 v{17+2*p}, 0xffff0000, v{60+p}")
    for j in range(16):
        A(f"v_mul_f32 v{16+j}, s41, v{16+j}")
    rope(16, 24, 32, 36, 40, 44, 48, 52, ["s_waitcnt vmcnt(2)", "s_waitcnt vmcnt(0)"])
    A(f"""
    v_add_u32 v9, 4096, v8
    global_store_dwordx4 v8, v[52:55], s[28:29] {st}
    global_store_dwordx4 v9, v[56:59], s[28:29] {st}
    s_endpgm
    """)
    A.label("P_V")
    A("""
    v_and_b32 v3, 31, v2
    v_lshrrev_b32 v4, 5, v2
    s_lshl_b32 s37, s32, 11
    s_lshl_b32 s38, s33, 5
    s_add_u32 s37, s37, s38
    v_lshl_add_u32 v5, v4, 2, s37
    v_lshlrev_b32 v6, 9, v5
    v_lshl_add_u32 v6, v3, 2, v6
    s_lshl_b32 s38, s35, 7
    v_add_u32 v6, s38, v6
    v_lshlrev_b32 v7, 1, v5
    v_add_u32 v10, 0x1000, v6
    v_add_u32 v11, 0x2000, v6
    v_add_u32 v12, 0x3000, v6
    s_waitcnt lgkmcnt(0)
    """)
    for g in range(4):
        A(f"global_load_dwordx2 v[{32+2*g}:{33+2*g}], v7, s[14:15] offset:{16*g}")
    for g in range(4):
        A(f"global_load_dwordx2 v[{40+2*g}:{41+2*g}], v7, s[16:17] offset:{16*g}")
    for g in range(4):
        base = [6, 10, 11, 12][g]
        for b in range(4):
            A(f"global_load_dword v{16+4*g+b}, v{base}, s[12:13] offset:{512*b}")
    A("""
    s_lshr_b32 s40, s33, 2
    s_lshl_b32 s41, s32, 4
    s_add_u32 s40, s40, s41
    s_lshl_b32 s40, s40, 2
    s_add_u32 s40, s40, s35
    s_lshl_b32 s40, s40, 14
    s_add_u32 s40, s40, 8192
    s_and_b32 s41, s33, 3
    s_sub_u32 s41, s41, s35
    s_and_b32 s41, s41, 3
    s_lshl_b32 s41, s41, 11
    s_add_u32 s40, s40, s41
    v_lshlrev_b32 v8, 4, v2
    v_add_u32 v8, s40, v8
    s_waitcnt vmcnt(16)
    """)
    for p in range(8):
        A(f"v_lshlrev_b32 v{48+2*p}, 16, v{32+p}")
        A(f"v_and_b32 v{49+2*p}, 0xffff0000, v{32+p}")
        A(f"v_lshlrev_b32 v{64+2*p}, 16, v{40+p}")
        A(f"v_and_b32 v{65+2*p}, 0xffff0000, v{40+p}")
        A(f"v_mul_f32 v{64+2*p}, v{64+2*p}, v{48+2*p}")
        A(f"v_mul_f32 v{65+2*p}, v{65+2*p}, v{49+2*p}")
    for p in range(8):
        if p % 2 == 0: A(f"s_waitcnt vmcnt({12 - 2*p})")
        A(f"v_cvt_f32_i32 v{16+2*p}, v{16+2*p}")
        A(f"v_cvt_f32_i32 v{17+2*p}, v{17+2*p}")
        A(f"v_fma_f32 v{16+2*p}, v{16+2*p}, v{48+2*p}, -v{64+2*p}")
        A(f"v_fma_f32 v{17+2*p}, v{17+2*p}, v{49+2*p}, -v{65+2*p}")
        A(f"v_cvt_pk_bf16_f32 v{80+p}, v{16+2*p}, v{17+2*p}")
    A(f"""
    global_store_dwordx4 v8, v[80:83], s[28:29] {st}
    global_store_dwordx4 v8, v[84:87], s[28:29] offset:1024 {st}
    """)
    A.label("P_end")
    A("s_endpgm")
    return A.text()

V_S   = [16, 48]
V_O   = 80
V_C   = 112
V_PO  = [144, 160]
V_L   = 176
V_M   = 178
V_X   = 180
V_T   = 216
A_Q = 0
A_K = [64, 96]
A_V = [128, 160]
A_P = 192
LDS_P = 0
LDS_L = 65536
LDS_M = 65536 + 2048

def gen_main(opt):
    mode = opt["mode"]
    A = Asm()
    A.raw(head("main_kernel"))
    nwg = 128 if mode == "none" else 256
    A(f"""
    s_cmp_ge_u32 s2, {nwg}
    s_cbranch_scc1 M_end
    s_load_dwordx2 s[4:5], s[0:1], 104
    s_load_dwordx2 s[6:7], s[0:1], 88
    """)
    if opt.get("stamps"): A("s_memtime s[60:61]")
    if opt.get("cpf", 1):
        code_prefetch(A, opt.get("cpf_bytes", 16384), 10, 11)
    A("""
    v_lshrrev_b32 v1, 6, v0
    v_and_b32 v2, 63, v0
    v_readfirstlane_b32 s16, v1
    v_lshlrev_b32 v3, 4, v2
    v_add_u32 v4, 0x1000, v3
    """)
    if mode == "none":
        A("""
        s_and_b32 s17, s2, 7
        s_lshr_b32 s17, s17, 1
        s_lshr_b32 s18, s2, 3
        s_lshl_b32 s18, s18, 1
        s_and_b32 s19, s2, 1
        s_add_u32 s18, s18, s19
        s_mov_b32 s19, 1
        s_mov_b32 s20, 0
        """)
    else:
        nA = opt["nA"]
        A(f"""
        s_and_b32 s17, s2, 7
        s_lshr_b32 s17, s17, 1
        s_lshr_b32 s18, s2, 3
        s_and_b32 s19, s2, 1
        s_mul_i32 s20, s19, {nA}
        """)
    A(f"""
    s_lshl_b32 s21, s17, 4
    s_add_u32 s21, s21, s20
    s_lshl_b32 s21, s21, 2
    s_add_u32 s21, s21, s16
    s_lshl_b32 s21, s21, 14
    s_lshl_b32 s22, s17, 6
    s_lshl_b32 s23, s18, 1
    s_add_u32 s22, s22, s23
    s_lshl_b32 s22, s22, 13
    s_add_u32 s22, s22, {Q_OFF}
    s_add_u32 s23, s22, 8192
    s_lshl_b32 s24, s17, 5
    s_add_u32 s24, s24, s18
    s_waitcnt lgkmcnt(0)
    s_mov_b32 s8, s4
    s_and_b32 s9, s5, 0xffff
    s_mov_b32 s10, 0x10000000
    s_mov_b32 s11, 0x20000
    s_mov_b32 s12, s6
    s_and_b32 s13, s7, 0xffff
    s_mov_b32 s14, 0x200000
    s_mov_b32 s15, 0x20000
    """)
    if opt.get("cpf", 1):
        A.vm += ["cpf"] * ((opt.get("cpf_bytes", 16384) + 8191) // 8192)
    A("s_lshl_b32 s25, s16, 12")
    A("v_add_u32 v5, s25, v3")
    for i in (1, 2, 3):
        A(f"s_add_u32 s25, s16, {i}")
        A("s_and_b32 s25, s25, 3")
        A("s_lshl_b32 s25, s25, 12")
        A(f"v_add_u32 v{5+i}, s25, v3")
    def ldQ(qt, s):
        A.vmem(f"buffer_load_dwordx4 a[{A_Q+(qt*8+s)*4}:{A_Q+(qt*8+s)*4+3}], v{3 + s//4}, s[8:11], s{22+qt} offen offset:{(s%4)*1024}", ("Q", qt, s))
    for i in range(32): A(f"v_mov_b32 v{V_C+i}, 0")
    A(f"v_mov_b32 v{V_M}, 0"); A(f"v_mov_b32 v{V_M+1}, 0")
    A("s_mov_b32 s26, 0")

    def body(n, pre, first):
        def ldK(r, s):
            b = A_K[r % 2] + 4*s
            A.vmem(f"buffer_load_dwordx4 a[{b}:{b+3}], v{3 + s//4}, s[8:11], s30 offen offset:{(s%4)*1024}", ("K", r, s))
            if s == 7: A("s_add_u32 s30, s30, 0x10000")
        def ldV(r, kk):
            b = A_V[r % 2] + 4*kk
            A.vmem(f"buffer_load_dwordx4 a[{b}:{b+3}], v{3 + kk//4}, s[8:11], s31 offen offset:{(kk%4)*1024}", ("V", r, kk))
            if kk == 7: A("s_add_u32 s31, s31, 0x10000")
        A("s_mov_b32 s30, s21")
        A("s_add_u32 s31, s21, 8192")
        for s in range(8):
            ldK(0, s)
            if first: ldQ(0, s)
        if first:
            for s in range(8): ldQ(1, s)
        for s in range(8): ldK(1, s)
        for s in range(8): ldV(0, s)
        for s in range(8): ldV(1, s)
        A(f"v_mov_b32 v{V_L}, 0"); A(f"v_mov_b32 v{V_L+1}, 0")
        a = [0] + [32*r - 16 for r in range(1, n)]
        b = [32*r + 32 for r in range(n-1)] + [32*(n-2) + 48]
        nslots = 32*n
        fill = [[] for _ in range(nslots + 8)]
        mf = [None]*nslots
        for r in range(n):
            for qt in range(2):
                for s in range(8):
                    mf[a[r] + qt*8 + s] = ("QK", r, qt, s)
            for kk in range(8):
                for qt in range(2):
                    mf[b[r] + kk*2 + qt] = ("PV", r, qt, kk)
        assert all(m is not None for m in mf)
        prev_end = 0
        for r in range(n):
            w0 = max(a[r] + 10, prev_end); w1 = b[r] - 4
            prev_end = w1
            S = V_S[r % 2]; PO = V_PO[r % 2]
            def cv(e):
                return ("cvt", f"v_cvt_pk_bf16_f32 v{PO + e//2}, v{S+e}, v{S+e+1}")
            def wr(f):
                return ("dsw", f"ds_write_b128 v5, v[{PO+4*f}:{PO+4*f+3}] offset:{LDS_P + (r%4)*16384 + f*1024}", ("PW", r))
            for e in range(32):
                sl = w0 + e*(w1 - w0)//32
                if e == 16: assert sl >= a[r] + 18, (r, sl)
                fill[sl].append(("v", f"v_exp_f32 v{S+e}, v{S+e}"))
                if e >= 1: fill[sl].append(("v", f"v_add_f32 v{V_L + (e-1)//16}, v{V_L + (e-1)//16}, v{S+e-1}"))
                if e >= 2 and e % 2 == 0:
                    fill[sl].append(cv(e-2))
                    if e % 8 == 0: fill[sl].append(wr(e//8 - 1))
            fill[w1].append(("v", f"v_add_f32 v{V_L+1}, v{V_L+1}, v{S+31}"))
            fill[w1].append(cv(30)); fill[w1].append(wr(3))
            if r == n-1:
                fill[w1].append(("lwr",))
            fill[b[r] - 2].insert(0, ("bar", r))
            idx = 0
            for kk in range(2, 8):
                for qt in range(2):
                    src = kk // 2; t = kk % 2
                    reg = A_P + idx*4
                    fill[b[r] - 2 + idx].append(("dsr", f"ds_read_b128 a[{reg}:{reg+3}], v{5+src} offset:{LDS_P + (r%4)*16384 + (qt*2+t)*1024}", ("PR", r, kk, qt)))
                    idx += 1
            if r + 2 < n:
                for s in range(8): fill[a[r] + 9 + s].append(("ldK", r+2, s))
                for kk in range(8): fill[b[r] + 2*kk + 2].append(("ldV", r+2, kk))
        for sl in range(nslots):
            A.nowait = bool(opt.get("nowait")) and sl > 40
            m = mf[sl]
            if m[0] == "QK":
                _, r, qt, s = m
                A.need(vtags=[("K", r, s), ("Q", qt, s)])
                d = V_S[r % 2] + qt*16
                c = f"v[{V_C+qt*16}:{V_C+qt*16+15}]" if s == 0 else f"v[{d}:{d+15}]"
                k = A_K[r % 2] + 4*s; q = A_Q + (qt*8+s)*4
                A(f"v_mfma_f32_32x32x16_bf16 v[{d}:{d+15}], a[{k}:{k+3}], a[{q}:{q+3}], {c}")
            else:
                _, r, qt, kk = m
                A.need(vtags=[("V", r, kk)], ltags=[("PR", r, kk, qt)])
                d = V_O + qt*16
                c = "0" if (r == 0 and kk == 0) else f"v[{d}:{d+15}]"
                v = A_V[r % 2] + 4*kk
                if kk < 2:
                    p = V_PO[r % 2] + (qt*2 + kk)*4; ps = f"v[{p}:{p+3}]"
                else:
                    p = A_P + ((kk-2)*2 + qt)*4; ps = f"a[{p}:{p+3}]"
                A(f"v_mfma_f32_32x32x16_bf16 v[{d}:{d+15}], a[{v}:{v+3}], {ps}, {c}")
            for f in fill[sl]:
                if f[0] in ("v", "cvt"):
                    if not opt.get("nosm"): A(f[1])
                elif f[0] == "dsw":
                    if not opt.get("nods") and not opt.get("nodsw"): A.ds(f[1], f[2])
                elif f[0] == "dsr":
                    if not opt.get("nods") and not opt.get("nodsr"): A.ds(f[1], f[2])
                elif f[0] == "ldK":
                    if not opt.get("noload"): ldK(f[1], f[2])
                elif f[0] == "ldV":
                    if not opt.get("noload") and not opt.get("noV"): ldV(f[1], f[2])
                elif f[0] == "bar":
                    A.need(ltags=[("PW", f[1]), "LW"])
                    if not opt.get("nobar"): A("s_barrier")
                    if f[1] == n-1:
                        for qt in range(2):
                            for hf in range(2):
                                A.ds(f"ds_read_b128 v[{V_T+qt*8+hf*4}:{V_T+qt*8+hf*4+3}], v13 offset:{qt*1024 + hf*16}", "LR")
                elif f[0] == "lwr":
                    A.ds(f"ds_write_b32 v12, v{V_L}", "LW")
                    A.ds(f"ds_write_b32 v12, v{V_L+1} offset:1024", "LW")
                elif f[0] == "hook": f[1]()
            if sl in pre: pre[sl]()
        A.nowait = False
        for sl in range(nslots, nslots+8): assert not fill[sl]
        A.need(ltags=["LR"])
        for qt in range(2):
            t = V_T + qt*8
            A(f"v_add_f32 v{t}, v{t}, v{t+1}"); A(f"v_add_f32 v{t+2}, v{t+2}, v{t+3}")
            A(f"v_add_f32 v{t+4}, v{t+4}, v{t+5}"); A(f"v_add_f32 v{t+6}, v{t+6}, v{t+7}")
            A(f"v_add_f32 v{t}, v{t}, v{t+2}"); A(f"v_add_f32 v{t+4}, v{t+4}, v{t+6}")
            A(f"v_add_f32 v{V_L+qt}, v{t}, v{t+4}")

    A(f"""
    v_and_b32 v13, 31, v2
    v_lshlrev_b32 v13, 5, v13
    v_add_u32 v13, {LDS_L}, v13
    v_lshrrev_b32 v12, 5, v2
    v_lshl_add_u32 v12, v12, 2, v13
    s_lshl_b32 s25, s16, 3
    v_add_u32 v12, s25, v12
    """)
    def finish():
        A(f"""
        v_rcp_f32 v{V_T}, v{V_L}
        v_rcp_f32 v{V_T+1}, v{V_L+1}
        v_and_b32 v14, 31, v2
        v_lshlrev_b32 v14, 8, v14
        v_lshrrev_b32 v15, 5, v2
        v_lshl_add_u32 v14, v15, 4, v14
        s_lshl_b32 s25, s17, 11
        s_lshl_b32 s27, s18, 6
        s_add_u32 s25, s25, s27
        s_lshl_b32 s25, s25, 8
        s_lshl_b32 s27, s16, 6
        s_add_u32 s25, s25, s27
        s_add_u32 s27, s25, 8192
        """)
        for qt in range(2):
            o = V_O + qt*16
            for i in range(16): A(f"v_mul_f32 v{o+i}, v{o+i}, v{V_T+qt}")
            pk = V_T + 4 + qt*8
            for i in range(8): A(f"v_cvt_pk_bf16_f32 v{pk+i}, v{o+2*i}, v{o+2*i+1}")
            A("s_nop 1")
            for pr in range(2):
                A(f"v_permlane32_swap_b32 v{pk+4*pr}, v{pk+4*pr+2}")
                A(f"v_permlane32_swap_b32 v{pk+4*pr+1}, v{pk+4*pr+3}")
            for pr in range(2):
                A(f"buffer_store_dwordx4 v[{pk+4*pr}:{pk+4*pr+3}], v14, s[12:15], s{25 if qt == 0 else 27} offen offset:{32*pr}")
    def stamp(i):
        if opt.get("stamps"): A(f"s_memtime s[{60+2*i}:{61+2*i}]")
    def dump_stamps(n):
        if not opt.get("stamps"): return
        A("s_waitcnt lgkmcnt(0)")
        A(f"s_lshl_b32 s50, s2, 2\n s_add_u32 s50, s50, s16\n s_lshl_b32 s50, s50, 6\n s_add_u32 s50, s50, {ST_OFF}")
        A("v_mov_b32 v1, 0\n s_mov_b64 exec, 1")
        for i in range(n):
            A(f"v_mov_b32 v10, s{60+2*i}\n v_mov_b32 v11, s{61+2*i}\n buffer_store_dwordx2 v[10:11], v1, s[8:11], s50 offen offset:{8*i}\n s_nop 1")
    if mode == "none":
        stamp(1)
        body(16, {0: lambda: stamp(2), 511: lambda: stamp(3)}, True)
        A("s_nop 7")
        finish()
        stamp(4)
        A("s_waitcnt vmcnt(0)")
        stamp(5)
        dump_stamps(6)
    A.label("M_end")
    A("s_endpgm")
    return A.text()

def gen(opt):
    nwg = 128 if opt["mode"] == "none" else 256
    o = []
    o.append("; @launch kernel=prep_kernel grid=(256,1,1) block=(768,1,1) lds=0\n")
    o.append(f"; @launch kernel=main_kernel grid=({nwg},1,1) block=(256,1,1) lds=70000\n")
    o.append(TARGET)
    o.append(gen_prep(opt))
    o.append(gen_main(opt))
    o.append(".fill 2048, 4, 0xBF800000\n")
    o.append(kd("prep_kernel", 88, sgpr=64))
    o.append(kd("main_kernel", 512, sgpr=96, accum=256))
    return "".join(o)

if __name__ == "__main__":
    opt = {"mode": "none"}
    out = sys.argv[1]
    for a in sys.argv[2:]:
        k, v = a.split("=")
        try: v = int(v)
        except: pass
        opt[k] = v
    import hazcheck
    t, n = hazcheck.fix(gen(opt))
    print("nops inserted:", n)
    open(out, "w").write(t)
```

```python
import sys, math, struct
from asmlib import *

def f2u(x): return struct.unpack("<I", struct.pack("<f", x))[0]

KV_OFF = 0
Q_OFF  = 4 << 20
X_OFF  = 6 << 20
F_OFF  = 15 << 20
ST_OFF = 16 << 20
RT_OFF = 17 << 20
SCALE = math.log2(math.e) / math.sqrt(128.0)

class Asm:
    def __init__(self):
        self.o = []
        self.vm = []
        self.lg = []
    def __call__(self, s):
        for l in s.strip("\n").split("\n"):
            self.o.append("  " + l.strip() + "\n")
    def label(self, l): self.o.append(l + ":\n")
    def raw(self, s): self.o.append(s)
    def vmem(self, s, tag=None):
        self(s); self.vm.append(tag)
        assert len(self.vm) <= 63, "vmcnt overflow"
    def ds(self, s, tag=None):
        self(s); self.lg.append(tag)
        assert len(self.lg) <= 15, "lgkmcnt overflow"
    nowait = False
    def need(self, vtags=(), ltags=(), force=False):
        parts = []
        iv = max([i for i, t in enumerate(self.vm) if t in vtags], default=-1)
        if iv >= 0:
            n = len(self.vm) - 1 - iv
            parts.append(f"vmcnt({n})"); self.vm = self.vm[iv+1:]
        il = max([i for i, t in enumerate(self.lg) if t in ltags], default=-1)
        if il >= 0:
            n = len(self.lg) - 1 - il
            parts.append(f"lgkmcnt({n})"); self.lg = self.lg[il+1:]
        if parts and not (self.nowait and not force): self("s_waitcnt " + " ".join(parts))
    def drain(self, vm=True, lg=True):
        p = []
        if vm: p.append("vmcnt(0)"); self.vm = []
        if lg: p.append("lgkmcnt(0)"); self.lg = []
        self("s_waitcnt " + " ".join(p))
    def text(self): return "".join(self.o)

def code_prefetch(A, nbytes, vreg, dst, spair="s[40:41]"):
    A(f"s_getpc_b64 {spair}")
    A(f"v_and_b32 v{vreg}, 63, v0")
    A(f"v_lshlrev_b32 v{vreg}, 7, v{vreg}")
    n = (nbytes + 8191) // 8192
    for i in range(n):
        A(f"global_load_dword v{dst}, v{vreg}, {spair}")
        if i + 1 < n: A(f"v_add_u32 v{vreg}, 0x2000, v{vreg}")

def gen_prep(opt):
    A = Asm()
    A.raw(head("prep_kernel"))
    A("""
    s_cmp_ge_u32 s2, 256
    s_cbranch_scc1 P_exit
    RTSTART
    s_load_dwordx16 s[4:19], s[0:1], 0
    s_load_dwordx8 s[20:27], s[0:1], 64
    s_load_dwordx2 s[28:29], s[0:1], 104
    v_lshrrev_b32 v1, 6, v0
    v_and_b32 v2, 63, v0
    v_readfirstlane_b32 s30, v1
    s_lshr_b32 s31, s2, 3
    s_and_b32 s32, s31, 3
    s_lshr_b32 s33, s31, 2
    s_lshl_b32 s33, s33, 3
    s_and_b32 s34, s2, 7
    s_add_u32 s33, s33, s34
    s_and_b32 s35, s30, 3
    s_lshr_b32 s36, s30, 2
    """)
    A("""
    s_cmp_eq_u32 s36, 2
    s_cbranch_scc1 P_V
    s_lshl_b32 s37, s33, 5
    s_lshl_b32 s38, s35, 3
    s_add_u32 s37, s37, s38
    v_lshrrev_b32 v3, 3, v2
    v_and_b32 v4, 7, v2
    v_add_u32 v5, s37, v3
    s_lshl_b32 s39, s32, 11
    v_add_u32 v6, s39, v5
    v_lshlrev_b32 v7, 8, v5
    v_lshl_add_u32 v7, v4, 4, v7
    v_lshrrev_b32 v8, 1, v4
    v_lshlrev_b32 v8, 10, v8
    v_and_b32 v9, 1, v4
    v_lshlrev_b32 v9, 9, v9
    v_add_u32 v8, v8, v9
    v_add_u32 v9, s38, v3
    v_lshl_add_u32 v8, v9, 4, v8
    s_cmp_eq_u32 s36, 1
    s_cbranch_scc1 P_Q
    """)
    A("""
    v_lshlrev_b32 v10, 9, v6
    v_lshl_add_u32 v10, v4, 5, v10
    v_lshlrev_b32 v11, 1, v6
    s_waitcnt lgkmcnt(0)
    RT1
    global_load_ushort v12, v11, s[8:9]
    global_load_ushort v13, v11, s[10:11]
    global_load_dwordx4 v[16:19], v10, s[6:7]
    global_load_dwordx4 v[20:23], v10, s[6:7] offset:16
    global_load_dwordx4 v[24:27], v10, s[6:7] offset:256
    global_load_dwordx4 v[28:31], v10, s[6:7] offset:272
    global_load_dwordx4 v[32:35], v7, s[22:23]
    global_load_dwordx4 v[36:39], v7, s[24:25]
    global_load_dwordx4 v[40:43], v7, s[22:23] offset:128
    global_load_dwordx4 v[44:47], v7, s[24:25] offset:128
    ; dest: KV_OFF + ((h*16 + T/4)*4 + T%4)*16384 = (h*64+T)*16384
    s_lshl_b32 s40, s32, 6
    s_add_u32 s40, s40, s33
    s_lshl_b32 s40, s40, 14
    v_add_u32 v8, s40, v8
    s_waitcnt vmcnt(8)
    RT2
    v_lshlrev_b32 v12, 16, v12
    v_lshlrev_b32 v13, 16, v13
    v_mul_f32 v13, v13, v12
    s_waitcnt vmcnt(4)
    """)
    for j in range(16):
        A(f"v_cvt_f32_i32 v{16+j}, v{16+j}")
    for j in range(16):
        A(f"v_fma_f32 v{16+j}, v{16+j}, v12, -v13")
    def rope(x1, x2, c1, s1, c2, s2, t, o, waits):
        A(waits[0])
        for p in range(4):
            A(f"v_lshlrev_b32 v{t}, 16, v{c1+p}")
            A(f"v_and_b32 v{t+1}, 0xffff0000, v{c1+p}")
            A(f"v_lshlrev_b32 v{t+2}, 16, v{s1+p}")
            A(f"v_and_b32 v{t+3}, 0xffff0000, v{s1+p}")
            A(f"v_mul_f32 v{t}, v{x1+2*p}, v{t}")
            A(f"v_mul_f32 v{t+1}, v{x1+2*p+1}, v{t+1}")
            A(f"v_fma_f32 v{t}, -v{x2+2*p}, v{t+2}, v{t}")
            A(f"v_fma_f32 v{t+1}, -v{x2+2*p+1}, v{t+3}, v{t+1}")
            A(f"v_cvt_pk_bf16_f32 v{o+p}, v{t}, v{t+1}")
        A(waits[1])
        for p in range(4):
            A(f"v_lshlrev_b32 v{t}, 16, v{c2+p}")
            A(f"v_and_b32 v{t+1}, 0xffff0000, v{c2+p}")
            A(f"v_lshlrev_b32 v{t+2}, 16, v{s2+p}")
            A(f"v_and_b32 v{t+3}, 0xffff0000, v{s2+p}")
            A(f"v_mul_f32 v{t}, v{x2+2*p}, v{t}")
            A(f"v_mul_f32 v{t+1}, v{x2+2*p+1}, v{t+1}")
            A(f"v_fmac_f32 v{t}, v{x1+2*p}, v{t+2}")
            A(f"v_fmac_f32 v{t+1}, v{x1+2*p+1}, v{t+3}")
            A(f"v_cvt_pk_bf16_f32 v{o+4+p}, v{t}, v{t+1}")
    st = opt.get("prep_st", "")
    rope(16, 24, 32, 36, 40, 44, 48, 52, ["s_waitcnt vmcnt(2)", "s_waitcnt vmcnt(0)"])
    A(f"""
    v_add_u32 v9, 4096, v8
    RT3
    global_store_dwordx4 v8, v[52:55], s[28:29] {st}
    global_store_dwordx4 v9, v[56:59], s[28:29] {st}
    """)
    A(f"""
    s_cmp_lg_u32 s35, 0
    s_cbranch_scc1 P_end
    s_cmp_ge_u32 s2, 128
    s_cbranch_scc1 P_end
    s_lshl_b32 s41, s2, 9
    s_add_u32 s41, s41, {F_OFF}
    v_lshlrev_b32 v3, 7, v2
    v_add_u32 v3, s41, v3
    v_mov_b32 v4, 0
    v_cmp_gt_u32 vcc, 4, v2
    s_and_saveexec_b64 s[42:43], vcc
    global_store_dword v3, v4, s[28:29]
    s_branch P_end
    """)
    A.label("P_Q")
    A(f"""
    v_lshlrev_b32 v10, 8, v6
    v_lshl_add_u32 v10, v4, 4, v10
    s_waitcnt lgkmcnt(0)
    RT1
    global_load_dwordx4 v[60:63], v10, s[4:5]
    global_load_dwordx4 v[64:67], v10, s[4:5] offset:128
    global_load_dwordx4 v[32:35], v7, s[18:19]
    global_load_dwordx4 v[36:39], v7, s[20:21]
    global_load_dwordx4 v[40:43], v7, s[18:19] offset:128
    global_load_dwordx4 v[44:47], v7, s[20:21] offset:128
    s_lshl_b32 s40, s32, 6
    s_add_u32 s40, s40, s33
    s_lshl_b32 s40, s40, 13
    s_add_u32 s40, s40, {Q_OFF}
    v_add_u32 v8, s40, v8
    s_mov_b32 s41, {hex(f2u(SCALE))}
    s_waitcnt vmcnt(4)
    RT2
    """)
    for p in range(8):
        A(f"v_lshlrev_b32 v{16+2*p}, 16, v{60+p}")
        A(f"v_and_b32 v{17+2*p}, 0xffff0000, v{60+p}")
    for j in range(16):
        A(f"v_mul_f32 v{16+j}, s41, v{16+j}")
    rope(16, 24, 32, 36, 40, 44, 48, 52, ["s_waitcnt vmcnt(2)", "s_waitcnt vmcnt(0)"])
    A(f"""
    v_add_u32 v9, 4096, v8
    RT3
    global_store_dwordx4 v8, v[52:55], s[28:29] {st}
    global_store_dwordx4 v9, v[56:59], s[28:29] {st}
    s_branch P_end
    """)
    A.label("P_V")
    A("""
    v_and_b32 v3, 31, v2
    v_lshrrev_b32 v4, 5, v2
    s_lshl_b32 s37, s32, 11
    s_lshl_b32 s38, s33, 5
    s_add_u32 s37, s37, s38
    v_lshl_add_u32 v5, v4, 2, s37
    v_lshlrev_b32 v6, 9, v5
    v_lshl_add_u32 v6, v3, 2, v6
    s_lshl_b32 s38, s35, 7
    v_add_u32 v6, s38, v6
    v_lshlrev_b32 v7, 1, v5
    v_add_u32 v10, 0x1000, v6
    v_add_u32 v11, 0x2000, v6
    v_add_u32 v12, 0x3000, v6
    s_waitcnt lgkmcnt(0)
    RT1
    """)
    for g in range(4):
        A(f"global_load_dwordx2 v[{32+2*g}:{33+2*g}], v7, s[14:15] offset:{16*g}")
    for g in range(4):
        A(f"global_load_dwordx2 v[{40+2*g}:{41+2*g}], v7, s[16:17] offset:{16*g}")
    for g in range(4):
        base = [6, 10, 11, 12][g]
        for b in range(4):
            A(f"global_load_dword v{16+4*g+b}, v{base}, s[12:13] offset:{512*b}")
    A("""
    s_lshr_b32 s40, s33, 2
    s_lshl_b32 s41, s32, 4
    s_add_u32 s40, s40, s41
    s_lshl_b32 s40, s40, 2
    s_add_u32 s40, s40, s35
    s_lshl_b32 s40, s40, 14
    s_add_u32 s40, s40, 8192
    s_and_b32 s41, s33, 3
    s_sub_u32 s41, s41, s35
    s_and_b32 s41, s41, 3
    s_lshl_b32 s41, s41, 11
    s_add_u32 s40, s40, s41
    v_lshlrev_b32 v8, 4, v2
    v_add_u32 v8, s40, v8
    s_waitcnt vmcnt(16)
    RT2
    """)
    for p in range(8):
        A(f"v_lshlrev_b32 v{48+2*p}, 16, v{32+p}")
        A(f"v_and_b32 v{49+2*p}, 0xffff0000, v{32+p}")
        A(f"v_lshlrev_b32 v{64+2*p}, 16, v{40+p}")
        A(f"v_and_b32 v{65+2*p}, 0xffff0000, v{40+p}")
        A(f"v_mul_f32 v{64+2*p}, v{64+2*p}, v{48+2*p}")
        A(f"v_mul_f32 v{65+2*p}, v{65+2*p}, v{49+2*p}")
    for p in range(8):
        if p % 2 == 0: A(f"s_waitcnt vmcnt({12 - 2*p})")
        A(f"v_cvt_f32_i32 v{16+2*p}, v{16+2*p}")
        A(f"v_cvt_f32_i32 v{17+2*p}, v{17+2*p}")
        A(f"v_fma_f32 v{16+2*p}, v{16+2*p}, v{48+2*p}, -v{64+2*p}")
        A(f"v_fma_f32 v{17+2*p}, v{17+2*p}, v{49+2*p}, -v{65+2*p}")
        A(f"v_cvt_pk_bf16_f32 v{80+p}, v{16+2*p}, v{17+2*p}")
    A(f"""
    RT3
    global_store_dwordx4 v8, v[80:83], s[28:29] {st}
    global_store_dwordx4 v8, v[84:87], s[28:29] offset:1024 {st}
    """)
    A.label("P_end")
    if opt.get("stamps"):
        A(f"""
        s_waitcnt vmcnt(0)
        s_memrealtime s[46:47]
        s_mul_i32 s48, s2, 12
        s_add_u32 s48, s48, s30
        s_lshl_b32 s48, s48, 4
        s_add_u32 s48, s48, {RT_OFF}
        s_waitcnt lgkmcnt(0)
        s_mov_b64 exec, 1
        v_mov_b32 v1, s48
        v_mov_b32 v4, s44
        v_mov_b32 v5, s45
        v_mov_b32 v6, s46
        v_mov_b32 v7, s47
        global_store_dwordx4 v1, v[4:7], s[28:29]
        v_add_u32 v1, 0x20000, v1
        v_mov_b32 v8, s50
        v_mov_b32 v9, s51
        v_mov_b32 v10, s52
        v_mov_b32 v11, s53
        global_store_dwordx4 v1, v[8:11], s[28:29]
        v_add_u32 v1, 0x10000, v1
        v_mov_b32 v12, s54
        v_mov_b32 v13, s55
        v_mov_b32 v14, s46
        v_mov_b32 v15, s47
        global_store_dwordx4 v1, v[12:15], s[28:29]
        """)
    A.label("P_exit")
    A("s_endpgm")
    return A.text().replace("RTSTART", "s_memrealtime s[44:45]" if opt.get("stamps") else "").replace("RT1", "s_memrealtime s[50:51]" if opt.get("stamps") else "").replace("RT2", "s_memrealtime s[52:53]" if opt.get("stamps") else "").replace("RT3", "s_memrealtime s[54:55]" if opt.get("stamps") else "")

V_S   = [16, 48]
V_O   = 80
V_C   = 112
V_PO  = [144, 160]
V_L   = 176
V_M   = 178
V_X   = 180
V_T   = 216
A_Q = 0
A_K = [64, 96]
A_V = [128, 160]
A_P = 192
LDS_P = 0
LDS_L = 65536
LDS_M = 65536 + 2048

def gen_main(opt):
    mode = opt["mode"]
    A = Asm()
    A.raw(head("main_kernel"))
    nwg = 128 if mode == "none" else 256
    A(f"""
    s_cmp_ge_u32 s2, {nwg}
    s_cbranch_scc1 M_end
    s_load_dwordx2 s[4:5], s[0:1], 104
    s_load_dwordx2 s[6:7], s[0:1], 88
    """)
    if opt.get("stamps"): A("s_memtime s[60:61]\n s_memrealtime s[80:81]")
    if opt.get("cpf", 1):
        code_prefetch(A, opt.get("cpf_bytes", 16384), 10, 11)
    A("""
    v_lshrrev_b32 v1, 6, v0
    v_and_b32 v2, 63, v0
    v_readfirstlane_b32 s16, v1
    v_lshlrev_b32 v3, 4, v2
    v_add_u32 v4, 0x1000, v3
    """)
    if mode == "none":
        A("""
        s_and_b32 s17, s2, 7
        s_lshr_b32 s17, s17, 1
        s_lshr_b32 s18, s2, 3
        s_lshl_b32 s18, s18, 1
        s_and_b32 s19, s2, 1
        s_add_u32 s18, s18, s19
        s_mov_b32 s19, 1
        s_mov_b32 s20, 0
        """)
    else:
        nA = opt["nA"]
        A(f"""
        s_and_b32 s17, s2, 7
        s_lshr_b32 s17, s17, 1
        s_lshr_b32 s18, s2, 3
        s_and_b32 s19, s2, 1
        s_mul_i32 s20, s19, {nA}
        """)
    A(f"""
    s_lshl_b32 s21, s17, 4
    s_add_u32 s21, s21, s20
    s_lshl_b32 s21, s21, 2
    s_add_u32 s21, s21, s16
    s_lshl_b32 s21, s21, 14
    s_lshl_b32 s22, s17, 6
    s_lshl_b32 s23, s18, 1
    s_add_u32 s22, s22, s23
    s_lshl_b32 s22, s22, 13
    s_add_u32 s22, s22, {Q_OFF}
    s_add_u32 s23, s22, 8192
    s_lshl_b32 s24, s17, 5
    s_add_u32 s24, s24, s18
    s_waitcnt lgkmcnt(0)
    s_mov_b32 s8, s4
    s_and_b32 s9, s5, 0xffff
    s_mov_b32 s10, 0x10000000
    s_mov_b32 s11, 0x20000
    s_mov_b32 s12, s6
    s_and_b32 s13, s7, 0xffff
    s_mov_b32 s14, 0x200000
    s_mov_b32 s15, 0x20000
    """)
    if opt.get("cpf", 1):
        A.vm += ["cpf"] * ((opt.get("cpf_bytes", 16384) + 8191) // 8192)
    A("s_lshl_b32 s25, s16, 12")
    A("v_add_u32 v5, s25, v3")
    for i in (1, 2, 3):
        A(f"s_add_u32 s25, s16, {i}")
        A("s_and_b32 s25, s25, 3")
        A("s_lshl_b32 s25, s25, 12")
        A(f"v_add_u32 v{5+i}, s25, v3")
    def ldQ(qt, s):
        A.vmem(f"buffer_load_dwordx4 a[{A_Q+(qt*8+s)*4}:{A_Q+(qt*8+s)*4+3}], v{3 + s//4}, s[8:11], s{22+qt} offen offset:{(s%4)*1024}", ("Q", qt, s))
    for i in range(32): A(f"v_mov_b32 v{V_C+i}, 0")
    A(f"v_mov_b32 v{V_M}, 0"); A(f"v_mov_b32 v{V_M+1}, 0")
    A("s_mov_b32 s26, 0")

    def body(n, pre, first):
        def ldK(r, s):
            b = A_K[r % 2] + 4*s
            A.vmem(f"buffer_load_dwordx4 a[{b}:{b+3}], v{3 + s//4}, s[8:11], s30 offen offset:{(s%4)*1024}", ("K", r, s))
            if s == 7: A("s_add_u32 s30, s30, 0x10000")
        def ldV(r, kk):
            b = A_V[r % 2] + 4*kk
            A.vmem(f"buffer_load_dwordx4 a[{b}:{b+3}], v{3 + kk//4}, s[8:11], s31 offen offset:{(kk%4)*1024}", ("V", r, kk))
            if kk == 7: A("s_add_u32 s31, s31, 0x10000")
        A("s_mov_b32 s30, s21")
        A("s_add_u32 s31, s21, 8192")
        for s in range(8):
            ldK(0, s)
            if first: ldQ(0, s)
        if first:
            for s in range(8): ldQ(1, s)
        for s in range(8): ldK(1, s)
        for s in range(8): ldV(0, s)
        for s in range(8): ldV(1, s)
        A(f"v_mov_b32 v{V_L}, 0"); A(f"v_mov_b32 v{V_L+1}, 0")
        a = [0] + [32*r - 16 for r in range(1, n)]
        b = [32*r + 32 for r in range(n-1)] + [32*(n-2) + 48]
        nslots = 32*n
        fill = [[] for _ in range(nslots + 8)]
        mf = [None]*nslots
        for r in range(n):
            for qt in range(2):
                for s in range(8):
                    mf[a[r] + qt*8 + s] = ("QK", r, qt, s)
            for kk in range(8):
                for qt in range(2):
                    mf[b[r] + kk*2 + qt] = ("PV", r, qt, kk)
        assert all(m is not None for m in mf)
        prev_end = 0
        for r in range(n):
            w0 = max(a[r] + 10, prev_end); w1 = b[r] - 4
            prev_end = w1
            S = V_S[r % 2]; PO = V_PO[r % 2]
            def cv(e):
                return ("cvt", f"v_cvt_pk_bf16_f32 v{PO + e//2}, v{S+e}, v{S+e+1}")
            def wr(f):
                return ("dsw", f"ds_write_b128 v5, v[{PO+4*f}:{PO+4*f+3}] offset:{LDS_P + (r%4)*16384 + f*1024}", ("PW", r))
            for e in range(32):
                sl = w0 + e*(w1 - w0)//32
                if e == 16: assert sl >= a[r] + 18, (r, sl)
                fill[sl].append(("v", f"v_exp_f32 v{S+e}, v{S+e}"))
                if e >= 1: fill[sl].append(("v", f"v_add_f32 v{V_L + (e-1)//16}, v{V_L + (e-1)//16}, v{S+e-1}"))
                if e >= 2 and e % 2 == 0:
                    fill[sl].append(cv(e-2))
                    if e % 8 == 0: fill[sl].append(wr(e//8 - 1))
            fill[w1].append(("v", f"v_add_f32 v{V_L+1}, v{V_L+1}, v{S+31}"))
            fill[w1].append(cv(30)); fill[w1].append(wr(3))
            if r == n-1:
                fill[w1].append(("lwr",))
            fill[b[r] - 2].insert(0, ("bar", r))
            idx = 0
            for kk in range(2, 8):
                for qt in range(2):
                    src = kk // 2; t = kk % 2
                    reg = A_P + idx*4
                    fill[b[r] - 2 + idx].append(("dsr", f"ds_read_b128 a[{reg}:{reg+3}], v{5+src} offset:{LDS_P + (r%4)*16384 + (qt*2+t)*1024}", ("PR", r, kk, qt)))
                    idx += 1
            if r + 2 < n:
                for s in range(8): fill[a[r] + 9 + s].append(("ldK", r+2, s))
                for kk in range(8): fill[b[r] + 2*kk + 2].append(("ldV", r+2, kk))
        for sl in range(nslots):
            A.nowait = bool(opt.get("nowait")) and sl > 40
            m = mf[sl]
            if m[0] == "QK":
                _, r, qt, s = m
                A.need(vtags=[("K", r, s), ("Q", qt, s)])
                d = V_S[r % 2] + qt*16
                c = f"v[{V_C+qt*16}:{V_C+qt*16+15}]" if s == 0 else f"v[{d}:{d+15}]"
                k = A_K[r % 2] + 4*s; q = A_Q + (qt*8+s)*4
                A(f"v_mfma_f32_32x32x16_bf16 v[{d}:{d+15}], a[{k}:{k+3}], a[{q}:{q+3}], {c}")
            else:
                _, r, qt, kk = m
                A.need(vtags=[("V", r, kk)], ltags=[("PR", r, kk, qt)])
                d = V_O + qt*16
                c = "0" if (r == 0 and kk == 0) else f"v[{d}:{d+15}]"
                v = A_V[r % 2] + 4*kk
                if kk < 2:
                    p = V_PO[r % 2] + (qt*2 + kk)*4; ps = f"v[{p}:{p+3}]"
                else:
                    p = A_P + ((kk-2)*2 + qt)*4; ps = f"a[{p}:{p+3}]"
                A(f"v_mfma_f32_32x32x16_bf16 v[{d}:{d+15}], a[{v}:{v+3}], {ps}, {c}")
            for f in fill[sl]:
                if f[0] in ("v", "cvt"):
                    if not opt.get("nosm"): A(f[1])
                elif f[0] == "dsw":
                    if not opt.get("nods") and not opt.get("nodsw"): A.ds(f[1], f[2])
                elif f[0] == "dsr":
                    if not opt.get("nods") and not opt.get("nodsr"): A.ds(f[1], f[2])
                elif f[0] == "ldK":
                    if not opt.get("noload"): ldK(f[1], f[2])
                elif f[0] == "ldV":
                    if not opt.get("noload") and not opt.get("noV"): ldV(f[1], f[2])
                elif f[0] == "bar":
                    A.need(ltags=[("PW", f[1]), "LW"])
                    if not opt.get("nobar"): A("s_barrier")
                    if f[1] == n-1:
                        for qt in range(2):
                            for hf in range(2):
                                A.ds(f"ds_read_b128 v[{V_T+qt*8+hf*4}:{V_T+qt*8+hf*4+3}], v13 offset:{qt*1024 + hf*16}", "LR")
                elif f[0] == "lwr":
                    A.ds(f"ds_write_b32 v12, v{V_L}", "LW")
                    A.ds(f"ds_write_b32 v12, v{V_L+1} offset:1024", "LW")
                elif f[0] == "hook": f[1]()
            if sl in pre: pre[sl]()
        A.nowait = False
        for sl in range(nslots, nslots+8): assert not fill[sl]
        A.need(ltags=["LR"])
        for qt in range(2):
            t = V_T + qt*8
            A(f"v_add_f32 v{t}, v{t}, v{t+1}"); A(f"v_add_f32 v{t+2}, v{t+2}, v{t+3}")
            A(f"v_add_f32 v{t+4}, v{t+4}, v{t+5}"); A(f"v_add_f32 v{t+6}, v{t+6}, v{t+7}")
            A(f"v_add_f32 v{t}, v{t}, v{t+2}"); A(f"v_add_f32 v{t+4}, v{t+4}, v{t+6}")
            A(f"v_add_f32 v{V_L+qt}, v{t}, v{t+4}")

    A(f"""
    v_and_b32 v13, 31, v2
    v_lshlrev_b32 v13, 5, v13
    v_add_u32 v13, {LDS_L}, v13
    v_lshrrev_b32 v12, 5, v2
    v_lshl_add_u32 v12, v12, 2, v13
    s_lshl_b32 s25, s16, 3
    v_add_u32 v12, s25, v12
    """)
    def finish():
        A(f"""
        v_rcp_f32 v{V_T}, v{V_L}
        v_rcp_f32 v{V_T+1}, v{V_L+1}
        v_and_b32 v14, 31, v2
        v_lshlrev_b32 v14, 8, v14
        v_lshrrev_b32 v15, 5, v2
        v_lshl_add_u32 v14, v15, 4, v14
        s_lshl_b32 s25, s17, 11
        s_lshl_b32 s27, s18, 6
        s_add_u32 s25, s25, s27
        s_lshl_b32 s25, s25, 8
        s_lshl_b32 s27, s16, 6
        s_add_u32 s25, s25, s27
        s_add_u32 s27, s25, 8192
        """)
        for qt in range(2):
            o = V_O + qt*16
            for i in range(16): A(f"v_mul_f32 v{o+i}, v{o+i}, v{V_T+qt}")
            pk = V_T + 4 + qt*8
            for i in range(8): A(f"v_cvt_pk_bf16_f32 v{pk+i}, v{o+2*i}, v{o+2*i+1}")
            A("s_nop 1")
            for pr in range(2):
                A(f"v_permlane32_swap_b32 v{pk+4*pr}, v{pk+4*pr+2}")
                A(f"v_permlane32_swap_b32 v{pk+4*pr+1}, v{pk+4*pr+3}")
            for pr in range(2):
                A(f"buffer_store_dwordx4 v[{pk+4*pr}:{pk+4*pr+3}], v14, s[12:15], s{25 if qt == 0 else 27} offen offset:{32*pr}")
    def stamp(i):
        if opt.get("stamps"): A(f"s_memtime s[{60+2*i}:{61+2*i}]")
    def dump_stamps(n):
        if not opt.get("stamps"): return
        A("s_memrealtime s[82:83]\n s_waitcnt lgkmcnt(0)")
        A(f"s_lshl_b32 s50, s2, 2\n s_add_u32 s50, s50, s16\n s_lshl_b32 s50, s50, 6\n s_add_u32 s50, s50, {ST_OFF}")
        A("v_mov_b32 v1, 0\n s_mov_b64 exec, 1")
        for i in range(n):
            A(f"v_mov_b32 v10, s{60+2*i}\n v_mov_b32 v11, s{61+2*i}\n buffer_store_dwordx2 v[10:11], v1, s[8:11], s50 offen offset:{8*i}\n s_nop 1")
        A(f"s_lshl_b32 s50, s2, 2\n s_add_u32 s50, s50, s16\n s_lshl_b32 s50, s50, 4\n s_add_u32 s50, s50, {RT_OFF + 65536}")
        A("v_mov_b32 v16, s80\n v_mov_b32 v17, s81\n v_mov_b32 v18, s82\n v_mov_b32 v19, s83\n buffer_store_dwordx4 v[16:19], v1, s[8:11], s50 offen")
    if mode == "none":
        stamp(1)
        body(16, {0: lambda: stamp(2), 511: lambda: stamp(3)}, True)
        A("s_nop 7")
        finish()
        stamp(4)
        A("s_waitcnt vmcnt(0)")
        stamp(5)
        dump_stamps(6)
    A.label("M_end")
    A("s_endpgm")
    return A.text()

def gen(opt):
    nwg = 128 if opt["mode"] == "none" else 256
    o = []
    o.append("; @launch kernel=prep_kernel grid=(256,1,1) block=(768,1,1) lds=0\n")
    o.append(f"; @launch kernel=main_kernel grid=({nwg},1,1) block=(256,1,1) lds=70000\n")
    o.append(TARGET)
    o.append(gen_prep(opt))
    o.append(gen_main(opt))
    o.append(".fill 2048, 4, 0xBF800000\n")
    o.append(kd("prep_kernel", 88, sgpr=64))
    o.append(kd("main_kernel", 512, sgpr=96, accum=256))
    return "".join(o)

if __name__ == "__main__":
    opt = {"mode": "none"}
    out = sys.argv[1]
    for a in sys.argv[2:]:
        k, v = a.split("=")
        try: v = int(v)
        except: pass
        opt[k] = v
    import hazcheck
    t, n = hazcheck.fix(gen(opt))
    print("nops inserted:", n)
    open(out, "w").write(t)
```

```python
import sys, math, struct
from asmlib import *
from gen1 import Asm, f2u

KN = NAME + "_kernel"
TILE = 10240
BLK = 4 * TILE
RA = 1 << 20
RB = 4 << 20
X_OFF = 8 << 20
E_OFF = 0
FA_OFF = 4096
FB_OFF = 8192
ST_OFF = 16 << 20
RT_OFF = 17 << 20
SCALE = math.log2(math.e) / math.sqrt(128.0)

LDS_P = 0
NPB = 3
LDS_Q = NPB * 16384
LDS_T = LDS_Q + 16896
LDS_L = LDS_T + 16384
LDS_K = LDS_L + 2048
LDS_M = LDS_K + 4 * 2304
LDS_BYTES = LDS_M + 64

vLANE, vK0, vK1, vV, vPW, vPR, vT, vLW, vLR, vOUT, vX, vZ = 2, 3, 4, 5, 9, 10, 13, 14, 15, 16, 17, 18
vT2, vT3 = 19, 0
V_L = 20
V_TMP = 22
V_S = [24, 56]
V_PO = [88, 104]
V_VR = 120
NVR = 4
V_VE = 152
NVE = 8
V_LV = [184, 200]
V_RV = [216, 232]
V_END = 248
A_Q = 0
A_K = [64, 96, 128]
A_P = 160
A_O = 208
COST = dict(l=8, r=4, w=20, e=8, a=4, c=4, bar=42)

def bitop(fn): return fn(0xF0, 0xCC, 0xAA) & 0xFF

def gen(opt):
    A = Asm()
    st = opt.get("stamps")
    stl = []
    stsel = set(opt.get("st", "start,karg,issued,lq,tables,ks,kconv,stored,qrope,ackA,bar1,flagsA,mfma0,slot96,loopend,end").split(","))
    def stamp(name):
        if st and name in stsel and name not in stl:
            i = len(stl); stl.append(name); assert i < 16
            A(f"s_memtime s[{64+2*i}:{65+2*i}]")
    nfull = opt.get("nfull", 6); nsolo = 16 - 2*nfull; nblk = nfull + nsolo
    rounds = [[(r, 0), (r, 1)] for r in range(nfull)] + [[(nfull + 2*i, 0), (nfull + 2*i + 1, 0)] for i in range(nsolo//2)]
    n = len(rounds)
    nt = "nt" if opt.get("nt", 1) else ""
    CPL = opt.get("cpl", 36)
    A.raw(head(KN))
    A("""
    s_cmp_ge_u32 s2, 256
    s_cbranch_scc1 L_end
    s_load_dwordx16 s[4:19], s[0:1], 0
    s_load_dwordx2 s[22:23], s[0:1], 104
    s_getpc_b64 s[60:61]
    v_lshlrev_b32 v64, 5, v0
    """)
    A.vmem(f"global_load_dword v255, v64, s[60:61]", "cpf")
    stamp("start")
    if st: A("s_memrealtime s[96:97]")
    A(f"""
    s_and_b32 s52, s2, 7
    s_lshr_b32 s35, s2, 3
    s_lshl_b32 s57, s52, 5
    s_or_b32 s57, s57, s35
    s_lshl_b32 s53, s57, 14
    v_and_b32 v25, 7, v0
    v_lshrrev_b32 v26, 3, v0
    v_lshl_add_u32 v29, v25, 4, s53
    v_lshl_add_u32 v28, v26, 9, v29
    v_and_b32 v24, 7, v26
    v_lshrrev_b32 v1, 6, v0
    v_lshl_add_u32 v29, v24, 11, v29
    v_lshl_add_u32 v29, v1, 7, v29
    s_lshl_b32 s53, s57, 6
    v_lshl_add_u32 v27, v26, 1, s53
    s_and_b32 s53, s53, 0x3000
    v_lshl_add_u32 v70, v0, 4, s53
    s_waitcnt lgkmcnt(0)
    """)
    stamp("karg")
    A.vmem(f"global_load_ushort v30, v27, s[8:9] {nt}", "KS")
    A.vmem(f"global_load_ushort v31, v27, s[10:11] {nt}", "KS")
    A.vmem(f"global_load_dwordx4 v[88:91], v70, s[14:15] {opt.get('tsfl','')}", "TS")
    A.vmem(f"global_load_dwordx4 v[92:95], v70, s[16:17] {opt.get('tsfl','')}", "TS")
    for i in range(4):
        A.vmem(f"global_load_dwordx4 v[{32+4*i}:{35+4*i}], v28, s[6:7] offset:{128*i} {nt}", "KR")
    for m in range(4):
        A.vmem(f"global_load_dwordx4 v[{48+4*m}:{51+4*m}], v29, s[12:13] offset:{512*m} {nt}", "VRAW")
    A(f"""
    v_readfirstlane_b32 s32, v1
    v_and_b32 v{vLANE}, 63, v0
    v_bfe_u32 v26, v27, 1, 11
    """)
    A(f"""
    s_lshr_b32 s33, s52, 1
    s_and_b32 s34, s52, 1
    s_lshl_b32 s59, s52, 8
    s_add_u32 s59, s59, {FA_OFF}
    s_lshl_b32 s53, s33, 7
    s_load_dword s39, s[22:23], s53
    s_load_dwordx2 s[20:21], s[0:1], 88
    s_and_b32 s36, s35, 1
    s_lshr_b32 s37, s35, 1
    s_lshl_b32 s53, s34, 4
    s_add_u32 s37, s37, s53
    s_and_b32 s38, s57, 63
    s_mov_b32 s24, s22
    s_and_b32 s25, s23, 0xffff
    s_mov_b32 s26, 0x10000000
    s_mov_b32 s27, 0x20000
    s_mul_i32 s58, s57, {TILE}
    s_add_u32 s58, s58, {RA}
    s_add_u32 s63, s58, {RB - RA}
    s_lshl_b32 s57, s33, 11
    s_lshl_b32 s54, s2, 2
    s_add_u32 s54, s54, s32
    s_xor_b32 s55, s54, 32
    s_lshl_b32 s54, s54, 13
    s_add_u32 s54, s54, {X_OFF}
    s_lshl_b32 s55, s55, 13
    s_add_u32 s55, s55, {X_OFF}
    """)
    stamp("issued")
    def trig(posf, cf, nn, c, s):
        for j in range(nn): A(f"v_mul_f32 v{s+j}, v{posf}, v{cf+j}")
        for j in range(nn): A(f"v_fract_f32 v{s+j}, v{s+j}")
        for j in range(nn):
            A(f"v_cos_f32 v{c+j}, v{s+j}")
            if j: A(f"v_cvt_pk_bf16_f32 v{s+j-1}, v{c+j-1}, v{s+j-1}")
            A(f"v_sin_f32 v{s+j}, v{s+j}")
            if j: A(f"v_lshlrev_b32 v{c+j-1}, 16, v{s+j-1}")
        A(f"v_and_b32 v{s}, 0xffff0000, v{s}")
        A(f"v_cvt_pk_bf16_f32 v{s+nn-1}, v{c+nn-1}, v{s+nn-1}")
        for j in range(1, nn-1): A(f"v_and_b32 v{s+j}, 0xffff0000, v{s+j}")
        A(f"v_lshlrev_b32 v{c+nn-1}, 16, v{s+nn-1}")
        A(f"v_and_b32 v{s+nn-1}, 0xffff0000, v{s+nn-1}")
    def freqs(idxreg, mul, cf, nn):
        A(f"v_mul_u32_u24 v104, {mul}, v{idxreg}\n v_cvt_f32_u32 v104, v104")
        A(f"s_mov_b32 s52, {hex(f2u(-math.log2(10000.0)/64))}\n s_mov_b32 s53, {hex(f2u(1/(2*math.pi)))}\n s_mov_b32 s3, {hex(f2u(0.01/(2*math.pi)))}")
        for j in range(nn): A(f"v_add_f32 v{cf+j}, {hex(f2u(float(j)))}, v104")
        for j in range(nn): A(f"v_mul_f32 v{cf+j}, s52, v{cf+j}")
        for j in range(nn): A(f"v_exp_f32 v{cf+j}, v{cf+j}")
        for j in range(nn): A(f"v_mul_f32 v{cf+nn+j}, s3, v{cf+j}")
        for j in range(nn): A(f"v_mul_f32 v{cf+j}, s53, v{cf+j}")
    KC, KSN, KB1, KB2 = 108, 116, 124, 132
    QC, QS = 140, 156
    def w_trigK():
        freqs(25, 4, 96, 4)
        A("v_cvt_f32_u32 v104, v26")
        trig(104, 96, 8, KC, KSN)
    def w_kaddr():
        A(f"""
        s_mul_i32 s52, s32, 2560
        s_add_u32 s52, s52, s58
        v_lshlrev_b32 v65, 7, v{vLANE}
        v_add_u32 v65, s52, v65
        v_mov_b32 v66, s59
        v_cmp_gt_u32 vcc, {opt.get("ptl", 20)}, v{vLANE}
        s_add_u32 s52, s54, 4352
        v_mov_b32 v67, s52
        v_cndmask_b32 v65, v66, v65, vcc
        v_cmp_eq_u32 vcc, 20, v{vLANE}
        s_mul_i32 s52, s32, 2304
        s_add_u32 s52, s52, {LDS_K}
        v_cndmask_b32 v65, v65, v67, vcc
        v_mul_u32_u24 v172, 144, v25
        v_lshl_add_u32 v172, v24, 4, v172
        v_add_u32 v172, s52, v172
        v_mul_u32_u24 v173, 144, v24
        v_lshl_add_u32 v173, v25, 4, v173
        v_add_u32 v173, s52, v173
        v_lshlrev_b32 v174, 9, v24
        v_lshl_add_u32 v174, v25, 4, v174
        v_lshl_add_u32 v174, v1, 7, v174
        v_add_u32 v175, 0x1000, v174
        v_lshlrev_b32 v176, 3, v0
        v_add_u32 v176, 0x2000, v176
        v_mov_b32 v177, 0x05040100
        v_mov_b32 v178, 0x07060302
        v_and_b32 v179, 16, v{vLANE}
        v_cmp_ne_u32 vcc, 0, v179
        s_getreg_b32 s41, hwreg(HW_REG_XCC_ID, 0, 4)
        v_mov_b32 v182, 0x11111111
        v_cndmask_b32 v177, v177, v178, vcc
        """)
    def l_cpf2():
        NCL = opt.get("ncl", 96)
        A(f"""
        s_getpc_b64 s[18:19]
        L_pc2:
        s_add_u32 s18, s18, {KN}+8192-L_pc2
        s_addc_u32 s19, s19, 0
        v_min_u32 v64, {NCL//32 - 1}, v{vLANE}
        v_lshl_add_u32 v64, v64, 2, v1
        s_and_b32 s53, s35, 7
        v_lshl_add_u32 v64, v64, 3, s53
        v_lshlrev_b32 v64, 7, v64
        """)
        A.vmem(f"global_load_dword v255, v64, s[18:19]", "cpf")
    def l_pt():
        A.vmem(f"buffer_load_dword v254, v65, s[24:27], 0 offen {opt.get('ptfl', 'nt')}", "PT")
    def w_qaddr():
        A(f"""
        s_lshr_b32 s52, s32, 1
        s_xor_b32 s53, s52, s36
        s_lshl_b32 s3, s37, 1
        s_add_u32 s53, s53, s3
        s_lshl_b32 s53, s53, 5
        s_and_b32 s3, s32, 1
        s_lshl_b32 s3, s3, 4
        s_add_u32 s53, s53, s3
        v_lshrrev_b32 v66, 2, v{vLANE}
        v_and_b32 v71, 3, v{vLANE}
        v_add_u32 v67, s53, v66
        v_add_u32 v68, s57, v67
        v_lshlrev_b32 v68, 8, v68
        v_lshl_add_u32 v68, v71, 4, v68
        s_mul_i32 s52, s52, 8448
        s_lshl_b32 s3, s3, 4
        s_add_u32 s52, s52, s3
        s_add_u32 s52, s52, {LDS_Q}
        v_mul_u32_u24 v180, 1056, v71
        v_lshl_add_u32 v180, v66, 4, v180
        v_add_u32 v180, s52, v180
        """)
    def l_q():
        for k in range(4):
            A.vmem(f"global_load_dwordx4 v[{72+4*k}:{75+4*k}], v68, s[4:5] offset:{64*k} {opt.get('qfl', 'nt')}", "QR")
    def w_trigQ():
        freqs(71, 8, 208, 8)
        A("v_cvt_f32_u32 v104, v67")
        trig(104, 208, 16, QC, QS)
        A(f"s_mov_b32 s52, {hex(f2u(SCALE))}")
        for j in range(32): A(f"v_mul_f32 v{QC+j}, s52, v{QC+j}")
    def w_tsaddr():
        A(f"""
        s_lshl_b32 s52, s34, 3
        s_lshl_b32 s53, s36, 2
        s_add_u32 s60, s52, s53
        s_xor_b32 s52, s52, 8
        s_mul_i32 s53, s36, {nfull-4}
        s_add_u32 s61, s52, s53
        s_add_u32 s62, s52, {2*(nfull-4)}
        v_lshlrev_b32 v69, 5, v0
        v_add_u32 v69, {LDS_T}, v69
        v_lshrrev_b32 v104, 5, v{vLANE}
        v_lshlrev_b32 v104, 4, v104
        v_lshl_add_u32 v104, v1, 7, v104
        v_add_u32 v104, {LDS_T}, v104
        s_lshl_b32 s52, s60, 9
        v_add_u32 v{vT}, s52, v104
        s_lshl_b32 s52, s61, 9
        v_add_u32 v{vT2}, s52, v104
        s_lshl_b32 s52, s62, 9
        v_add_u32 v{vT3}, s52, v104
        s_lshl_b32 s52, s33, 4
        """)
        for src, reg, b0, b1 in (("s60", RA, 0, 4), ("s61", RB, 4, nfull), ("s62", RB, nfull, nblk)):
            if b1 > b0:
                A(f"s_add_u32 s53, s52, {src}\n s_mul_i32 s53, s53, {BLK}")
                for b in range(b0, b1): A(f"s_add_u32 s{42+b}, s53, {reg + (b-b0)*BLK}")
    def w_paddr():
        A(f"""
        v_lshlrev_b32 v{vX}, 4, v{vLANE}
        s_mul_i32 s52, s32, {TILE}
        v_add_u32 v{vK0}, s52, v{vX}
        v_add_u32 v{vK1}, 0x1000, v{vK0}
        v_lshrrev_b32 v104, 5, v{vLANE}
        v_lshl_add_u32 v105, v104, 3, v25
        v_bfe_u32 v106, v{vLANE}, 3, 2
        v_lshl_add_u32 v105, v106, 4, v105
        v_lshlrev_b32 v105, 3, v105
        s_lshl_b32 s53, s32, 9
        s_add_u32 s53, s53, 8192
        v_lshl_add_u32 v{vPW}, v1, 12, v{vX}
        """)
        for i in range(4):
            A(f"s_add_u32 s52, s32, {i}\n s_and_b32 s52, s52, 3")
            if i: A(f"s_lshl_b32 s3, s52, 12\n v_add_u32 v{vPR+i-1}, s3, v{vX}")
            A(f"s_mul_i32 s52, s52, {TILE}\n s_add_u32 s52, s52, s53\n v_add_u32 v{vV+i}, s52, v105")
        A(f"""
        v_and_b32 v{vLR}, 31, v{vLANE}
        v_lshlrev_b32 v{vOUT}, 8, v{vLR}
        v_lshl_add_u32 v{vOUT}, v104, 5, v{vOUT}
        v_mul_u32_u24 v181, 528, v104
        v_lshl_add_u32 v181, v{vLR}, 4, v181
        v_add_u32 v181, {LDS_Q}, v181
        v_lshlrev_b32 v{vLR}, 5, v{vLR}
        v_add_u32 v{vLR}, {LDS_L}, v{vLR}
        v_lshl_add_u32 v{vLW}, v104, 2, v{vLR}
        v_lshl_add_u32 v{vLW}, v1, 3, v{vLW}
        v_mov_b32 v{vZ}, 0
        v_mov_b32 v{V_L}, 0
        v_mov_b32 v{V_L+1}, 0
        s_lshl_b32 s56, s33, 6
        s_lshl_b32 s52, s37, 1
        s_add_u32 s56, s56, s52
        s_add_u32 s56, s56, s36
        s_lshl_b32 s56, s56, 13
        s_lshl_b32 s52, s32, 6
        s_add_u32 s56, s56, s52
        v_mov_b32 v{V_END+1}, 0x20000000
        s_lshl_b32 s53, s38, 6
        v_mov_b32 v{V_END}, s53
        v_cmp_eq_u32 vcc, 0, v0
        s_lshl_b32 s53, s35, 2
        v_mov_b32 v{V_END+4}, s53
        v_cndmask_b32 v{V_END}, v{V_END+1}, v{V_END}, vcc
        v_cndmask_b32 v{V_END+4}, v{V_END+1}, v{V_END+4}, vcc
        v_and_b32 v104, 15, v{vLANE}
        s_lshl_b32 s53, s36, 4
        v_add_u32 v{V_END+5}, s53, v104
        v_lshlrev_b32 v{V_END+5}, 2, v{V_END+5}
        v_lshl_add_u32 v{V_END+3}, v1, 4, v104
        v_lshlrev_b32 v{V_END+3}, 6, v{V_END+3}
        """)
    def w_tables():
        A.need(["TS"])
        x = 184
        for k in range(4):
            A(f"v_lshlrev_b32 v{x+2*k}, 16, v{88+k}\n v_and_b32 v{x+2*k+1}, 0xffff0000, v{88+k}")
        A("s_mov_b32 s52, 0x3fc03fc0")
        A("v_xor_b32 v92, s52, v92\n v_xor_b32 v93, s52, v93\n v_xor_b32 v94, s52, v94\n v_xor_b32 v95, s52, v95")
        A("v_or3_b32 v92, v92, v93, v94\n v_or_b32 v92, v92, v95")
        mm = [f"v_min3_f32 v93, v{x}, v{x+1}, v{x+2}", f"v_min3_f32 v93, v93, v{x+3}, v{x+4}", f"v_min3_f32 v93, v93, v{x+5}, v{x+6}", f"v_min_f32 v93, v93, v{x+7}",
              f"v_max3_f32 v94, v{x}, v{x+1}, v{x+2}", f"v_max3_f32 v94, v94, v{x+3}, v{x+4}", f"v_max3_f32 v94, v94, v{x+5}, v{x+6}", f"v_max_f32 v94, v94, v{x+7}"]
        for k in range(8):
            A(f"v_log_f32 v{192+k}, v{x+k}\n {mm[k]}\n v_rcp_f32 v{200+k}, v{x+k}")
        A(f"""
        s_mov_b32 s52, 0x30800000
        s_mov_b32 s53, 0x4e800000
        v_cmp_le_f32 vcc, s52, v93
        v_cmp_ge_f32 s[18:19], s53, v94
        s_and_b64 vcc, vcc, s[18:19]
        v_cmp_eq_u32 s[18:19], 0, v92
        s_and_b64 vcc, vcc, s[18:19]
        v_mov_b32 v93, 0x7fc00000
        s_nop 1
        v_cndmask_b32 v200, v93, v200, vcc
        """)
        A.ds("ds_write_b128 v69, v[192:195]", "QW"); A.ds("ds_write_b128 v69, v[196:199] offset:16", "QW")
        A.ds("ds_write_b128 v69, v[200:203] offset:8192", "QW"); A.ds("ds_write_b128 v69, v[204:207] offset:8208", "QW")
    def w_qrope():
        A.need(["QR"])
        stamp("qr")
        x = 32; y = 96
        for k in range(16):
            A(f"v_lshlrev_b32 v{x+2*k}, 16, v{72+k}\n v_and_b32 v{x+2*k+1}, 0xffff0000, v{72+k}")
        z = 208
        for half in range(2):
            js = [4*half + t for t in range(4)] + [8 + 4*half + t for t in range(4)]
            for t, j in enumerate(js):
                A(f"v_mul_f32 v{y+t}, v{x+j}, v{QC+j}\n v_mul_f32 v{y+8+t}, v{x+16+j}, v{QC+j}")
            for t, j in enumerate(js):
                A(f"v_fma_f32 v{y+t}, -v{x+16+j}, v{QS+j}, v{y+t}\n v_fmac_f32 v{y+8+t}, v{x+j}, v{QS+j}")
            zz = z + 8*half
            for k in range(8): A(f"v_cvt_pk_bf16_f32 v{zz+k}, v{y+2*k}, v{y+2*k+1}")
            A.ds(f"ds_write_b128 v180, v[{zz}:{zz+3}] offset:{528*half}", "QW")
            A.ds(f"ds_write_b128 v180, v[{zz+4}:{zz+7}] offset:{528*half + 8*528}", "QW")
    def w_coef():
        A.need(["KS"])
        A("v_lshlrev_b32 v30, 16, v30\n v_lshlrev_b32 v31, 16, v31")
        for j in range(16): A(f"v_mul_f32 v{KC+j}, v30, v{KC+j}")
        for j in range(8):
            A(f"v_sub_f32 v{KB1+j}, v{KSN+j}, v{KC+j}")
            A(f"v_add_f32 v{KB2+j}, v{KC+j}, v{KSN+j}")
        for j in range(8):
            A(f"v_mul_f32 v{KB1+j}, v31, v{KB1+j}")
            A(f"v_mul_f32_e64 v{KB2+j}, -v31, v{KB2+j}")
        A("s_waitcnt lgkmcnt(0)"); A.lg = []
    W = dict(cpf2=l_cpf2, trigK=w_trigK, kaddr=w_kaddr, pt=l_pt, qaddr=w_qaddr, lq=l_q, trigQ=w_trigQ, tsaddr=w_tsaddr, coef=w_coef, paddr=w_paddr, tables=w_tables, qrope=w_qrope)
    def run(seq):
        for x_ in seq.split("."):
            if x_: W[x_](); stamp(x_)
    run(opt.get("o1", "trigK.kaddr.pt.cpf2.qaddr.trigQ.paddr.lq.tsaddr.coef.tables"))
    A.need(["KR"])
    stamp("ks")
    for j in range(16): A(f"v_cvt_f32_i32 v{32+j}, v{32+j}")
    for j in range(8):
        A(f"v_fmac_f32 v{KB1+j}, v{32+j}, v{KC+j}")
        A(f"v_fmac_f32 v{KB2+j}, v{40+j}, v{KC+j}")
    for j in range(8):
        A(f"v_fma_f32 v{KB1+j}, -v{40+j}, v{KSN+j}, v{KB1+j}")
        A(f"v_fmac_f32 v{KB2+j}, v{32+j}, v{KSN+j}")
    for p in range(8): A(f"v_cvt_pk_bf16_f32 v{32+p}, v{KB1+2*p}, v{KB1+2*p+1}")
    A.ds("ds_write_b128 v172, v[32:35]", "KT")
    A.ds("ds_write_b128 v172, v[36:39] offset:1152", "KT")
    A.ds("ds_read_b128 v[124:127], v173", "KT2")
    A.ds("ds_read_b128 v[128:131], v173 offset:1152", "KT2")
    stamp("kconv")
    A.need(["VRAW"])
    for c in range(4): A(f"v_lshl_or_b32 v{48+c}, v{52+c}, 4, v{48+c}")
    for c in range(4): A(f"v_lshl_or_b32 v{56+c}, v{60+c}, 4, v{56+c}")
    for c in range(4): A(f"v_lshl_or_b32 v{48+c}, v{56+c}, 8, v{48+c}")
    A("v_lshl_or_b32 v48, v49, 16, v48\n v_lshl_or_b32 v49, v51, 16, v50")
    A("s_mov_b32 s52, 0x22222222\n s_mov_b32 s53, 0x88888888")
    A("v_permlane32_swap_b32 v48, v49")
    A("v_mov_b32 v50, v48\n v_mov_b32 v51, v49")
    A.need(ltags=["KT2"])
    A.vmem("buffer_store_dwordx4 v[124:127], v174, s[24:27], s58 offen", "SA")
    A.vmem("buffer_store_dwordx4 v[128:131], v175, s[24:27], s58 offen", "SA")
    A("v_permlane16_swap_b32 v48, v50\n v_permlane16_swap_b32 v49, v51")
    A("v_perm_b32 v132, v50, v48, v177\n v_perm_b32 v133, v51, v49, v177")
    t1 = bitop(lambda a, b, c: ~(a ^ b) & c); t2 = bitop(lambda a, b, c: (~a & b) | c)
    for r in (132, 133):
        A(f"v_lshlrev_b32 v55, 1, v{r}\n v_lshlrev_b32 v56, 2, v{r}")
        A(f"v_bitop3_b32 v55, v{r}, v55, s52 bitop3:{hex(t1)}")
        A(f"v_bitop3_b32 v56, v56, s53, v182 bitop3:{hex(t2)}")
        A(f"v_or_b32 v{r}, v55, v56")
    A.vmem("buffer_store_dwordx2 v[132:133], v176, s[24:27], s58 offen", "SA")
    run(opt.get("o2", ""))
    A.vmem("buffer_store_dwordx4 v[124:127], v174, s[24:27], s63 offen sc1", "SB")
    A.vmem("buffer_store_dwordx4 v[128:131], v175, s[24:27], s63 offen sc1", "SB")
    A.vmem("buffer_store_dwordx2 v[132:133], v176, s[24:27], s63 offen sc1", "SB")
    stamp("stored")
    A(f"""
    s_mul_i32 s40, s39, 0x9E3779B1
    s_add_u32 s40, s40, 0x7F4A7C15
    s_and_b32 s40, s40, 0xfffffff0
    s_mov_b32 s28, s20
    s_and_b32 s29, s21, 0xffff
    s_mov_b32 s30, 0x200000
    s_mov_b32 s31, 0x20000
    """)
    run(opt.get("o3", "qrope"))
    A(f"""
    s_or_b32 s62, s40, s41
    s_or_b32 s61, s40, 8
    s_lshl_b32 s60, s33, 12
    s_add_u32 s60, s60, {FB_OFF}
    v_mov_b32 v24, s62
    v_mov_b32 v{V_END+2}, s61
    """)
    A.need(["SA"], ["QW"])
    stamp("ackA")
    A("s_barrier")
    A.vmem(f"buffer_store_dword v24, v{V_END+4}, s[24:27], s59 offen", "FA")
    stamp("bar1")
    def qread(i):
        A.ds(f"ds_read_b128 a[{A_Q+4*i}:{A_Q+4*i+3}], v181 offset:{(i//8)*8448 + (i%8)*1056}", ("Q", i//8, i%8))
    for q_ in range(4):
        A.ds(f"ds_read_b128 v[{V_LV[0]+4*q_}:{V_LV[0]+4*q_+3}], v{vT} offset:{q_*32}", ("LV", 0, q_))
    for i in range(10): qread(i)
    A.need(ltags=[("Q", 0, 3)])
    for i in range(10, 16): qread(i)
    if opt.get("polld"): A(f"s_sleep {opt['polld']}")
    A("s_mov_b32 s53, 0")
    A.label("L_pollA")
    A(f"""
    buffer_load_dword v26, v{V_END+5}, s[24:27], s59 offen sc1
    s_add_u32 s53, s53, 1
    s_waitcnt vmcnt(0)
    v_cmp_eq_u32 vcc, s62, v26
    s_cmp_eq_u64 vcc, -1
    s_cbranch_scc0 L_pollA_more
    """)
    A.vm = []
    stamp("flagsA")

    order = []
    for r in range(n):
        order.append(("QK", r))
        if r >= 1: order.append(("PV", r-1))
    order.append(("PV", n-1))
    mf = []; a = [0]*n; b = [0]*n
    for kind, r in order:
        if kind == "QK":
            a[r] = len(mf)
            for u in range(2):
                for s in range(8): mf.append(("QK", r, u, s))
        else:
            b[r] = len(mf)
            for kk in range(8):
                for u in range(2): mf.append(("PV", r, u, kk))
    nslots = len(mf)
    firstuse = {}; lastuse = {}
    for sl, m in enumerate(mf):
        blk = rounds[m[1]][m[2]][0]
        key = ("K" if m[0] == "QK" else "V", blk, m[3])
        firstuse.setdefault(key, sl); lastuse[key] = sl
    kbuf = {}; kfree = {}
    pool = [(A_K[i], None) for i in range(3)]
    q1dead = a[nfull-1] + 15
    hold = [None, None, None]; bases = list(A_K)
    if nsolo: bases.append(A_Q + 32); hold.append("Q1")
    for blk in range(nblk):
        def rel(h): return -1 if h is None else (q1dead if h == "Q1" else lastuse[("K", h, 7)])
        i = min(range(len(bases)), key=lambda i: rel(hold[i]))
        for s in range(8):
            h = hold[i]
            kfree[(blk, s)] = -1 if h is None else (a[nfull-1] + 8 + s if h == "Q1" else lastuse[("K", h, s)])
        kbuf[blk] = bases[i]; hold[i] = blk
    vexp = sorted({k for k in firstuse if k[0] == "V"}, key=lambda k: firstuse[k])
    vereg = {k: V_VE + (i % NVE)*4 for i, k in enumerate(vexp)}
    vefree = {k: (-1 if i < NVE else lastuse[vexp[i-NVE]]) for i, k in enumerate(vexp)}
    vedone = {}
    gate = b[opt.get("gater", 1)] - opt.get("barlead", 2)
    lead_v = opt.get("leadv", 40)
    loads = [(firstuse[("K", blk, s)], ("K", blk, s)) for blk in range(nblk) for s in range(8)]
    loads += [(firstuse[("V", blk, 2*i)] - lead_v + 24, ("VR", blk, i)) for blk in range(nblk) for i in range(4)]
    loads = [k for _, k in sorted(loads, key=lambda x: x[0])]
    need_at = {k: (firstuse[k] if k[0] == "K" else firstuse[("V", k[1], 2*k[2])] - 10) for k in loads}
    def ld_free(key):
        f = -1
        if key[0] == "K": f = kfree[(key[1], key[2])]
        elif key[1] >= NVR:
            pk = ("V", key[1]-NVR, 2*key[2]+1)
            f = vedone.get(pk, 10**6)
        if key[1] >= 4: f = max(f, gate)
        return f
    def ld(key):
        k, blk, f = key
        if k == "K":
            rg = kbuf[blk] + 4*f
            A.vmem(f"buffer_load_dwordx4 a[{rg}:{rg+3}], v{vK0 + f//4}, s[24:27], s{42+blk} offen offset:{(f%4)*1024}", key)
        else:
            rg = V_VR + (blk % NVR)*8 + 2*f
            A.vmem(f"buffer_load_dwordx2 v[{rg}:{rg+1}], v{vV+f}, s[24:27], s{42+blk} offen", key)
    tb = []
    for r in range(n):
        for u in range(2):
            if not tb or tb[-1][0] != rounds[r][u][0]: tb.append((rounds[r][u][0], r, u))
    lvreg = {blk: V_LV[i % 2] for i, (blk, _, _) in enumerate(tb)}
    rvreg = {blk: V_RV[i % 2] for i, (blk, _, _) in enumerate(tb)}
    lv_use = {blk: firstuse[("K", blk, 0)] for blk, _, _ in tb}
    lv_last = {blk: lastuse[("K", blk, 0)] for blk, _, _ in tb}
    rv_done = {}
    lvq = [("LV", blk, q, i) for i, (blk, r, u) in enumerate(tb) for q in range(4)]
    rvq = [("RV", blk, q, i) for i, (blk, r, u) in enumerate(tb) for q in range(4)]
    tdone = {}
    NXT = opt.get("nxt", 0); XTL = -(-33 // max(NXT, 1))
    xt_slots = [opt.get("xt0", 33) + opt.get("xtd", 32)*i for i in range(NXT)]
    assert (NXT-1)*XTL*128 < 4096
    npre = opt.get("npre", 8)
    A("s_mov_b32 s3, 0")
    A.label("L_go")
    for key in loads[:npre]: ld(key)
    def tread(t, sl_):
        k, blk, q, i = t
        rg = (lvreg if k == "LV" else rvreg)[blk] + 4*q
        tb_, rel_ = (vT, blk) if blk < 4 else ((vT2, blk-4) if blk < nfull else (vT3, blk-nfull))
        A.ds(f"ds_read_b128 v[{rg}:{rg+3}], v{tb_} offset:{rel_*512 + q*32 + (8192 if k == 'RV' else 0)}", (k, blk, q))
        tdone[(k, blk, q)] = sl_
    for q_ in range(4): lvq.pop(0); tdone[("LV", 0, q_)] = -5
    qrest = []
    A(f"""
    v_min_u32 v{V_END+4}, {XTL-1}, v{vLANE}
    v_lshlrev_b32 v{V_END+4}, 7, v{V_END+4}
    s_xor_b32 s53, s35, 1
    s_lshl_b32 s53, s53, 2
    v_mov_b32 v{V_END+5}, s53
    """)
    li = npre
    win = {}; prev_end = 0
    for r in range(n):
        w0 = max(a[r] + 10, prev_end); w1 = b[r] - opt.get("smend", 5)
        prev_end = w1; win[r] = (w0, w1)
    items = {}
    for r in range(n):
        S = V_S[r % 2]; PO = V_PO[r % 2]; L = []
        for e in range(33):
            if e < 32: L.append(("e", e, f"v_exp_f32 v{S+e}, v{S+e}", None))
            if e >= 1:
                blk, qt = rounds[r][(e-1)//16]; j = (e-1) % 16
                L.append(("a", e, f"v_fmac_f32 v{V_L+qt}, v{rvreg[blk]+j}, v{S+e-1}", (blk, j//4, (e-1)//16 == 1 or rounds[r][0][0] != rounds[r][1][0], j % 4 == 3)))
            if e >= 2 and e % 2 == 0:
                L.append(("c", e, f"v_cvt_pk_bf16_f32 v{PO + (e-2)//2}, v{S+e-2}, v{S+e-1}", None))
        items[r] = L
    cur = 0; ci = 0; pendw = []; nw = {r: 0 for r in range(n)}
    barlead = opt.get("barlead", 2)
    bar_at = {b[r] - barlead: r for r in range(n)}
    prq = [(r, kk, u, (kk-2)*2+u) for r in range(n) for kk in range(2, 8) for u in range(2)]
    prdone = set()
    lastw = -10
    send_slot = b[nfull-1] + 16 + 1
    inloop_send = send_slot + 6 < nslots
    flag_slot = send_slot + 5 + opt.get("flagdelay", 12)
    xpoll_slot = flag_slot + opt.get("xpolldelay", 10)
    xchk_slot = xpoll_slot + opt.get("xchkdelay", 9)
    pollB_slot = opt.get("pollslot", 30); chkB_slot = gate - opt.get("chklead", 3)
    XR = V_LV[0]
    def operands(m):
        blk = rounds[m[1]][m[2]][0]
        if m[0] == "QK":
            lt = [("Q", rounds[m[1]][m[2]][1], m[3])]
            if m[3] == 0: lt += [("LV", blk, q) for q in range(4)]
            return [("K", blk, m[3])], lt
        return [], [("PR", m[1], m[3], m[2])]
    def lsum(t_):
        A(f"v_add_f32 v{t_}, v{t_}, v{t_+1}\n v_add_f32 v{t_+2}, v{t_+2}, v{t_+3}\n v_add_f32 v{t_+4}, v{t_+4}, v{t_+5}\n v_add_f32 v{t_+6}, v{t_+6}, v{t_+7}")
        A(f"v_add_f32 v{t_}, v{t_}, v{t_+2}\n v_add_f32 v{t_+4}, v{t_+4}, v{t_+6}\n v_add_f32 v{t_}, v{t_}, v{t_+4}")
    LT = [24+0, 24+0]
    uid = [0]
    def two_way(fn):
        uid[0] += 1; u_ = uid[0]
        A(f"s_cmp_eq_u32 s62, 0\n s_cbranch_scc1 L_far{u_}")
        save = list(A.vm); fn(""); A(f"s_branch L_join{u_}"); A.label(f"L_far{u_}"); A.vm = save; fn("sc1"); A.label(f"L_join{u_}")
    def send_payload(fl):
        for i in range(4):
            o = A_O + 16 + 4*i
            A.vmem(f"buffer_store_dwordx4 a[{o}:{o+3}], v{vX}, s[24:27], s54 offen offset:{i*1024} {fl}", "XS")
        A.vmem(f"buffer_store_dword v{V_END+6}, v{V_END+7}, s[24:27], s54 offen {fl}", "XS")
    def send_flag(fl):
        A("s_mov_b64 exec, 1")
        A.vmem(f"buffer_store_dword v{V_END+2}, v{V_END+1}, s[24:27], s54 offen {fl}", "XF")
        A("s_mov_b64 exec, -1")
    def recv_loads():
        for i in range(4):
            A.vmem(f"buffer_load_dwordx4 v[{XR+4*i}:{XR+4*i+3}], v{vX}, s[24:27], s55 offen offset:{i*1024} sc1", "XR")
        A.vmem(f"buffer_load_dword v{XR+16}, v{V_END+7}, s[24:27], s55 offen sc1", "XR")
    def xcheck():
        A(f"v_readfirstlane_b32 s52, v{V_TMP}\n s_cmp_eq_u32 s52, s61\n s_cbranch_scc1 L_xok\n s_mov_b32 s53, 0")
        A.label("L_xspin")
        A(f"""
        buffer_load_dword v{V_TMP}, v{V_END+1}, s[24:27], s55 offen sc1
        s_add_u32 s53, s53, 1
        s_waitcnt vmcnt(0)
        v_readfirstlane_b32 s52, v{V_TMP}
        s_cmp_eq_u32 s52, s61
        s_cbranch_scc1 L_xok
        s_cmp_lt_u32 s53, 0x40000
        s_cbranch_scc1 L_xspin
        """)
        A.label("L_xok")
    seenO = set(); vi = 0; vpart = 0
    vt, lt = operands(mf[0]); A.need(vt, lt)
    stamp("mfma0")
    totcost = []
    pace = opt.get("pace", 1.9)
    lastld = -10
    for sl in range(nslots):
        m = mf[sl]
        blk, qt = rounds[m[1]][m[2]]
        if m[0] == "QK":
            _, r, u, s = m
            d = V_S[r % 2] + u*16
            c = f"v[{lvreg[blk]}:{lvreg[blk]+15}]" if s == 0 else f"v[{d}:{d+15}]"
            if s == 0: assert all(("LV", blk, q_) in tdone for q_ in range(4)), ("lv not read", sl)
            assert ("K", blk, s) in loads[:li], ("K not loaded", sl)
            k = kbuf[blk] + 4*s; q = A_Q + (qt*8+s)*4
            A(f"v_mfma_f32_32x32x16_bf16 v[{d}:{d+15}], a[{k}:{k+3}], a[{q}:{q+3}], {c}")
        else:
            _, r, u, kk = m
            d = A_O + qt*16
            c = "0" if qt not in seenO else f"a[{d}:{d+15}]"
            seenO.add(qt)
            assert ("V", blk, kk) in vedone, ("V frag not expanded", sl, m)
            assert kk < 2 or (r, kk, u) in prdone, ("P not read", sl)
            v = vereg[("V", blk, kk)]
            ps = f"v[{V_PO[r%2] + (u*2+kk)*4}:{V_PO[r%2] + (u*2+kk)*4+3}]" if kk < 2 else f"a[{A_P + ((kk-2)*2+u)*4}:{A_P + ((kk-2)*2+u)*4+3}]"
            A(f"v_mfma_f32_32x32x16_bf16 a[{d}:{d+15}], v[{v}:{v+3}], {ps}, {c}")
        stamp(f"slot{sl}")
        bud = 24
        vt, lt = operands(mf[sl+1]) if sl + 1 < nslots else ([], [])
        vt = list(vt); lt = list(lt)
        if vi < len(vexp): vt.append(("VR", vexp[vi][1], vexp[vi][2]//2)) if firstuse[vexp[vi]] - sl <= opt.get("vahead", 14) else None
        if cur < n:
            for it in (items[cur][ci:] + (items[cur+1] if cur+1 < n and sl >= a[cur+1] + 9 else []))[:8]:
                if it[0] == "a" and sl >= a[cur] + 9: lt.append(("RV", it[3][0], it[3][1]))
        if sl == chkB_slot: vt.append("PB")
        if inloop_send and sl == flag_slot: vt.append("XS")
        if inloop_send and sl == xchk_slot: vt.append("XP")
        if sl in bar_at:
            r = bar_at[sl]
            assert nw[r] == 4, ("P not written before barrier", r, sl)
            A.need(vt, lt + [("PW", r), "LW"])
            if not opt.get("nobar"): A("s_barrier")
            bud -= COST['bar']
            for q_ in ([1] if r == nfull-1 else []) + ([0] if r == n-1 else []):
                LT[q_] = V_S[r % 2] + 8*q_
                for hf in range(2):
                    A.ds(f"ds_read_b128 v[{LT[q_]+hf*4}:{LT[q_]+hf*4+3}], v{vLR} offset:{q_*1024 + hf*16}", ("LR", q_)); bud -= 4
        else:
            A.need(vt, lt)
        hasw = bool(pendw) and sl not in bar_at and not (sl + 1 in bar_at)
        nr = 0
        while nr < opt.get("maxr", 2) and len(A.lg) < 13:
            c_ = []
            if prq:
                r, kk, u, idx = prq[0]
                if sl >= b[r] - barlead and (r == 0 or sl >= b[r-1] + 4 + idx): c_.append((b[r] + 4 + idx - 5, "p"))
            if qrest: c_.append((qrest[0] - 5, "q"))
            if lvq:
                _, tblk, q, i = lvq[0]
                if (i < 2 or lv_last[tb[i-2][0]] + 1 < sl): c_.append((lv_use[tblk] - 8 + q, "lv"))
            if rvq:
                _, tblk, q, i = rvq[0]
                if (i < 2 or (tb[i-2][0], q) in rv_done): c_.append((lv_use[tblk] + 4 + 2*q, "rv"))
            if not c_: break
            d_, k_ = min(c_)
            if sl == lastw + 1 and d_ > sl - 2: break
            if nr >= 1 and d_ > sl + 1: break
            if hasw and d_ > sl + 1: break
            if d_ > sl + opt.get("rlead", 24): break
            if k_ == "p":
                r, kk, u, idx = prq.pop(0); rg = A_P + idx*4
                A.ds(f"ds_read_b128 a[{rg}:{rg+3}], v{vPR+kk//2-1} offset:{LDS_P + (r%NPB)*16384 + (u*2+kk%2)*1024}", ("PR", r, kk, u)); prdone.add((r, kk, u))
            elif k_ == "q": qread(qrest.pop(0))
            elif k_ == "lv": tread(lvq.pop(0), sl)
            else: tread(rvq.pop(0), sl)
            bud -= COST["r"]; nr += 1
        if hasw:
            r, f = pendw.pop(0); PO = V_PO[r % 2]
            if f == 3:
                for q_ in ([1] if r == nfull-1 else []) + ([0] if r == n-1 else []):
                    A.ds(f"ds_write_b32 v{vLW}, v{V_L+q_} offset:{q_*1024}", "LW"); bud -= 8
            A.ds(f"ds_write_b128 v{vPW}, v[{PO+4*f}:{PO+4*f+3}] offset:{LDS_P + (r%NPB)*16384 + f*1024}", ("PW", r)); bud -= COST["w"]; nw[r] += 1
            lastw = sl
        if sl == opt.get("fbslot", 7):
            A("s_cmp_eq_u32 s3, 0\n s_cbranch_scc0 L_skip2\n s_barrier")
            A.label("L_skip2")
            A.vmem(f"buffer_store_dword v{V_END+2}, v{V_END}, s[24:27], s60 offen sc1", "FB"); bud -= 50
        elif sl == pollB_slot:
            A.vmem(f"buffer_load_dword v{V_TMP}, v{V_END+3}, s[24:27], s60 offen sc1", "PB")
            A.vmem(f"buffer_load_dword v{V_TMP+1}, v{V_END+5}, s[24:27], s59 offen sc1", "PB")
            bud -= 16
        elif sl in xt_slots:
            A.vmem(f"buffer_load_dword v{V_END+6}, v{V_END+4}, s[24:27], s54 offen offset:{xt_slots.index(sl)*XTL*128} {opt.get('xtfl', 'nt')}", "XT"); bud -= 8
        elif li < len(loads) and not hasw and sl not in bar_at:
            key = loads[li]
            if ld_free(key) <= sl and (sl - lastld >= pace or need_at[key] - sl < opt.get("urg", 30)) and need_at[key] - sl <= opt.get("maxlead", 80):
                ld(key); li += 1; bud -= COST["l"]
                lastld = max(lastld + pace, sl - 1) if sl - lastld < 2*pace else sl
        if sl == chkB_slot:
            A(f"""
            v_cmp_eq_u32 vcc, s61, v{V_TMP}
            v_readfirstlane_b32 s62, v{V_TMP+1}
            s_cmp_eq_u64 vcc, -1
            s_cbranch_scc1 L_bok
            v_and_b32 v{V_TMP+1}, 15, v{vLANE}
            s_lshl_b32 s53, s32, 4
            v_add_u32 v{V_TMP+1}, s53, v{V_TMP+1}
            v_lshlrev_b32 v{V_TMP+1}, 6, v{V_TMP+1}
            s_mov_b32 s53, 0
            """)
            A.label("L_bspin")
            A(f"""
            buffer_load_dword v{V_TMP}, v{V_TMP+1}, s[24:27], s60 offen sc1
            s_add_u32 s53, s53, 1
            s_waitcnt vmcnt(0)
            v_cmp_eq_u32 vcc, s61, v{V_TMP}
            s_cmp_eq_u64 vcc, -1
            s_cbranch_scc1 L_bok
            s_cmp_lt_u32 s53, 0x40000
            s_cbranch_scc1 L_bspin
            """)
            A.label("L_bok")
            A(f"""
            s_or_b32 s52, s40, s41
            s_cmp_eq_u32 s62, s52
            s_cselect_b32 s62, 1, 0
            v_mov_b32 v{V_END+1}, 4352
            v_and_b32 v{V_END+7}, 31, v{vLANE}
            v_lshlrev_b32 v{V_END+7}, 2, v{V_END+7}
            v_add_u32 v{V_END+7}, 4096, v{V_END+7}
            """)
            bud -= 40
        if inloop_send:
            if sl == b[nfull-1] + 6:
                A.need(ltags=[("LR", 1)]); lsum(LT[1]); A(f"v_mov_b32 v{V_END+6}, v{LT[1]}"); bud -= 32
            if sl == send_slot + 1:
                stamp("send"); two_way(send_payload); bud -= 60
                if opt.get("selft", 1):
                    A.vmem(f"buffer_load_dword v{V_END+3}, v{V_END+4}, s[24:27], s54 offen {opt.get('stfl', 'sc1')}", "ST"); bud -= 8
            if sl == flag_slot:
                stamp("xack"); two_way(send_flag); bud -= 20
            if sl == xpoll_slot:
                A.vmem(f"buffer_load_dword v{V_TMP}, v{V_END+1}, s[24:27], s55 offen sc1", "XP"); bud -= 8
            if sl == xchk_slot:
                assert li == len(loads) and all(lv_last[t[0]] < sl for t in tb)
                stamp("xp"); xcheck(); stamp("xok"); recv_loads(); bud -= 50
        def vexp_step():
            nonlocal vi, vpart, bud
            key = vexp[vi]; src = V_VR + (key[1] % NVR)*8 + key[2]
            A(f"v_cvt_scalef32_pk_bf16_fp4 v{vereg[key]+vpart}, v{src}, 1.0 op_sel:[{vpart&1},{vpart>>1},0]")
            bud -= 4; vpart += 1
            if vpart == 4: vedone[key] = sl; vi += 1; vpart = 0
        def vexp_ok():
            if vi >= len(vexp): return False
            key = vexp[vi]
            tag = ("VR", key[1], key[2]//2)
            return vefree[key] <= sl and tag not in A.vm and tag in loads[:li]
        def sm_next():
            nonlocal cur, ci
            while cur < n and ci >= len(items[cur]): cur += 1; ci = 0
            if cur >= n: return None
            kind, e, txt, info = items[cur][ci]
            if sl < a[cur] + 10: return None
            if kind == "e" and e == 16 and sl < a[cur] + 18: return None
            if kind == "c" and cur >= 2 and sl < b[cur-2] + 4: return None
            if kind == "a" and tdone.get(("RV", info[0], info[1]), 10**6) > sl - 2: return None
            w1 = win[cur][1]
            return w1 - (32 - e) * opt.get("smrate", 0.9)
        def sm_step():
            nonlocal ci, bud
            kind, e, txt, info = items[cur][ci]
            if kind == "a":
                A.need(ltags=[("RV", info[0], info[1])])
                if info[2] and info[3]: rv_done[(info[0], info[1])] = sl
            A(txt); bud -= COST[kind]; ci += 1
            if kind == "c" and e % 8 == 0: pendw.append((cur, e//8 - 1))
        while True:
            ds_ = sm_next()
            dv = None
            if vi < len(vexp):
                dl = firstuse[vexp[vi]] - 2 - (3 - vpart) * 0.25
                if vexp_ok(): dv = dl
                elif firstuse[vexp[vi]] - sl <= 2:
                    A.need([("VR", vexp[vi][1], vexp[vi][2]//2)])
                    assert vexp_ok(), ("cannot expand in time", sl, vexp[vi])
                    dv = dl
            cands = [(d, k) for d, k in ((ds_, "s"), (dv, "v")) if d is not None]
            if not cands: break
            d, k = min(cands)
            if bud <= opt.get("fillto", 0) and d > sl: break
            (sm_step if k == "s" else vexp_step)()
        totcost.append(32 - bud)
    assert li == len(loads), (li, len(loads))
    if opt.get("verbose"):
        print("slot costs:", totcost, "sum:", sum(totcost), "sum max(32,c):", sum(max(32, c) for c in totcost), file=sys.stderr)
    stamp("loopend")
    if not inloop_send or flag_slot >= nslots or xpoll_slot >= nslots or xchk_slot >= nslots:
        if not inloop_send:
            A.need(ltags=[("LR", 1)]); lsum(LT[1]); A(f"v_mov_b32 v{V_END+6}, v{LT[1]}\n s_nop 7"); two_way(send_payload)
            if opt.get("selft", 1): A.vmem(f"buffer_load_dword v{V_END+3}, v{V_END+4}, s[24:27], s54 offen {opt.get('stfl', 'sc1')}", "ST")
        if not inloop_send or flag_slot >= nslots:
            A.need(["XS"]); two_way(send_flag)
        if not inloop_send or xpoll_slot >= nslots:
            A.vmem(f"buffer_load_dword v{V_TMP}, v{V_END+1}, s[24:27], s55 offen sc1", "XP")
        A.need(["XP"]); xcheck(); recv_loads()
    A.need(ltags=[("LR", 0)])
    lsum(LT[0])
    O = V_S[(n) % 2]
    for i in range(16): A(f"v_accvgpr_read_b32 v{O+i}, a{A_O+i}")
    A.need(["XR"])
    stamp("xr")
    A(f"v_add_f32 v{LT[0]}, v{LT[0]}, v{XR+16}")
    A(f"v_rcp_f32 v{V_TMP}, v{LT[0]}")
    for i in range(16): A(f"v_add_f32 v{O+i}, v{O+i}, v{XR+i}")
    for i in range(16): A(f"v_mul_f32 v{O+i}, v{O+i}, v{V_TMP}")
    pk = V_PO[0]
    for bq in range(4):
        A(f"v_cvt_pk_bf16_f32 v{pk+2*bq}, v{O+bq}, v{O+4+bq}")
        A(f"v_cvt_pk_bf16_f32 v{pk+2*bq+1}, v{O+8+bq}, v{O+12+bq}")
    A(f"buffer_store_dwordx4 v[{pk}:{pk+3}], v{vOUT}, s[28:31], s56 offen")
    A(f"buffer_store_dwordx4 v[{pk+4}:{pk+7}], v{vOUT}, s[28:31], s56 offen offset:16")
    A(f"""
    s_or_b32 s52, s38, s32
    s_cmp_lg_u32 s52, 0
    s_cbranch_scc1 L_nobump
    s_add_u32 s52, s39, 1
    s_lshl_b32 s53, s33, 7
    v_mov_b32 v{V_TMP}, s52
    s_mov_b64 exec, 1
    buffer_store_dword v{V_TMP}, v{vZ}, s[24:27], s53 offen
    """)
    A.label("L_nobump")
    if st:
        A("s_waitcnt vmcnt(0)")
        stamp("end")
        A("s_memrealtime s[98:99]\n s_waitcnt lgkmcnt(0)")
        A(f"s_lshl_b32 s50, s2, 2\n s_add_u32 s50, s50, s32\n s_lshl_b32 s51, s50, 7\n s_add_u32 s51, s51, {ST_OFF}")
        A("s_mov_b64 exec, 1")
        open("stampnames.txt", "w").write(" ".join(stl))
        for i in range(len(stl)):
            A(f"v_mov_b32 v10, s{64+2*i}\n v_mov_b32 v11, s{65+2*i}\n buffer_store_dwordx2 v[10:11], v{vZ}, s[24:27], s51 offen offset:{8*i}\n s_nop 1")
        A(f"s_lshl_b32 s50, s50, 4\n s_add_u32 s50, s50, {RT_OFF}")
        A(f"v_mov_b32 v24, s96\n v_mov_b32 v25, s97\n v_mov_b32 v26, s98\n v_mov_b32 v27, s99\n buffer_store_dwordx4 v[24:27], v{vZ}, s[24:27], s50 offen")
    A.label("L_end")
    A("s_endpgm")
    A.label("L_pollA_more")
    A(f"""
    s_cmp_lt_u32 s53, {opt.get("tmo", 64)}
    s_cbranch_scc1 L_pollA
    """)
    A(f"""
    s_barrier
    buffer_store_dword v{V_END+2}, v{V_END}, s[24:27], s60 offen sc1
    v_lshlrev_b32 v27, 4, v{V_END+5}
    s_lshl_b32 s52, s34, 11
    v_add_u32 v27, s52, v27
    s_mov_b32 s53, 0
    """)
    A.label("L_pollB0")
    A(f"""
    buffer_load_dword v26, v27, s[24:27], s60 offen sc1
    s_add_u32 s53, s53, 1
    s_waitcnt vmcnt(0)
    v_cmp_eq_u32 vcc, s61, v26
    s_cmp_eq_u64 vcc, -1
    s_cbranch_scc1 L_pollB0_ok
    s_sleep 4
    s_cmp_lt_u32 s53, 0x40000
    s_cbranch_scc1 L_pollB0
    """)
    A.label("L_pollB0_ok")
    for b_ in range(4): A(f"s_add_u32 s{42+b_}, s{42+b_}, {RB-RA}")
    A("s_mov_b32 s3, 1\n s_branch L_go")
    o = ["; generated by gen4.py\n", f"; @launch grid=(256,1,1) block=(256,1,1) lds={LDS_BYTES}\n", TARGET, A.text(),
         ".fill 4096, 4, 0xBF800000\n", kd(KN, 512, sgpr=102, accum=256)]
    return "".join(o)

if __name__ == "__main__":
    opt = {}
    out = sys.argv[1]
    for a_ in sys.argv[2:]:
        k, v = a_.split("=")
        try: v = int(v)
        except:
            try: v = float(v)
            except: pass
        opt[k] = v
    import hazcheck
    t, n = hazcheck.fix(gen(opt))
    print("nops inserted:", n)
    open(out, "w").write(t)
```

```python
from asmlib import *
def text(mode, RT_OFF, ST_OFF, repi, k):
    o = [head("rep_kernel")]
    A = o.append
    A(f"""
  s_cmp_lg_u32 s2, 0
  s_cbranch_scc1 R_end
  s_load_dwordx2 s[4:5], s[0:1], 104
  s_waitcnt lgkmcnt(0)
  v_mov_b32 v10, -1
  v_mov_b32 v11, 0
  v_mov_b32 v12, 0
  v_mov_b32 v13, -1
""")
    if mode == "cyc":
        A(f"  v_lshlrev_b32 v1, 7, v0\n  v_add_u32 v1, {ST_OFF}, v1\n")
        for i in range(16):
            A(f"  global_load_dword v2, v1, s[4:5]\n  global_load_dword v4, v1, s[4:5] offset:{8*repi}\n  s_waitcnt vmcnt(0)\n  v_sub_u32 v4, v4, v2\n  v_lshrrev_b32 v4, 4, v4\n  v_add_u32 v12, v12, v4\n  v_add_u32 v1, 8192, v1\n")
        A("  v_mov_b32 v10, 0\n")
    else:
        A(f"  v_lshlrev_b32 v1, 4, v0\n  v_add_u32 v1, {RT_OFF}, v1\n  v_mov_b32 v20, {RT_OFF}\n  global_load_dword v21, v20, s[4:5]\n  s_waitcnt vmcnt(0)\n  v_subrev_u32 v21, 100000, v21\n")
        for i in range(16):
            A("  global_load_dwordx4 v[2:5], v1, s[4:5]\n  s_waitcnt vmcnt(0)\n")
            if mode == "own": A("  v_sub_u32 v4, v4, v2\n  v_mov_b32 v2, 0\n")
            else: A("  v_sub_u32 v2, v2, v21\n  v_sub_u32 v4, v4, v21\n")
            A("  v_min_u32 v10, v10, v2\n  v_max_u32 v11, v11, v4\n  v_min_u32 v13, v13, v4\n  v_add_u32 v12, v12, v4\n  v_add_u32 v1, 1024, v1\n")
    A("  s_mov_b32 s10, -1\n  s_mov_b32 s11, 0\n  s_mov_b32 s12, 0\n  s_mov_b32 s13, -1\n  s_nop 1\n")
    for l in range(64):
        A(f"  v_readlane_b32 s6, v10, {l}\n  v_readlane_b32 s7, v11, {l}\n  v_readlane_b32 s8, v12, {l}\n  v_readlane_b32 s9, v13, {l}\n  s_min_u32 s10, s10, s6\n  s_max_u32 s11, s11, s7\n  s_add_u32 s12, s12, s8\n  s_min_u32 s13, s13, s9\n")
    if mode == "max": A("  s_sub_u32 s14, s11, s10\n")
    elif mode == "min": A("  s_sub_u32 s14, s13, s10\n")
    else: A("  s_lshr_b32 s14, s12, 10\n  s_sub_u32 s14, s14, s10\n")
    A(f"""
  s_min_u32 s14, s14, 5000
  s_mul_i32 s14, s14, {k}
  s_memrealtime s[16:17]
  s_waitcnt lgkmcnt(0)
  s_add_u32 s14, s14, s16
R_w:
  s_memrealtime s[16:17]
  s_waitcnt lgkmcnt(0)
  s_sub_u32 s15, s14, s16
  s_cmp_gt_i32 s15, 0
  s_cbranch_scc1 R_w
R_end:
  s_endpgm
""")
    return "".join(o)
```

```python
import sys, math, struct
from asmlib import *
from gen1 import Asm, f2u

KN = NAME + "_kernel"
TILE = 10240
BLK = 4 * TILE
RA = 1 << 20
RB = 4 << 20
X_OFF = 8 << 20
E_OFF = 0
FA_OFF = 4096
FB_OFF = 8192
ST_OFF = 16 << 20
RT_OFF = 17 << 20
SCALE = math.log2(math.e) / math.sqrt(128.0)

LDS_P = 0
NPB = 3
LDS_Q = NPB * 16384
LDS_T = LDS_Q + 16896
LDS_L = LDS_T + 16384
LDS_K = LDS_L + 2048
LDS_M = LDS_K + 4 * 2304
LDS_BYTES = LDS_M + 64

vLANE, vK0, vK1, vV, vPW, vPR, vT, vLW, vLR, vOUT, vX, vZ = 2, 3, 4, 5, 9, 10, 13, 14, 15, 16, 17, 18
vT2, vT3 = 19, 0
V_L = 20
V_TMP = 22
V_S = [24, 56]
V_PO = [88, 104]
V_VR = 120
NVR = 4
V_VE = 152
NVE = 8
V_LV = [184, 200]
V_RV = [216, 232]
V_END = 248
A_Q = 0
A_K = [64, 96, 128]
A_P = 160
A_O = 208
COST = dict(l=8, r=4, w=20, e=8, a=4, c=4, bar=42)

def bitop(fn): return fn(0xF0, 0xCC, 0xAA) & 0xFF

def gen(opt):
    A = Asm()
    st = opt.get("stamps")
    stl = []
    stsel = set(opt.get("st", "start,karg,issued,lq,tables,ks,kconv,stored,qrope,ackA,bar1,flagsA,mfma0,slot96,loopend,end").split(","))
    rtdone = []
    def stamp(name):
        if st and opt.get("rtst") == name and not rtdone:
            rtdone.append(1); A("s_memrealtime s[98:99]")
        if st and opt.get("rtst0") == name:
            A("s_memrealtime s[96:97]")
        if st and name in stsel and name not in stl:
            i = len(stl); stl.append(name); assert i < 16
            A(f"s_memtime s[{64+2*i}:{65+2*i}]")
    nfull = opt.get("nfull", 6); nsolo = 16 - 2*nfull; nblk = nfull + nsolo
    rounds = [[(r, 0), (r, 1)] for r in range(nfull)] + [[(nfull + 2*i, 0), (nfull + 2*i + 1, 0)] for i in range(nsolo//2)]
    n = len(rounds)
    nt = "nt" if opt.get("nt", 1) else ""
    CPL = opt.get("cpl", 36)
    A.raw(head(KN))
    A("""
    s_cmp_ge_u32 s2, 256
    s_cbranch_scc1 L_end
    s_load_dwordx16 s[4:19], s[0:1], 0
    s_load_dwordx2 s[22:23], s[0:1], 104
    s_getpc_b64 s[60:61]
    v_lshlrev_b32 v64, 5, v0
    """)
    A.vmem(f"global_load_dword v255, v64, s[60:61]", "cpf")
    stamp("start")
    if st: A("s_memrealtime s[96:97]")
    A(f"""
    s_and_b32 s52, s2, 7
    s_lshr_b32 s35, s2, 3
    s_lshl_b32 s57, s52, 5
    s_or_b32 s57, s57, s35
    s_lshl_b32 s53, s57, 14
    v_and_b32 v25, 7, v0
    v_lshrrev_b32 v26, 3, v0
    v_lshl_add_u32 v29, v25, 4, s53
    v_lshl_add_u32 v28, v26, 9, v29
    v_and_b32 v24, 7, v26
    v_lshrrev_b32 v1, 6, v0
    v_lshl_add_u32 v29, v24, 11, v29
    v_lshl_add_u32 v29, v1, 7, v29
    s_lshl_b32 s53, s57, 6
    v_lshl_add_u32 v27, v26, 1, s53
    s_and_b32 s53, s53, 0x3000
    v_lshl_add_u32 v70, v0, 4, s53
    s_waitcnt lgkmcnt(0)
    """)
    stamp("karg")
    A.vmem(f"global_load_ushort v30, v27, s[8:9] {nt}", "KS")
    A.vmem(f"global_load_ushort v31, v27, s[10:11] {nt}", "KS")
    A.vmem(f"global_load_dwordx4 v[88:91], v70, s[14:15] {opt.get('tsfl','')}", "TS")
    A.vmem(f"global_load_dwordx4 v[92:95], v70, s[16:17] {opt.get('tsfl','')}", "TS")
    for i in range(4):
        A.vmem(f"global_load_dwordx4 v[{32+4*i}:{35+4*i}], v28, s[6:7] offset:{128*i} {nt}", "KR")
    for m in range(4):
        A.vmem(f"global_load_dwordx4 v[{48+4*m}:{51+4*m}], v29, s[12:13] offset:{512*m} {nt}", "VRAW")
    A(f"""
    v_readfirstlane_b32 s32, v1
    v_and_b32 v{vLANE}, 63, v0
    v_bfe_u32 v26, v27, 1, 11
    """)
    A(f"""
    s_lshr_b32 s33, s52, 1
    s_and_b32 s34, s52, 1
    s_lshl_b32 s59, s52, 8
    s_add_u32 s59, s59, {FA_OFF}
    s_lshl_b32 s53, s33, 7
    s_load_dword s39, s[22:23], s53
    s_load_dwordx2 s[20:21], s[0:1], 88
    s_and_b32 s36, s35, 1
    s_lshr_b32 s37, s35, 1
    s_lshl_b32 s53, s34, 4
    s_add_u32 s37, s37, s53
    s_and_b32 s38, s57, 63
    s_mov_b32 s24, s22
    s_and_b32 s25, s23, 0xffff
    s_mov_b32 s26, 0x10000000
    s_mov_b32 s27, 0x20000
    s_mul_i32 s58, s57, {TILE}
    s_add_u32 s58, s58, {RA}
    s_add_u32 s63, s58, {RB - RA}
    s_lshl_b32 s57, s33, 11
    s_lshl_b32 s54, s2, 2
    s_add_u32 s54, s54, s32
    s_xor_b32 s55, s54, 32
    s_lshl_b32 s54, s54, 13
    s_add_u32 s54, s54, {X_OFF}
    s_lshl_b32 s55, s55, 13
    s_add_u32 s55, s55, {X_OFF}
    """)
    stamp("issued")
    def trig(posf, cf, nn, c, s):
        for j in range(nn): A(f"v_mul_f32 v{s+j}, v{posf}, v{cf+j}")
        for j in range(nn): A(f"v_fract_f32 v{s+j}, v{s+j}")
        for j in range(nn):
            A(f"v_cos_f32 v{c+j}, v{s+j}")
            if j: A(f"v_cvt_pk_bf16_f32 v{s+j-1}, v{c+j-1}, v{s+j-1}")
            A(f"v_sin_f32 v{s+j}, v{s+j}")
            if j: A(f"v_lshlrev_b32 v{c+j-1}, 16, v{s+j-1}")
        A(f"v_and_b32 v{s}, 0xffff0000, v{s}")
        A(f"v_cvt_pk_bf16_f32 v{s+nn-1}, v{c+nn-1}, v{s+nn-1}")
        for j in range(1, nn-1): A(f"v_and_b32 v{s+j}, 0xffff0000, v{s+j}")
        A(f"v_lshlrev_b32 v{c+nn-1}, 16, v{s+nn-1}")
        A(f"v_and_b32 v{s+nn-1}, 0xffff0000, v{s+nn-1}")
    def freqs(idxreg, mul, cf, nn):
        A(f"v_mul_u32_u24 v104, {mul}, v{idxreg}\n v_cvt_f32_u32 v104, v104")
        A(f"s_mov_b32 s52, {hex(f2u(-math.log2(10000.0)/64))}\n s_mov_b32 s53, {hex(f2u(1/(2*math.pi)))}\n s_mov_b32 s3, {hex(f2u(0.01/(2*math.pi)))}")
        for j in range(nn): A(f"v_add_f32 v{cf+j}, {hex(f2u(float(j)))}, v104")
        for j in range(nn): A(f"v_mul_f32 v{cf+j}, s52, v{cf+j}")
        for j in range(nn): A(f"v_exp_f32 v{cf+j}, v{cf+j}")
        for j in range(nn): A(f"v_mul_f32 v{cf+nn+j}, s3, v{cf+j}")
        for j in range(nn): A(f"v_mul_f32 v{cf+j}, s53, v{cf+j}")
    KC, KSN, KB1, KB2 = 108, 116, 124, 132
    QC, QS = 140, 156
    def w_trigK():
        freqs(25, 4, 96, 4)
        A("v_cvt_f32_u32 v104, v26")
        trig(104, 96, 8, KC, KSN)
    def w_kaddr():
        A(f"""
        s_mul_i32 s52, s32, 2560
        s_add_u32 s52, s52, s58
        v_lshlrev_b32 v65, 7, v{vLANE}
        v_add_u32 v65, s52, v65
        v_mov_b32 v66, s59
        v_cmp_gt_u32 vcc, {opt.get("ptl", 20)}, v{vLANE}
        s_add_u32 s52, s54, 4352
        v_mov_b32 v67, s52
        v_cndmask_b32 v65, v66, v65, vcc
        v_cmp_eq_u32 vcc, 20, v{vLANE}
        s_mul_i32 s52, s32, 2304
        s_add_u32 s52, s52, {LDS_K}
        v_cndmask_b32 v65, v65, v67, vcc
        v_mul_u32_u24 v172, 144, v25
        v_lshl_add_u32 v172, v24, 4, v172
        v_add_u32 v172, s52, v172
        v_mul_u32_u24 v173, 144, v24
        v_lshl_add_u32 v173, v25, 4, v173
        v_add_u32 v173, s52, v173
        v_lshlrev_b32 v174, 9, v24
        v_lshl_add_u32 v174, v25, 4, v174
        v_lshl_add_u32 v174, v1, 7, v174
        v_add_u32 v175, 0x1000, v174
        v_lshlrev_b32 v176, 3, v0
        v_add_u32 v176, 0x2000, v176
        v_mov_b32 v177, 0x05040100
        v_mov_b32 v178, 0x07060302
        v_and_b32 v179, 16, v{vLANE}
        v_cmp_ne_u32 vcc, 0, v179
        s_getreg_b32 s41, hwreg(HW_REG_XCC_ID, 0, 4)
        v_mov_b32 v182, 0x11111111
        v_cndmask_b32 v177, v177, v178, vcc
        """)
    def l_cpf2():
        NCL = opt.get("ncl", 96)
        A(f"""
        s_getpc_b64 s[18:19]
        L_pc2:
        s_add_u32 s18, s18, {KN}+8192-L_pc2
        s_addc_u32 s19, s19, 0
        v_min_u32 v64, {NCL//32 - 1}, v{vLANE}
        v_lshl_add_u32 v64, v64, 2, v1
        s_and_b32 s53, s35, 7
        v_lshl_add_u32 v64, v64, 3, s53
        v_lshlrev_b32 v64, 7, v64
        """)
        A.vmem(f"global_load_dword v255, v64, s[18:19]", "cpf")
    def l_pt():
        A.vmem(f"buffer_load_dword v254, v65, s[24:27], 0 offen {opt.get('ptfl', 'nt')}", "PT")
    def w_qaddr():
        A(f"""
        s_lshr_b32 s52, s32, 1
        s_xor_b32 s53, s52, s36
        s_lshl_b32 s3, s37, 1
        s_add_u32 s53, s53, s3
        s_lshl_b32 s53, s53, 5
        s_and_b32 s3, s32, 1
        s_lshl_b32 s3, s3, 4
        s_add_u32 s53, s53, s3
        v_lshrrev_b32 v66, 2, v{vLANE}
        v_and_b32 v71, 3, v{vLANE}
        v_add_u32 v67, s53, v66
        v_add_u32 v68, s57, v67
        v_lshlrev_b32 v68, 8, v68
        v_lshl_add_u32 v68, v71, 4, v68
        s_mul_i32 s52, s52, 8448
        s_lshl_b32 s3, s3, 4
        s_add_u32 s52, s52, s3
        s_add_u32 s52, s52, {LDS_Q}
        v_mul_u32_u24 v180, 1056, v71
        v_lshl_add_u32 v180, v66, 4, v180
        v_add_u32 v180, s52, v180
        """)
    def l_q():
        for k in range(4):
            A.vmem(f"global_load_dwordx4 v[{72+4*k}:{75+4*k}], v68, s[4:5] offset:{64*k} {opt.get('qfl', 'nt')}", "QR")
    def w_trigQ():
        freqs(71, 8, 208, 8)
        A("v_cvt_f32_u32 v104, v67")
        trig(104, 208, 16, QC, QS)
        A(f"s_mov_b32 s52, {hex(f2u(SCALE))}")
        for j in range(32): A(f"v_mul_f32 v{QC+j}, s52, v{QC+j}")
    def w_tsaddr():
        A(f"""
        s_lshl_b32 s52, s34, 3
        s_lshl_b32 s53, s36, 2
        s_add_u32 s60, s52, s53
        s_xor_b32 s52, s52, 8
        s_mul_i32 s53, s36, {nfull-4}
        s_add_u32 s61, s52, s53
        s_add_u32 s62, s52, {2*(nfull-4)}
        v_lshlrev_b32 v69, 5, v0
        v_add_u32 v69, {LDS_T}, v69
        v_lshrrev_b32 v104, 5, v{vLANE}
        v_lshlrev_b32 v104, 4, v104
        v_lshl_add_u32 v104, v1, 7, v104
        v_add_u32 v104, {LDS_T}, v104
        s_lshl_b32 s52, s60, 9
        v_add_u32 v{vT}, s52, v104
        s_lshl_b32 s52, s61, 9
        v_add_u32 v{vT2}, s52, v104
        s_lshl_b32 s52, s62, 9
        v_add_u32 v{vT3}, s52, v104
        s_lshl_b32 s52, s33, 4
        """)
        for src, reg, b0, b1 in (("s60", RA, 0, 4), ("s61", RB, 4, nfull), ("s62", RB, nfull, nblk)):
            if b1 > b0:
                A(f"s_add_u32 s53, s52, {src}\n s_mul_i32 s53, s53, {BLK}")
                for b in range(b0, b1): A(f"s_add_u32 s{42+b}, s53, {reg + (b-b0)*BLK}")
    def w_paddr():
        A(f"""
        v_lshlrev_b32 v{vX}, 4, v{vLANE}
        s_mul_i32 s52, s32, {TILE}
        v_add_u32 v{vK0}, s52, v{vX}
        v_add_u32 v{vK1}, 0x1000, v{vK0}
        v_lshrrev_b32 v104, 5, v{vLANE}
        v_lshl_add_u32 v105, v104, 3, v25
        v_bfe_u32 v106, v{vLANE}, 3, 2
        v_lshl_add_u32 v105, v106, 4, v105
        v_lshlrev_b32 v105, 3, v105
        s_lshl_b32 s53, s32, 9
        s_add_u32 s53, s53, 8192
        v_lshl_add_u32 v{vPW}, v1, 12, v{vX}
        """)
        for i in range(4):
            A(f"s_add_u32 s52, s32, {i}\n s_and_b32 s52, s52, 3")
            if i: A(f"s_lshl_b32 s3, s52, 12\n v_add_u32 v{vPR+i-1}, s3, v{vX}")
            A(f"s_mul_i32 s52, s52, {TILE}\n s_add_u32 s52, s52, s53\n v_add_u32 v{vV+i}, s52, v105")
        A(f"""
        v_and_b32 v{vLR}, 31, v{vLANE}
        v_lshlrev_b32 v{vOUT}, 8, v{vLR}
        v_lshl_add_u32 v{vOUT}, v104, 5, v{vOUT}
        v_mul_u32_u24 v181, 528, v104
        v_lshl_add_u32 v181, v{vLR}, 4, v181
        v_add_u32 v181, {LDS_Q}, v181
        v_lshlrev_b32 v{vLR}, 5, v{vLR}
        v_add_u32 v{vLR}, {LDS_L}, v{vLR}
        v_lshl_add_u32 v{vLW}, v104, 2, v{vLR}
        v_lshl_add_u32 v{vLW}, v1, 3, v{vLW}
        v_mov_b32 v{vZ}, 0
        v_mov_b32 v{V_L}, 0
        v_mov_b32 v{V_L+1}, 0
        s_lshl_b32 s56, s33, 6
        s_lshl_b32 s52, s37, 1
        s_add_u32 s56, s56, s52
        s_add_u32 s56, s56, s36
        s_lshl_b32 s56, s56, 13
        s_lshl_b32 s52, s32, 6
        s_add_u32 s56, s56, s52
        v_mov_b32 v{V_END+1}, 0x20000000
        s_lshl_b32 s53, s38, 6
        v_mov_b32 v{V_END}, s53
        v_cmp_eq_u32 vcc, 0, v0
        s_lshl_b32 s53, s35, 2
        v_mov_b32 v{V_END+4}, s53
        v_cndmask_b32 v{V_END}, v{V_END+1}, v{V_END}, vcc
        v_cndmask_b32 v{V_END+4}, v{V_END+1}, v{V_END+4}, vcc
        v_and_b32 v104, 15, v{vLANE}
        s_lshl_b32 s53, s36, 4
        v_add_u32 v{V_END+5}, s53, v104
        v_lshlrev_b32 v{V_END+5}, 2, v{V_END+5}
        v_lshl_add_u32 v{V_END+3}, v1, 4, v104
        v_lshlrev_b32 v{V_END+3}, 6, v{V_END+3}
        """)
    def w_tables():
        A.need(["TS"])
        x = 184
        for k in range(4):
            A(f"v_lshlrev_b32 v{x+2*k}, 16, v{88+k}\n v_and_b32 v{x+2*k+1}, 0xffff0000, v{88+k}")
        A("s_mov_b32 s52, 0x3fc03fc0")
        A("v_xor_b32 v92, s52, v92\n v_xor_b32 v93, s52, v93\n v_xor_b32 v94, s52, v94\n v_xor_b32 v95, s52, v95")
        A("v_or3_b32 v92, v92, v93, v94\n v_or_b32 v92, v92, v95")
        mm = [f"v_min3_f32 v93, v{x}, v{x+1}, v{x+2}", f"v_min3_f32 v93, v93, v{x+3}, v{x+4}", f"v_min3_f32 v93, v93, v{x+5}, v{x+6}", f"v_min_f32 v93, v93, v{x+7}",
              f"v_max3_f32 v94, v{x}, v{x+1}, v{x+2}", f"v_max3_f32 v94, v94, v{x+3}, v{x+4}", f"v_max3_f32 v94, v94, v{x+5}, v{x+6}", f"v_max_f32 v94, v94, v{x+7}"]
        for k in range(8):
            A(f"v_log_f32 v{192+k}, v{x+k}\n {mm[k]}\n v_rcp_f32 v{200+k}, v{x+k}")
        A(f"""
        s_mov_b32 s52, 0x30800000
        s_mov_b32 s53, 0x4e800000
        v_cmp_le_f32 vcc, s52, v93
        v_cmp_ge_f32 s[18:19], s53, v94
        s_and_b64 vcc, vcc, s[18:19]
        v_cmp_eq_u32 s[18:19], 0, v92
        s_and_b64 vcc, vcc, s[18:19]
        v_mov_b32 v93, 0x7fc00000
        s_nop 1
        v_cndmask_b32 v200, v93, v200, vcc
        """)
        A.ds("ds_write_b128 v69, v[192:195]", "QW"); A.ds("ds_write_b128 v69, v[196:199] offset:16", "QW")
        A.ds("ds_write_b128 v69, v[200:203] offset:8192", "QW"); A.ds("ds_write_b128 v69, v[204:207] offset:8208", "QW")
    def w_qrope():
        A.need(["QR"])
        stamp("qr")
        x = 32; y = 96
        for k in range(16):
            A(f"v_lshlrev_b32 v{x+2*k}, 16, v{72+k}\n v_and_b32 v{x+2*k+1}, 0xffff0000, v{72+k}")
        z = 208
        for half in range(2):
            js = [4*half + t for t in range(4)] + [8 + 4*half + t for t in range(4)]
            for t, j in enumerate(js):
                A(f"v_mul_f32 v{y+t}, v{x+j}, v{QC+j}\n v_mul_f32 v{y+8+t}, v{x+16+j}, v{QC+j}")
            for t, j in enumerate(js):
                A(f"v_fma_f32 v{y+t}, -v{x+16+j}, v{QS+j}, v{y+t}\n v_fmac_f32 v{y+8+t}, v{x+j}, v{QS+j}")
            zz = z + 8*half
            for k in range(8): A(f"v_cvt_pk_bf16_f32 v{zz+k}, v{y+2*k}, v{y+2*k+1}")
            A.ds(f"ds_write_b128 v180, v[{zz}:{zz+3}] offset:{528*half}", "QW")
            A.ds(f"ds_write_b128 v180, v[{zz+4}:{zz+7}] offset:{528*half + 8*528}", "QW")
    def w_coef():
        A.need(["KS"])
        A("v_lshlrev_b32 v30, 16, v30\n v_lshlrev_b32 v31, 16, v31")
        for j in range(16): A(f"v_mul_f32 v{KC+j}, v30, v{KC+j}")
        for j in range(8):
            A(f"v_sub_f32 v{KB1+j}, v{KSN+j}, v{KC+j}")
            A(f"v_add_f32 v{KB2+j}, v{KC+j}, v{KSN+j}")
        for j in range(8):
            A(f"v_mul_f32 v{KB1+j}, v31, v{KB1+j}")
            A(f"v_mul_f32_e64 v{KB2+j}, -v31, v{KB2+j}")
        A("s_waitcnt lgkmcnt(0)"); A.lg = []
    W = dict(cpf2=l_cpf2, trigK=w_trigK, kaddr=w_kaddr, pt=l_pt, qaddr=w_qaddr, lq=l_q, trigQ=w_trigQ, tsaddr=w_tsaddr, coef=w_coef, paddr=w_paddr, tables=w_tables, qrope=w_qrope)
    def run(seq):
        for x_ in seq.split("."):
            if x_: W[x_](); stamp(x_)
    run(opt.get("o1", "trigK.kaddr.pt.cpf2.qaddr.trigQ.paddr.lq.tsaddr.coef.tables"))
    A.need(["KR"])
    stamp("ks")
    for j in range(16): A(f"v_cvt_f32_i32 v{32+j}, v{32+j}")
    for j in range(8):
        A(f"v_fmac_f32 v{KB1+j}, v{32+j}, v{KC+j}")
        A(f"v_fmac_f32 v{KB2+j}, v{40+j}, v{KC+j}")
    for j in range(8):
        A(f"v_fma_f32 v{KB1+j}, -v{40+j}, v{KSN+j}, v{KB1+j}")
        A(f"v_fmac_f32 v{KB2+j}, v{32+j}, v{KSN+j}")
    for p in range(8): A(f"v_cvt_pk_bf16_f32 v{32+p}, v{KB1+2*p}, v{KB1+2*p+1}")
    A.ds("ds_write_b128 v172, v[32:35]", "KT")
    A.ds("ds_write_b128 v172, v[36:39] offset:1152", "KT")
    A.ds("ds_read_b128 v[124:127], v173", "KT2")
    A.ds("ds_read_b128 v[128:131], v173 offset:1152", "KT2")
    stamp("kconv")
    A.need(["VRAW"])
    for c in range(4): A(f"v_lshl_or_b32 v{48+c}, v{52+c}, 4, v{48+c}")
    for c in range(4): A(f"v_lshl_or_b32 v{56+c}, v{60+c}, 4, v{56+c}")
    for c in range(4): A(f"v_lshl_or_b32 v{48+c}, v{56+c}, 8, v{48+c}")
    A("v_lshl_or_b32 v48, v49, 16, v48\n v_lshl_or_b32 v49, v51, 16, v50")
    A("s_mov_b32 s52, 0x22222222\n s_mov_b32 s53, 0x88888888")
    A("v_permlane32_swap_b32 v48, v49")
    A("v_mov_b32 v50, v48\n v_mov_b32 v51, v49")
    A.need(ltags=["KT2"])
    A.vmem("buffer_store_dwordx4 v[124:127], v174, s[24:27], s58 offen", "SA")
    A.vmem("buffer_store_dwordx4 v[128:131], v175, s[24:27], s58 offen", "SA")
    A("v_permlane16_swap_b32 v48, v50\n v_permlane16_swap_b32 v49, v51")
    A("v_perm_b32 v132, v50, v48, v177\n v_perm_b32 v133, v51, v49, v177")
    t1 = bitop(lambda a, b, c: ~(a ^ b) & c); t2 = bitop(lambda a, b, c: (~a & b) | c)
    for r in (132, 133):
        A(f"v_lshlrev_b32 v55, 1, v{r}\n v_lshlrev_b32 v56, 2, v{r}")
        A(f"v_bitop3_b32 v55, v{r}, v55, s52 bitop3:{hex(t1)}")
        A(f"v_bitop3_b32 v56, v56, s53, v182 bitop3:{hex(t2)}")
        A(f"v_or_b32 v{r}, v55, v56")
    A.vmem("buffer_store_dwordx2 v[132:133], v176, s[24:27], s58 offen", "SA")
    run(opt.get("o2", ""))
    A.vmem("buffer_store_dwordx4 v[124:127], v174, s[24:27], s63 offen sc1", "SB")
    A.vmem("buffer_store_dwordx4 v[128:131], v175, s[24:27], s63 offen sc1", "SB")
    A.vmem("buffer_store_dwordx2 v[132:133], v176, s[24:27], s63 offen sc1", "SB")
    stamp("stored")
    A(f"""
    s_mul_i32 s40, s39, 0x9E3779B1
    s_add_u32 s40, s40, 0x7F4A7C15
    s_and_b32 s40, s40, 0xfffffff0
    s_mov_b32 s28, s20
    s_and_b32 s29, s21, 0xffff
    s_mov_b32 s30, 0x200000
    s_mov_b32 s31, 0x20000
    """)
    run(opt.get("o3", "qrope"))
    A(f"""
    s_or_b32 s62, s40, s41
    s_or_b32 s61, s40, 8
    s_lshl_b32 s60, s33, 12
    s_add_u32 s60, s60, {FB_OFF}
    v_mov_b32 v24, s62
    v_mov_b32 v{V_END+2}, s61
    """)
    A.need(["SA"], ["QW"])
    stamp("ackA")
    A("s_barrier")
    A.vmem(f"buffer_store_dword v24, v{V_END+4}, s[24:27], s59 offen", "FA")
    stamp("bar1")
    def qread(i):
        A.ds(f"ds_read_b128 a[{A_Q+4*i}:{A_Q+4*i+3}], v181 offset:{(i//8)*8448 + (i%8)*1056}", ("Q", i//8, i%8))
    for q_ in range(4):
        A.ds(f"ds_read_b128 v[{V_LV[0]+4*q_}:{V_LV[0]+4*q_+3}], v{vT} offset:{q_*32}", ("LV", 0, q_))
    for i in range(10): qread(i)
    A.need(ltags=[("Q", 0, 3)])
    for i in range(10, 16): qread(i)
    if opt.get("polld"): A(f"s_sleep {opt['polld']}")
    A("s_mov_b32 s53, 0")
    A.label("L_pollA")
    A(f"""
    buffer_load_dword v26, v{V_END+5}, s[24:27], s59 offen sc1
    s_add_u32 s53, s53, 1
    s_waitcnt vmcnt(0)
    v_cmp_eq_u32 vcc, s62, v26
    s_cmp_eq_u64 vcc, -1
    s_cbranch_scc0 L_pollA_more
    """)
    A.vm = []
    stamp("flagsA")

    order = []
    for r in range(n):
        order.append(("QK", r))
        if r >= 1: order.append(("PV", r-1))
    order.append(("PV", n-1))
    mf = []; a = [0]*n; b = [0]*n
    for kind, r in order:
        if kind == "QK":
            a[r] = len(mf)
            for u in range(2):
                for s in range(8): mf.append(("QK", r, u, s))
        else:
            b[r] = len(mf)
            for kk in range(8):
                for u in range(2): mf.append(("PV", r, u, kk))
    nslots = len(mf)
    firstuse = {}; lastuse = {}
    for sl, m in enumerate(mf):
        blk = rounds[m[1]][m[2]][0]
        key = ("K" if m[0] == "QK" else "V", blk, m[3])
        firstuse.setdefault(key, sl); lastuse[key] = sl
    kbuf = {}; kfree = {}
    pool = [(A_K[i], None) for i in range(3)]
    q1dead = a[nfull-1] + 15
    hold = [None, None, None]; bases = list(A_K)
    if nsolo: bases.append(A_Q + 32); hold.append("Q1")
    for blk in range(nblk):
        def rel(h): return -1 if h is None else (q1dead if h == "Q1" else lastuse[("K", h, 7)])
        i = min(range(len(bases)), key=lambda i: rel(hold[i]))
        for s in range(8):
            h = hold[i]
            kfree[(blk, s)] = -1 if h is None else (a[nfull-1] + 8 + s if h == "Q1" else lastuse[("K", h, s)])
        kbuf[blk] = bases[i]; hold[i] = blk
    vexp = sorted({k for k in firstuse if k[0] == "V"}, key=lambda k: firstuse[k])
    vereg = {k: V_VE + (i % NVE)*4 for i, k in enumerate(vexp)}
    vefree = {k: (-1 if i < NVE else lastuse[vexp[i-NVE]]) for i, k in enumerate(vexp)}
    vedone = {}
    gate = b[opt.get("gater", 1)] - opt.get("barlead", 2)
    lead_v = opt.get("leadv", 40)
    loads = [(firstuse[("K", blk, s)], ("K", blk, s)) for blk in range(nblk) for s in range(8)]
    loads += [(firstuse[("V", blk, 2*i)] - lead_v + 24, ("VR", blk, i)) for blk in range(nblk) for i in range(4)]
    loads = [k for _, k in sorted(loads, key=lambda x: x[0])]
    need_at = {k: (firstuse[k] if k[0] == "K" else firstuse[("V", k[1], 2*k[2])] - 10) for k in loads}
    def ld_free(key):
        f = -1
        if key[0] == "K": f = kfree[(key[1], key[2])]
        elif key[1] >= NVR:
            pk = ("V", key[1]-NVR, 2*key[2]+1)
            f = vedone.get(pk, 10**6)
        if key[1] >= 4: f = max(f, gate)
        return f
    def ld(key):
        k, blk, f = key
        if k == "K":
            rg = kbuf[blk] + 4*f
            A.vmem(f"buffer_load_dwordx4 a[{rg}:{rg+3}], v{vK0 + f//4}, s[24:27], s{42+blk} offen offset:{(f%4)*1024}", key)
        else:
            rg = V_VR + (blk % NVR)*8 + 2*f
            A.vmem(f"buffer_load_dwordx2 v[{rg}:{rg+1}], v{vV+f}, s[24:27], s{42+blk} offen", key)
    tb = []
    for r in range(n):
        for u in range(2):
            if not tb or tb[-1][0] != rounds[r][u][0]: tb.append((rounds[r][u][0], r, u))
    lvreg = {blk: V_LV[i % 2] for i, (blk, _, _) in enumerate(tb)}
    rvreg = {blk: V_RV[i % 2] for i, (blk, _, _) in enumerate(tb)}
    lv_use = {blk: firstuse[("K", blk, 0)] for blk, _, _ in tb}
    lv_last = {blk: lastuse[("K", blk, 0)] for blk, _, _ in tb}
    rv_done = {}
    lvq = [("LV", blk, q, i) for i, (blk, r, u) in enumerate(tb) for q in range(4)]
    rvq = [("RV", blk, q, i) for i, (blk, r, u) in enumerate(tb) for q in range(4)]
    tdone = {}
    NXT = opt.get("nxt", 0); XTL = -(-33 // max(NXT, 1))
    xt_slots = [opt.get("xt0", 33) + opt.get("xtd", 32)*i for i in range(NXT)]
    assert (NXT-1)*XTL*128 < 4096
    npre = opt.get("npre", 8)
    A("s_mov_b32 s3, 0")
    A.label("L_go")
    for key in loads[:npre]: ld(key)
    def tread(t, sl_):
        k, blk, q, i = t
        rg = (lvreg if k == "LV" else rvreg)[blk] + 4*q
        tb_, rel_ = (vT, blk) if blk < 4 else ((vT2, blk-4) if blk < nfull else (vT3, blk-nfull))
        A.ds(f"ds_read_b128 v[{rg}:{rg+3}], v{tb_} offset:{rel_*512 + q*32 + (8192 if k == 'RV' else 0)}", (k, blk, q))
        tdone[(k, blk, q)] = sl_
    for q_ in range(4): lvq.pop(0); tdone[("LV", 0, q_)] = -5
    qrest = []
    A(f"""
    v_min_u32 v{V_END+4}, {XTL-1}, v{vLANE}
    v_lshlrev_b32 v{V_END+4}, 7, v{V_END+4}
    s_xor_b32 s53, s35, 1
    s_lshl_b32 s53, s53, 2
    v_mov_b32 v{V_END+5}, s53
    """)
    li = npre
    win = {}; prev_end = 0
    for r in range(n):
        w0 = max(a[r] + 10, prev_end); w1 = b[r] - opt.get("smend", 5)
        prev_end = w1; win[r] = (w0, w1)
    items = {}
    for r in range(n):
        S = V_S[r % 2]; PO = V_PO[r % 2]; L = []
        for e in range(33):
            if e < 32: L.append(("e", e, f"v_exp_f32 v{S+e}, v{S+e}", None))
            if e >= 1:
                blk, qt = rounds[r][(e-1)//16]; j = (e-1) % 16
                L.append(("a", e, f"v_fmac_f32 v{V_L+qt}, v{rvreg[blk]+j}, v{S+e-1}", (blk, j//4, (e-1)//16 == 1 or rounds[r][0][0] != rounds[r][1][0], j % 4 == 3)))
            if e >= 2 and e % 2 == 0:
                L.append(("c", e, f"v_cvt_pk_bf16_f32 v{PO + (e-2)//2}, v{S+e-2}, v{S+e-1}", None))
        items[r] = L
    cur = 0; ci = 0; pendw = []; nw = {r: 0 for r in range(n)}
    barlead = opt.get("barlead", 2)
    bar_at = {b[r] - barlead: r for r in range(n)}
    prq = [(r, kk, u, (kk-2)*2+u) for r in range(n) for kk in range(2, 8) for u in range(2)]
    prdone = set()
    lastw = -10
    send_slot = b[nfull-1] + 16 + 1
    inloop_send = send_slot + 6 < nslots
    flag_slot = send_slot + 5 + opt.get("flagdelay", 12)
    xpoll_slot = flag_slot + opt.get("xpolldelay", 10)
    xchk_slot = xpoll_slot + opt.get("xchkdelay", 9)
    pollB_slot = opt.get("pollslot", 30); chkB_slot = gate - opt.get("chklead", 3)
    XR = V_LV[0]
    def operands(m):
        blk = rounds[m[1]][m[2]][0]
        if m[0] == "QK":
            lt = [("Q", rounds[m[1]][m[2]][1], m[3])]
            if m[3] == 0: lt += [("LV", blk, q) for q in range(4)]
            return [("K", blk, m[3])], lt
        return [], [("PR", m[1], m[3], m[2])]
    def lsum(t_):
        A(f"v_add_f32 v{t_}, v{t_}, v{t_+1}\n v_add_f32 v{t_+2}, v{t_+2}, v{t_+3}\n v_add_f32 v{t_+4}, v{t_+4}, v{t_+5}\n v_add_f32 v{t_+6}, v{t_+6}, v{t_+7}")
        A(f"v_add_f32 v{t_}, v{t_}, v{t_+2}\n v_add_f32 v{t_+4}, v{t_+4}, v{t_+6}\n v_add_f32 v{t_}, v{t_}, v{t_+4}")
    LT = [24+0, 24+0]
    uid = [0]
    def two_way(fn):
        uid[0] += 1; u_ = uid[0]
        A(f"s_cmp_eq_u32 s62, 0\n s_cbranch_scc1 L_far{u_}")
        save = list(A.vm); fn(""); A(f"s_branch L_join{u_}"); A.label(f"L_far{u_}"); A.vm = save; fn("sc1"); A.label(f"L_join{u_}")
    def send_payload(fl):
        for i in range(4):
            o = A_O + 16 + 4*i
            A.vmem(f"buffer_store_dwordx4 a[{o}:{o+3}], v{vX}, s[24:27], s54 offen offset:{i*1024} {fl}", "XS")
        A.vmem(f"buffer_store_dword v{V_END+6}, v{V_END+7}, s[24:27], s54 offen {fl}", "XS")
    def send_flag(fl):
        A("s_mov_b64 exec, 1")
        A.vmem(f"buffer_store_dword v{V_END+2}, v{V_END+1}, s[24:27], s54 offen {fl}", "XF")
        A("s_mov_b64 exec, -1")
    def recv_loads():
        for i in range(4):
            A.vmem(f"buffer_load_dwordx4 v[{XR+4*i}:{XR+4*i+3}], v{vX}, s[24:27], s55 offen offset:{i*1024} sc1", "XR")
        A.vmem(f"buffer_load_dword v{XR+16}, v{V_END+7}, s[24:27], s55 offen sc1", "XR")
    def xcheck():
        A(f"v_readfirstlane_b32 s52, v{V_TMP}\n s_cmp_eq_u32 s52, s61\n s_cbranch_scc1 L_xok\n s_mov_b32 s53, 0")
        A.label("L_xspin")
        A(f"""
        buffer_load_dword v{V_TMP}, v{V_END+1}, s[24:27], s55 offen sc1
        s_add_u32 s53, s53, 1
        s_waitcnt vmcnt(0)
        v_readfirstlane_b32 s52, v{V_TMP}
        s_cmp_eq_u32 s52, s61
        s_cbranch_scc1 L_xok
        s_cmp_lt_u32 s53, 0x40000
        s_cbranch_scc1 L_xspin
        """)
        A.label("L_xok")
    seenO = set(); vi = 0; vpart = 0
    vt, lt = operands(mf[0]); A.need(vt, lt)
    stamp("mfma0")
    totcost = []
    pace = opt.get("pace", 1.9)
    lastld = -10
    for sl in range(nslots):
        m = mf[sl]
        blk, qt = rounds[m[1]][m[2]]
        if m[0] == "QK":
            _, r, u, s = m
            d = V_S[r % 2] + u*16
            c = f"v[{lvreg[blk]}:{lvreg[blk]+15}]" if s == 0 else f"v[{d}:{d+15}]"
            if s == 0: assert all(("LV", blk, q_) in tdone for q_ in range(4)), ("lv not read", sl)
            assert ("K", blk, s) in loads[:li], ("K not loaded", sl)
            k = kbuf[blk] + 4*s; q = A_Q + (qt*8+s)*4
            A(f"v_mfma_f32_32x32x16_bf16 v[{d}:{d+15}], a[{k}:{k+3}], a[{q}:{q+3}], {c}")
        else:
            _, r, u, kk = m
            d = A_O + qt*16
            c = "0" if qt not in seenO else f"a[{d}:{d+15}]"
            seenO.add(qt)
            assert ("V", blk, kk) in vedone, ("V frag not expanded", sl, m)
            assert kk < 2 or (r, kk, u) in prdone, ("P not read", sl)
            v = vereg[("V", blk, kk)]
            ps = f"v[{V_PO[r%2] + (u*2+kk)*4}:{V_PO[r%2] + (u*2+kk)*4+3}]" if kk < 2 else f"a[{A_P + ((kk-2)*2+u)*4}:{A_P + ((kk-2)*2+u)*4+3}]"
            A(f"v_mfma_f32_32x32x16_bf16 a[{d}:{d+15}], v[{v}:{v+3}], {ps}, {c}")
        stamp(f"slot{sl}")
        bud = 24
        vt, lt = operands(mf[sl+1]) if sl + 1 < nslots else ([], [])
        vt = list(vt); lt = list(lt)
        if vi < len(vexp): vt.append(("VR", vexp[vi][1], vexp[vi][2]//2)) if firstuse[vexp[vi]] - sl <= opt.get("vahead", 14) else None
        if cur < n:
            for it in (items[cur][ci:] + (items[cur+1] if cur+1 < n and sl >= a[cur+1] + 9 else []))[:8]:
                if it[0] == "a" and sl >= a[cur] + 9: lt.append(("RV", it[3][0], it[3][1]))
        if sl == chkB_slot: vt.append("PB")
        if inloop_send and sl == flag_slot: vt.append("XS")
        if inloop_send and sl == xchk_slot: vt.append("XP")
        if sl in bar_at:
            r = bar_at[sl]
            assert nw[r] == 4, ("P not written before barrier", r, sl)
            A.need(vt, lt + [("PW", r), "LW"])
            if not opt.get("nobar"): A("s_barrier")
            bud -= COST['bar']
            for q_ in ([1] if r == nfull-1 else []) + ([0] if r == n-1 else []):
                LT[q_] = V_S[r % 2] + 8*q_
                for hf in range(2):
                    A.ds(f"ds_read_b128 v[{LT[q_]+hf*4}:{LT[q_]+hf*4+3}], v{vLR} offset:{q_*1024 + hf*16}", ("LR", q_)); bud -= 4
        else:
            A.need(vt, lt)
        hasw = bool(pendw) and sl not in bar_at and not (sl + 1 in bar_at)
        nr = 0
        while nr < opt.get("maxr", 2) and len(A.lg) < 13:
            c_ = []
            if prq:
                r, kk, u, idx = prq[0]
                if sl >= b[r] - barlead and (r == 0 or sl >= b[r-1] + 4 + idx): c_.append((b[r] + 4 + idx - 5, "p"))
            if qrest: c_.append((qrest[0] - 5, "q"))
            if lvq:
                _, tblk, q, i = lvq[0]
                if (i < 2 or lv_last[tb[i-2][0]] + 1 < sl): c_.append((lv_use[tblk] - 8 + q, "lv"))
            if rvq:
                _, tblk, q, i = rvq[0]
                if (i < 2 or (tb[i-2][0], q) in rv_done): c_.append((lv_use[tblk] + 4 + 2*q, "rv"))
            if not c_: break
            d_, k_ = min(c_)
            if sl == lastw + 1 and d_ > sl - 2: break
            if nr >= 1 and d_ > sl + 1: break
            if hasw and d_ > sl + 1: break
            if d_ > sl + opt.get("rlead", 24): break
            if k_ == "p":
                r, kk, u, idx = prq.pop(0); rg = A_P + idx*4
                A.ds(f"ds_read_b128 a[{rg}:{rg+3}], v{vPR+kk//2-1} offset:{LDS_P + (r%NPB)*16384 + (u*2+kk%2)*1024}", ("PR", r, kk, u)); prdone.add((r, kk, u))
            elif k_ == "q": qread(qrest.pop(0))
            elif k_ == "lv": tread(lvq.pop(0), sl)
            else: tread(rvq.pop(0), sl)
            bud -= COST["r"]; nr += 1
        if hasw:
            r, f = pendw.pop(0); PO = V_PO[r % 2]
            if f == 3:
                for q_ in ([1] if r == nfull-1 else []) + ([0] if r == n-1 else []):
                    A.ds(f"ds_write_b32 v{vLW}, v{V_L+q_} offset:{q_*1024}", "LW"); bud -= 8
            A.ds(f"ds_write_b128 v{vPW}, v[{PO+4*f}:{PO+4*f+3}] offset:{LDS_P + (r%NPB)*16384 + f*1024}", ("PW", r)); bud -= COST["w"]; nw[r] += 1
            lastw = sl
        if sl == opt.get("fbslot", 7):
            A("s_cmp_eq_u32 s3, 0\n s_cbranch_scc0 L_skip2\n s_barrier")
            A.label("L_skip2")
            A.vmem(f"buffer_store_dword v{V_END+2}, v{V_END}, s[24:27], s60 offen sc1", "FB"); bud -= 50
        elif sl == pollB_slot:
            A.vmem(f"buffer_load_dword v{V_TMP}, v{V_END+3}, s[24:27], s60 offen sc1", "PB")
            A.vmem(f"buffer_load_dword v{V_TMP+1}, v{V_END+5}, s[24:27], s59 offen sc1", "PB")
            bud -= 16
        elif sl in xt_slots:
            A.vmem(f"buffer_load_dword v{V_END+6}, v{V_END+4}, s[24:27], s54 offen offset:{xt_slots.index(sl)*XTL*128} {opt.get('xtfl', 'nt')}", "XT"); bud -= 8
        elif li < len(loads) and not hasw and sl not in bar_at:
            key = loads[li]
            if ld_free(key) <= sl and (sl - lastld >= pace or need_at[key] - sl < opt.get("urg", 30)) and need_at[key] - sl <= opt.get("maxlead", 80):
                ld(key); li += 1; bud -= COST["l"]
                lastld = max(lastld + pace, sl - 1) if sl - lastld < 2*pace else sl
        if sl == chkB_slot:
            A(f"""
            v_cmp_eq_u32 vcc, s61, v{V_TMP}
            v_readfirstlane_b32 s62, v{V_TMP+1}
            s_cmp_eq_u64 vcc, -1
            s_cbranch_scc1 L_bok
            v_and_b32 v{V_TMP+1}, 15, v{vLANE}
            s_lshl_b32 s53, s32, 4
            v_add_u32 v{V_TMP+1}, s53, v{V_TMP+1}
            v_lshlrev_b32 v{V_TMP+1}, 6, v{V_TMP+1}
            s_mov_b32 s53, 0
            """)
            A.label("L_bspin")
            A(f"""
            buffer_load_dword v{V_TMP}, v{V_TMP+1}, s[24:27], s60 offen sc1
            s_add_u32 s53, s53, 1
            s_waitcnt vmcnt(0)
            v_cmp_eq_u32 vcc, s61, v{V_TMP}
            s_cmp_eq_u64 vcc, -1
            s_cbranch_scc1 L_bok
            s_cmp_lt_u32 s53, 0x40000
            s_cbranch_scc1 L_bspin
            """)
            A.label("L_bok")
            A(f"""
            s_or_b32 s52, s40, s41
            s_cmp_eq_u32 s62, s52
            s_cselect_b32 s62, 1, 0
            v_mov_b32 v{V_END+1}, 4352
            v_and_b32 v{V_END+7}, 31, v{vLANE}
            v_lshlrev_b32 v{V_END+7}, 2, v{V_END+7}
            v_add_u32 v{V_END+7}, 4096, v{V_END+7}
            """)
            bud -= 40
        if inloop_send:
            if sl == b[nfull-1] + 6:
                A.need(ltags=[("LR", 1)]); lsum(LT[1]); A(f"v_mov_b32 v{V_END+6}, v{LT[1]}"); bud -= 32
            if sl == send_slot + 1:
                stamp("send"); two_way(send_payload); bud -= 60
                if opt.get("selft", 1):
                    A.vmem(f"buffer_load_dword v{V_END+3}, v{V_END+4}, s[24:27], s54 offen {opt.get('stfl', 'sc1')}", "ST"); bud -= 8
            if sl == flag_slot:
                stamp("xack"); two_way(send_flag); bud -= 20
            if sl == xpoll_slot:
                A.vmem(f"buffer_load_dword v{V_TMP}, v{V_END+1}, s[24:27], s55 offen sc1", "XP"); bud -= 8
            if sl == xchk_slot:
                assert li == len(loads) and all(lv_last[t[0]] < sl for t in tb)
                stamp("xp"); xcheck(); stamp("xok"); recv_loads(); bud -= 50
        def vexp_step():
            nonlocal vi, vpart, bud
            key = vexp[vi]; src = V_VR + (key[1] % NVR)*8 + key[2]
            A(f"v_cvt_scalef32_pk_bf16_fp4 v{vereg[key]+vpart}, v{src}, 1.0 op_sel:[{vpart&1},{vpart>>1},0]")
            bud -= 4; vpart += 1
            if vpart == 4: vedone[key] = sl; vi += 1; vpart = 0
        def vexp_ok():
            if vi >= len(vexp): return False
            key = vexp[vi]
            tag = ("VR", key[1], key[2]//2)
            return vefree[key] <= sl and tag not in A.vm and tag in loads[:li]
        def sm_next():
            nonlocal cur, ci
            while cur < n and ci >= len(items[cur]): cur += 1; ci = 0
            if cur >= n: return None
            kind, e, txt, info = items[cur][ci]
            if sl < a[cur] + 10: return None
            if kind == "e" and e == 16 and sl < a[cur] + 18: return None
            if kind == "c" and cur >= 2 and sl < b[cur-2] + 4: return None
            if kind == "a" and tdone.get(("RV", info[0], info[1]), 10**6) > sl - 2: return None
            w1 = win[cur][1]
            return w1 - (32 - e) * opt.get("smrate", 0.9)
        def sm_step():
            nonlocal ci, bud
            kind, e, txt, info = items[cur][ci]
            if kind == "a":
                A.need(ltags=[("RV", info[0], info[1])])
                if info[2] and info[3]: rv_done[(info[0], info[1])] = sl
            A(txt); bud -= COST[kind]; ci += 1
            if kind == "c" and e % 8 == 0: pendw.append((cur, e//8 - 1))
        while True:
            ds_ = sm_next()
            dv = None
            if vi < len(vexp):
                dl = firstuse[vexp[vi]] - 2 - (3 - vpart) * 0.25
                if vexp_ok(): dv = dl
                elif firstuse[vexp[vi]] - sl <= 2:
                    A.need([("VR", vexp[vi][1], vexp[vi][2]//2)])
                    assert vexp_ok(), ("cannot expand in time", sl, vexp[vi])
                    dv = dl
            cands = [(d, k) for d, k in ((ds_, "s"), (dv, "v")) if d is not None]
            if not cands: break
            d, k = min(cands)
            if bud <= opt.get("fillto", 0) and d > sl: break
            (sm_step if k == "s" else vexp_step)()
        totcost.append(32 - bud)
    assert li == len(loads), (li, len(loads))
    if opt.get("verbose"):
        print("slot costs:", totcost, "sum:", sum(totcost), "sum max(32,c):", sum(max(32, c) for c in totcost), file=sys.stderr)
    stamp("loopend")
    if not inloop_send or flag_slot >= nslots or xpoll_slot >= nslots or xchk_slot >= nslots:
        if not inloop_send:
            A.need(ltags=[("LR", 1)]); lsum(LT[1]); A(f"v_mov_b32 v{V_END+6}, v{LT[1]}\n s_nop 7"); two_way(send_payload)
            if opt.get("selft", 1): A.vmem(f"buffer_load_dword v{V_END+3}, v{V_END+4}, s[24:27], s54 offen {opt.get('stfl', 'sc1')}", "ST")
        if not inloop_send or flag_slot >= nslots:
            A.need(["XS"]); two_way(send_flag)
        if not inloop_send or xpoll_slot >= nslots:
            A.vmem(f"buffer_load_dword v{V_TMP}, v{V_END+1}, s[24:27], s55 offen sc1", "XP")
        A.need(["XP"]); xcheck(); recv_loads()
    A.need(ltags=[("LR", 0)])
    lsum(LT[0])
    O = V_S[(n) % 2]
    for i in range(16): A(f"v_accvgpr_read_b32 v{O+i}, a{A_O+i}")
    A.need(["XR"])
    stamp("xr")
    A(f"v_add_f32 v{LT[0]}, v{LT[0]}, v{XR+16}")
    A(f"v_rcp_f32 v{V_TMP}, v{LT[0]}")
    for i in range(16): A(f"v_add_f32 v{O+i}, v{O+i}, v{XR+i}")
    for i in range(16): A(f"v_mul_f32 v{O+i}, v{O+i}, v{V_TMP}")
    pk = V_PO[0]
    for bq in range(4):
        A(f"v_cvt_pk_bf16_f32 v{pk+2*bq}, v{O+bq}, v{O+4+bq}")
        A(f"v_cvt_pk_bf16_f32 v{pk+2*bq+1}, v{O+8+bq}, v{O+12+bq}")
    A(f"buffer_store_dwordx4 v[{pk}:{pk+3}], v{vOUT}, s[28:31], s56 offen")
    A(f"buffer_store_dwordx4 v[{pk+4}:{pk+7}], v{vOUT}, s[28:31], s56 offen offset:16")
    A(f"""
    s_or_b32 s52, s38, s32
    s_cmp_lg_u32 s52, 0
    s_cbranch_scc1 L_nobump
    s_add_u32 s52, s39, 1
    s_lshl_b32 s53, s33, 7
    v_mov_b32 v{V_TMP}, s52
    s_mov_b64 exec, 1
    buffer_store_dword v{V_TMP}, v{vZ}, s[24:27], s53 offen
    """)
    A.label("L_nobump")
    if st:
        A("s_waitcnt vmcnt(0)")
        stamp("end")
        A(("" if rtdone else "s_memrealtime s[98:99]\n") + "s_waitcnt lgkmcnt(0)")
        A(f"s_lshl_b32 s50, s2, 2\n s_add_u32 s50, s50, s32\n s_lshl_b32 s51, s50, 7\n s_add_u32 s51, s51, {ST_OFF}")
        A("s_mov_b64 exec, 1")
        open("stampnames.txt", "w").write(" ".join(stl))
        for i in range(len(stl)):
            A(f"v_mov_b32 v10, s{64+2*i}\n v_mov_b32 v11, s{65+2*i}\n buffer_store_dwordx2 v[10:11], v{vZ}, s[24:27], s51 offen offset:{8*i}\n s_nop 1")
        A(f"s_lshl_b32 s50, s50, 4\n s_add_u32 s50, s50, {RT_OFF}")
        A(f"v_mov_b32 v24, s96\n v_mov_b32 v25, s97\n v_mov_b32 v26, s98\n v_mov_b32 v27, s99\n buffer_store_dwordx4 v[24:27], v{vZ}, s[24:27], s50 offen")
    A.label("L_end")
    A("s_endpgm")
    A.label("L_pollA_more")
    A(f"""
    s_cmp_lt_u32 s53, {opt.get("tmo", 64)}
    s_cbranch_scc1 L_pollA
    """)
    A(f"""
    s_barrier
    buffer_store_dword v{V_END+2}, v{V_END}, s[24:27], s60 offen sc1
    v_lshlrev_b32 v27, 4, v{V_END+5}
    s_lshl_b32 s52, s34, 11
    v_add_u32 v27, s52, v27
    s_mov_b32 s53, 0
    """)
    A.label("L_pollB0")
    A(f"""
    buffer_load_dword v26, v27, s[24:27], s60 offen sc1
    s_add_u32 s53, s53, 1
    s_waitcnt vmcnt(0)
    v_cmp_eq_u32 vcc, s61, v26
    s_cmp_eq_u64 vcc, -1
    s_cbranch_scc1 L_pollB0_ok
    s_sleep 4
    s_cmp_lt_u32 s53, 0x40000
    s_cbranch_scc1 L_pollB0
    """)
    A.label("L_pollB0_ok")
    for b_ in range(4): A(f"s_add_u32 s{42+b_}, s{42+b_}, {RB-RA}")
    A("s_mov_b32 s3, 1\n s_branch L_go")
    o = ["; generated by gen4.py\n", f"; @launch grid=(256,1,1) block=(256,1,1) lds={LDS_BYTES}\n", TARGET, A.text(),
         ".fill 4096, 4, 0xBF800000\n", kd(KN, 512, sgpr=102, accum=256)]
    if opt.get("rep"):
        import reporter
        o[1] = f"; @launch kernel={KN} grid=(256,1,1) block=(256,1,1) lds={LDS_BYTES}\n; @launch kernel=rep_kernel grid=(1,1,1) block=(64,1,1) lds=0\n"
        o[4] = o[4] + reporter.text(opt["rep"], RT_OFF, ST_OFF, opt.get("repi", 0), opt.get("repk", 20))
        o.append(kd("rep_kernel", 32))
    return "".join(o)

if __name__ == "__main__":
    opt = {}
    out = sys.argv[1]
    for a_ in sys.argv[2:]:
        k, v = a_.split("=")
        try: v = int(v)
        except:
            try: v = float(v)
            except: pass
        opt[k] = v
    import hazcheck
    t, n = hazcheck.fix(gen(opt))
    print("nops inserted:", n)
    open(out, "w").write(t)
```

```python
import sys, math, struct
from asmlib import *
from gen1 import Asm, f2u

KN = NAME + "_kernel"
TILE = 10240
BLK = 4 * TILE
RA = 1 << 20
RB = 4 << 20
X_OFF = 8 << 20
FA_OFF = 4096
FB_OFF = 8192
ST_OFF = 16 << 20
RT_OFF = 17 << 20
SCALE = math.log2(math.e) / math.sqrt(128.0)

LDS_K = 0
LDS_L = 9216
LDS_Q = LDS_L + 2048
LDS_T = LDS_Q + 16896
LDS_P = 45056
NPB = 3
LDS_BYTES = LDS_P + NPB * 16384
assert LDS_T + 16384 <= LDS_P

vT3, vW, vLANE, vK0, vK1, vV, vPW, vPR, vT, vLW, vLR, vOUT, vX, vT2 = 0, 1, 2, 3, 4, 5, 9, 10, 13, 14, 15, 16, 17, 18
vFB, V_L, V_TMP = 19, 20, 22
V_S = [24, 56]
V_PO = [88, 104]
COST = dict(l=8, r=4, w=20, e=8, a=4, c=4, bar=42)
A_Q = 0
A_K = [64, 96, 128]
A_P = 160
A_O = 208

def bitop(fn): return fn(0xF0, 0xCC, 0xAA) & 0xFF

def gen(opt):
    A = Asm()
    OOL = Asm()
    st = opt.get("stamps")
    stl = []; rtdone = []
    stsel = set(opt.get("st", "start,karg,issued,pre,ks,kconv,stored,mid,ackA,bar1,flagsA,mfma0,slot96,slot192,loopend,end").split(","))
    def stamp(name):
        if st and opt.get("rtst") == name and not rtdone:
            rtdone.append(1); A("s_memrealtime s[98:99]")
        if st and opt.get("rtst0") == name: A("s_memrealtime s[96:97]")
        if st and name in stsel and name not in stl:
            i = len(stl); stl.append(name); assert i < 16
            A(f"s_memtime s[{64+2*i}:{65+2*i}]")
    NVR = opt.get("nvr", 3); NVE = opt.get("nve", 6); OARCH = opt.get("oarch", 1)
    V_VR = 120; V_VE = V_VR + NVR*8
    V_LV = [V_VE + NVE*4, V_VE + NVE*4 + 16]; V_RV = [V_LV[1] + 16, V_LV[1] + 32]
    V_O0 = V_RV[1] + 16
    V_END = V_O0 + (16 if OARCH else 0)
    assert V_END + 8 <= 256, V_END
    vTAG, vPB, vXF, vXL, vXT, vPA, vLS = V_END, V_END+1, V_END+2, V_END+3, V_END+4, V_END+5, V_END+6
    nfull = opt.get("nfull", 6); nsolo = 16 - 2*nfull; nblk = nfull + nsolo
    rounds = [[(r, 0), (r, 1)] for r in range(nfull)] + [[(nfull + 2*i, 0), (nfull + 2*i + 1, 0)] for i in range(nsolo//2)]
    n = len(rounds)
    nt = opt.get("ntfl", "")
    XSC1 = opt.get("xsc1", 0)
    A.raw(head(KN))
    A("""
    s_cmp_ge_u32 s2, 256
    s_cbranch_scc1 L_end
    s_load_dwordx16 s[4:19], s[0:1], 0
    s_load_dwordx2 s[22:23], s[0:1], 104
    s_getpc_b64 s[60:61]
    v_lshlrev_b32 v64, 5, v0
    """)
    A.vmem("global_load_dword v255, v64, s[60:61]", "cpf")
    stamp("start")
    if st: A("s_memrealtime s[96:97]")
    A(f"""
    s_and_b32 s52, s2, 7
    s_lshr_b32 s35, s2, 3
    s_lshl_b32 s57, s52, 5
    s_or_b32 s57, s57, s35
    s_lshl_b32 s53, s57, 14
    v_and_b32 v25, 7, v0
    v_lshrrev_b32 v26, 3, v0
    v_lshl_add_u32 v29, v25, 4, s53
    v_lshl_add_u32 v28, v26, 9, v29
    v_and_b32 v24, 7, v26
    v_lshrrev_b32 v{vW}, 6, v0
    v_lshl_add_u32 v29, v24, 11, v29
    v_lshl_add_u32 v29, v{vW}, 7, v29
    s_lshl_b32 s53, s57, 6
    v_lshl_add_u32 v27, v26, 1, s53
    s_waitcnt lgkmcnt(0)
    """)
    stamp("karg")
    for i in range(4):
        A.vmem(f"global_load_dwordx4 v[{32+4*i}:{35+4*i}], v28, s[6:7] offset:{128*i} {nt}", "KR")
    A.vmem(f"global_load_ushort v30, v27, s[8:9] {nt}", "KR")
    A.vmem(f"global_load_ushort v31, v27, s[10:11] {nt}", "KR")
    for m in range(4):
        A.vmem(f"global_load_dwordx4 v[{48+4*m}:{51+4*m}], v29, s[12:13] offset:{512*m} {nt}", "VRAW")
    A(f"""
    v_readfirstlane_b32 s32, v{vW}
    v_and_b32 v{vLANE}, 63, v0
    s_lshr_b32 s33, s52, 1
    s_lshl_b32 s53, s33, 7
    s_load_dword s39, s[22:23], s53
    s_load_dwordx2 s[20:21], s[0:1], 88
    s_and_b32 s34, s52, 1
    s_lshl_b32 s59, s52, 8
    s_add_u32 s59, s59, {FA_OFF}
    s_and_b32 s36, s35, 1
    s_mov_b32 s24, s22
    s_and_b32 s25, s23, 0xffff
    s_mov_b32 s26, 0x10000000
    s_mov_b32 s27, 0x20000
    s_mul_i32 s58, s57, {TILE}
    s_add_u32 s58, s58, {RA}
    s_lshl_b32 s54, s2, 2
    s_add_u32 s54, s54, s32
    s_lshl_b32 s54, s54, 13
    s_add_u32 s54, s54, {X_OFF}
    """)
    stamp("issued")
    KF = -math.log2(10000.0) / 64
    def trig(idx, mul, pos, nn, t, P1, P2):
        A(f"""
        v_cvt_f32_u32 v{t}, v{idx}
        v_mul_f32 v{t}, {hex(f2u(KF*mul))}, v{t}
        v_exp_f32 v{t}, v{t}
        v_cvt_f32_u32 v{t+1}, v{pos}
        v_mul_f32 v{t}, v{t}, v{t+1}
        """)
        cst = [10000.0 ** (-(j % (nn//2) + 32*(j // (nn//2))) / 64.0) / (2*math.pi) for j in range(nn)]
        A(f"v_mul_f32 v{P2}, {hex(f2u(cst[0]))}, v{t}")
        for j in range(nn):
            A(f"v_cos_f32 v{t+2+2*(j%2)}, v{P2+j}")
            if j + 1 < nn: A(f"v_mul_f32 v{P2+j+1}, {hex(f2u(cst[j+1]))}, v{t}")
            if j: A(f"v_cvt_pk_bf16_f32 v{P1+j-1}, v{t+2+2*((j-1)%2)}, v{t+3+2*((j-1)%2)}")
            A(f"v_sin_f32 v{t+3+2*(j%2)}, v{P2+j}")
            if j: A(f"v_cvt_pk_bf16_f32 v{P2+j-1}, v{t+3+2*((j-1)%2)}, v{t+2+2*((j-1)%2)}")
        j = nn - 1
        A(f"v_cvt_pk_bf16_f32 v{P1+j}, v{t+2+2*(j%2)}, v{t+3+2*(j%2)}")
        A(f"v_cvt_pk_bf16_f32 v{P2+j}, v{t+3+2*(j%2)}, v{t+2+2*(j%2)}")
    KP1, KP2, QP1, QP2 = 96, 104, 112, 128
    def w_trigK():
        A("v_bfe_u32 v150, v27, 1, 11")
        trig(25, 4, 150, 8, 144, KP1, KP2)
    def w_kaddr():
        A(f"""
        v_mul_u32_u24 v173, 144, v26
        v_lshl_add_u32 v173, v25, 4, v173
        v_lshl_add_u32 v174, v{vW}, 3, v25
        v_mul_u32_u24 v172, 144, v174
        v_lshl_add_u32 v172, v24, 4, v172
        v_lshlrev_b32 v174, 4, v174
        v_lshl_add_u32 v174, v24, 9, v174
        v_add_u32 v175, 0x1000, v174
        v_lshlrev_b32 v176, 3, v0
        v_add_u32 v176, 0x2000, v176
        v_bfe_i32 v177, v0, 4, 1
        v_and_b32 v177, 0x02020202, v177
        v_or_b32 v177, 0x05040100, v177
        v_mov_b32 v178, 0x11111111
        s_add_u32 s63, s58, {RB - RA}
        """)
    def l_pt():
        A(f"""
        s_mul_i32 s52, s32, 2560
        s_add_u32 s52, s52, s58
        v_lshl_add_u32 v65, v{vLANE}, 7, s52
        v_mov_b32 v66, s59
        s_add_u32 s52, s54, 4352
        v_cmp_gt_u32 vcc, {opt.get("ptl", 20)}, v{vLANE}
        v_writelane_b32 v66, s52, 20
        s_nop 0
        v_cndmask_b32 v65, v66, v65, vcc
        """)
        A.vmem(f"buffer_load_dword v254, v65, s[24:27], 0 offen {opt.get('ptfl', '')}", "PT")
    def l_cpf2():
        NCL = opt.get("ncl", 128)
        A(f"""
        v_min_u32 v64, {NCL//32 - 1}, v{vLANE}
        v_lshl_add_u32 v64, v64, 2, v{vW}
        s_and_b32 s53, s35, 7
        s_add_u32 s53, s53, 64
        v_lshl_add_u32 v64, v64, 3, s53
        v_lshlrev_b32 v64, 7, v64
        """)
        A.vmem(f"global_load_dword v255, v64, s[60:61]", "cpf")
    def w_qaddr():
        A(f"""
        s_lshr_b32 s52, s32, 1
        s_xor_b32 s53, s57, s52
        s_lshl_b32 s53, s53, 5
        v_bfe_u32 v66, v0, 2, 5
        v_and_b32 v71, 3, v0
        v_add_u32 v67, s53, v66
        v_lshlrev_b32 v68, 8, v67
        v_lshl_add_u32 v68, v71, 4, v68
        v_and_b32 v67, 2047, v67
        s_mul_i32 s52, s52, 8448
        v_mul_u32_u24 v180, 1056, v71
        v_lshl_add_u32 v180, v66, 4, v180
        v_add_u32 v180, s52, v180
        """)
    def l_q():
        for k in range(4):
            A.vmem(f"global_load_dwordx4 v[{72+4*k}:{75+4*k}], v68, s[4:5] offset:{64*k} {opt.get('qfl', '')}", "QR")
    def l_ts():
        A("s_lshl_b32 s53, s33, 12\n v_lshl_add_u32 v70, v0, 4, s53")
        A.vmem(f"global_load_dwordx4 v[88:91], v70, s[14:15]", "TS")
        A.vmem(f"global_load_dwordx4 v[92:95], v70, s[16:17]", "TS")
    def w_trigQ():
        trig(71, 8, 67, 16, 144, QP1, QP2)
    def w_blk():
        A(f"""
        s_lshl_b32 s52, s34, 3
        s_lshl_b32 s53, s36, 2
        s_add_u32 s18, s52, s53
        s_xor_b32 s52, s52, 8
        s_mul_i32 s53, s36, {nfull-4}
        s_add_u32 s19, s52, s53
        s_add_u32 s3, s52, {2*(nfull-4)}
        v_lshlrev_b32 v179, 5, v0
        v_lshrrev_b32 v151, 5, v{vLANE}
        v_lshlrev_b32 v152, 4, v151
        v_lshl_add_u32 v152, v{vW}, 7, v152
        s_lshl_b32 s52, s18, 9
        v_add_u32 v{vT}, s52, v152
        s_lshl_b32 s52, s19, 9
        v_add_u32 v{vT2}, s52, v152
        v_cmp_eq_u32 vcc, 0, v0
        s_lshl_b32 s52, s33, 4
        """)
        for src, reg, b0, b1 in (("s18", RA, 0, 4), ("s19", RB, 4, nfull), ("s3", RB, nfull, nblk)):
            if b1 > b0:
                A(f"s_add_u32 s53, s52, {src}\n s_mul_i32 s53, s53, {BLK}")
                for b_ in range(b0, b1): A(f"s_add_u32 s{42+b_}, s53, {reg + (b_-b0)*BLK}")
        A(f"""
        v_bfrev_b32 v153, 4
        v_cndmask_b32 v{vFB}, v153, 0, vcc
        s_lshl_b32 s53, s36, 6
        v_and_b32 v154, 15, v{vLANE}
        v_lshl_add_u32 v{vPA}, v154, 2, s53
        v_lshlrev_b32 v{vX}, 4, v{vLANE}
        v_lshl_add_u32 v23, v151, 4, v{vX}
        s_mul_i32 s52, s32, {TILE}
        v_add_u32 v{vK0}, s52, v{vX}
        v_add_u32 v{vK1}, 0x1000, v{vK0}
        s_getreg_b32 s41, hwreg(HW_REG_XCC_ID, 0, 4)
        """)
    def w_vaddr():
        A(f"""
        v_lshl_add_u32 v155, v151, 3, v25
        v_bfe_u32 v156, v{vLANE}, 3, 2
        v_lshl_add_u32 v155, v156, 4, v155
        v_lshlrev_b32 v155, 3, v155
        v_lshl_add_u32 v155, v{vW}, 9, v155
        v_add_u32 v156, {LDS_P}, v{vX}
        """)
        for i in range(4):
            A(f"s_add_u32 s52, s32, {i}\n s_and_b32 s52, s52, 3\n s_lshl_b32 s53, s52, 12\n v_add_u32 v{vPW+i}, s53, v156")
            A(f"s_mul_i32 s52, s52, {TILE}\n s_add_u32 s52, s52, 8192\n v_add_u32 v{vV+i}, s52, v155")
    late = []
    def w_late():
        late.extend(f"""
        v_mov_b32 v{V_L}, 0
        v_mov_b32 v{V_L+1}, 0
        v_and_b32 v{vPB}, 15, v{vLANE}
        v_lshl_add_u32 v{vPB}, v{vW}, 4, v{vPB}
        v_lshlrev_b32 v{vPB}, 6, v{vPB}
        s_xor_b32 s37, s35, 1
        s_lshl_b32 s37, s37, 2
        s_add_u32 s37, s37, s59
        v_and_b32 v{vLR}, 31, v{vLANE}
        v_lshrrev_b32 v{V_TMP}, 5, v{vLANE}
        v_lshlrev_b32 v{vOUT}, 8, v{vLR}
        v_lshl_add_u32 v{vOUT}, v{V_TMP}, 5, v{vOUT}
        v_lshlrev_b32 v{vXL}, 2, v{vLR}
        v_add_u32 v{vXL}, 4096, v{vXL}
        v_lshlrev_b32 v{vLR}, 5, v{vLR}
        v_lshl_add_u32 v{vLW}, v{V_TMP}, 2, v{vLR}
        v_lshl_add_u32 v{vLW}, v{vW}, 3, v{vLW}
        v_mov_b32 v{vXF}, 4352
        v_min_u32 v{vXT}, 32, v{vLANE}
        v_lshlrev_b32 v{vXT}, 7, v{vXT}
        s_sub_u32 s38, 2, s36
        s_mul_i32 s38, s38, {(nfull-4)*512}
        v_add_u32 v{vT3}, s38, v{vT2}
        s_xor_b32 s55, s54, 0x40000
        s_lshl_b32 s56, s57, 13
        s_lshl_b32 s38, s32, 6
        s_add_u32 s56, s56, s38
        s_mov_b32 s28, s20
        s_and_b32 s29, s21, 0xffff
        s_mov_b32 s30, 0x200000
        s_mov_b32 s31, 0x20000
        """.strip().split("\n"))
    def w_tables():
        A.need(["TS"])
        x = 184
        for k in range(4):
            A(f"v_lshlrev_b32 v{x+2*k}, 16, v{88+k}\n v_and_b32 v{x+2*k+1}, 0xffff0000, v{88+k}")
        A("s_mov_b32 s52, 0x3fc03fc0")
        ex = ["v_xor_b32 v92, s52, v92", "v_xor_b32 v93, s52, v93", "v_xor_b32 v94, s52, v94", "v_xor_b32 v95, s52, v95",
              "v_or3_b32 v92, v92, v93, v94", "v_or_b32 v92, v92, v95", "v_mov_b32 v95, 0x7fc00000", "v_cmp_eq_u32 s[52:53], 0, v92"]
        for k in range(8): A(f"v_log_f32 v{192+k}, v{x+k}\n {ex[k]}")
        ex = ["v_max3_f32 v93, |v192|, |v193|, |v194|", "v_max3_f32 v94, |v195|, |v196|, |v197|", "v_max3_f32 v93, |v198|, |v199|, v93", "v_max_f32 v93, v93, v94",
              "v_cmp_gt_f32 vcc, 0x41f00000, v93", "s_nop 0", "s_and_b64 vcc, vcc, s[52:53]", "s_nop 0"]
        A(f"v_rcp_f32 v200, v{x}")
        A.ds(f"ds_write_b128 v179, v[192:195] offset:{LDS_T}", "QW"); A.ds(f"ds_write_b128 v179, v[196:199] offset:{LDS_T+16}", "QW")
        for k in range(1, 8): A(f"{ex[k-1]}\n v_rcp_f32 v{200+k}, v{x+k}")
        A("v_cndmask_b32 v200, v95, v200, vcc")
        A.ds(f"ds_write_b128 v179, v[200:203] offset:{LDS_T+8192}", "QW"); A.ds(f"ds_write_b128 v179, v[204:207] offset:{LDS_T+8208}", "QW")
    def w_qrope():
        A.need(["QR"])
        A("s_mov_b32 s52, 0x05040100\n s_mov_b32 s53, 0x07060302")
        x = 32
        for k in range(8):
            A(f"v_perm_b32 v{x+2*k}, v{80+k}, v{72+k}, s52\n v_perm_b32 v{x+2*k+1}, v{80+k}, v{72+k}, s53")
        for half in range(2):
            js = [4*half + t for t in range(4)] + [8 + 4*half + t for t in range(4)]
            y = 48 + 16*half
            for t, j in enumerate(js): A(f"v_dot2_f32_bf16 v{y+t}, v{x+j}, v{QP1+j}, 0 neg_hi:[0,1,0]")
            for t, j in enumerate(js): A(f"v_dot2_f32_bf16 v{y+8+t}, v{x+j}, v{QP2+j}, 0")
        for half in range(2):
            y = 48 + 16*half; zz = 208 + 8*half
            for k in range(8): A(f"v_cvt_pk_bf16_f32 v{zz+k}, v{y+2*k}, v{y+2*k+1}")
            A.ds(f"ds_write_b128 v180, v[{zz}:{zz+3}] offset:{LDS_Q + 528*half}", "QW")
            A.ds(f"ds_write_b128 v180, v[{zz+4}:{zz+7}] offset:{LDS_Q + 528*half + 8*528}", "QW")
    def w_flush():
        for l_ in late: A(l_)
        late.clear()
    def w_warm():
        if opt.get("hooks"): A("s_mov_b64 exec, 0\n s_branch L_hook0"); A.label("L_warmed"); A("s_mov_b64 exec, -1")
    W = dict(trigK=w_trigK, kaddr=w_kaddr, pt=l_pt, cpf2=l_cpf2, q=l_q, qaddr=w_qaddr, ts=l_ts, trigQ=w_trigQ, blk=w_blk, vaddr=w_vaddr,
             tables=w_tables, qrope=w_qrope, flush=w_flush, warm=w_warm)
    def run(seq):
        for x_ in seq.split("."):
            if x_: W[x_](); stamp(x_)
    w_late()
    run(opt.get("o1", "pt.trigK.kaddr.cpf2.qaddr.trigQ.blk.vaddr.q.ts"))
    stamp("pre")
    A.need(["KR"])
    stamp("ks")
    A(f"v_lshlrev_b32 v30, 16, v30\n v_lshlrev_b32 v31, 16, v31\n v_mul_f32 v30, {hex(f2u(SCALE))}, v30\n v_mul_f32 v31, v31, v30")
    for j in range(16): A(f"v_cvt_f32_i32 v{32+j}, v{32+j}")
    for j in range(16): A(f"v_fma_f32 v{32+j}, v{32+j}, v30, -v31")
    for j in range(8): A(f"v_cvt_pk_bf16_f32 v{32+j}, v{32+j}, v{40+j}")
    for j in range(8): A(f"v_dot2_f32_bf16 v{KP1+j}, v{32+j}, v{KP1+j}, 0 neg_hi:[0,1,0]")
    for j in range(8): A(f"v_dot2_f32_bf16 v{KP2+j}, v{32+j}, v{KP2+j}, 0")
    for p in range(4): A(f"v_cvt_pk_bf16_f32 v{40+p}, v{KP1+2*p}, v{KP1+2*p+1}")
    A("s_waitcnt lgkmcnt(0)"); A.lg = []
    A.ds("ds_write_b128 v172, v[40:43]", "KT")
    for p in range(4): A(f"v_cvt_pk_bf16_f32 v{44+p}, v{KP2+2*p}, v{KP2+2*p+1}")
    A.ds("ds_write_b128 v172, v[44:47] offset:4608", "KT")
    A.ds("ds_read_b128 v[160:163], v173", "KT2")
    A.ds("ds_read_b128 v[164:167], v173 offset:4608", "KT2")
    stamp("kconv")
    A.need(["VRAW"])
    for c in range(4): A(f"v_lshl_or_b32 v{48+c}, v{52+c}, 4, v{48+c}")
    for c in range(4): A(f"v_lshl_or_b32 v{56+c}, v{60+c}, 4, v{56+c}")
    for c in range(4): A(f"v_lshl_or_b32 v{48+c}, v{56+c}, 8, v{48+c}")
    A("v_lshl_or_b32 v48, v49, 16, v48\n v_lshl_or_b32 v49, v51, 16, v50")
    A("s_mov_b32 s52, 0x22222222\n s_mov_b32 s53, 0x88888888")
    A("v_permlane32_swap_b32 v48, v49")
    A("v_mov_b32 v50, v48\n v_mov_b32 v51, v49")
    A.need(ltags=["KT2"])
    A.vmem("buffer_store_dwordx4 v[160:163], v174, s[24:27], s58 offen", "SA")
    A.vmem("buffer_store_dwordx4 v[164:167], v175, s[24:27], s58 offen", "SA")
    A("v_permlane16_swap_b32 v48, v50\n v_permlane16_swap_b32 v49, v51")
    A("v_perm_b32 v168, v50, v48, v177\n v_perm_b32 v169, v51, v49, v177")
    t1 = bitop(lambda a, b, c: ~(a ^ b) & c); t2 = bitop(lambda a, b, c: (~a & b) | c)
    for r in (168, 169):
        A(f"v_lshlrev_b32 v55, 1, v{r}\n v_lshlrev_b32 v56, 2, v{r}")
        A(f"v_bitop3_b32 v55, v{r}, v55, s52 bitop3:{hex(t1)}")
        A(f"v_bitop3_b32 v56, v56, s53, v178 bitop3:{hex(t2)}")
        A(f"v_or_b32 v{r}, v55, v56")
    A.vmem("buffer_store_dwordx2 v[168:169], v176, s[24:27], s58 offen", "SA")
    run(opt.get("o2", ""))
    A.vmem("buffer_store_dwordx4 v[160:163], v174, s[24:27], s63 offen sc1", "SB")
    A.vmem("buffer_store_dwordx4 v[164:167], v175, s[24:27], s63 offen sc1", "SB")
    A.vmem("buffer_store_dwordx2 v[168:169], v176, s[24:27], s63 offen sc1", "SB")
    stamp("stored")
    run(opt.get("o3", "qrope.tables"))
    A(f"""
    s_mul_i32 s40, s39, 0x9E3779B1
    s_add_u32 s40, s40, 0x7F4A7C15
    s_and_b32 s40, s40, 0xfffffff0
    s_or_b32 s62, s40, s41
    s_lshl_b32 s63, s35, 2
    s_add_u32 s63, s63, s59
    v_mov_b32 v24, s62
    """)
    stamp("mid")
    A.need(["SA"], ["QW"])
    stamp("ackA")
    A("s_barrier")
    A.vmem(f"buffer_store_dword v24, v{vFB}, s[24:27], s63 offen", "FA")
    stamp("bar1")
    def qread(i):
        A.ds(f"ds_read_b128 a[{A_Q+4*i}:{A_Q+4*i+3}], v23 offset:{LDS_Q + (i//8)*8448 + (i%8)*1056}", ("Q", i//8, i%8))
    for q_ in range(4):
        A.ds(f"ds_read_b128 v[{V_LV[0]+4*q_}:{V_LV[0]+4*q_+3}], v{vT} offset:{LDS_T + q_*32}", ("LV", 0, q_))
    for i in range(10): qread(i)
    A(f"""
    s_or_b32 s61, s40, 8
    s_lshl_b32 s60, s33, 12
    s_add_u32 s60, s60, {FB_OFF}
    s_lshl_b32 s18, s57, 6
    s_add_u32 s18, s18, {FB_OFF}
    v_mov_b32 v{vTAG}, s61
    s_mov_b32 s3, 0
    s_mov_b32 s19, 0
    """)
    run(opt.get("o4", ""))
    A.need(ltags=[("Q", 0, 3)])
    for i in range(10, 16): qread(i)
    A.label("L_pollA")
    A(f"buffer_load_dword v26, v{vPA}, s[24:27], s59 offen sc1")
    run(opt.get("o5", "warm"))
    A(f"""
    s_waitcnt vmcnt(0)
    v_cmp_eq_u32 vcc, s62, v26
    s_cmp_eq_u64 vcc, -1
    s_cbranch_scc0 L_pollA_more
    """)
    A.vm = []
    stamp("flagsA")
    OOL.label("L_pollA_more")
    OOL(f"""
    s_add_u32 s19, s19, 1
    s_cmp_lt_u32 s19, {opt.get("tmo", 64)}
    s_cbranch_scc1 L_pollA
    s_barrier
    buffer_store_dword v{vTAG}, v{vFB}, s[24:27], s18 offen sc1
    v_lshlrev_b32 v27, 4, v{vPA}
    s_lshl_b32 s52, s34, 11
    v_add_u32 v27, s52, v27
    s_mov_b32 s53, 0
    """)
    OOL.label("L_pollB0")
    OOL(f"""
    buffer_load_dword v26, v27, s[24:27], s60 offen sc1
    s_add_u32 s53, s53, 1
    s_waitcnt vmcnt(0)
    v_cmp_eq_u32 vcc, s61, v26
    s_cmp_eq_u64 vcc, -1
    s_cbranch_scc1 L_pollB0_ok
    s_sleep 4
    s_cmp_lt_u32 s53, 0x100000
    s_cbranch_scc1 L_pollB0
    """)
    OOL.label("L_pollB0_ok")
    for b_ in range(4): OOL(f"s_add_u32 s{42+b_}, s{42+b_}, {RB-RA}")
    OOL("s_mov_b32 s3, 1\n s_branch L_go")

    order = []
    for r in range(n):
        order.append(("QK", r))
        if r >= 1: order.append(("PV", r-1))
    order.append(("PV", n-1))
    mf = []; a = [0]*n; b = [0]*n
    for kind, r in order:
        if kind == "QK":
            a[r] = len(mf)
            for u in range(2):
                for s in range(8): mf.append(("QK", r, u, s))
        else:
            b[r] = len(mf)
            for kk in range(8):
                for u in range(2): mf.append(("PV", r, u, kk))
    nslots = len(mf)
    firstuse = {}; lastuse = {}
    for sl, m in enumerate(mf):
        blk = rounds[m[1]][m[2]][0]
        key = ("K" if m[0] == "QK" else "V", blk, m[3])
        firstuse.setdefault(key, sl); lastuse[key] = sl
    kbuf = {}; kfree = {}
    q1dead = a[nfull-1] + 15
    bases = list(A_K); hold = [None]*len(bases)
    if OARCH and opt.get("k4", 1): bases.append(224); hold.append(None)
    if nsolo: bases.append(A_Q + 32); hold.append("Q1")
    for blk in range(nblk):
        def rel(h): return -1 if h is None else (q1dead if h == "Q1" else lastuse[("K", h, 7)])
        i = min(range(len(bases)), key=lambda i: rel(hold[i]))
        for s in range(8):
            h = hold[i]
            kfree[(blk, s)] = -1 if h is None else (a[nfull-1] + 8 + s if h == "Q1" else lastuse[("K", h, s)])
        kbuf[blk] = bases[i]; hold[i] = blk
    def oreg(qt):
        if OARCH: return f"v[{V_O0}:{V_O0+15}]" if qt == 0 else f"a[{A_O}:{A_O+15}]"
        return f"a[{A_O+16*qt}:{A_O+16*qt+15}]"
    A_O1 = A_O if OARCH else A_O + 16
    vexp = sorted({k for k in firstuse if k[0] == "V"}, key=lambda k: firstuse[k])
    vereg = {k: V_VE + (i % NVE)*4 for i, k in enumerate(vexp)}
    vefree = {k: (-1 if i < NVE else lastuse[vexp[i-NVE]]) for i, k in enumerate(vexp)}
    vedone = {}
    barlead = opt.get("barlead", 2)
    gate = b[opt.get("gater", 1)] - barlead
    kl = [("K", blk, s) for blk in range(nblk) for s in range(8)]
    vl = sorted([("VR", blk, i) for blk in range(nblk) for i in range(4)], key=lambda k: firstuse[("V", k[1], 2*k[2])])
    need_at = {k: firstuse[k] for k in kl}
    need_at.update({k: firstuse[("V", k[1], 2*k[2])] - opt.get("vneed", 14) for k in vl})
    for i in range(4): need_at[("VR", 0, i)] = opt.get("v0need", 9) + i
    issued = set()
    def ld_free(key):
        f = -1
        if key[0] == "K": f = kfree[(key[1], key[2])]
        elif key[1] >= NVR: f = vedone.get(("V", key[1]-NVR, 2*key[2]+1), 10**6)
        if key[1] >= 4: f = max(f, gate)
        return f
    def ld(key):
        k, blk, f = key
        issued.add(key)
        if k == "K":
            rg = kbuf[blk] + 4*f
            A.vmem(f"buffer_load_dwordx4 a[{rg}:{rg+3}], v{vK0 + f//4}, s[24:27], s{42+blk} offen offset:{(f%4)*1024}", key)
        else:
            rg = V_VR + (blk % NVR)*8 + 2*f
            A.vmem(f"buffer_load_dwordx2 v[{rg}:{rg+1}], v{vV+f}, s[24:27], s{42+blk} offen", key)
    tb = []
    for r in range(n):
        for u in range(2):
            if not tb or tb[-1][0] != rounds[r][u][0]: tb.append((rounds[r][u][0], r, u))
    lvreg = {blk: V_LV[i % 2] for i, (blk, _, _) in enumerate(tb)}
    rvreg = {blk: V_RV[i % 2] for i, (blk, _, _) in enumerate(tb)}
    lv_use = {blk: firstuse[("K", blk, 0)] for blk, _, _ in tb}
    lv_last = {blk: lastuse[("K", blk, 0)] for blk, _, _ in tb}
    rv_done = {}
    lvq = [("LV", blk, q, i) for i, (blk, r, u) in enumerate(tb) for q in range(4)]
    rvq = [("RV", blk, q, i) for i, (blk, r, u) in enumerate(tb) for q in range(4)]
    tdone = {}
    A.label("L_go")
    for _ in range(opt.get("npre", 8)): ld(kl.pop(0))
    for _ in range(opt.get("nlate0", 12)):
        if late: A(late.pop(0))
    def tread(t, sl_):
        k, blk, q, i = t
        rg = (lvreg if k == "LV" else rvreg)[blk] + 4*q
        tb_, rel_ = (vT, blk) if blk < 4 else ((vT2, blk-4) if blk < nfull else (vT3, blk-nfull))
        A.ds(f"ds_read_b128 v[{rg}:{rg+3}], v{tb_} offset:{LDS_T + rel_*512 + q*32 + (8192 if k == 'RV' else 0)}", (k, blk, q))
        tdone[(k, blk, q)] = sl_
    for q_ in range(4): lvq.pop(0); tdone[("LV", 0, q_)] = -5
    wend = {r: b[r] - opt.get("smend", 5) for r in range(n)}
    items = {}
    for r in range(n):
        S = V_S[r % 2]; PO = V_PO[r % 2]; L = []
        for e in range(33):
            if e < 32: L.append(("e", e, f"v_exp_f32 v{S+e}, v{S+e}", None))
            if e >= 1:
                blk, qt = rounds[r][(e-1)//16]; j = (e-1) % 16
                L.append(("a", e, f"v_fmac_f32 v{V_L+qt}, v{rvreg[blk]+j}, v{S+e-1}", (blk, j//4, (e-1)//16 == 1 or rounds[r][0][0] != rounds[r][1][0], j % 4 == 3)))
            if e >= 2 and e % 2 == 0:
                L.append(("c", e, f"v_cvt_pk_bf16_f32 v{PO + (e-2)//2}, v{S+e-2}, v{S+e-1}", None))
        items[r] = L
    cur = 0; ci = 0; pendw = []; nw = {r: 0 for r in range(n)}
    bar_at = {b[r] - barlead: r for r in range(n)}
    prq = [(r, kk, u, (kk-2)*2+u) for r in range(n) for kk in range(2, 8) for u in range(2)]
    prdone = set(); lastw = -10
    send_slot = b[nfull-1] + 16 + 2
    inloop = send_slot + 6 < nslots
    flag_slot = send_slot + opt.get("flagdelay", 16)
    xpoll_slot = flag_slot + opt.get("xpolldelay", 10)
    xchk_slot = xpoll_slot + opt.get("xchkdelay", 8)
    xuse_slot = xchk_slot + opt.get("xusedelay", 8)
    pollB_slot = opt.get("pollslot", 33); chkB_slot = gate - opt.get("chklead", 3)
    XR = V_LV[0]
    def operands(m):
        blk = rounds[m[1]][m[2]][0]
        if m[0] == "QK":
            lt = [("Q", rounds[m[1]][m[2]][1], m[3])]
            if m[3] == 0: lt += [("LV", blk, q) for q in range(4)]
            return [("K", blk, m[3])], lt
        return [], [("PR", m[1], m[3], m[2])]
    def lsum(t_, dst):
        return [f"v_add_f32 v{t_}, v{t_}, v{t_+1}", f"v_add_f32 v{t_+2}, v{t_+2}, v{t_+3}", f"v_add_f32 v{t_+4}, v{t_+4}, v{t_+5}", f"v_add_f32 v{t_+6}, v{t_+6}, v{t_+7}",
                f"v_add_f32 v{t_}, v{t_}, v{t_+2}", f"v_add_f32 v{t_+4}, v{t_+4}, v{t_+6}", f"v_add_f32 v{dst}, v{t_}, v{t_+4}"]
    LT = [0, 0]
    uid = [0]
    def two_way(fn):
        if XSC1: fn(A, "sc1"); return
        uid[0] += 1; u_ = uid[0]
        A(f"s_cmp_eq_u32 s37, s62\n s_cbranch_scc0 L_far{u_}")
        fn(A, ""); A.label(f"L_join{u_}")
        OOL.label(f"L_far{u_}"); fn(OOL, "sc1"); OOL.vm = []; OOL(f"s_branch L_join{u_}")
    def send_payload(B, fl):
        for i in range(4):
            o = A_O1 + 4*i
            B.vmem(f"buffer_store_dwordx4 a[{o}:{o+3}], v{vX}, s[24:27], s54 offen offset:{i*1024} {fl}", "XS")
        B.vmem(f"buffer_store_dword v{vLS}, v{vXL}, s[24:27], s54 offen {fl}", "XS")
    def send_flag(B, fl):
        B.vmem(f"buffer_store_dword v{vTAG}, v{vXF}, s[24:27], s54 offen {fl}", "XF")
    def self_touch():
        if opt.get("selft", 1): A.vmem(f"buffer_load_dword v{vPB}, v{vXT}, s[24:27], s54 offen sc1", "ST")
    def recv_loads():
        A.vmem(f"buffer_load_dword v{XR+16}, v{vXL}, s[24:27], s55 offen sc1", "XR")
        for i in range(4):
            A.vmem(f"buffer_load_dwordx4 v[{XR+4*i}:{XR+4*i+3}], v{vX}, s[24:27], s55 offen offset:{i*1024} sc1", "XR")
    def xcheck():
        A(f"v_cmp_eq_u32 vcc, s61, v{V_TMP}\n s_cbranch_vccz L_xspin0")
        A.label("L_xok")
        OOL.label("L_xspin0"); OOL("s_mov_b32 s53, 0"); OOL.label("L_xspin")
        OOL(f"""
        buffer_load_dword v{V_TMP}, v{vXF}, s[24:27], s55 offen sc1
        s_add_u32 s53, s53, 1
        s_waitcnt vmcnt(0)
        v_cmp_eq_u32 vcc, s61, v{V_TMP}
        s_cbranch_vccnz L_xok
        s_cmp_lt_u32 s53, 0x100000
        s_cbranch_scc1 L_xspin
        s_branch L_xok
        """)
    def fin_pre():
        L_ = [f"v_add_f32 v{V_L}, v{V_L}, v{XR+16}", f"v_rcp_f32 v{V_TMP}, v{V_L}",
              f"v_cmp_lt_f32 vcc, 0x30800000, v{V_L}", f"v_cmp_gt_f32 s[52:53], s19, v{V_L}"]
        L_ += [f"v_mul_f32 v{XR+i}, v{XR+i}, v{V_TMP}" for i in range(16)]
        return L_
    extra = []
    seenO = set(); vi = 0; vpart = 0
    vt, lt = operands(mf[0]); A.need(vt, lt)
    stamp("mfma0")
    totcost = []
    pace = opt.get("pace", 2.0); lastld = -10
    hooks = opt.get("hooks") or []
    for sl in range(nslots):
        m = mf[sl]
        blk, qt = rounds[m[1]][m[2]]
        if m[0] == "QK":
            _, r, u, s = m
            d = V_S[r % 2] + u*16
            c = f"v[{lvreg[blk]}:{lvreg[blk]+15}]" if s == 0 else f"v[{d}:{d+15}]"
            if s == 0: assert all(("LV", blk, q_) in tdone for q_ in range(4)), ("lv not read", sl)
            assert ("K", blk, s) in issued, ("K not loaded", sl)
            k = kbuf[blk] + 4*s; q = A_Q + (qt*8+s)*4
            A(f"v_mfma_f32_32x32x16_bf16 v[{d}:{d+15}], a[{k}:{k+3}], a[{q}:{q+3}], {c}")
        else:
            _, r, u, kk = m
            c = "0" if qt not in seenO else oreg(qt)
            seenO.add(qt)
            assert ("V", blk, kk) in vedone, ("V frag not expanded", sl, m)
            assert kk < 2 or (r, kk, u) in prdone, ("P not read", sl)
            v = vereg[("V", blk, kk)]
            ps = f"v[{V_PO[r%2] + (u*2+kk)*4}:{V_PO[r%2] + (u*2+kk)*4+3}]" if kk < 2 else f"a[{A_P + ((kk-2)*2+u)*4}:{A_P + ((kk-2)*2+u)*4+3}]"
            A(f"v_mfma_f32_32x32x16_bf16 {oreg(qt)}, v[{v}:{v+3}], {ps}, {c}")
        if sl in hooks:
            hi = hooks.index(sl)
            A.label(f"L_hook{hi}")
            A(f"s_cbranch_execz {'L_hook%d' % (hi+1) if hi + 1 < len(hooks) else 'L_warmed'}")
        stamp(f"slot{sl}")
        bud = 24
        vt, lt = operands(mf[sl+1]) if sl + 1 < nslots else ([], [])
        vt = list(vt); lt = list(lt)
        if vi < len(vexp) and sl >= need_at[("VR", vexp[vi][1], vexp[vi][2]//2)]: vt.append(("VR", vexp[vi][1], vexp[vi][2]//2))
        if cur < n:
            for it in (items[cur][ci:] + (items[cur+1] if cur+1 < n and sl >= a[cur+1] + 9 else []))[:8]:
                if it[0] == "a" and sl >= a[cur] + 9 and tdone.get(("RV", it[3][0], it[3][1]), 10**6) <= sl - 2: lt.append(("RV", it[3][0], it[3][1]))
        if sl == chkB_slot: vt.append("PB")
        if inloop and sl == flag_slot: vt.append("XS")
        if inloop and sl == xchk_slot: vt.append("XP")
        if inloop and sl == xuse_slot: vt.append("XR")
        if sl == b[nfull-1] + 4: lt.append(("LR", 1))
        if sl == b[n-1] + 4: lt.append(("LR", 0))
        if sl in bar_at:
            r = bar_at[sl]
            assert nw[r] == 4, ("P not written before barrier", r, sl)
            A.need(vt, lt + [("PW", r), "LW"])
            A("s_barrier")
            bud -= COST['bar']
            for q_ in ([1] if r == nfull-1 else []) + ([0] if r == n-1 else []):
                LT[q_] = V_S[r % 2] + 8*q_
                for hf in range(2):
                    A.ds(f"ds_read_b128 v[{LT[q_]+hf*4}:{LT[q_]+hf*4+3}], v{vLR} offset:{LDS_L + q_*1024 + hf*16}", ("LR", q_)); bud -= 4
        else:
            A.need(vt, lt)
        if sl == b[nfull-1] + 4: extra += lsum(LT[1], vLS)
        if sl == b[n-1] + 4: extra += lsum(LT[0], V_L)
        hasw = bool(pendw) and sl not in bar_at and not (sl + 1 in bar_at)
        nr = 0
        while nr < opt.get("maxr", 2) and len(A.lg) < 13:
            c_ = []
            if prq:
                r, kk, u, idx = prq[0]
                if sl >= b[r] - barlead and (r == 0 or sl >= b[r-1] + 4 + idx): c_.append((b[r] + 4 + idx - 5, "p"))
            if lvq:
                _, tblk, q, i = lvq[0]
                if (i < 2 or lv_last[tb[i-2][0]] + 1 < sl): c_.append((lv_use[tblk] - 8 + q, "lv"))
            if rvq:
                _, tblk, q, i = rvq[0]
                if (i < 2 or (tb[i-2][0], q) in rv_done): c_.append((lv_use[tblk] + 4 + 2*q, "rv"))
            if not c_: break
            d_, k_ = min(c_)
            if sl == lastw + 1 and d_ > sl - 2: break
            if nr >= 1 and d_ > sl + 1: break
            if hasw and d_ > sl + 1: break
            if d_ > sl + opt.get("rlead", 24): break
            if k_ == "p":
                r, kk, u, idx = prq.pop(0); rg = A_P + idx*4
                A.ds(f"ds_read_b128 a[{rg}:{rg+3}], v{vPR+kk//2-1} offset:{(r%NPB)*16384 + (u*2+kk%2)*1024}", ("PR", r, kk, u)); prdone.add((r, kk, u))
            elif k_ == "lv": tread(lvq.pop(0), sl)
            else: tread(rvq.pop(0), sl)
            bud -= COST["r"]; nr += 1
        if hasw:
            r, f = pendw.pop(0); PO = V_PO[r % 2]
            if f == 3:
                for q_ in ([1] if r == nfull-1 else []) + ([0] if r == n-1 else []):
                    A.ds(f"ds_write_b32 v{vLW}, v{V_L+q_} offset:{LDS_L + q_*1024}", "LW"); bud -= 8
            A.ds(f"ds_write_b128 v{vPW}, v[{PO+4*f}:{PO+4*f+3}] offset:{(r%NPB)*16384 + f*1024}", ("PW", r)); bud -= COST["w"]; nw[r] += 1
            lastw = sl
        if sl == opt.get("fbslot", 7):
            A("s_cmp_eq_u32 s3, 0\n s_cbranch_scc0 L_skip2\n s_barrier")
            A.label("L_skip2")
            A.vmem(f"buffer_store_dword v{vTAG}, v{vFB}, s[24:27], s18 offen sc1", "FB"); bud -= 50
        elif sl == pollB_slot:
            assert not late
            A.vmem(f"buffer_load_dword v{V_TMP}, v{vPB}, s[24:27], s60 offen sc1", "PB"); bud -= 8
            if not XSC1: A.vmem(f"buffer_load_dword v{V_TMP+1}, off, s[24:27], s37 sc1", "PB"); bud -= 8
        elif (kl or vl) and not hasw and sl not in bar_at:
            c_ = [q_[0] for q_ in (kl, vl) if q_ and ld_free(q_[0]) <= sl and need_at[q_[0]] - sl <= opt.get("maxlead", 90)]
            if c_:
                key = min(c_, key=lambda k: need_at[k])
                if sl - lastld >= pace or need_at[key] - sl < opt.get("urg", 30):
                    (kl if key[0] == "K" else vl).pop(0)
                    ld(key); bud -= COST["l"]
                    lastld = max(lastld + pace, sl - 1) if sl - lastld < 2*pace else sl
        if sl == chkB_slot:
            A(f"v_cmp_eq_u32 vcc, s61, v{V_TMP}")
            if not XSC1: A(f"v_readfirstlane_b32 s37, v{V_TMP+1}")
            A(f"s_cmp_eq_u64 vcc, -1\n s_cbranch_scc0 L_bspin0")
            A.label("L_bok")
            OOL.label("L_bspin0"); OOL("s_mov_b32 s53, 0"); OOL.label("L_bspin")
            OOL(f"""
            buffer_load_dword v{V_TMP}, v{vPB}, s[24:27], s60 offen sc1
            s_add_u32 s53, s53, 1
            s_waitcnt vmcnt(0)
            v_cmp_eq_u32 vcc, s61, v{V_TMP}
            s_cmp_eq_u64 vcc, -1
            s_cbranch_scc1 L_bok
            s_cmp_lt_u32 s53, 0x100000
            s_cbranch_scc1 L_bspin
            s_branch L_bok
            """)
            A("s_mov_b32 s19, 0x4e800000")
            bud -= 24
        if inloop:
            if sl == send_slot:
                assert not extra
                stamp("send"); two_way(send_payload); bud -= 60
                if not XSC1: self_touch(); bud -= 8
            if sl == flag_slot:
                stamp("xack"); two_way(send_flag); bud -= 16
            if sl == xpoll_slot:
                A.vmem(f"buffer_load_dword v{V_TMP}, v{vXF}, s[24:27], s55 offen sc1", "XP"); bud -= 8
            if sl == xchk_slot:
                assert not kl and not vl and all(lv_last[t[0]] < sl for t in tb)
                stamp("xp"); xcheck(); recv_loads(); bud -= 50
            if sl == xuse_slot:
                assert sl > b[n-1] + 4
                stamp("xr"); extra += fin_pre()
        def vexp_step():
            nonlocal vi, vpart, bud
            key = vexp[vi]; src = V_VR + (key[1] % NVR)*8 + key[2]
            A(f"v_cvt_scalef32_pk_bf16_fp4 v{vereg[key]+vpart}, v{src}, 1.0 op_sel:[{vpart&1},{vpart>>1},0]")
            bud -= 4; vpart += 1
            if vpart == 4: vedone[key] = sl; vi += 1; vpart = 0
        def vexp_ok():
            if vi >= len(vexp): return False
            key = vexp[vi]; tag = ("VR", key[1], key[2]//2)
            return vefree[key] <= sl and tag not in A.vm and tag in issued
        def sm_next():
            nonlocal cur, ci
            while cur < n and ci >= len(items[cur]): cur += 1; ci = 0
            if cur >= n: return None
            kind, e, txt, info = items[cur][ci]
            if sl < a[cur] + 10: return None
            if kind == "e" and e == 16 and sl < a[cur] + 18: return None
            if kind == "a" and tdone.get(("RV", info[0], info[1]), 10**6) > sl - 2: return None
            rate = min(opt.get("smrate", 0.9), (wend[cur] - a[cur] - 10) / 33.0)
            return wend[cur] - (32 - e) * rate
        def sm_step():
            nonlocal ci, bud
            kind, e, txt, info = items[cur][ci]
            if kind == "a":
                A.need(ltags=[("RV", info[0], info[1])])
                if info[2] and info[3]: rv_done[(info[0], info[1])] = sl
            A(txt); bud -= COST[kind]; ci += 1
            if kind == "c" and e % 8 == 0: pendw.append((cur, e//8 - 1))
        while True:
            ds_ = sm_next(); dv = None
            if vi < len(vexp):
                dl = firstuse[vexp[vi]] - 2 - (3 - vpart) * 0.25
                if vexp_ok(): dv = dl
                elif firstuse[vexp[vi]] - sl <= 2:
                    A.need([("VR", vexp[vi][1], vexp[vi][2]//2)])
                    assert vexp_ok(), ("cannot expand in time", sl, vexp[vi])
                    dv = dl
            cands = [(d, k) for d, k in ((ds_, "s"), (dv, "v")) if d is not None]
            if extra: cands.append(((b[nfull-1] + 10 if sl < send_slot and inloop else sl + 3), "x"))
            if late: cands.append((8, "t"))
            if not cands: break
            d, k = min(cands)
            if bud <= opt.get("fillto", 0) and d > sl: break
            if k == "s": sm_step()
            elif k == "v": vexp_step()
            elif k == "x": A(extra.pop(0)); bud -= 4
            else: A(late.pop(0)); bud -= 4
        totcost.append(32 - bud)
    assert not kl and not vl
    if opt.get("verbose"):
        print("slot costs:", totcost, "sum:", sum(totcost), "sum max(32,c):", sum(max(32, c) for c in totcost), file=sys.stderr)
    stamp("loopend")
    for x_ in extra: A(x_)
    if not inloop:
        A("s_nop 7"); two_way(send_payload)
        if not XSC1: self_touch()
    if not inloop or flag_slot >= nslots: A.need(["XS"]); two_way(send_flag)
    if not inloop or xpoll_slot >= nslots: A.vmem(f"buffer_load_dword v{V_TMP}, v{vXF}, s[24:27], s55 offen sc1", "XP")
    if not inloop or xchk_slot >= nslots: A.need(["XP"]); xcheck(); recv_loads()
    if not inloop or xuse_slot >= nslots:
        A.need(["XR"]); stamp("xr")
        for x_ in fin_pre(): A(x_)
    A("s_and_b64 vcc, vcc, s[52:53]\n s_cmp_eq_u64 vcc, -1\n s_cbranch_scc0 L_slow")
    O = V_O0
    if not OARCH:
        O = V_S[n % 2]
        for i in range(16): A(f"v_accvgpr_read_b32 v{O+i}, a{A_O+i}")
    pk = V_PO[0]
    for bq in range(4):
        for a_ in range(4): A(f"v_fmac_f32 v{XR+4*a_+bq}, v{O+4*a_+bq}, v{V_TMP}")
    A.label("L_pack")
    for bq in range(4):
        A(f"v_cvt_pk_bf16_f32 v{pk+2*bq}, v{XR+bq}, v{XR+4+bq}")
        A(f"v_cvt_pk_bf16_f32 v{pk+2*bq+1}, v{XR+8+bq}, v{XR+12+bq}")
        if bq == 1: A(f"buffer_store_dwordx4 v[{pk}:{pk+3}], v{vOUT}, s[28:31], s56 offen {opt.get('ofl','')}")
    A(f"buffer_store_dwordx4 v[{pk+4}:{pk+7}], v{vOUT}, s[28:31], s56 offen offset:16 {opt.get('ofl','')}")
    A(f"""
    s_and_b32 s52, s57, 63
    s_cbranch_scc1 L_nobump
    s_add_u32 s52, s39, 1
    s_lshl_b32 s53, s33, 7
    v_mov_b32 v{V_TMP}, s52
    buffer_store_dword v{V_TMP}, v{vFB}, s[24:27], s53 offen
    """)
    A.label("L_nobump")
    if st:
        A("s_waitcnt vmcnt(0)")
        stamp("end")
        A(("" if rtdone else "s_memrealtime s[98:99]\n") + "s_waitcnt lgkmcnt(0)")
        A(f"s_lshl_b32 s50, s2, 2\n s_add_u32 s50, s50, s32\n s_lshl_b32 s51, s50, 7\n s_add_u32 s51, s51, {ST_OFF}")
        A("s_mov_b64 exec, 1")
        open("stampnames.txt", "w").write(" ".join(stl))
        for i in range(len(stl)):
            A(f"v_mov_b32 v10, s{64+2*i}\n v_mov_b32 v11, s{65+2*i}\n buffer_store_dwordx2 v[10:11], off, s[24:27], s51 offset:{8*i}\n s_nop 1")
        A(f"s_lshl_b32 s50, s50, 4\n s_add_u32 s50, s50, {RT_OFF}")
        A(f"v_mov_b32 v24, s96\n v_mov_b32 v25, s97\n v_mov_b32 v26, s98\n v_mov_b32 v27, s99\n buffer_store_dwordx4 v[24:27], off, s[24:27], s50")
    A.label("L_end")
    A("s_endpgm")
    S = OOL
    S.label("L_slow")
    S(f"""
    s_waitcnt vmcnt(0) lgkmcnt(0)
    s_mul_i32 s40, s33, {64*TILE}
    s_add_u32 s40, s40, {RB}
    v_add_u32 v{vK1}, 0x1000, v{vX}
    v_mov_b32 v40, 0xff800000
    s_mov_b32 s41, s40
    s_mov_b32 s42, 0
    """)
    def slow_qk():
        for s in range(8): S(f"buffer_load_dwordx4 a[{64+4*s}:{67+4*s}], v{vX if s < 4 else vK1}, s[24:27], s41 offen offset:{(s%4)*1024} sc1")
        S("s_waitcnt vmcnt(0)")
        for s in range(8): S(f"v_mfma_f32_32x32x16_bf16 v[24:39], a[{64+4*s}:{67+4*s}], a[{4*s}:{4*s+3}], {'0' if s == 0 else 'v[24:39]'}")
        S("s_nop 15")
    S.label("L_slow1")
    slow_qk()
    for i in range(8): S(f"v_max3_f32 v40, v{24+2*i}, v{25+2*i}, v40")
    S(f"""
    s_add_u32 s41, s41, {TILE}
    s_add_u32 s42, s42, 1
    s_cmp_lt_u32 s42, 64
    s_cbranch_scc1 L_slow1
    v_mov_b32 v41, v40
    s_nop 1
    v_permlane32_swap_b32 v40, v41
    v_max_f32 v40, v40, v41
    v_mov_b32 v42, 0
    v_and_b32 v43, 7, v{vLANE}
    v_bfe_u32 v44, v{vLANE}, 3, 2
    v_lshl_add_u32 v43, v43, 2, v44
    v_lshl_add_u32 v43, v{vW}, 5, v43
    v_lshlrev_b32 v43, 2, v43
    v_lshrrev_b32 v44, 5, v{vLANE}
    s_lshl_b32 s52, s33, 11
    v_lshl_add_u32 v44, v44, 2, s52
    v_lshl_add_u32 v43, v44, 9, v43
    v_lshlrev_b32 v44, 1, v44
    s_mov_b32 s41, s40
    s_mov_b32 s42, 0
    """)
    for i in range(16): S(f"v_mov_b32 v{XR+i}, 0")
    S.label("L_slow2")
    for g in range(4):
        S(f"global_load_dwordx2 v[{64+2*g}:{65+2*g}], v44, s[14:15] offset:{16*g}")
        S(f"global_load_dwordx2 v[{72+2*g}:{73+2*g}], v44, s[16:17] offset:{16*g}")
        for b_ in range(4): S(f"global_load_dword v{48+4*g+b_}, v43, s[12:13] offset:{512*b_}")
        S("v_add_u32 v43, 0x1000, v43")
    S("v_add_u32 v44, 64, v44")
    slow_qk()
    for i in range(16): S(f"v_sub_f32 v{24+i}, v{24+i}, v40")
    for i in range(16): S(f"v_exp_f32 v{24+i}, v{24+i}")
    for i in range(16): S(f"v_add_f32 v42, v42, v{24+i}")
    for i in range(8): S(f"v_cvt_pk_bf16_f32 v{80+i}, v{24+2*i}, v{25+2*i}")
    for i in range(8):
        S(f"""
        v_cvt_f32_i32 v{48+2*i}, v{48+2*i}
        v_cvt_f32_i32 v{49+2*i}, v{49+2*i}
        v_lshlrev_b32 v45, 16, v{72+i}
        v_and_b32 v46, 0xffff0000, v{72+i}
        v_sub_f32 v{48+2*i}, v{48+2*i}, v45
        v_sub_f32 v{49+2*i}, v{49+2*i}, v46
        v_lshlrev_b32 v45, 16, v{64+i}
        v_and_b32 v46, 0xffff0000, v{64+i}
        v_mul_f32 v{48+2*i}, v{48+2*i}, v45
        v_mul_f32 v{49+2*i}, v{49+2*i}, v46
        v_cvt_pk_bf16_f32 v{88+i}, v{48+2*i}, v{49+2*i}
        """)
    S(f"""
    s_nop 1
    v_mfma_f32_32x32x16_bf16 v[{XR}:{XR+15}], v[88:91], v[80:83], v[{XR}:{XR+15}]
    v_mfma_f32_32x32x16_bf16 v[{XR}:{XR+15}], v[92:95], v[84:87], v[{XR}:{XR+15}]
    s_add_u32 s41, s41, {TILE}
    s_add_u32 s42, s42, 1
    s_cmp_lt_u32 s42, 64
    s_cbranch_scc1 L_slow2
    v_mov_b32 v41, v42
    s_nop 15
    v_permlane32_swap_b32 v42, v41
    v_add_f32 v42, v42, v41
    v_rcp_f32 v42, v42
    s_nop 0
    """)
    for i in range(16): S(f"v_mul_f32 v{XR+i}, v{XR+i}, v42")
    S("s_branch L_pack")
    o = ["; generated by gen5.py\n", f"; @launch grid=(256,1,1) block=(256,1,1) lds={LDS_BYTES}\n", TARGET, A.text() + OOL.text(),
         ".fill 2048, 4, 0xBF800000\n", kd(KN, 512, sgpr=102, accum=256)]
    if opt.get("rep"):
        import reporter
        o[1] = f"; @launch kernel={KN} grid=(256,1,1) block=(256,1,1) lds={LDS_BYTES}\n; @launch kernel=rep_kernel grid=(1,1,1) block=(64,1,1) lds=0\n"
        o[4] = o[4] + reporter.text(opt["rep"], RT_OFF, ST_OFF, opt.get("repi", 0), opt.get("repk", 20))
        o.append(kd("rep_kernel", 32))
    return "".join(o)

if __name__ == "__main__":
    opt = {}
    out = sys.argv[1]
    for a_ in sys.argv[2:]:
        k, v = a_.split("=")
        try: v = int(v)
        except:
            try: v = float(v)
            except: pass
        opt[k] = v
    if "hooks" in opt: opt["hooks"] = [int(x) for x in str(opt["hooks"]).split("_")]
    import hazcheck
    t, n = hazcheck.fix(gen(opt))
    print("nops inserted:", n)
    open(out, "w").write(t)
```

```python
import sys, math, struct
from asmlib import *
from gen1 import Asm, f2u

KN = NAME + "_kernel"
TILE = 10240
BLK = 4 * TILE
RA = 1 << 20
RB = 4 << 20
X_OFF = 8 << 20
FA_OFF = 4096
FB_OFF = 8192
ST_OFF = 16 << 20
RT_OFF = 17 << 20
SCALE = math.log2(math.e) / math.sqrt(128.0)

LDS_K = 0
LDS_L = 9216
LDS_Q = LDS_L + 2048
LDS_T = LDS_Q + 16896
LDS_P = 45056
NPB = 3
LDS_BYTES = LDS_P + NPB * 16384
assert LDS_T + 16384 <= LDS_P

vT3, vW, vLANE, vK0, vK1, vV, vPW, vPR, vT, vLW, vLR, vOUT, vX, vT2 = 0, 1, 2, 3, 4, 5, 9, 10, 13, 14, 15, 16, 17, 18
vFB, V_L, V_TMP = 19, 20, 22
V_S = [24, 56]
V_PO = [88, 104]
COST = dict(l=8, r=4, w=20, e=8, a=4, c=4, bar=42)
A_Q = 0
A_K = [64, 96, 128]
A_P = 160
A_O = 208

def bitop(fn): return fn(0xF0, 0xCC, 0xAA) & 0xFF

def gen(opt):
    A = Asm()
    OOL = Asm()
    st = opt.get("stamps")
    stl = []; rtdone = []
    stsel = set(opt.get("st", "start,karg,issued,pre,ks,kconv,stored,mid,ackA,bar1,flagsA,mfma0,slot96,slot192,loopend,end").split(","))
    def stamp(name):
        if st and opt.get("rtst") == name and not rtdone:
            rtdone.append(1); A("s_memrealtime s[98:99]")
        if st and opt.get("rtst0") == name: A("s_memrealtime s[96:97]")
        if st and name in stsel and name not in stl:
            i = len(stl); stl.append(name); assert i < 16
            A(f"s_memtime s[{64+2*i}:{65+2*i}]")
    NVR = opt.get("nvr", 3); NVE = opt.get("nve", 6); OARCH = opt.get("oarch", 1)
    V_VR = 120; V_VE = V_VR + NVR*8
    V_LV = [V_VE + NVE*4, V_VE + NVE*4 + 16]; V_RV = [V_LV[1] + 16, V_LV[1] + 32]
    V_O0 = V_RV[1] + 16
    V_END = V_O0 + (16 if OARCH else 0)
    assert V_END + 8 <= 256, V_END
    vTAG, vPB, vXF, vXL, vXT, vPA, vLS = V_END, V_END+1, V_END+2, V_END+3, V_END+4, V_END+5, V_END+6
    nfull = opt.get("nfull", 6); nsolo = 16 - 2*nfull; nblk = nfull + nsolo
    rounds = [[(r, 0), (r, 1)] for r in range(nfull)] + [[(nfull + 2*i, 0), (nfull + 2*i + 1, 0)] for i in range(nsolo//2)]
    n = len(rounds)
    nt = opt.get("ntfl", "")
    XSC1 = opt.get("xsc1", 0)
    A.raw(head(KN))
    A("""
    s_cmp_ge_u32 s2, 256
    s_cbranch_scc1 L_end
    s_load_dwordx16 s[4:19], s[0:1], 0
    s_load_dwordx2 s[22:23], s[0:1], 104
    s_getpc_b64 s[60:61]
    v_lshlrev_b32 v64, 5, v0
    """)
    A.vmem("global_load_dword v255, v64, s[60:61]", "cpf")
    stamp("start")
    if st: A("s_memrealtime s[96:97]")
    A(f"""
    s_and_b32 s52, s2, 7
    s_lshr_b32 s35, s2, 3
    s_lshl_b32 s57, s52, 5
    s_or_b32 s57, s57, s35
    s_lshl_b32 s53, s57, 14
    v_and_b32 v25, 7, v0
    v_lshrrev_b32 v26, 3, v0
    v_lshl_add_u32 v29, v25, 4, s53
    v_lshl_add_u32 v28, v26, 9, v29
    v_and_b32 v24, 7, v26
    v_lshrrev_b32 v{vW}, 6, v0
    v_lshl_add_u32 v29, v24, 11, v29
    v_lshl_add_u32 v29, v{vW}, 7, v29
    s_lshl_b32 s53, s57, 6
    v_lshl_add_u32 v27, v26, 1, s53
    s_waitcnt lgkmcnt(0)
    """)
    stamp("karg")
    for i in range(4):
        A.vmem(f"global_load_dwordx4 v[{32+4*i}:{35+4*i}], v28, s[6:7] offset:{128*i} {nt}", "KR")
    A.vmem(f"global_load_ushort v30, v27, s[8:9] {nt}", "KR")
    A.vmem(f"global_load_ushort v31, v27, s[10:11] {nt}", "KR")
    for m in range(4):
        A.vmem(f"global_load_dwordx4 v[{48+4*m}:{51+4*m}], v29, s[12:13] offset:{512*m} {nt}", "VRAW")
    A(f"""
    v_readfirstlane_b32 s32, v{vW}
    v_and_b32 v{vLANE}, 63, v0
    s_lshr_b32 s33, s52, 1
    s_lshl_b32 s53, s33, 7
    s_load_dword s39, s[22:23], s53
    s_load_dwordx2 s[20:21], s[0:1], 88
    s_and_b32 s34, s52, 1
    s_lshl_b32 s59, s52, 8
    s_add_u32 s59, s59, {FA_OFF}
    s_and_b32 s36, s35, 1
    s_mov_b32 s24, s22
    s_and_b32 s25, s23, 0xffff
    s_mov_b32 s26, 0x10000000
    s_mov_b32 s27, 0x20000
    s_mul_i32 s58, s57, {TILE}
    s_add_u32 s58, s58, {RA}
    s_lshl_b32 s54, s2, 2
    s_add_u32 s54, s54, s32
    s_lshl_b32 s54, s54, 13
    s_add_u32 s54, s54, {X_OFF}
    """)
    stamp("issued")
    KF = -math.log2(10000.0) / 64
    def trig(idx, mul, pos, nn, t, P1, P2):
        A(f"""
        v_cvt_f32_u32 v{t}, v{idx}
        v_mul_f32 v{t}, {hex(f2u(KF*mul))}, v{t}
        v_exp_f32 v{t}, v{t}
        v_cvt_f32_u32 v{t+1}, v{pos}
        v_mul_f32 v{t}, v{t}, v{t+1}
        """)
        cst = [10000.0 ** (-(j % (nn//2) + 32*(j // (nn//2))) / 64.0) / (2*math.pi) for j in range(nn)]
        A(f"v_mul_f32 v{P2}, {hex(f2u(cst[0]))}, v{t}")
        for j in range(nn):
            A(f"v_cos_f32 v{t+2+2*(j%2)}, v{P2+j}")
            if j + 1 < nn: A(f"v_mul_f32 v{P2+j+1}, {hex(f2u(cst[j+1]))}, v{t}")
            if j: A(f"v_cvt_pk_bf16_f32 v{P1+j-1}, v{t+2+2*((j-1)%2)}, v{t+3+2*((j-1)%2)}")
            A(f"v_sin_f32 v{t+3+2*(j%2)}, v{P2+j}")
            if j: A(f"v_cvt_pk_bf16_f32 v{P2+j-1}, v{t+3+2*((j-1)%2)}, v{t+2+2*((j-1)%2)}")
        j = nn - 1
        A(f"v_cvt_pk_bf16_f32 v{P1+j}, v{t+2+2*(j%2)}, v{t+3+2*(j%2)}")
        A(f"v_cvt_pk_bf16_f32 v{P2+j}, v{t+3+2*(j%2)}, v{t+2+2*(j%2)}")
    KP1, KP2, QP1, QP2 = 96, 104, 112, 128
    def w_trigK():
        A("v_bfe_u32 v150, v27, 1, 11")
        trig(25, 4, 150, 8, 144, KP1, KP2)
    def w_kaddr():
        A(f"""
        v_mul_u32_u24 v173, 144, v26
        v_lshl_add_u32 v173, v25, 4, v173
        v_lshl_add_u32 v174, v{vW}, 3, v25
        v_mul_u32_u24 v172, 144, v174
        v_lshl_add_u32 v172, v24, 4, v172
        v_lshlrev_b32 v174, 4, v174
        v_lshl_add_u32 v174, v24, 9, v174
        v_add_u32 v175, 0x1000, v174
        v_lshlrev_b32 v176, 3, v0
        v_add_u32 v176, 0x2000, v176
        v_bfe_i32 v177, v0, 4, 1
        v_and_b32 v177, 0x02020202, v177
        v_or_b32 v177, 0x05040100, v177
        v_mov_b32 v178, 0x11111111
        s_add_u32 s63, s58, {RB - RA}
        """)
    def l_pt():
        A(f"""
        s_mul_i32 s52, s32, 2560
        s_add_u32 s52, s52, s58
        v_lshl_add_u32 v65, v{vLANE}, 7, s52
        v_mov_b32 v66, s59
        s_add_u32 s52, s54, 4352
        v_cmp_gt_u32 vcc, {opt.get("ptl", 20)}, v{vLANE}
        v_writelane_b32 v66, s52, 20
        s_nop 0
        v_cndmask_b32 v65, v66, v65, vcc
        """)
        A.vmem(f"buffer_load_dword v254, v65, s[24:27], 0 offen {opt.get('ptfl', '')}", "PT")
    def l_cpf2():
        NCL = opt.get("ncl", 128)
        A(f"""
        v_min_u32 v64, {NCL//32 - 1}, v{vLANE}
        v_lshl_add_u32 v64, v64, 2, v{vW}
        s_and_b32 s53, s35, 7
        s_add_u32 s53, s53, 64
        v_lshl_add_u32 v64, v64, 3, s53
        v_lshlrev_b32 v64, 7, v64
        """)
        A.vmem(f"global_load_dword v255, v64, s[60:61]", "cpf")
    def l_q():
        A(f"""
        s_lshr_b32 s52, s32, 1
        s_xor_b32 s53, s57, s52
        s_lshl_b32 s53, s53, 5
        v_bfe_u32 v66, v0, 2, 5
        v_and_b32 v71, 3, v0
        v_add_u32 v67, s53, v66
        v_lshlrev_b32 v68, 8, v67
        v_lshl_add_u32 v68, v71, 4, v68
        """)
        for k in range(4):
            A.vmem(f"global_load_dwordx4 v[{72+4*k}:{75+4*k}], v68, s[4:5] offset:{64*k} {opt.get('qfl', '')}", "QR")
        A(f"""
        v_and_b32 v67, 2047, v67
        s_mul_i32 s52, s52, 8448
        v_mul_u32_u24 v180, 1056, v71
        v_lshl_add_u32 v180, v66, 4, v180
        v_add_u32 v180, s52, v180
        """)
    def l_ts():
        A("s_lshl_b32 s53, s33, 12\n v_lshl_add_u32 v70, v0, 4, s53")
        A.vmem(f"global_load_dwordx4 v[88:91], v70, s[14:15]", "TS")
        A.vmem(f"global_load_dwordx4 v[92:95], v70, s[16:17]", "TS")
    def w_trigQ():
        trig(71, 8, 67, 16, 144, QP1, QP2)
    def w_blk():
        A(f"""
        s_lshl_b32 s52, s34, 3
        s_lshl_b32 s53, s36, 2
        s_add_u32 s18, s52, s53
        s_xor_b32 s52, s52, 8
        s_mul_i32 s53, s36, {nfull-4}
        s_add_u32 s19, s52, s53
        s_add_u32 s3, s52, {2*(nfull-4)}
        v_lshlrev_b32 v179, 5, v0
        v_lshrrev_b32 v151, 5, v{vLANE}
        v_lshlrev_b32 v152, 4, v151
        v_lshl_add_u32 v152, v{vW}, 7, v152
        s_lshl_b32 s52, s18, 9
        v_add_u32 v{vT}, s52, v152
        s_lshl_b32 s52, s19, 9
        v_add_u32 v{vT2}, s52, v152
        s_lshl_b32 s52, s3, 9
        v_cmp_eq_u32 vcc, 0, v0
        v_add_u32 v{vT3}, s52, v152
        s_lshl_b32 s52, s33, 4
        """)
        for src, reg, b0, b1 in (("s18", RA, 0, 4), ("s19", RB, 4, nfull), ("s3", RB, nfull, nblk)):
            if b1 > b0:
                A(f"s_add_u32 s53, s52, {src}\n s_mul_i32 s53, s53, {BLK}")
                for b_ in range(b0, b1): A(f"s_add_u32 s{42+b_}, s53, {reg + (b_-b0)*BLK}")
        A(f"""
        v_bfrev_b32 v153, 4
        v_cndmask_b32 v{vFB}, v153, 0, vcc
        s_lshl_b32 s53, s36, 6
        v_and_b32 v154, 15, v{vLANE}
        v_lshl_add_u32 v{vPA}, v154, 2, s53
        v_lshlrev_b32 v{vX}, 4, v{vLANE}
        v_lshl_add_u32 v23, v151, 4, v{vX}
        s_mul_i32 s52, s32, {TILE}
        v_add_u32 v{vK0}, s52, v{vX}
        v_add_u32 v{vK1}, 0x1000, v{vK0}
        s_getreg_b32 s41, hwreg(HW_REG_XCC_ID, 0, 4)
        """)
    def w_vaddr():
        A(f"""
        v_lshl_add_u32 v155, v151, 3, v25
        v_bfe_u32 v156, v{vLANE}, 3, 2
        v_lshl_add_u32 v155, v156, 4, v155
        v_lshlrev_b32 v155, 3, v155
        v_lshl_add_u32 v155, v{vW}, 9, v155
        v_add_u32 v156, {LDS_P}, v{vX}
        """)
        for i in range(4):
            A(f"s_add_u32 s52, s32, {i}\n s_and_b32 s52, s52, 3\n s_lshl_b32 s53, s52, 12\n v_add_u32 v{vPW+i}, s53, v156")
            A(f"s_mul_i32 s52, s52, {TILE}\n s_add_u32 s52, s52, 8192\n v_add_u32 v{vV+i}, s52, v155")
    late = []
    def w_late():
        late.extend(f"""
        v_mov_b32 v{V_L}, 0
        v_mov_b32 v{V_L+1}, 0
        v_and_b32 v{vPB}, 15, v{vLANE}
        v_lshl_add_u32 v{vPB}, v{vW}, 4, v{vPB}
        v_lshlrev_b32 v{vPB}, 6, v{vPB}
        s_xor_b32 s37, s35, 1
        s_lshl_b32 s37, s37, 2
        s_add_u32 s37, s37, s59
        v_and_b32 v{vLR}, 31, v{vLANE}
        v_lshrrev_b32 v{V_TMP}, 5, v{vLANE}
        v_lshlrev_b32 v{vOUT}, 8, v{vLR}
        v_lshl_add_u32 v{vOUT}, v{V_TMP}, 5, v{vOUT}
        v_lshlrev_b32 v{vXL}, 2, v{vLR}
        v_add_u32 v{vXL}, 4096, v{vXL}
        v_lshlrev_b32 v{vLR}, 5, v{vLR}
        v_lshl_add_u32 v{vLW}, v{V_TMP}, 2, v{vLR}
        v_lshl_add_u32 v{vLW}, v{vW}, 3, v{vLW}
        v_mov_b32 v{vXF}, 4352
        v_min_u32 v{vXT}, 32, v{vLANE}
        v_lshlrev_b32 v{vXT}, 7, v{vXT}
        s_xor_b32 s55, s54, 0x40000
        s_lshl_b32 s56, s57, 13
        s_lshl_b32 s38, s32, 6
        s_add_u32 s56, s56, s38
        s_mov_b32 s28, s20
        s_and_b32 s29, s21, 0xffff
        s_mov_b32 s30, 0x200000
        s_mov_b32 s31, 0x20000
        """.strip().split("\n"))
    def w_tables():
        A.need(["TS"])
        x = 184
        for k in range(4):
            A(f"v_lshlrev_b32 v{x+2*k}, 16, v{88+k}\n v_and_b32 v{x+2*k+1}, 0xffff0000, v{88+k}")
        A("s_mov_b32 s52, 0x3fc03fc0")
        ex = ["v_xor_b32 v92, s52, v92", "v_xor_b32 v93, s52, v93", "v_xor_b32 v94, s52, v94", "v_xor_b32 v95, s52, v95",
              "v_or3_b32 v92, v92, v93, v94", "v_or_b32 v92, v92, v95", "v_mov_b32 v95, 0x7fc00000", "v_cmp_eq_u32 s[52:53], 0, v92"]
        for k in range(8): A(f"v_log_f32 v{192+k}, v{x+k}\n {ex[k]}")
        ex = ["v_max3_f32 v93, |v192|, |v193|, |v194|", "v_max3_f32 v94, |v195|, |v196|, |v197|", "v_max3_f32 v93, |v198|, |v199|, v93", "v_max_f32 v93, v93, v94",
              "v_cmp_gt_f32 vcc, 0x41f00000, v93", "s_nop 0", "s_and_b64 vcc, vcc, s[52:53]", "s_nop 0"]
        A(f"v_rcp_f32 v200, v{x}")
        A.ds(f"ds_write_b128 v179, v[192:195] offset:{LDS_T}", "QW"); A.ds(f"ds_write_b128 v179, v[196:199] offset:{LDS_T+16}", "QW")
        for k in range(1, 8): A(f"{ex[k-1]}\n v_rcp_f32 v{200+k}, v{x+k}")
        A("v_cndmask_b32 v200, v95, v200, vcc")
        A.ds(f"ds_write_b128 v179, v[200:203] offset:{LDS_T+8192}", "QW"); A.ds(f"ds_write_b128 v179, v[204:207] offset:{LDS_T+8208}", "QW")
    def w_qrope():
        A.need(["QR"])
        A("s_mov_b32 s52, 0x05040100\n s_mov_b32 s53, 0x07060302")
        x = 32
        for k in range(8):
            A(f"v_perm_b32 v{x+2*k}, v{80+k}, v{72+k}, s52\n v_perm_b32 v{x+2*k+1}, v{80+k}, v{72+k}, s53")
        for half in range(2):
            js = [4*half + t for t in range(4)] + [8 + 4*half + t for t in range(4)]
            y = 48 + 16*half
            for t, j in enumerate(js): A(f"v_dot2_f32_bf16 v{y+t}, v{x+j}, v{QP1+j}, 0 neg_hi:[0,1,0]")
            for t, j in enumerate(js): A(f"v_dot2_f32_bf16 v{y+8+t}, v{x+j}, v{QP2+j}, 0")
        for half in range(2):
            y = 48 + 16*half; zz = 208 + 8*half
            for k in range(8): A(f"v_cvt_pk_bf16_f32 v{zz+k}, v{y+2*k}, v{y+2*k+1}")
            A.ds(f"ds_write_b128 v180, v[{zz}:{zz+3}] offset:{LDS_Q + 528*half}", "QW")
            A.ds(f"ds_write_b128 v180, v[{zz+4}:{zz+7}] offset:{LDS_Q + 528*half + 8*528}", "QW")
    def w_flush():
        for l_ in late: A(l_)
        late.clear()
    def w_warm():
        if opt.get("hooks"): A("s_mov_b64 exec, 0\n s_branch L_hook0"); A.label("L_warmed"); A("s_mov_b64 exec, -1")
    W = dict(trigK=w_trigK, kaddr=w_kaddr, pt=l_pt, cpf2=l_cpf2, q=l_q, ts=l_ts, trigQ=w_trigQ, blk=w_blk, vaddr=w_vaddr,
             tables=w_tables, qrope=w_qrope, flush=w_flush, warm=w_warm)
    def run(seq):
        for x_ in seq.split("."):
            if x_: W[x_](); stamp(x_)
    w_late()
    run(opt.get("o1", "pt.trigK.kaddr.cpf2.q.ts.trigQ.blk"))
    stamp("pre")
    A.need(["KR"])
    stamp("ks")
    A(f"v_lshlrev_b32 v30, 16, v30\n v_lshlrev_b32 v31, 16, v31\n v_mul_f32 v30, {hex(f2u(SCALE))}, v30\n v_mul_f32 v31, v31, v30")
    for j in range(16): A(f"v_cvt_f32_i32 v{32+j}, v{32+j}")
    for j in range(16): A(f"v_fma_f32 v{32+j}, v{32+j}, v30, -v31")
    for j in range(8): A(f"v_cvt_pk_bf16_f32 v{32+j}, v{32+j}, v{40+j}")
    for j in range(8): A(f"v_dot2_f32_bf16 v{KP1+j}, v{32+j}, v{KP1+j}, 0 neg_hi:[0,1,0]")
    for j in range(8): A(f"v_dot2_f32_bf16 v{KP2+j}, v{32+j}, v{KP2+j}, 0")
    for p in range(4): A(f"v_cvt_pk_bf16_f32 v{40+p}, v{KP1+2*p}, v{KP1+2*p+1}")
    A("s_waitcnt lgkmcnt(0)"); A.lg = []
    A.ds("ds_write_b128 v172, v[40:43]", "KT")
    for p in range(4): A(f"v_cvt_pk_bf16_f32 v{44+p}, v{KP2+2*p}, v{KP2+2*p+1}")
    A.ds("ds_write_b128 v172, v[44:47] offset:4608", "KT")
    A.ds("ds_read_b128 v[160:163], v173", "KT2")
    A.ds("ds_read_b128 v[164:167], v173 offset:4608", "KT2")
    stamp("kconv")
    A.need(["VRAW"])
    for c in range(4): A(f"v_lshl_or_b32 v{48+c}, v{52+c}, 4, v{48+c}")
    for c in range(4): A(f"v_lshl_or_b32 v{56+c}, v{60+c}, 4, v{56+c}")
    for c in range(4): A(f"v_lshl_or_b32 v{48+c}, v{56+c}, 8, v{48+c}")
    A("v_lshl_or_b32 v48, v49, 16, v48\n v_lshl_or_b32 v49, v51, 16, v50")
    A("s_mov_b32 s52, 0x22222222\n s_mov_b32 s53, 0x88888888")
    A("v_permlane32_swap_b32 v48, v49")
    A("v_mov_b32 v50, v48\n v_mov_b32 v51, v49")
    A.need(ltags=["KT2"])
    A.vmem("buffer_store_dwordx4 v[160:163], v174, s[24:27], s58 offen", "SA")
    A.vmem("buffer_store_dwordx4 v[164:167], v175, s[24:27], s58 offen", "SA")
    A("v_permlane16_swap_b32 v48, v50\n v_permlane16_swap_b32 v49, v51")
    A("v_perm_b32 v168, v50, v48, v177\n v_perm_b32 v169, v51, v49, v177")
    t1 = bitop(lambda a, b, c: ~(a ^ b) & c); t2 = bitop(lambda a, b, c: (~a & b) | c)
    for r in (168, 169):
        A(f"v_lshlrev_b32 v55, 1, v{r}\n v_lshlrev_b32 v56, 2, v{r}")
        A(f"v_bitop3_b32 v55, v{r}, v55, s52 bitop3:{hex(t1)}")
        A(f"v_bitop3_b32 v56, v56, s53, v178 bitop3:{hex(t2)}")
        A(f"v_or_b32 v{r}, v55, v56")
    A.vmem("buffer_store_dwordx2 v[168:169], v176, s[24:27], s58 offen", "SA")
    run(opt.get("o2", ""))
    A.vmem("buffer_store_dwordx4 v[160:163], v174, s[24:27], s63 offen sc1", "SB")
    A.vmem("buffer_store_dwordx4 v[164:167], v175, s[24:27], s63 offen sc1", "SB")
    A.vmem("buffer_store_dwordx2 v[168:169], v176, s[24:27], s63 offen sc1", "SB")
    stamp("stored")
    run(opt.get("o3", "qrope.tables"))
    A(f"""
    s_mul_i32 s40, s39, 0x9E3779B1
    s_add_u32 s40, s40, 0x7F4A7C15
    s_and_b32 s40, s40, 0xfffffff0
    s_or_b32 s62, s40, s41
    s_lshl_b32 s63, s35, 2
    s_add_u32 s63, s63, s59
    v_mov_b32 v24, s62
    """)
    stamp("mid")
    A.need(["SA"], ["QW"])
    stamp("ackA")
    A("s_barrier")
    A.vmem(f"buffer_store_dword v24, v{vFB}, s[24:27], s63 offen", "FA")
    stamp("bar1")
    def qread(i):
        A.ds(f"ds_read_b128 a[{A_Q+4*i}:{A_Q+4*i+3}], v23 offset:{LDS_Q + (i//8)*8448 + (i%8)*1056}", ("Q", i//8, i%8))
    for q_ in range(4):
        A.ds(f"ds_read_b128 v[{V_LV[0]+4*q_}:{V_LV[0]+4*q_+3}], v{vT} offset:{LDS_T + q_*32}", ("LV", 0, q_))
    for i in range(10): qread(i)
    A(f"""
    s_or_b32 s61, s40, 8
    s_lshl_b32 s60, s33, 12
    s_add_u32 s60, s60, {FB_OFF}
    s_lshl_b32 s18, s57, 6
    s_add_u32 s18, s18, {FB_OFF}
    v_mov_b32 v{vTAG}, s61
    s_mov_b32 s3, 0
    s_mov_b32 s19, 0
    """)
    run(opt.get("o4", "vaddr"))
    A.need(ltags=[("Q", 0, 3)])
    for i in range(10, 16): qread(i)
    A.label("L_pollA")
    A(f"buffer_load_dword v26, v{vPA}, s[24:27], s59 offen sc1")
    run(opt.get("o5", "warm"))
    A(f"""
    s_waitcnt vmcnt(0)
    v_cmp_eq_u32 vcc, s62, v26
    s_cmp_eq_u64 vcc, -1
    s_cbranch_scc0 L_pollA_more
    """)
    A.vm = []
    stamp("flagsA")
    OOL.label("L_pollA_more")
    OOL(f"""
    s_add_u32 s19, s19, 1
    s_cmp_lt_u32 s19, {opt.get("tmo", 64)}
    s_cbranch_scc1 L_pollA
    s_barrier
    buffer_store_dword v{vTAG}, v{vFB}, s[24:27], s18 offen sc1
    v_lshlrev_b32 v27, 4, v{vPA}
    s_lshl_b32 s52, s34, 11
    v_add_u32 v27, s52, v27
    s_mov_b32 s53, 0
    """)
    OOL.label("L_pollB0")
    OOL(f"""
    buffer_load_dword v26, v27, s[24:27], s60 offen sc1
    s_add_u32 s53, s53, 1
    s_waitcnt vmcnt(0)
    v_cmp_eq_u32 vcc, s61, v26
    s_cmp_eq_u64 vcc, -1
    s_cbranch_scc1 L_pollB0_ok
    s_sleep 4
    s_cmp_lt_u32 s53, 0x100000
    s_cbranch_scc1 L_pollB0
    """)
    OOL.label("L_pollB0_ok")
    for b_ in range(4): OOL(f"s_add_u32 s{42+b_}, s{42+b_}, {RB-RA}")
    OOL("s_mov_b32 s3, 1\n s_branch L_go")

    order = []
    for r in range(n):
        order.append(("QK", r))
        if r >= 1: order.append(("PV", r-1))
    order.append(("PV", n-1))
    mf = []; a = [0]*n; b = [0]*n
    for kind, r in order:
        if kind == "QK":
            a[r] = len(mf)
            for u in range(2):
                for s in range(8): mf.append(("QK", r, u, s))
        else:
            b[r] = len(mf)
            for kk in range(8):
                for u in range(2): mf.append(("PV", r, u, kk))
    nslots = len(mf)
    firstuse = {}; lastuse = {}
    for sl, m in enumerate(mf):
        blk = rounds[m[1]][m[2]][0]
        key = ("K" if m[0] == "QK" else "V", blk, m[3])
        firstuse.setdefault(key, sl); lastuse[key] = sl
    kbuf = {}; kfree = {}
    q1dead = a[nfull-1] + 15
    bases = list(A_K); hold = [None]*len(bases)
    if OARCH and opt.get("k4", 1): bases.append(224); hold.append(None)
    if nsolo: bases.append(A_Q + 32); hold.append("Q1")
    for blk in range(nblk):
        def rel(h): return -1 if h is None else (q1dead if h == "Q1" else lastuse[("K", h, 7)])
        i = min(range(len(bases)), key=lambda i: rel(hold[i]))
        for s in range(8):
            h = hold[i]
            kfree[(blk, s)] = -1 if h is None else (a[nfull-1] + 8 + s if h == "Q1" else lastuse[("K", h, s)])
        kbuf[blk] = bases[i]; hold[i] = blk
    def oreg(qt):
        if OARCH: return f"v[{V_O0}:{V_O0+15}]" if qt == 0 else f"a[{A_O}:{A_O+15}]"
        return f"a[{A_O+16*qt}:{A_O+16*qt+15}]"
    A_O1 = A_O if OARCH else A_O + 16
    vexp = sorted({k for k in firstuse if k[0] == "V"}, key=lambda k: firstuse[k])
    vereg = {k: V_VE + (i % NVE)*4 for i, k in enumerate(vexp)}
    vefree = {k: (-1 if i < NVE else lastuse[vexp[i-NVE]]) for i, k in enumerate(vexp)}
    vedone = {}
    barlead = opt.get("barlead", 2)
    gate = b[opt.get("gater", 1)] - barlead
    kl = [("K", blk, s) for blk in range(nblk) for s in range(8)]
    vl = sorted([("VR", blk, i) for blk in range(nblk) for i in range(4)], key=lambda k: firstuse[("V", k[1], 2*k[2])])
    need_at = {k: firstuse[k] for k in kl}
    need_at.update({k: firstuse[("V", k[1], 2*k[2])] - opt.get("vneed", 14) for k in vl})
    for i in range(4): need_at[("VR", 0, i)] = opt.get("v0need", 9) + i
    issued = set()
    def ld_free(key):
        f = -1
        if key[0] == "K": f = kfree[(key[1], key[2])]
        elif key[1] >= NVR: f = vedone.get(("V", key[1]-NVR, 2*key[2]+1), 10**6)
        if key[1] >= 4: f = max(f, gate)
        return f
    def ld(key):
        k, blk, f = key
        issued.add(key)
        if k == "K":
            rg = kbuf[blk] + 4*f
            A.vmem(f"buffer_load_dwordx4 a[{rg}:{rg+3}], v{vK0 + f//4}, s[24:27], s{42+blk} offen offset:{(f%4)*1024}", key)
        else:
            rg = V_VR + (blk % NVR)*8 + 2*f
            A.vmem(f"buffer_load_dwordx2 v[{rg}:{rg+1}], v{vV+f}, s[24:27], s{42+blk} offen", key)
    tb = []
    for r in range(n):
        for u in range(2):
            if not tb or tb[-1][0] != rounds[r][u][0]: tb.append((rounds[r][u][0], r, u))
    lvreg = {blk: V_LV[i % 2] for i, (blk, _, _) in enumerate(tb)}
    rvreg = {blk: V_RV[i % 2] for i, (blk, _, _) in enumerate(tb)}
    lv_use = {blk: firstuse[("K", blk, 0)] for blk, _, _ in tb}
    lv_last = {blk: lastuse[("K", blk, 0)] for blk, _, _ in tb}
    rv_done = {}
    lvq = [("LV", blk, q, i) for i, (blk, r, u) in enumerate(tb) for q in range(4)]
    rvq = [("RV", blk, q, i) for i, (blk, r, u) in enumerate(tb) for q in range(4)]
    tdone = {}
    A.label("L_go")
    for _ in range(opt.get("npre", 8)): ld(kl.pop(0))
    for _ in range(opt.get("nlate0", 12)):
        if late: A(late.pop(0))
    def tread(t, sl_):
        k, blk, q, i = t
        rg = (lvreg if k == "LV" else rvreg)[blk] + 4*q
        tb_, rel_ = (vT, blk) if blk < 4 else ((vT2, blk-4) if blk < nfull else (vT3, blk-nfull))
        A.ds(f"ds_read_b128 v[{rg}:{rg+3}], v{tb_} offset:{LDS_T + rel_*512 + q*32 + (8192 if k == 'RV' else 0)}", (k, blk, q))
        tdone[(k, blk, q)] = sl_
    for q_ in range(4): lvq.pop(0); tdone[("LV", 0, q_)] = -5
    wend = {r: b[r] - opt.get("smend", 5) for r in range(n)}
    items = {}
    for r in range(n):
        S = V_S[r % 2]; PO = V_PO[r % 2]; L = []
        for e in range(33):
            if e < 32: L.append(("e", e, f"v_exp_f32 v{S+e}, v{S+e}", None))
            if e >= 1:
                blk, qt = rounds[r][(e-1)//16]; j = (e-1) % 16
                L.append(("a", e, f"v_fmac_f32 v{V_L+qt}, v{rvreg[blk]+j}, v{S+e-1}", (blk, j//4, (e-1)//16 == 1 or rounds[r][0][0] != rounds[r][1][0], j % 4 == 3)))
            if e >= 2 and e % 2 == 0:
                L.append(("c", e, f"v_cvt_pk_bf16_f32 v{PO + (e-2)//2}, v{S+e-2}, v{S+e-1}", None))
        items[r] = L
    cur = 0; ci = 0; pendw = []; nw = {r: 0 for r in range(n)}
    bar_at = {b[r] - barlead: r for r in range(n)}
    prq = [(r, kk, u, (kk-2)*2+u) for r in range(n) for kk in range(2, 8) for u in range(2)]
    prdone = set(); lastw = -10
    send_slot = b[nfull-1] + 16 + 2
    inloop = send_slot + 6 < nslots
    flag_slot = send_slot + opt.get("flagdelay", 16)
    xpoll_slot = flag_slot + opt.get("xpolldelay", 10)
    xchk_slot = xpoll_slot + opt.get("xchkdelay", 8)
    xuse_slot = xchk_slot + opt.get("xusedelay", 8)
    pollB_slot = opt.get("pollslot", 33); chkB_slot = gate - opt.get("chklead", 3)
    XR = V_LV[0]
    def operands(m):
        blk = rounds[m[1]][m[2]][0]
        if m[0] == "QK":
            lt = [("Q", rounds[m[1]][m[2]][1], m[3])]
            if m[3] == 0: lt += [("LV", blk, q) for q in range(4)]
            return [("K", blk, m[3])], lt
        return [], [("PR", m[1], m[3], m[2])]
    def lsum(t_, dst):
        return [f"v_add_f32 v{t_}, v{t_}, v{t_+1}", f"v_add_f32 v{t_+2}, v{t_+2}, v{t_+3}", f"v_add_f32 v{t_+4}, v{t_+4}, v{t_+5}", f"v_add_f32 v{t_+6}, v{t_+6}, v{t_+7}",
                f"v_add_f32 v{t_}, v{t_}, v{t_+2}", f"v_add_f32 v{t_+4}, v{t_+4}, v{t_+6}", f"v_add_f32 v{dst}, v{t_}, v{t_+4}"]
    LT = [0, 0]
    uid = [0]
    def two_way(fn):
        if XSC1: fn(A, "sc1"); return
        uid[0] += 1; u_ = uid[0]
        A(f"s_cmp_eq_u32 s37, s62\n s_cbranch_scc0 L_far{u_}")
        fn(A, ""); A.label(f"L_join{u_}")
        OOL.label(f"L_far{u_}"); fn(OOL, "sc1"); OOL.vm = []; OOL(f"s_branch L_join{u_}")
    def send_payload(B, fl):
        for i in range(4):
            o = A_O1 + 4*i
            B.vmem(f"buffer_store_dwordx4 a[{o}:{o+3}], v{vX}, s[24:27], s54 offen offset:{i*1024} {fl}", "XS")
        B.vmem(f"buffer_store_dword v{vLS}, v{vXL}, s[24:27], s54 offen {fl}", "XS")
    def send_flag(B, fl):
        B.vmem(f"buffer_store_dword v{vTAG}, v{vXF}, s[24:27], s54 offen {fl}", "XF")
    def self_touch():
        if opt.get("selft", 1): A.vmem(f"buffer_load_dword v{vPB}, v{vXT}, s[24:27], s54 offen sc1", "ST")
    def recv_loads():
        A.vmem(f"buffer_load_dword v{XR+16}, v{vXL}, s[24:27], s55 offen sc1", "XR")
        for i in range(4):
            A.vmem(f"buffer_load_dwordx4 v[{XR+4*i}:{XR+4*i+3}], v{vX}, s[24:27], s55 offen offset:{i*1024} sc1", "XR")
    def xcheck():
        A(f"v_cmp_eq_u32 vcc, s61, v{V_TMP}\n s_cbranch_vccz L_xspin0")
        A.label("L_xok")
        OOL.label("L_xspin0"); OOL("s_mov_b32 s53, 0"); OOL.label("L_xspin")
        OOL(f"""
        buffer_load_dword v{V_TMP}, v{vXF}, s[24:27], s55 offen sc1
        s_add_u32 s53, s53, 1
        s_waitcnt vmcnt(0)
        v_cmp_eq_u32 vcc, s61, v{V_TMP}
        s_cbranch_vccnz L_xok
        s_cmp_lt_u32 s53, 0x100000
        s_cbranch_scc1 L_xspin
        s_branch L_xok
        """)
    def fin_pre():
        L_ = [f"v_add_f32 v{V_L}, v{V_L}, v{XR+16}", f"v_rcp_f32 v{V_TMP}, v{V_L}",
              f"v_cmp_lt_f32 vcc, 0x30800000, v{V_L}", f"v_cmp_gt_f32 s[52:53], s19, v{V_L}"]
        L_ += [f"v_mul_f32 v{XR+i}, v{XR+i}, v{V_TMP}" for i in range(16)]
        return L_
    extra = []
    seenO = set(); vi = 0; vpart = 0
    vt, lt = operands(mf[0]); A.need(vt, lt)
    stamp("mfma0")
    totcost = []
    pace = opt.get("pace", 2.0); lastld = -10
    hooks = opt.get("hooks") or []
    for sl in range(nslots):
        m = mf[sl]
        blk, qt = rounds[m[1]][m[2]]
        if m[0] == "QK":
            _, r, u, s = m
            d = V_S[r % 2] + u*16
            c = f"v[{lvreg[blk]}:{lvreg[blk]+15}]" if s == 0 else f"v[{d}:{d+15}]"
            if s == 0: assert all(("LV", blk, q_) in tdone for q_ in range(4)), ("lv not read", sl)
            assert ("K", blk, s) in issued, ("K not loaded", sl)
            k = kbuf[blk] + 4*s; q = A_Q + (qt*8+s)*4
            A(f"v_mfma_f32_32x32x16_bf16 v[{d}:{d+15}], a[{k}:{k+3}], a[{q}:{q+3}], {c}")
        else:
            _, r, u, kk = m
            c = "0" if qt not in seenO else oreg(qt)
            seenO.add(qt)
            assert ("V", blk, kk) in vedone, ("V frag not expanded", sl, m)
            assert kk < 2 or (r, kk, u) in prdone, ("P not read", sl)
            v = vereg[("V", blk, kk)]
            ps = f"v[{V_PO[r%2] + (u*2+kk)*4}:{V_PO[r%2] + (u*2+kk)*4+3}]" if kk < 2 else f"a[{A_P + ((kk-2)*2+u)*4}:{A_P + ((kk-2)*2+u)*4+3}]"
            A(f"v_mfma_f32_32x32x16_bf16 {oreg(qt)}, v[{v}:{v+3}], {ps}, {c}")
        if sl in hooks:
            hi = hooks.index(sl)
            A.label(f"L_hook{hi}")
            A(f"s_cbranch_execz {'L_hook%d' % (hi+1) if hi + 1 < len(hooks) else 'L_warmed'}")
        stamp(f"slot{sl}")
        bud = 24
        vt, lt = operands(mf[sl+1]) if sl + 1 < nslots else ([], [])
        vt = list(vt); lt = list(lt)
        if vi < len(vexp) and sl >= need_at[("VR", vexp[vi][1], vexp[vi][2]//2)]: vt.append(("VR", vexp[vi][1], vexp[vi][2]//2))
        if cur < n:
            for it in (items[cur][ci:] + (items[cur+1] if cur+1 < n and sl >= a[cur+1] + 9 else []))[:8]:
                if it[0] == "a" and sl >= a[cur] + 9 and tdone.get(("RV", it[3][0], it[3][1]), 10**6) <= sl - 2: lt.append(("RV", it[3][0], it[3][1]))
        if sl == chkB_slot: vt.append("PB")
        if inloop and sl == flag_slot: vt.append("XS")
        if inloop and sl == xchk_slot: vt.append("XP")
        if inloop and sl == xuse_slot: vt.append("XR")
        if sl == b[nfull-1] + 4: lt.append(("LR", 1))
        if sl == b[n-1] + 4: lt.append(("LR", 0))
        if sl in bar_at:
            r = bar_at[sl]
            assert nw[r] == 4, ("P not written before barrier", r, sl)
            A.need(vt, lt + [("PW", r), "LW"])
            A("s_barrier")
            bud -= COST['bar']
            for q_ in ([1] if r == nfull-1 else []) + ([0] if r == n-1 else []):
                LT[q_] = V_S[r % 2] + 8*q_
                for hf in range(2):
                    A.ds(f"ds_read_b128 v[{LT[q_]+hf*4}:{LT[q_]+hf*4+3}], v{vLR} offset:{LDS_L + q_*1024 + hf*16}", ("LR", q_)); bud -= 4
        else:
            A.need(vt, lt)
        if sl == b[nfull-1] + 4: extra += lsum(LT[1], vLS)
        if sl == b[n-1] + 4: extra += lsum(LT[0], V_L)
        hasw = bool(pendw) and sl not in bar_at and not (sl + 1 in bar_at)
        nr = 0
        while nr < opt.get("maxr", 2) and len(A.lg) < 13:
            c_ = []
            if prq:
                r, kk, u, idx = prq[0]
                if sl >= b[r] - barlead and (r == 0 or sl >= b[r-1] + 4 + idx): c_.append((b[r] + 4 + idx - 5, "p"))
            if lvq:
                _, tblk, q, i = lvq[0]
                if (i < 2 or lv_last[tb[i-2][0]] + 1 < sl): c_.append((lv_use[tblk] - 8 + q, "lv"))
            if rvq:
                _, tblk, q, i = rvq[0]
                if (i < 2 or (tb[i-2][0], q) in rv_done): c_.append((lv_use[tblk] + 4 + 2*q, "rv"))
            if not c_: break
            d_, k_ = min(c_)
            if sl == lastw + 1 and d_ > sl - 2: break
            if nr >= 1 and d_ > sl + 1: break
            if hasw and d_ > sl + 1: break
            if d_ > sl + opt.get("rlead", 24): break
            if k_ == "p":
                r, kk, u, idx = prq.pop(0); rg = A_P + idx*4
                A.ds(f"ds_read_b128 a[{rg}:{rg+3}], v{vPR+kk//2-1} offset:{(r%NPB)*16384 + (u*2+kk%2)*1024}", ("PR", r, kk, u)); prdone.add((r, kk, u))
            elif k_ == "lv": tread(lvq.pop(0), sl)
            else: tread(rvq.pop(0), sl)
            bud -= COST["r"]; nr += 1
        if hasw:
            r, f = pendw.pop(0); PO = V_PO[r % 2]
            if f == 3:
                for q_ in ([1] if r == nfull-1 else []) + ([0] if r == n-1 else []):
                    A.ds(f"ds_write_b32 v{vLW}, v{V_L+q_} offset:{LDS_L + q_*1024}", "LW"); bud -= 8
            A.ds(f"ds_write_b128 v{vPW}, v[{PO+4*f}:{PO+4*f+3}] offset:{(r%NPB)*16384 + f*1024}", ("PW", r)); bud -= COST["w"]; nw[r] += 1
            lastw = sl
        if sl == opt.get("fbslot", 7):
            A("s_cmp_eq_u32 s3, 0\n s_cbranch_scc0 L_skip2\n s_barrier")
            A.label("L_skip2")
            A.vmem(f"buffer_store_dword v{vTAG}, v{vFB}, s[24:27], s18 offen sc1", "FB"); bud -= 50
        elif sl == pollB_slot:
            assert not late
            A.vmem(f"buffer_load_dword v{V_TMP}, v{vPB}, s[24:27], s60 offen sc1", "PB"); bud -= 8
            if not XSC1: A.vmem(f"buffer_load_dword v{V_TMP+1}, off, s[24:27], s37 sc1", "PB"); bud -= 8
        elif (kl or vl) and not hasw and sl not in bar_at:
            c_ = [q_[0] for q_ in (kl, vl) if q_ and ld_free(q_[0]) <= sl and need_at[q_[0]] - sl <= opt.get("maxlead", 90)]
            if c_:
                key = min(c_, key=lambda k: need_at[k])
                if sl - lastld >= pace or need_at[key] - sl < opt.get("urg", 30):
                    (kl if key[0] == "K" else vl).pop(0)
                    ld(key); bud -= COST["l"]
                    lastld = max(lastld + pace, sl - 1) if sl - lastld < 2*pace else sl
        if sl == chkB_slot:
            A(f"v_cmp_eq_u32 vcc, s61, v{V_TMP}")
            if not XSC1: A(f"v_readfirstlane_b32 s37, v{V_TMP+1}")
            A(f"s_cmp_eq_u64 vcc, -1\n s_cbranch_scc0 L_bspin0")
            A.label("L_bok")
            OOL.label("L_bspin0"); OOL("s_mov_b32 s53, 0"); OOL.label("L_bspin")
            OOL(f"""
            buffer_load_dword v{V_TMP}, v{vPB}, s[24:27], s60 offen sc1
            s_add_u32 s53, s53, 1
            s_waitcnt vmcnt(0)
            v_cmp_eq_u32 vcc, s61, v{V_TMP}
            s_cmp_eq_u64 vcc, -1
            s_cbranch_scc1 L_bok
            s_cmp_lt_u32 s53, 0x100000
            s_cbranch_scc1 L_bspin
            s_branch L_bok
            """)
            A("s_mov_b32 s19, 0x4e800000")
            bud -= 24
        if inloop:
            if sl == send_slot:
                assert not extra
                stamp("send"); two_way(send_payload); bud -= 60
                if not XSC1: self_touch(); bud -= 8
            if sl == flag_slot:
                stamp("xack"); two_way(send_flag); bud -= 16
            if sl == xpoll_slot:
                A.vmem(f"buffer_load_dword v{V_TMP}, v{vXF}, s[24:27], s55 offen sc1", "XP"); bud -= 8
            if sl == xchk_slot:
                assert not kl and not vl and all(lv_last[t[0]] < sl for t in tb)
                stamp("xp"); xcheck(); recv_loads(); bud -= 50
            if sl == xuse_slot:
                assert sl > b[n-1] + 4
                stamp("xr"); extra += fin_pre()
        def vexp_step():
            nonlocal vi, vpart, bud
            key = vexp[vi]; src = V_VR + (key[1] % NVR)*8 + key[2]
            A(f"v_cvt_scalef32_pk_bf16_fp4 v{vereg[key]+vpart}, v{src}, 1.0 op_sel:[{vpart&1},{vpart>>1},0]")
            bud -= 4; vpart += 1
            if vpart == 4: vedone[key] = sl; vi += 1; vpart = 0
        def vexp_ok():
            if vi >= len(vexp): return False
            key = vexp[vi]; tag = ("VR", key[1], key[2]//2)
            return vefree[key] <= sl and tag not in A.vm and tag in issued
        def sm_next():
            nonlocal cur, ci
            while cur < n and ci >= len(items[cur]): cur += 1; ci = 0
            if cur >= n: return None
            kind, e, txt, info = items[cur][ci]
            if sl < a[cur] + 10: return None
            if kind == "e" and e == 16 and sl < a[cur] + 18: return None
            if kind == "a" and tdone.get(("RV", info[0], info[1]), 10**6) > sl - 2: return None
            rate = min(opt.get("smrate", 0.9), (wend[cur] - a[cur] - 10) / 33.0)
            return wend[cur] - (32 - e) * rate
        def sm_step():
            nonlocal ci, bud
            kind, e, txt, info = items[cur][ci]
            if kind == "a":
                A.need(ltags=[("RV", info[0], info[1])])
                if info[2] and info[3]: rv_done[(info[0], info[1])] = sl
            A(txt); bud -= COST[kind]; ci += 1
            if kind == "c" and e % 8 == 0: pendw.append((cur, e//8 - 1))
        while True:
            ds_ = sm_next(); dv = None
            if vi < len(vexp):
                dl = firstuse[vexp[vi]] - 2 - (3 - vpart) * 0.25
                if vexp_ok(): dv = dl
                elif firstuse[vexp[vi]] - sl <= 2:
                    A.need([("VR", vexp[vi][1], vexp[vi][2]//2)])
                    assert vexp_ok(), ("cannot expand in time", sl, vexp[vi])
                    dv = dl
            cands = [(d, k) for d, k in ((ds_, "s"), (dv, "v")) if d is not None]
            if extra: cands.append(((b[nfull-1] + 10 if sl < send_slot and inloop else sl + 3), "x"))
            if late: cands.append((8, "t"))
            if not cands: break
            d, k = min(cands)
            if bud <= opt.get("fillto", 0) and d > sl: break
            if k == "s": sm_step()
            elif k == "v": vexp_step()
            elif k == "x": A(extra.pop(0)); bud -= 4
            else: A(late.pop(0)); bud -= 4
        totcost.append(32 - bud)
    assert not kl and not vl
    if opt.get("verbose"):
        print("slot costs:", totcost, "sum:", sum(totcost), "sum max(32,c):", sum(max(32, c) for c in totcost), file=sys.stderr)
    stamp("loopend")
    for x_ in extra: A(x_)
    if not inloop:
        A("s_nop 7"); two_way(send_payload)
        if not XSC1: self_touch()
    if not inloop or flag_slot >= nslots: A.need(["XS"]); two_way(send_flag)
    if not inloop or xpoll_slot >= nslots: A.vmem(f"buffer_load_dword v{V_TMP}, v{vXF}, s[24:27], s55 offen sc1", "XP")
    if not inloop or xchk_slot >= nslots: A.need(["XP"]); xcheck(); recv_loads()
    if not inloop or xuse_slot >= nslots:
        A.need(["XR"]); stamp("xr")
        for x_ in fin_pre(): A(x_)
    A("s_and_b64 vcc, vcc, s[52:53]\n s_cmp_eq_u64 vcc, -1\n s_cbranch_scc0 L_slow")
    O = V_O0
    if not OARCH:
        O = V_S[n % 2]
        for i in range(16): A(f"v_accvgpr_read_b32 v{O+i}, a{A_O+i}")
    pk = V_PO[0]
    for bq in range(4):
        for a_ in range(4): A(f"v_fmac_f32 v{XR+4*a_+bq}, v{O+4*a_+bq}, v{V_TMP}")
    A.label("L_pack")
    for bq in range(4):
        A(f"v_cvt_pk_bf16_f32 v{pk+2*bq}, v{XR+bq}, v{XR+4+bq}")
        A(f"v_cvt_pk_bf16_f32 v{pk+2*bq+1}, v{XR+8+bq}, v{XR+12+bq}")
        if bq == 1: A(f"buffer_store_dwordx4 v[{pk}:{pk+3}], v{vOUT}, s[28:31], s56 offen {opt.get('ofl','')}")
    A(f"buffer_store_dwordx4 v[{pk+4}:{pk+7}], v{vOUT}, s[28:31], s56 offen offset:16 {opt.get('ofl','')}")
    A(f"""
    s_and_b32 s52, s57, 63
    s_cbranch_scc1 L_nobump
    s_add_u32 s52, s39, 1
    s_lshl_b32 s53, s33, 7
    v_mov_b32 v{V_TMP}, s52
    buffer_store_dword v{V_TMP}, v{vFB}, s[24:27], s53 offen
    """)
    A.label("L_nobump")
    if st:
        A("s_waitcnt vmcnt(0)")
        stamp("end")
        A(("" if rtdone else "s_memrealtime s[98:99]\n") + "s_waitcnt lgkmcnt(0)")
        A(f"s_lshl_b32 s50, s2, 2\n s_add_u32 s50, s50, s32\n s_lshl_b32 s51, s50, 7\n s_add_u32 s51, s51, {ST_OFF}")
        A("s_mov_b64 exec, 1")
        open("stampnames.txt", "w").write(" ".join(stl))
        for i in range(len(stl)):
            A(f"v_mov_b32 v10, s{64+2*i}\n v_mov_b32 v11, s{65+2*i}\n buffer_store_dwordx2 v[10:11], off, s[24:27], s51 offset:{8*i}\n s_nop 1")
        A(f"s_lshl_b32 s50, s50, 4\n s_add_u32 s50, s50, {RT_OFF}")
        A(f"v_mov_b32 v24, s96\n v_mov_b32 v25, s97\n v_mov_b32 v26, s98\n v_mov_b32 v27, s99\n buffer_store_dwordx4 v[24:27], off, s[24:27], s50")
    A.label("L_end")
    A("s_endpgm")
    S = OOL
    S.label("L_slow")
    S(f"""
    s_waitcnt vmcnt(0) lgkmcnt(0)
    s_mul_i32 s40, s33, {64*TILE}
    s_add_u32 s40, s40, {RB}
    v_add_u32 v{vK1}, 0x1000, v{vX}
    v_mov_b32 v40, 0xff800000
    s_mov_b32 s41, s40
    s_mov_b32 s42, 0
    """)
    def slow_qk():
        for s in range(8): S(f"buffer_load_dwordx4 a[{64+4*s}:{67+4*s}], v{vX if s < 4 else vK1}, s[24:27], s41 offen offset:{(s%4)*1024} sc1")
        S("s_waitcnt vmcnt(0)")
        for s in range(8): S(f"v_mfma_f32_32x32x16_bf16 v[24:39], a[{64+4*s}:{67+4*s}], a[{4*s}:{4*s+3}], {'0' if s == 0 else 'v[24:39]'}")
        S("s_nop 15")
    S.label("L_slow1")
    slow_qk()
    for i in range(8): S(f"v_max3_f32 v40, v{24+2*i}, v{25+2*i}, v40")
    S(f"""
    s_add_u32 s41, s41, {TILE}
    s_add_u32 s42, s42, 1
    s_cmp_lt_u32 s42, 64
    s_cbranch_scc1 L_slow1
    v_mov_b32 v41, v40
    s_nop 1
    v_permlane32_swap_b32 v40, v41
    v_max_f32 v40, v40, v41
    v_mov_b32 v42, 0
    v_and_b32 v43, 7, v{vLANE}
    v_bfe_u32 v44, v{vLANE}, 3, 2
    v_lshl_add_u32 v43, v43, 2, v44
    v_lshl_add_u32 v43, v{vW}, 5, v43
    v_lshlrev_b32 v43, 2, v43
    v_lshrrev_b32 v44, 5, v{vLANE}
    s_lshl_b32 s52, s33, 11
    v_lshl_add_u32 v44, v44, 2, s52
    v_lshl_add_u32 v43, v44, 9, v43
    v_lshlrev_b32 v44, 1, v44
    s_mov_b32 s41, s40
    s_mov_b32 s42, 0
    """)
    for i in range(16): S(f"v_mov_b32 v{XR+i}, 0")
    S.label("L_slow2")
    for g in range(4):
        S(f"global_load_dwordx2 v[{64+2*g}:{65+2*g}], v44, s[14:15] offset:{16*g}")
        S(f"global_load_dwordx2 v[{72+2*g}:{73+2*g}], v44, s[16:17] offset:{16*g}")
        for b_ in range(4): S(f"global_load_dword v{48+4*g+b_}, v43, s[12:13] offset:{512*b_}")
        S("v_add_u32 v43, 0x1000, v43")
    S("v_add_u32 v44, 64, v44")
    slow_qk()
    for i in range(16): S(f"v_sub_f32 v{24+i}, v{24+i}, v40")
    for i in range(16): S(f"v_exp_f32 v{24+i}, v{24+i}")
    for i in range(16): S(f"v_add_f32 v42, v42, v{24+i}")
    for i in range(8): S(f"v_cvt_pk_bf16_f32 v{80+i}, v{24+2*i}, v{25+2*i}")
    for i in range(8):
        S(f"""
        v_cvt_f32_i32 v{48+2*i}, v{48+2*i}
        v_cvt_f32_i32 v{49+2*i}, v{49+2*i}
        v_lshlrev_b32 v45, 16, v{72+i}
        v_and_b32 v46, 0xffff0000, v{72+i}
        v_sub_f32 v{48+2*i}, v{48+2*i}, v45
        v_sub_f32 v{49+2*i}, v{49+2*i}, v46
        v_lshlrev_b32 v45, 16, v{64+i}
        v_and_b32 v46, 0xffff0000, v{64+i}
        v_mul_f32 v{48+2*i}, v{48+2*i}, v45
        v_mul_f32 v{49+2*i}, v{49+2*i}, v46
        v_cvt_pk_bf16_f32 v{88+i}, v{48+2*i}, v{49+2*i}
        """)
    S(f"""
    s_nop 1
    v_mfma_f32_32x32x16_bf16 v[{XR}:{XR+15}], v[88:91], v[80:83], v[{XR}:{XR+15}]
    v_mfma_f32_32x32x16_bf16 v[{XR}:{XR+15}], v[92:95], v[84:87], v[{XR}:{XR+15}]
    s_add_u32 s41, s41, {TILE}
    s_add_u32 s42, s42, 1
    s_cmp_lt_u32 s42, 64
    s_cbranch_scc1 L_slow2
    v_mov_b32 v41, v42
    s_nop 15
    v_permlane32_swap_b32 v42, v41
    v_add_f32 v42, v42, v41
    v_rcp_f32 v42, v42
    s_nop 0
    """)
    for i in range(16): S(f"v_mul_f32 v{XR+i}, v{XR+i}, v42")
    S("s_branch L_pack")
    o = ["; generated by gen5.py\n", f"; @launch grid=(256,1,1) block=(256,1,1) lds={LDS_BYTES}\n", TARGET, A.text() + OOL.text(),
         ".fill 2048, 4, 0xBF800000\n", kd(KN, 512, sgpr=102, accum=256)]
    if opt.get("rep"):
        import reporter
        o[1] = f"; @launch kernel={KN} grid=(256,1,1) block=(256,1,1) lds={LDS_BYTES}\n; @launch kernel=rep_kernel grid=(1,1,1) block=(64,1,1) lds=0\n"
        o[4] = o[4] + reporter.text(opt["rep"], RT_OFF, ST_OFF, opt.get("repi", 0), opt.get("repk", 20))
        o.append(kd("rep_kernel", 32))
    return "".join(o)

if __name__ == "__main__":
    opt = {}
    out = sys.argv[1]
    for a_ in sys.argv[2:]:
        k, v = a_.split("=")
        try: v = int(v)
        except:
            try: v = float(v)
            except: pass
        opt[k] = v
    if "hooks" in opt: opt["hooks"] = [int(x) for x in str(opt["hooks"]).split("_")]
    import hazcheck
    t, n = hazcheck.fix(gen(opt))
    print("nops inserted:", n)
    open(out, "w").write(t)
```

```python
import sys, math, struct
from asmlib import *
from gen1 import Asm, f2u

KN = NAME + "_kernel"
TILE = 10240
BLK = 4 * TILE
RA = 1 << 20
RB = 4 << 20
X_OFF = 8 << 20
FA_OFF = 4096
FB_OFF = 8192
ST_OFF = 16 << 20
RT_OFF = 17 << 20
SCALE = math.log2(math.e) / math.sqrt(128.0)

LDS_K = 0
LDS_L = 9216
LDS_Q = LDS_L + 2048
LDS_T = LDS_Q + 16896
LDS_P = 45056
NPB = 3
LDS_BYTES = LDS_P + NPB * 16384
assert LDS_T + 16384 <= LDS_P

vT3, vW, vLANE, vK0, vK1, vV, vPW, vPR, vT, vLW, vLR, vOUT, vX, vT2 = 0, 1, 2, 3, 4, 5, 9, 10, 13, 14, 15, 16, 17, 18
vFB, V_L, V_TMP = 19, 20, 22
V_S = [24, 56]
V_PO = [88, 104]
COST = dict(l=8, r=4, w=20, e=8, a=4, c=4, bar=42)
A_Q = 0
A_K = [64, 96, 128]
A_P = 160
A_O = 208

def bitop(fn): return fn(0xF0, 0xCC, 0xAA) & 0xFF

def gen(opt):
    A = Asm()
    OOL = Asm()
    st = opt.get("stamps")
    stl = []; rtdone = []
    stsel = set(opt.get("st", "start,karg,issued,pre,ks,kconv,stored,mid,ackA,bar1,flagsA,mfma0,slot96,slot192,loopend,end").split(","))
    def stamp(name):
        if st and opt.get("rtst") == name and not rtdone:
            rtdone.append(1); A("s_memrealtime s[98:99]")
        if st and opt.get("rtst0") == name: A("s_memrealtime s[96:97]")
        if st and name in stsel and name not in stl:
            i = len(stl); stl.append(name); assert i < 16
            A(f"s_memtime s[{64+2*i}:{65+2*i}]")
    NVR = opt.get("nvr", 4 if opt.get("xtag", 1) else 3); NVE = opt.get("nve", 6); OARCH = opt.get("oarch", 1)
    V_VR = 120; V_VE = V_VR + NVR*8
    V_LV = [V_VE + NVE*4, V_VE + NVE*4 + 16]; V_RV = [V_LV[1] + 16, V_LV[1] + 32]
    V_O0 = V_RV[1] + 16
    V_END = V_O0 + (16 if OARCH else 0)
    if opt.get("xtag", 1):
        assert V_END <= 256 and OARCH
        vTAG, vPA, vPB = V_O0, V_O0+1, vOUT
        vXF = vXL = vXT = vLS = None
    else:
        assert V_END + 8 <= 256, V_END
        vTAG, vPB, vXF, vXL, vXT, vPA, vLS = V_END, V_END+1, V_END+2, V_END+3, V_END+4, V_END+5, V_END+6
    nfull = opt.get("nfull", 6); nsolo = 16 - 2*nfull; nblk = nfull + nsolo
    rounds = [[(r, 0), (r, 1)] for r in range(nfull)] + [[(nfull + 2*i, 0), (nfull + 2*i + 1, 0)] for i in range(nsolo//2)]
    n = len(rounds)
    nt = opt.get("ntfl", "")
    XTAG = opt.get("xtag", 1)
    XSC1 = opt.get("xsc1", 0) or XTAG
    A.raw(head(KN))
    A("""
    s_cmp_ge_u32 s2, 256
    s_cbranch_scc1 L_end
    s_load_dwordx16 s[4:19], s[0:1], 0
    s_load_dwordx2 s[22:23], s[0:1], 104
    s_getpc_b64 s[60:61]
    v_lshlrev_b32 v64, 5, v0
    """)
    A.vmem("global_load_dword v255, v64, s[60:61]", "cpf")
    stamp("start")
    if st: A("s_memrealtime s[96:97]")
    A(f"""
    s_and_b32 s52, s2, 7
    s_lshr_b32 s35, s2, 3
    s_lshl_b32 s57, s52, 5
    s_or_b32 s57, s57, s35
    s_lshl_b32 s53, s57, 14
    v_and_b32 v25, 7, v0
    v_lshrrev_b32 v26, 3, v0
    v_lshl_add_u32 v29, v25, 4, s53
    v_lshl_add_u32 v28, v26, 9, v29
    v_and_b32 v24, 7, v26
    v_lshrrev_b32 v{vW}, 6, v0
    v_lshl_add_u32 v29, v24, 11, v29
    v_lshl_add_u32 v29, v{vW}, 7, v29
    s_lshl_b32 s53, s57, 6
    v_lshl_add_u32 v27, v26, 1, s53
    s_waitcnt lgkmcnt(0)
    """)
    stamp("karg")
    if opt.get("tse", 1):
        A("s_and_b32 s53, s53, 0x3000\n v_lshl_add_u32 v70, v0, 4, s53")
        A.vmem(f"global_load_dwordx4 v[88:91], v70, s[14:15]", "TS")
        A.vmem(f"global_load_dwordx4 v[92:95], v70, s[16:17]", "TS")
    for i in range(4):
        A.vmem(f"global_load_dwordx4 v[{32+4*i}:{35+4*i}], v28, s[6:7] offset:{128*i} {nt}", "KR")
    A.vmem(f"global_load_ushort v30, v27, s[8:9] {nt}", "KR")
    A.vmem(f"global_load_ushort v31, v27, s[10:11] {nt}", "KR")
    for m in range(4):
        A.vmem(f"global_load_dwordx4 v[{48+4*m}:{51+4*m}], v29, s[12:13] offset:{512*m} {nt}", "VRAW")
    A(f"""
    v_readfirstlane_b32 s32, v{vW}
    v_and_b32 v{vLANE}, 63, v0
    s_lshr_b32 s33, s52, 1
    s_lshl_b32 s53, s33, 7
    s_load_dword s39, s[22:23], s53
    s_load_dwordx2 s[20:21], s[0:1], 88
    s_and_b32 s34, s52, 1
    s_lshl_b32 s59, s52, 8
    s_add_u32 s59, s59, {FA_OFF}
    s_and_b32 s36, s35, 1
    s_mov_b32 s24, s22
    s_and_b32 s25, s23, 0xffff
    s_mov_b32 s26, 0x10000000
    s_mov_b32 s27, 0x20000
    s_mul_i32 s58, s57, {TILE}
    s_add_u32 s58, s58, {RA}
    s_lshl_b32 s54, s2, 2
    s_add_u32 s54, s54, s32
    s_lshl_b32 s54, s54, 13
    s_add_u32 s54, s54, {X_OFF}
    """)
    stamp("issued")
    KF = -math.log2(10000.0) / 64
    def trig(idx, mul, pos, nn, t, P1, P2):
        A(f"""
        v_cvt_f32_u32 v{t}, v{idx}
        v_mul_f32 v{t}, {hex(f2u(KF*mul))}, v{t}
        v_exp_f32 v{t}, v{t}
        v_cvt_f32_u32 v{t+1}, v{pos}
        v_mul_f32 v{t}, v{t}, v{t+1}
        """)
        cst = [10000.0 ** (-(j % (nn//2) + 32*(j // (nn//2))) / 64.0) / (2*math.pi) for j in range(nn)]
        A(f"v_mul_f32 v{P2}, {hex(f2u(cst[0]))}, v{t}")
        for j in range(nn):
            A(f"v_cos_f32 v{t+2+2*(j%2)}, v{P2+j}")
            if j + 1 < nn: A(f"v_mul_f32 v{P2+j+1}, {hex(f2u(cst[j+1]))}, v{t}")
            if j: A(f"v_cvt_pk_bf16_f32 v{P1+j-1}, v{t+2+2*((j-1)%2)}, v{t+3+2*((j-1)%2)}")
            A(f"v_sin_f32 v{t+3+2*(j%2)}, v{P2+j}")
            if j: A(f"v_cvt_pk_bf16_f32 v{P2+j-1}, v{t+3+2*((j-1)%2)}, v{t+2+2*((j-1)%2)}")
        j = nn - 1
        A(f"v_cvt_pk_bf16_f32 v{P1+j}, v{t+2+2*(j%2)}, v{t+3+2*(j%2)}")
        A(f"v_cvt_pk_bf16_f32 v{P2+j}, v{t+3+2*(j%2)}, v{t+2+2*(j%2)}")
    KP1, KP2, QP1, QP2 = 96, 104, 112, 128
    def w_trigK():
        A("v_bfe_u32 v150, v27, 1, 11")
        trig(25, 4, 150, 8, 144, KP1, KP2)
    def w_kaddr():
        A(f"""
        v_mul_u32_u24 v173, 144, v26
        v_lshl_add_u32 v173, v25, 4, v173
        v_lshl_add_u32 v174, v{vW}, 3, v25
        v_mul_u32_u24 v172, 144, v174
        v_lshl_add_u32 v172, v24, 4, v172
        v_lshlrev_b32 v174, 4, v174
        v_lshl_add_u32 v174, v24, 9, v174
        v_add_u32 v175, 0x1000, v174
        v_lshlrev_b32 v176, 3, v0
        v_add_u32 v176, 0x2000, v176
        v_bfe_i32 v177, v0, 4, 1
        v_and_b32 v177, 0x02020202, v177
        v_or_b32 v177, 0x05040100, v177
        v_mov_b32 v178, 0x11111111
        s_add_u32 s37, s58, {RB - RA}
        """)
    def l_pt():
        A(f"""
        s_mul_i32 s52, s32, 2560
        s_add_u32 s52, s52, s58
        v_lshl_add_u32 v65, v{vLANE}, 7, s52
        v_mov_b32 v66, s59
        v_cmp_gt_u32 vcc, {opt.get("ptl", 20)}, v{vLANE}
        {"" if XTAG else "s_add_u32 s52, s54, 4352"}
        {"" if XTAG else "v_writelane_b32 v66, s52, 20"}
        v_cndmask_b32 v65, v66, v65, vcc
        """)
        A.vmem(f"buffer_load_dword v254, v65, s[24:27], 0 offen {opt.get('ptfl', '')}", "PT")
    def l_cpf2():
        NCL = opt.get("ncl", 128)
        A(f"""
        v_min_u32 v64, {NCL//32 - 1}, v{vLANE}
        v_lshl_add_u32 v64, v64, 2, v{vW}
        s_and_b32 s53, s35, 7
        s_add_u32 s53, s53, 64
        v_lshl_add_u32 v64, v64, 3, s53
        v_lshlrev_b32 v64, 7, v64
        """)
        A.vmem(f"global_load_dword v255, v64, s[60:61]", "cpf")
    def w_qaddr():
        A(f"""
        s_lshr_b32 s52, s32, 1
        s_xor_b32 s53, s57, s52
        s_lshl_b32 s53, s53, 5
        v_bfe_u32 v66, v0, 2, 5
        v_and_b32 v71, 3, v0
        v_add_u32 v67, s53, v66
        v_lshlrev_b32 v68, 8, v67
        v_lshl_add_u32 v68, v71, 4, v68
        v_and_b32 v67, 2047, v67
        s_mul_i32 s52, s52, 8448
        v_mul_u32_u24 v180, 1056, v71
        v_lshl_add_u32 v180, v66, 4, v180
        v_add_u32 v180, s52, v180
        """)
    def l_q():
        for k in range(0 if opt.get("noq") else 4):
            A.vmem(f"global_load_dwordx4 v[{72+4*k}:{75+4*k}], v68, s[4:5] offset:{64*k} {opt.get('qfl', '')}", "QR")
    def l_ts():
        A("s_lshl_b32 s53, s33, 12\n v_lshl_add_u32 v70, v0, 4, s53")
        A.vmem(f"global_load_dwordx4 v[88:91], v70, s[14:15]", "TS")
        A.vmem(f"global_load_dwordx4 v[92:95], v70, s[16:17]", "TS")
    def w_trigQ():
        trig(71, 8, 67, 16, 144, QP1, QP2)
    def w_blk():
        A(f"""
        s_lshl_b32 s52, s34, 3
        s_lshl_b32 s53, s36, 2
        s_add_u32 s18, s52, s53
        s_xor_b32 s52, s52, 8
        s_mul_i32 s53, s36, {nfull-4}
        s_add_u32 s19, s52, s53
        s_add_u32 s3, s52, {2*(nfull-4)}
        v_lshlrev_b32 v179, 5, v0
        v_lshrrev_b32 v151, 5, v{vLANE}
        v_lshlrev_b32 v152, 4, v151
        v_lshl_add_u32 v152, v{vW}, 7, v152
        s_lshl_b32 s52, s18, 9
        v_add_u32 v{vT}, s52, v152
        s_lshl_b32 s52, s19, 9
        v_add_u32 v{vT2}, s52, v152
        v_cmp_eq_u32 vcc, 0, v0
        s_lshl_b32 s52, s33, 4
        """)
        for src, reg, b0, b1 in (("s18", RA, 0, 4), ("s19", RB, 4, nfull), ("s3", RB, nfull, nblk)):
            if b1 > b0:
                A(f"s_add_u32 s53, s52, {src}\n s_mul_i32 s53, s53, {BLK}")
                for b_ in range(b0, b1): A(f"s_add_u32 s{42+b_}, s53, {reg + (b_-b0)*BLK}")
        A(f"""
        v_bfrev_b32 v153, 4
        v_cndmask_b32 v{vFB}, v153, 0, vcc
        s_lshl_b32 s53, s36, 6
        v_and_b32 v154, 15, v{vLANE}
        v_lshl_add_u32 v{vPA}, v154, 2, s53
        v_lshlrev_b32 v{vX}, 4, v{vLANE}
        v_lshl_add_u32 v23, v151, 4, v{vX}
        s_mul_i32 s52, s32, {TILE}
        v_add_u32 v{vK0}, s52, v{vX}
        v_add_u32 v{vK1}, 0x1000, v{vK0}
        s_getreg_b32 s41, hwreg(HW_REG_XCC_ID, 0, 4)
        """)
    def w_vaddr():
        A(f"""
        v_lshl_add_u32 v155, v151, 3, v25
        v_bfe_u32 v156, v{vLANE}, 3, 2
        v_lshl_add_u32 v155, v156, 4, v155
        v_lshlrev_b32 v155, 3, v155
        v_lshl_add_u32 v155, v{vW}, 9, v155
        v_add_u32 v156, {LDS_P}, v{vX}
        """)
        for i in range(4):
            A(f"s_add_u32 s52, s32, {i}\n s_and_b32 s52, s52, 3\n s_lshl_b32 s53, s52, 12\n v_add_u32 v{vPW+i}, s53, v156")
            A(f"s_mul_i32 s52, s52, {TILE}\n s_add_u32 s52, s52, 8192\n v_add_u32 v{vV+i}, s52, v155")
    late = []
    late2 = []
    def w_late():
        L_ = f"""
        v_mov_b32 v{V_L}, 0
        v_mov_b32 v{V_L+1}, 0
        v_and_b32 v{vPB}, 15, v{vLANE}
        v_lshl_add_u32 v{vPB}, v{vW}, 4, v{vPB}
        v_lshlrev_b32 v{vPB}, 6, v{vPB}
        v_and_b32 v{vLR}, 31, v{vLANE}
        v_lshrrev_b32 v{V_TMP}, 5, v{vLANE}
        v_lshlrev_b32 v{vLR}, 5, v{vLR}
        v_lshl_add_u32 v{vLW}, v{V_TMP}, 2, v{vLR}
        v_lshl_add_u32 v{vLW}, v{vW}, 3, v{vLW}
        s_sub_u32 s38, 2, s36
        s_mul_i32 s38, s38, {(nfull-4)*512}
        v_add_u32 v{vT3}, s38, v{vT2}
        s_xor_b32 s55, s54, 0x40000
        s_lshl_b32 s56, s57, 13
        s_lshl_b32 s38, s32, 6
        s_add_u32 s56, s56, s38
        s_mov_b32 s28, s20
        s_and_b32 s29, s21, 0xffff
        s_mov_b32 s30, 0x200000
        s_mov_b32 s31, 0x20000
        """
        if not XTAG: L_ += f"""
        s_xor_b32 s37, s35, 1
        s_lshl_b32 s37, s37, 2
        s_add_u32 s37, s37, s59
        v_lshrrev_b32 v{vXL}, 3, v{vLR}
        v_add_u32 v{vXL}, 4096, v{vXL}
        v_mov_b32 v{vXF}, 4352
        v_min_u32 v{vXT}, 32, v{vLANE}
        v_lshlrev_b32 v{vXT}, 7, v{vXT}
        """
        late.extend(x.strip() for x in L_.split("\n") if x.strip())
        late2.extend([f"v_and_b32 v{vOUT}, 32, v{vLANE}", f"v_lshl_add_u32 v{vOUT}, v{vLR}, 3, v{vOUT}"])
    def w_tables():
        A.need(["TS"])
        x = 184
        for k in range(4):
            A(f"v_lshlrev_b32 v{x+2*k}, 16, v{88+k}\n v_and_b32 v{x+2*k+1}, 0xffff0000, v{88+k}")
        A("s_mov_b32 s52, 0x3fc03fc0")
        ex = ["v_xor_b32 v92, s52, v92", "v_xor_b32 v93, s52, v93", "v_xor_b32 v94, s52, v94", "v_xor_b32 v95, s52, v95",
              "v_or3_b32 v92, v92, v93, v94", "v_or_b32 v92, v92, v95", "v_mov_b32 v95, 0x7fc00000", "v_cmp_eq_u32 s[52:53], 0, v92"]
        for k in range(8): A(f"v_log_f32 v{192+k}, v{x+k}\n {ex[k]}")
        ex = ["v_max3_f32 v93, |v192|, |v193|, |v194|", "v_max3_f32 v94, |v195|, |v196|, |v197|", "v_max3_f32 v93, |v198|, |v199|, v93", "v_max_f32 v93, v93, v94",
              "v_cmp_gt_f32 vcc, 0x41f00000, v93", "s_nop 0", "s_and_b64 vcc, vcc, s[52:53]", "s_nop 0"]
        A(f"v_rcp_f32 v200, v{x}")
        A.ds(f"ds_write_b128 v179, v[192:195] offset:{LDS_T}", "QW"); A.ds(f"ds_write_b128 v179, v[196:199] offset:{LDS_T+16}", "QW")
        for k in range(1, 8): A(f"{ex[k-1]}\n v_rcp_f32 v{200+k}, v{x+k}")
        A("v_cndmask_b32 v200, v95, v200, vcc")
        A.ds(f"ds_write_b128 v179, v[200:203] offset:{LDS_T+8192}", "QW"); A.ds(f"ds_write_b128 v179, v[204:207] offset:{LDS_T+8208}", "QW")
    def w_qrope():
        A.need(["QR"])
        A("s_mov_b32 s52, 0x05040100\n s_mov_b32 s53, 0x07060302")
        x = 32
        for k in range(8):
            A(f"v_perm_b32 v{x+2*k}, v{80+k}, v{72+k}, s52\n v_perm_b32 v{x+2*k+1}, v{80+k}, v{72+k}, s53")
        for half in range(2):
            js = [4*half + t for t in range(4)] + [8 + 4*half + t for t in range(4)]
            y = 48 + 16*half
            for t, j in enumerate(js): A(f"v_dot2_f32_bf16 v{y+t}, v{x+j}, v{QP1+j}, 0 neg_hi:[0,1,0]")
            for t, j in enumerate(js): A(f"v_dot2_f32_bf16 v{y+8+t}, v{x+j}, v{QP2+j}, 0")
        for half in range(2):
            y = 48 + 16*half; zz = 208 + 8*half
            for k in range(8): A(f"v_cvt_pk_bf16_f32 v{zz+k}, v{y+2*k}, v{y+2*k+1}")
            A.ds(f"ds_write_b128 v180, v[{zz}:{zz+3}] offset:{LDS_Q + 528*half}", "QW")
            A.ds(f"ds_write_b128 v180, v[{zz+4}:{zz+7}] offset:{LDS_Q + 528*half + 8*528}", "QW")
    def w_flush():
        for l_ in late: A(l_)
        late.clear()
    def w_warm():
        if opt.get("hooks"): A("s_mov_b64 exec, 0\n s_branch L_hook0"); A.label("L_warmed"); A("s_mov_b64 exec, -1")
    W = dict(trigK=w_trigK, kaddr=w_kaddr, pt=l_pt, cpf2=l_cpf2, q=l_q, qaddr=w_qaddr, ts=l_ts, trigQ=w_trigQ, blk=w_blk, vaddr=w_vaddr,
             tables=w_tables, qrope=w_qrope, flush=w_flush, warm=w_warm)
    def run(seq):
        for x_ in seq.split("."):
            if x_: W[x_](); stamp(x_)
    w_late()
    run(opt.get("o1", "pt.trigK.kaddr.cpf2.qaddr.q.trigQ.blk.vaddr.tables"))
    stamp("pre")
    A.need(["KR"])
    stamp("ks")
    A(f"v_lshlrev_b32 v30, 16, v30\n v_lshlrev_b32 v31, 16, v31\n v_mul_f32 v30, {hex(f2u(SCALE))}, v30\n v_mul_f32 v31, v31, v30")
    for j in range(16): A(f"v_cvt_f32_i32 v{32+j}, v{32+j}")
    for j in range(16): A(f"v_fma_f32 v{32+j}, v{32+j}, v30, -v31")
    for j in range(8): A(f"v_cvt_pk_bf16_f32 v{32+j}, v{32+j}, v{40+j}")
    for j in range(8): A(f"v_dot2_f32_bf16 v{KP1+j}, v{32+j}, v{KP1+j}, 0 neg_hi:[0,1,0]")
    for j in range(8): A(f"v_dot2_f32_bf16 v{KP2+j}, v{32+j}, v{KP2+j}, 0")
    for p in range(4): A(f"v_cvt_pk_bf16_f32 v{40+p}, v{KP1+2*p}, v{KP1+2*p+1}")
    A("s_waitcnt lgkmcnt(0)"); A.lg = []
    A.ds("ds_write_b128 v172, v[40:43]", "KT")
    for p in range(4): A(f"v_cvt_pk_bf16_f32 v{44+p}, v{KP2+2*p}, v{KP2+2*p+1}")
    A.ds("ds_write_b128 v172, v[44:47] offset:4608", "KT")
    A.ds("ds_read_b128 v[160:163], v173", "KT2")
    A.ds("ds_read_b128 v[164:167], v173 offset:4608", "KT2")
    stamp("kconv")
    A.need(["VRAW"])
    for c in range(4): A(f"v_lshl_or_b32 v{48+c}, v{52+c}, 4, v{48+c}")
    for c in range(4): A(f"v_lshl_or_b32 v{56+c}, v{60+c}, 4, v{56+c}")
    for c in range(4): A(f"v_lshl_or_b32 v{48+c}, v{56+c}, 8, v{48+c}")
    A("v_lshl_or_b32 v48, v49, 16, v48\n v_lshl_or_b32 v49, v51, 16, v50")
    A("s_mov_b32 s52, 0x22222222\n s_mov_b32 s53, 0x88888888")
    A("v_permlane32_swap_b32 v48, v49")
    A("v_mov_b32 v50, v48\n v_mov_b32 v51, v49")
    A.need(ltags=["KT2"])
    A.vmem("buffer_store_dwordx4 v[160:163], v174, s[24:27], s58 offen", "SA")
    A.vmem("buffer_store_dwordx4 v[164:167], v175, s[24:27], s58 offen", "SA")
    A("v_permlane16_swap_b32 v48, v50\n v_permlane16_swap_b32 v49, v51")
    A("v_perm_b32 v168, v50, v48, v177\n v_perm_b32 v169, v51, v49, v177")
    t1 = bitop(lambda a, b, c: ~(a ^ b) & c); t2 = bitop(lambda a, b, c: (~a & b) | c)
    for r in (168, 169):
        A(f"v_lshlrev_b32 v55, 1, v{r}\n v_lshlrev_b32 v56, 2, v{r}")
        A(f"v_bitop3_b32 v55, v{r}, v55, s52 bitop3:{hex(t1)}")
        A(f"v_bitop3_b32 v56, v56, s53, v178 bitop3:{hex(t2)}")
        A(f"v_or_b32 v{r}, v55, v56")
    A.vmem("buffer_store_dwordx2 v[168:169], v176, s[24:27], s58 offen", "SA")
    run(opt.get("o2", ""))
    def st_b():
        A.vmem("buffer_store_dwordx4 v[160:163], v174, s[24:27], s37 offen sc1", "SB")
        A.vmem("buffer_store_dwordx4 v[164:167], v175, s[24:27], s37 offen sc1", "SB")
        A.vmem("buffer_store_dwordx2 v[168:169], v176, s[24:27], s37 offen sc1", "SB")
    W["sb"] = st_b
    if not opt.get("sbl", 1): st_b()
    stamp("stored")
    run(opt.get("o3", ""))
    A(f"""
    s_mul_i32 s40, s39, 0x9E3779B1
    s_add_u32 s40, s40, 0x7F4A7C15
    s_and_b32 s40, s40, 0xfffffff0
    s_or_b32 s62, s40, s41
    s_lshl_b32 s63, s35, 2
    s_add_u32 s63, s63, s59
    v_mov_b32 v24, s62
    s_or_b32 s61, s40, 8
    s_lshl_b32 s18, s57, 6
    s_add_u32 s18, s18, {FB_OFF}
    v_mov_b32 v{vTAG}, s61
    """)
    FBE = 2
    stamp("mid")
    A.need(["SA"])
    stamp("ackA")
    A("s_barrier")
    A.vmem(f"buffer_store_dword v24, v{vFB}, s[24:27], s63 offen", "FA")
    stamp("bar0")
    run(opt.get("o3b", "sb.qrope.flush"))
    A(f"""
    buffer_load_dword v26, v{vPA}, s[24:27], s59 offen sc1
    s_lshl_b32 s60, s33, 12
    s_add_u32 s60, s60, {FB_OFF}
    s_mov_b32 s3, 0
    s_mov_b32 s19, 0
    """)
    run(opt.get("o5", ""))
    A.label("L_pollA")
    A(f"""
    s_waitcnt vmcnt(0)
    v_cmp_eq_u32 vcc, s62, v26
    s_cmp_eq_u64 vcc, -1
    s_cbranch_scc0 L_pollA_more
    """)
    A.vm = []
    stamp("flagsA")
    OOL.label("L_pollA_more")
    OOL(f"""
    buffer_load_dword v26, v{vPA}, s[24:27], s59 offen sc1
    s_add_u32 s19, s19, 1
    s_cmp_lt_u32 s19, {opt.get("tmo", 64)}
    s_cbranch_scc1 L_pollA
    s_waitcnt vmcnt(0)
    s_waitcnt lgkmcnt(0)
    s_barrier
    buffer_store_dword v{vTAG}, v{vFB}, s[24:27], s18 offen sc1
    v_lshlrev_b32 v27, 4, v{vPA}
    s_lshl_b32 s52, s34, 11
    v_add_u32 v27, s52, v27
    s_mov_b32 s53, 0
    """)
    OOL.label("L_pollB0")
    OOL(f"""
    buffer_load_dword v26, v27, s[24:27], s60 offen sc1
    s_add_u32 s53, s53, 1
    s_waitcnt vmcnt(0)
    v_cmp_eq_u32 vcc, s61, v26
    s_cmp_eq_u64 vcc, -1
    s_cbranch_scc1 L_pollB0_ok
    s_sleep 4
    s_cmp_lt_u32 s53, 0x100000
    s_cbranch_scc1 L_pollB0
    """)
    OOL.label("L_pollB0_ok")
    for b_ in range(4): OOL(f"s_add_u32 s{42+b_}, s{42+b_}, {RB-RA}")
    OOL("s_mov_b32 s3, 1\n s_branch L_go")

    order = []
    for r in range(n):
        order.append(("QK", r))
        if r >= 1: order.append(("PV", r-1))
    order.append(("PV", n-1))
    mf = []; a = [0]*n; b = [0]*n
    for kind, r in order:
        if kind == "QK":
            a[r] = len(mf)
            if r < opt.get("smaj", 1):
                for s in range(8):
                    for u in range(2): mf.append(("QK", r, u, s))
            else:
                for u in range(2):
                    for s in range(8): mf.append(("QK", r, u, s))
        else:
            b[r] = len(mf)
            for kk in range(8):
                for u in range(2): mf.append(("PV", r, u, kk))
    nslots = len(mf)
    sready = {(m[1], m[2]): sl + 3 for sl, m in enumerate(mf) if m[0] == "QK"}
    q1last = {m[3]: sl for sl, m in enumerate(mf) if m[0] == "QK" and rounds[m[1]][m[2]][1] == 1}
    firstuse = {}; lastuse = {}
    for sl, m in enumerate(mf):
        blk = rounds[m[1]][m[2]][0]
        key = ("K" if m[0] == "QK" else "V", blk, m[3])
        firstuse.setdefault(key, sl); lastuse[key] = sl
    kbuf = {}; kfree = {}
    q1dead = a[nfull-1] + 15
    bases = list(A_K); hold = [None]*len(bases)
    if OARCH and opt.get("k4", 1): bases.append(224); hold.append(None)
    if nsolo: bases.append(A_Q + 32); hold.append("Q1")
    for blk in range(nblk):
        def rel(h): return -1 if h is None else (q1dead if h == "Q1" else lastuse[("K", h, 7)])
        i = min(range(len(bases)), key=lambda i: rel(hold[i]))
        for s in range(8):
            h = hold[i]
            kfree[(blk, s)] = -1 if h is None else (q1last[s] if h == "Q1" else lastuse[("K", h, s)])
        kbuf[blk] = bases[i]; hold[i] = blk
    def oreg(qt):
        if OARCH: return f"v[{V_O0}:{V_O0+15}]" if qt == 0 else f"a[{A_O}:{A_O+15}]"
        return f"a[{A_O+16*qt}:{A_O+16*qt+15}]"
    A_O1 = A_O if OARCH else A_O + 16
    vexp = sorted({k for k in firstuse if k[0] == "V"}, key=lambda k: firstuse[k])
    vereg = {k: V_VE + (i % NVE)*4 for i, k in enumerate(vexp)}
    vefree = {k: (-1 if i < NVE else lastuse[vexp[i-NVE]]) for i, k in enumerate(vexp)}
    vedone = {}
    barlead = opt.get("barlead", 2)
    gate = b[opt.get("gater", 1)] - barlead
    kl = [("K", blk, s) for blk in range(nblk) for s in range(8)]
    vl = sorted([("VR", blk, i) for blk in range(nblk) for i in range(4)], key=lambda k: firstuse[("V", k[1], 2*k[2])])
    need_at = {k: firstuse[k] for k in kl}
    need_at.update({k: firstuse[("V", k[1], 2*k[2])] - opt.get("vneed", 14) for k in vl})
    for i in range(4): need_at[("VR", 0, i)] = opt.get("v0need", 9) + i
    issued = set()
    def ld_free(key):
        f = -1
        if key[0] == "K": f = kfree[(key[1], key[2])]
        elif key[1] >= NVR: f = vedone.get(("V", key[1]-NVR, 2*key[2]+1), 10**6)
        if key[1] >= 4: f = max(f, gate)
        return f
    def ld(key):
        k, blk, f = key
        issued.add(key)
        if k == "K":
            rg = kbuf[blk] + 4*f
            A.vmem(f"buffer_load_dwordx4 a[{rg}:{rg+3}], v{vK0 + f//4}, s[24:27], s{42+blk} offen offset:{(f%4)*1024}", key)
        else:
            rg = V_VR + (blk % NVR)*8 + 2*f
            A.vmem(f"buffer_load_dwordx2 v[{rg}:{rg+1}], v{vV+f}, s[24:27], s{42+blk} offen", key)
    tb = []
    for r in range(n):
        for u in range(2):
            if not tb or tb[-1][0] != rounds[r][u][0]: tb.append((rounds[r][u][0], r, u))
    lvreg = {blk: V_LV[i % 2] for i, (blk, _, _) in enumerate(tb)}
    rvreg = {blk: V_RV[i % 2] for i, (blk, _, _) in enumerate(tb)}
    lv_use = {blk: firstuse[("K", blk, 0)] for blk, _, _ in tb}
    lv_last = {blk: lastuse[("K", blk, 0)] for blk, _, _ in tb}
    rv_done = {}
    lvq = [("LV", blk, q, i) for i, (blk, r, u) in enumerate(tb) for q in range(4)]
    rvq = [("RV", blk, q, i) for i, (blk, r, u) in enumerate(tb) for q in range(4)]
    tdone = {}
    A.label("L_go")
    def qread(i):
        A.ds(f"ds_read_b128 a[{A_Q+4*i}:{A_Q+4*i+3}], v23 offset:{LDS_Q + (i//8)*8448 + (i%8)*1056}", ("Q", i//8, i%8))
    qord = [x for s_ in range(8) for x in (s_, 8+s_)] if opt.get("smaj", 1) else list(range(16))
    for _ in range(opt.get("npre0", 2)): ld(kl.pop(0))
    A("s_cmp_eq_u32 s3, 0\n s_waitcnt lgkmcnt(0)\n s_cbranch_scc0 L_skip2\n s_barrier"); A.lg = []
    A.label("L_skip2")
    stamp("bar1")
    rd = [lambda q_=q_: A.ds(f"ds_read_b128 v[{V_LV[0]+4*q_}:{V_LV[0]+4*q_+3}], v{vT} offset:{LDS_T + q_*32}", ("LV", 0, q_)) for q_ in range(4)]
    rd += [lambda i=i: qread(i) for i in qord[:10]]
    for _ in range(opt.get("npre", 6) - opt.get("npre0", 2)):
        for _ in range(opt.get("gap0", 3)):
            if rd: rd.pop(0)()
        ld(kl.pop(0))
    while rd: rd.pop(0)()
    qrest = qord[10:]
    def tread(t, sl_):
        k, blk, q, i = t
        rg = (lvreg if k == "LV" else rvreg)[blk] + 4*q
        tb_, rel_ = (vT, blk) if blk < 4 else ((vT2, blk-4) if blk < nfull else (vT3, blk-nfull))
        A.ds(f"ds_read_b128 v[{rg}:{rg+3}], v{tb_} offset:{LDS_T + rel_*512 + q*32 + (8192 if k == 'RV' else 0)}", (k, blk, q))
        tdone[(k, blk, q)] = sl_
    for q_ in range(4): lvq.pop(0); tdone[("LV", 0, q_)] = -5
    wend = {r: b[r] - opt.get("smend", 5) for r in range(n)}
    items = {}
    for r in range(n):
        S = V_S[r % 2]; PO = V_PO[r % 2]; L = []
        for e in range(33):
            if e < 32: L.append(("e", e, f"v_exp_f32 v{S+e}, v{S+e}", None))
            if e >= 1:
                blk, qt = rounds[r][(e-1)//16]; j = (e-1) % 16
                L.append(("a", e, f"v_fmac_f32 v{V_L+qt}, v{rvreg[blk]+j}, v{S+e-1}", (blk, j//4, (e-1)//16 == 1 or rounds[r][0][0] != rounds[r][1][0], j % 4 == 3)))
            if e >= 2 and e % 2 == 0:
                L.append(("c", e, f"v_cvt_pk_bf16_f32 v{PO + (e-2)//2}, v{S+e-2}, v{S+e-1}", None))
        items[r] = L
    cur = 0; ci = 0; pendw = []; nw = {r: 0 for r in range(n)}
    bar_at = {b[r] - barlead: r for r in range(n)}
    prq = [(r, kk, u, (kk-2)*2+u) for r in range(n) for kk in range(2, 8) for u in range(2)]
    prdone = set(); lastw = -10
    send_slot = b[nfull-1] + 16 + 2
    inloop = send_slot + 6 < nslots
    flag_slot = send_slot + opt.get("flagdelay", 16)
    xpoll_slot = flag_slot + opt.get("xpolldelay", 10)
    xchk_slot = xpoll_slot + opt.get("xchkdelay", 8)
    xuse_slot = xchk_slot + opt.get("xusedelay", 8)
    pollB_slot = opt.get("pollslot", 40); chkB_slot = gate - opt.get("chklead", 3)
    XR = V_LV[0]
    def operands(m):
        blk = rounds[m[1]][m[2]][0]
        if m[0] == "QK":
            lt = [("Q", rounds[m[1]][m[2]][1], m[3])]
            if m[3] == 0: lt += [("LV", blk, q) for q in range(4)]
            return [("K", blk, m[3])], lt
        return [], [("PR", m[1], m[3], m[2])]
    def lsum(t_, dst):
        return [f"v_add_f32 v{t_}, v{t_}, v{t_+1}", f"v_add_f32 v{t_+2}, v{t_+2}, v{t_+3}", f"v_add_f32 v{t_+4}, v{t_+4}, v{t_+5}", f"v_add_f32 v{t_+6}, v{t_+6}, v{t_+7}",
                f"v_add_f32 v{t_}, v{t_}, v{t_+2}", f"v_add_f32 v{t_+4}, v{t_+4}, v{t_+6}", f"v_add_f32 v{dst}, v{t_}, v{t_+4}"]
    LT = [0, 0]
    uid = [0]
    def two_way(fn):
        if XSC1: fn(A, "sc1"); return
        uid[0] += 1; u_ = uid[0]
        A(f"s_cmp_eq_u32 s37, s62\n s_cbranch_scc0 L_far{u_}")
        fn(A, ""); A.label(f"L_join{u_}")
        OOL.label(f"L_far{u_}"); fn(OOL, "sc1"); OOL.vm = []; OOL(f"s_branch L_join{u_}")
    def send_payload(B, fl):
        for i in range(4):
            o = A_O1 + 4*i
            B.vmem(f"buffer_store_dwordx4 a[{o}:{o+3}], v{vX}, s[24:27], s54 offen offset:{i*1024} {fl}", "XS")
        B.vmem(f"buffer_store_dword v{vLS}, v{vXL}, s[24:27], s54 offen {fl}", "XS")
    def send_flag(B, fl):
        B.vmem(f"buffer_store_dword v{vTAG}, v{vXF}, s[24:27], s54 offen {fl}", "XF")
    def self_touch():
        if opt.get("selft", 1): A.vmem(f"buffer_load_dword v{vPB}, v{vXT}, s[24:27], s54 offen sc1", "ST")
    def recv_loads():
        A.vmem(f"buffer_load_dword v{XR+16}, v{vXL}, s[24:27], s55 offen sc1", "XR")
        for i in range(4):
            A.vmem(f"buffer_load_dwordx4 v[{XR+4*i}:{XR+4*i+3}], v{vX}, s[24:27], s55 offen offset:{i*1024} sc1", "XR")
    def xcheck():
        A(f"v_cmp_eq_u32 vcc, s61, v{V_TMP}\n s_cbranch_vccz L_xspin0")
        A.label("L_xok")
        OOL.label("L_xspin0"); OOL("s_mov_b32 s53, 0"); OOL.label("L_xspin")
        OOL(f"""
        buffer_load_dword v{V_TMP}, v{vXF}, s[24:27], s55 offen sc1
        s_add_u32 s53, s53, 1
        s_waitcnt vmcnt(0)
        v_cmp_eq_u32 vcc, s61, v{V_TMP}
        s_cbranch_vccnz L_xok
        s_cmp_lt_u32 s53, 0x100000
        s_cbranch_scc1 L_xspin
        s_branch L_xok
        """)
    def fin_pre():
        L_ = [f"v_add_f32 v{V_L}, v{V_L}, v{XR+16}", f"v_rcp_f32 v{V_TMP}, v{V_L}",
              f"v_cmp_lt_f32 vcc, 0x30800000, v{V_L}", f"v_cmp_gt_f32 s[52:53], s19, v{V_L}"]
        L_ += [f"v_mul_f32 v{XR+i}, v{XR+i}, v{V_TMP}" for i in range(16)]
        return L_
    XB = V_PO[(nfull-1) % 2]
    XL = V_LV[1]
    def xpos(k): return k + k//3
    def tag_pack():
        L_ = []
        for k in range(8):
            L_ += [f"v_accvgpr_read_b32 v{V_TMP}, a{A_O1+2*k}", f"v_accvgpr_read_b32 v{V_TMP+1}, a{A_O1+2*k+1}",
                   f"v_cvt_pk_bf16_f32 v{XB+xpos(k)}, v{V_TMP}, v{V_TMP+1}"]
            if k in (2, 5, 7): L_.append(("st", {2: 0, 5: 1, 7: 2}[k]))
        return L_
    def tag_recv(B):
        for i in range(3):
            B.vmem(f"buffer_load_dwordx4 v[{XL+4*i}:{XL+4*i+3}], v{vX}, s[24:27], s55 offen offset:{i*1024} sc1", "XR")
    def tag_cmp(B):
        B(f"v_cmp_eq_u32 vcc, s61, v{XL+3}\n v_cmp_eq_u32 s[52:53], s61, v{XL+7}\n v_cmp_eq_u32 s[20:21], s61, v{XL+11}")
        B("s_and_b64 vcc, vcc, s[52:53]\n s_and_b64 vcc, vcc, s[20:21]\n s_cmp_eq_u64 vcc, -1")
    def tag_check():
        tag_cmp(A); A("s_cbranch_scc0 L_xspin0"); A.label("L_xok")
        OOL.label("L_xspin0"); OOL("s_mov_b32 s38, 0"); OOL.label("L_xspin")
        tag_recv(OOL); OOL.vm = []
        OOL("s_add_u32 s38, s38, 1\n s_waitcnt vmcnt(0)"); tag_cmp(OOL)
        OOL("s_cbranch_scc1 L_xok\n s_cmp_lt_u32 s38, 0x100000\n s_cbranch_scc1 L_xspin\n s_branch L_xok")
    def tag_fin():
        L_ = [f"v_add_f32 v{V_L}, v{V_L}, v{XL+10}", f"v_rcp_f32 v{V_TMP}, v{V_L}",
              f"v_cmp_lt_f32 vcc, 0x30800000, v{V_L}", f"v_cmp_gt_f32 s[52:53], s19, v{V_L}"]
        for k in range(8):
            L_ += [f"v_lshlrev_b32 v{XR+2*k}, 16, v{XL+xpos(k)}", f"v_and_b32 v{XR+2*k+1}, 0xffff0000, v{XL+xpos(k)}"]
        L_ += [f"v_mul_f32 v{XR+i}, v{XR+i}, v{V_TMP}" for i in range(16)]
        return L_
    def emit_extra(x_):
        if isinstance(x_, tuple):
            A.vmem(f"buffer_store_dwordx4 v[{XB+4*x_[1]}:{XB+4*x_[1]+3}], v{vX}, s[24:27], s54 offen offset:{x_[1]*1024} sc1", "XS")
        else: A(x_)
    xld_slot = opt.get("xld", nslots - 22); xuse2 = opt.get("xuse", max(xld_slot + 10, nslots - 8))
    extra = []
    seenO = set(); vi = 0; vpart = 0
    vt, lt = operands(mf[0]); A.need(vt, lt)
    stamp("mfma0")
    totcost = []
    pace = opt.get("pace", 2.0); lastld = -10
    hooks = opt.get("hooks") or []
    for sl in range(nslots):
        m = mf[sl]
        blk, qt = rounds[m[1]][m[2]]
        if m[0] == "QK":
            _, r, u, s = m
            d = V_S[r % 2] + u*16
            c = f"v[{lvreg[blk]}:{lvreg[blk]+15}]" if s == 0 else f"v[{d}:{d+15}]"
            if s == 0: assert all(("LV", blk, q_) in tdone for q_ in range(4)), ("lv not read", sl)
            assert ("K", blk, s) in issued, ("K not loaded", sl)
            assert qt*8+s not in qrest
            k = kbuf[blk] + 4*s; q = A_Q + (qt*8+s)*4
            A(f"v_mfma_f32_32x32x16_bf16 v[{d}:{d+15}], a[{k}:{k+3}], a[{q}:{q+3}], {c}")
        else:
            _, r, u, kk = m
            c = "0" if qt not in seenO else oreg(qt)
            seenO.add(qt)
            assert ("V", blk, kk) in vedone, ("V frag not expanded", sl, m)
            assert kk < 2 or (r, kk, u) in prdone, ("P not read", sl)
            v = vereg[("V", blk, kk)]
            ps = f"v[{V_PO[r%2] + (u*2+kk)*4}:{V_PO[r%2] + (u*2+kk)*4+3}]" if kk < 2 else f"a[{A_P + ((kk-2)*2+u)*4}:{A_P + ((kk-2)*2+u)*4+3}]"
            A(f"v_mfma_f32_32x32x16_bf16 {oreg(qt)}, v[{v}:{v+3}], {ps}, {c}")
        if sl in hooks:
            hi = hooks.index(sl)
            A.label(f"L_hook{hi}")
            A(f"s_cbranch_execz {'L_hook%d' % (hi+1) if hi + 1 < len(hooks) else 'L_warmed'}")
        stamp(f"slot{sl}")
        bud = 24
        vt, lt = operands(mf[sl+1]) if sl + 1 < nslots else ([], [])
        vt = list(vt); lt = list(lt)
        if vi < len(vexp) and sl >= need_at[("VR", vexp[vi][1], vexp[vi][2]//2)]: vt.append(("VR", vexp[vi][1], vexp[vi][2]//2))
        if cur < n:
            for it in (items[cur][ci:] + (items[cur+1] if cur+1 < n and sl >= sready[(cur+1, 0)] - 1 else []))[:8]:
                if it[0] == "a" and sl >= sready[(cur, 0)] - 1 and tdone.get(("RV", it[3][0], it[3][1]), 10**6) <= sl - 2: lt.append(("RV", it[3][0], it[3][1]))
        if sl == chkB_slot: vt.append("PB")
        if inloop and not XTAG:
            if sl == flag_slot: vt.append("XS")
            if sl == xchk_slot: vt.append("XP")
            if sl == xuse_slot: vt.append("XR")
        if inloop and XTAG and sl == xuse2: vt.append("XR")
        if sl == b[nfull-1] + 4: lt.append(("LR", 1))
        if sl == b[n-1] + 4: lt.append(("LR", 0))
        if sl in bar_at:
            r = bar_at[sl]
            assert nw[r] == 4, ("P not written before barrier", r, sl)
            A.need(vt, lt + [("PW", r), "LW"])
            A("s_barrier")
            bud -= COST['bar']
            for q_ in ([1] if r == nfull-1 else []) + ([0] if r == n-1 else []):
                LT[q_] = V_S[r % 2] + 8*q_
                for hf in range(2):
                    A.ds(f"ds_read_b128 v[{LT[q_]+hf*4}:{LT[q_]+hf*4+3}], v{vLR} offset:{LDS_L + q_*1024 + hf*16}", ("LR", q_)); bud -= 4
        else:
            A.need(vt, lt)
        if sl == b[nfull-1] + 4:
            extra += lsum(LT[1], XB+10 if XTAG else vLS)
            if XTAG: extra += [f"v_mov_b32 v{XB+j}, s61" for j in (3, 7, 11)]
        if sl == b[n-1] + 4: extra += lsum(LT[0], V_L)
        hasw = bool(pendw) and sl not in bar_at and not (sl + 1 in bar_at)
        nr = 0
        while nr < opt.get("maxr", 2) and len(A.lg) < 13:
            c_ = []
            if prq:
                r, kk, u, idx = prq[0]
                if sl >= b[r] - barlead and (r == 0 or sl >= b[r-1] + 4 + idx): c_.append((b[r] + 4 + idx - 5, "p"))
            if qrest: c_.append((qord.index(qrest[0]) - 6, "q"))
            if lvq:
                _, tblk, q, i = lvq[0]
                if (i < 2 or lv_last[tb[i-2][0]] + 1 < sl): c_.append((lv_use[tblk] - 8 + q, "lv"))
            if rvq:
                _, tblk, q, i = rvq[0]
                if (i < 2 or (tb[i-2][0], q) in rv_done): c_.append((lv_use[tblk] + 4 + 2*q, "rv"))
            if not c_: break
            d_, k_ = min(c_)
            if sl == lastw + 1 and d_ > sl - 2: break
            if nr >= 1 and d_ > sl + 1: break
            if hasw and d_ > sl + 1: break
            if d_ > sl + opt.get("rlead", 24): break
            if k_ == "p":
                r, kk, u, idx = prq.pop(0); rg = A_P + idx*4
                A.ds(f"ds_read_b128 a[{rg}:{rg+3}], v{vPR+kk//2-1} offset:{(r%NPB)*16384 + (u*2+kk%2)*1024}", ("PR", r, kk, u)); prdone.add((r, kk, u))
            elif k_ == "q": qread(qrest.pop(0))
            elif k_ == "lv": tread(lvq.pop(0), sl)
            else: tread(rvq.pop(0), sl)
            bud -= COST["r"]; nr += 1
        if hasw:
            r, f = pendw.pop(0); PO = V_PO[r % 2]
            if f == 3:
                for q_ in ([1] if r == nfull-1 else []) + ([0] if r == n-1 else []):
                    A.ds(f"ds_write_b32 v{vLW}, v{V_L+q_} offset:{LDS_L + q_*1024}", "LW"); bud -= 8
            A.ds(f"ds_write_b128 v{vPW}, v[{PO+4*f}:{PO+4*f+3}] offset:{(r%NPB)*16384 + f*1024}", ("PW", r)); bud -= COST["w"]; nw[r] += 1
            lastw = sl
        if sl == opt.get("fbslot", 13) and FBE != 1:
            if not FBE:
                A("s_cmp_eq_u32 s3, 0\n s_cbranch_scc0 L_skip2\n s_barrier"); bud -= 42
                A.label("L_skip2")
            A.vmem(f"buffer_store_dword v{vTAG}, v{vFB}, s[24:27], s18 offen sc1", "FB"); bud -= 8
        elif sl == pollB_slot:
            assert not late
            A.vmem(f"buffer_load_dword v{V_TMP}, v{vPB}, s[24:27], s60 offen sc1", "PB"); bud -= 8
            if not XSC1: A.vmem(f"buffer_load_dword v{V_TMP+1}, off, s[24:27], s37 sc1", "PB"); bud -= 8
        elif (kl or vl) and not hasw and sl not in bar_at:
            c_ = [q_[0] for q_ in (kl, vl) if q_ and ld_free(q_[0]) <= sl and need_at[q_[0]] - sl <= opt.get("maxlead", 90)]
            if c_:
                key = min(c_, key=lambda k: need_at[k])
                if sl - lastld >= pace or need_at[key] - sl < min(opt.get("urg", 30), opt.get("urg0", 30) + sl * opt.get("urgs", 0.5)):
                    (kl if key[0] == "K" else vl).pop(0)
                    ld(key); bud -= COST["l"]
                    lastld = max(lastld + pace, sl - 1) if sl - lastld < 2*pace else sl
        if sl == chkB_slot:
            A(f"v_cmp_eq_u32 vcc, s61, v{V_TMP}")
            if not XSC1: A(f"v_readfirstlane_b32 s37, v{V_TMP+1}")
            A(f"s_cmp_eq_u64 vcc, -1\n s_cbranch_scc0 L_bspin0")
            A.label("L_bok")
            OOL.label("L_bspin0"); OOL("s_mov_b32 s53, 0"); OOL.label("L_bspin")
            OOL(f"""
            buffer_load_dword v{V_TMP}, v{vPB}, s[24:27], s60 offen sc1
            s_add_u32 s53, s53, 1
            s_waitcnt vmcnt(0)
            v_cmp_eq_u32 vcc, s61, v{V_TMP}
            s_cmp_eq_u64 vcc, -1
            s_cbranch_scc1 L_bok
            s_cmp_lt_u32 s53, 0x100000
            s_cbranch_scc1 L_bspin
            s_branch L_bok
            """)
            A("s_mov_b32 s19, 0x4e800000")
            for x_ in late2: A(x_)
            bud -= 32
        if sl == opt.get("wbslot", -1):
            A("s_or_b32 s38, s35, s32\n s_cbranch_scc0 L_dowb"); A.label("L_nowb"); bud -= 8
            OOL.label("L_dowb"); OOL("buffer_wbl2 sc1\n s_branch L_nowb")
        if inloop and XTAG:
            if sl == send_slot:
                assert not extra
                stamp("send"); extra += tag_pack()
            if sl == xld_slot:
                assert not kl and not vl and all(lv_last[t[0]] + 1 < sl for t in tb) and sl > send_slot + 8
                tag_recv(A); bud -= 24
            if sl == xuse2:
                assert sl > b[n-1] + 4 and all(lv_last[t[0]] < sl for t in tb)
                stamp("xr")
                while extra: emit_extra(extra.pop(0)); bud -= 4
                tag_check(); bud -= 28; extra += tag_fin()
        elif inloop:
            if sl == send_slot:
                assert not extra
                stamp("send"); two_way(send_payload); bud -= 60
                if not XSC1: self_touch(); bud -= 8
            if sl == flag_slot:
                stamp("xack"); two_way(send_flag); bud -= 16
            if sl == xpoll_slot:
                A.vmem(f"buffer_load_dword v{V_TMP}, v{vXF}, s[24:27], s55 offen sc1", "XP"); bud -= 8
            if sl == xchk_slot:
                assert not kl and not vl and all(lv_last[t[0]] < sl for t in tb)
                stamp("xp"); xcheck(); recv_loads(); bud -= 50
            if sl == xuse_slot:
                assert sl > b[n-1] + 4
                stamp("xr"); extra += fin_pre()
        def vexp_step():
            nonlocal vi, vpart, bud
            key = vexp[vi]; src = V_VR + (key[1] % NVR)*8 + key[2]
            A(f"v_cvt_scalef32_pk_bf16_fp4 v{vereg[key]+vpart}, v{src}, 1.0 op_sel:[{vpart&1},{vpart>>1},0]")
            bud -= 4; vpart += 1
            if vpart == 4: vedone[key] = sl; vi += 1; vpart = 0
        def vexp_ok():
            if vi >= len(vexp): return False
            key = vexp[vi]; tag = ("VR", key[1], key[2]//2)
            return vefree[key] <= sl and tag not in A.vm and tag in issued
        def sm_next():
            nonlocal cur, ci
            while cur < n and ci >= len(items[cur]): cur += 1; ci = 0
            if cur >= n: return None
            kind, e, txt, info = items[cur][ci]
            if sl < sready[(cur, 0)]: return None
            if kind == "e" and e == 16 and sl < sready[(cur, 1)]: return None
            if kind == "a" and tdone.get(("RV", info[0], info[1]), 10**6) > sl - 2: return None
            if kind == "c" and XTAG and cur == nfull + 1: assert not extra and sl > send_slot + 4
            rate = min(opt.get("smrate", 0.9), (wend[cur] - sready[(cur, 0)]) / 33.0)
            return wend[cur] - (32 - e) * rate
        def sm_step():
            nonlocal ci, bud
            kind, e, txt, info = items[cur][ci]
            if kind == "a":
                A.need(ltags=[("RV", info[0], info[1])])
                if info[2] and info[3]: rv_done[(info[0], info[1])] = sl
            A(txt); bud -= COST[kind]; ci += 1
            if kind == "c" and e % 8 == 0: pendw.append((cur, e//8 - 1))
        while True:
            ds_ = sm_next(); dv = None
            if vi < len(vexp):
                dl = firstuse[vexp[vi]] - 2 - (3 - vpart) * 0.25
                if vexp_ok(): dv = dl
                elif firstuse[vexp[vi]] - sl <= 2:
                    A.need([("VR", vexp[vi][1], vexp[vi][2]//2)])
                    assert vexp_ok(), ("cannot expand in time", sl, vexp[vi])
                    dv = dl
            cands = [(d, k) for d, k in ((ds_, "s"), (dv, "v")) if d is not None]
            if extra:
                if inloop and sl < send_slot: dx = b[nfull-1] + 10
                elif inloop and XTAG and sl < send_slot + 8: dx = send_slot + (27 - len(extra)) * opt.get("packrate", 0.12)
                else: dx = sl + 3
                cands.append((dx, "x"))
            if late: cands.append((8, "t"))
            if not cands: break
            d, k = min(cands)
            if bud <= opt.get("fillto", 0) and d > sl: break
            if k == "s": sm_step()
            elif k == "v": vexp_step()
            elif k == "x": emit_extra(extra.pop(0)); bud -= 4
            else: A(late.pop(0)); bud -= 4
        totcost.append(32 - bud)
    assert not kl and not vl
    if opt.get("verbose"):
        print("slot costs:", totcost, "sum:", sum(totcost), "sum max(32,c):", sum(max(32, c) for c in totcost), file=sys.stderr)
    stamp("loopend")
    for x_ in extra: emit_extra(x_)
    if XTAG:
        if not inloop:
            for x_ in tag_pack(): emit_extra(x_)
        if not inloop or xld_slot >= nslots: A.need(["XS"]); tag_recv(A)
        if not inloop or xuse2 >= nslots:
            A.need(["XR"]); stamp("xr"); tag_check()
            for x_ in tag_fin(): A(x_)
    else:
        if not inloop:
            A("s_nop 7"); two_way(send_payload)
            if not XSC1: self_touch()
        if not inloop or flag_slot >= nslots: A.need(["XS"]); two_way(send_flag)
        if not inloop or xpoll_slot >= nslots: A.vmem(f"buffer_load_dword v{V_TMP}, v{vXF}, s[24:27], s55 offen sc1", "XP")
        if not inloop or xchk_slot >= nslots: A.need(["XP"]); xcheck(); recv_loads()
        if not inloop or xuse_slot >= nslots:
            A.need(["XR"]); stamp("xr")
            for x_ in fin_pre(): A(x_)
    if not opt.get("noslow"): A("s_and_b64 vcc, vcc, s[52:53]\n s_cmp_eq_u64 vcc, -1\n s_cbranch_scc0 L_slow")
    O = V_O0
    if not OARCH:
        O = V_S[n % 2]
        for i in range(16): A(f"v_accvgpr_read_b32 v{O+i}, a{A_O+i}")
    pk = V_PO[0]
    for bq in range(4):
        for a_ in range(4): A(f"v_fmac_f32 v{XR+4*a_+bq}, v{O+4*a_+bq}, v{V_TMP}")
    A.label("L_pack")
    for bq in range(4):
        A(f"v_cvt_pk_bf16_f32 v{pk+2*bq}, v{XR+bq}, v{XR+4+bq}")
        A(f"v_cvt_pk_bf16_f32 v{pk+2*bq+1}, v{XR+8+bq}, v{XR+12+bq}")
        if bq == 1: A(f"buffer_store_dwordx4 v[{pk}:{pk+3}], v{vOUT}, s[28:31], s56 offen {opt.get('ofl','')}")
    A(f"buffer_store_dwordx4 v[{pk+4}:{pk+7}], v{vOUT}, s[28:31], s56 offen offset:16 {opt.get('ofl','')}")
    A(f"""
    s_and_b32 s52, s57, 63
    s_cbranch_scc1 L_nobump
    s_add_u32 s52, s39, 1
    s_lshl_b32 s53, s33, 7
    v_mov_b32 v{V_TMP}, s52
    buffer_store_dword v{V_TMP}, v{vFB}, s[24:27], s53 offen
    """)
    A.label("L_nobump")
    if st:
        A("s_waitcnt vmcnt(0)")
        stamp("end")
        A(("" if rtdone else "s_memrealtime s[98:99]\n") + "s_waitcnt lgkmcnt(0)")
        A(f"s_lshl_b32 s50, s2, 2\n s_add_u32 s50, s50, s32\n s_lshl_b32 s51, s50, 7\n s_add_u32 s51, s51, {ST_OFF}")
        A("s_mov_b64 exec, 1")
        open("stampnames.txt", "w").write(" ".join(stl))
        for i in range(len(stl)):
            A(f"v_mov_b32 v10, s{64+2*i}\n v_mov_b32 v11, s{65+2*i}\n buffer_store_dwordx2 v[10:11], off, s[24:27], s51 offset:{8*i}\n s_nop 1")
        A(f"s_lshl_b32 s50, s50, 4\n s_add_u32 s50, s50, {RT_OFF}")
        A(f"v_mov_b32 v24, s96\n v_mov_b32 v25, s97\n v_mov_b32 v26, s98\n v_mov_b32 v27, s99\n buffer_store_dwordx4 v[24:27], off, s[24:27], s50")
    A.label("L_end")
    A("s_endpgm")
    S = OOL
    S.label("L_slow")
    S(f"""
    s_waitcnt vmcnt(0) lgkmcnt(0)
    s_mul_i32 s40, s33, {64*TILE}
    s_add_u32 s40, s40, {RB}
    v_add_u32 v{vK1}, 0x1000, v{vX}
    v_mov_b32 v40, 0xff800000
    s_mov_b32 s41, s40
    s_mov_b32 s42, 0
    """)
    def slow_qk():
        for s in range(8): S(f"buffer_load_dwordx4 a[{64+4*s}:{67+4*s}], v{vX if s < 4 else vK1}, s[24:27], s41 offen offset:{(s%4)*1024} sc1")
        S("s_waitcnt vmcnt(0)")
        for s in range(8): S(f"v_mfma_f32_32x32x16_bf16 v[24:39], a[{64+4*s}:{67+4*s}], a[{4*s}:{4*s+3}], {'0' if s == 0 else 'v[24:39]'}")
        S("s_nop 15")
    S.label("L_slow1")
    slow_qk()
    for i in range(8): S(f"v_max3_f32 v40, v{24+2*i}, v{25+2*i}, v40")
    S(f"""
    s_add_u32 s41, s41, {TILE}
    s_add_u32 s42, s42, 1
    s_cmp_lt_u32 s42, 64
    s_cbranch_scc1 L_slow1
    v_mov_b32 v41, v40
    s_nop 1
    v_permlane32_swap_b32 v40, v41
    v_max_f32 v40, v40, v41
    v_mov_b32 v42, 0
    v_and_b32 v43, 7, v{vLANE}
    v_bfe_u32 v44, v{vLANE}, 3, 2
    v_lshl_add_u32 v43, v43, 2, v44
    v_lshl_add_u32 v43, v{vW}, 5, v43
    v_lshlrev_b32 v43, 2, v43
    v_lshrrev_b32 v44, 5, v{vLANE}
    s_lshl_b32 s52, s33, 11
    v_lshl_add_u32 v44, v44, 2, s52
    v_lshl_add_u32 v43, v44, 9, v43
    v_lshlrev_b32 v44, 1, v44
    s_mov_b32 s41, s40
    s_mov_b32 s42, 0
    """)
    for i in range(16): S(f"v_mov_b32 v{XR+i}, 0")
    S.label("L_slow2")
    for g in range(4):
        S(f"global_load_dwordx2 v[{64+2*g}:{65+2*g}], v44, s[14:15] offset:{16*g}")
        S(f"global_load_dwordx2 v[{72+2*g}:{73+2*g}], v44, s[16:17] offset:{16*g}")
        for b_ in range(4): S(f"global_load_dword v{48+4*g+b_}, v43, s[12:13] offset:{512*b_}")
        S("v_add_u32 v43, 0x1000, v43")
    S("v_add_u32 v44, 64, v44")
    slow_qk()
    for i in range(16): S(f"v_sub_f32 v{24+i}, v{24+i}, v40")
    for i in range(16): S(f"v_exp_f32 v{24+i}, v{24+i}")
    for i in range(16): S(f"v_add_f32 v42, v42, v{24+i}")
    for i in range(8): S(f"v_cvt_pk_bf16_f32 v{80+i}, v{24+2*i}, v{25+2*i}")
    for i in range(8):
        S(f"""
        v_cvt_f32_i32 v{48+2*i}, v{48+2*i}
        v_cvt_f32_i32 v{49+2*i}, v{49+2*i}
        v_lshlrev_b32 v45, 16, v{72+i}
        v_and_b32 v46, 0xffff0000, v{72+i}
        v_sub_f32 v{48+2*i}, v{48+2*i}, v45
        v_sub_f32 v{49+2*i}, v{49+2*i}, v46
        v_lshlrev_b32 v45, 16, v{64+i}
        v_and_b32 v46, 0xffff0000, v{64+i}
        v_mul_f32 v{48+2*i}, v{48+2*i}, v45
        v_mul_f32 v{49+2*i}, v{49+2*i}, v46
        v_cvt_pk_bf16_f32 v{88+i}, v{48+2*i}, v{49+2*i}
        """)
    S(f"""
    s_nop 1
    v_mfma_f32_32x32x16_bf16 v[{XR}:{XR+15}], v[88:91], v[80:83], v[{XR}:{XR+15}]
    v_mfma_f32_32x32x16_bf16 v[{XR}:{XR+15}], v[92:95], v[84:87], v[{XR}:{XR+15}]
    s_add_u32 s41, s41, {TILE}
    s_add_u32 s42, s42, 1
    s_cmp_lt_u32 s42, 64
    s_cbranch_scc1 L_slow2
    v_mov_b32 v41, v42
    s_nop 15
    v_permlane32_swap_b32 v42, v41
    v_add_f32 v42, v42, v41
    v_rcp_f32 v42, v42
    s_nop 0
    """)
    for i in range(16): S(f"v_mul_f32 v{XR+i}, v{XR+i}, v42")
    S("s_branch L_pack")
    o = ["; generated by gen5.py\n", f"; @launch grid=(256,1,1) block=(256,1,1) lds={LDS_BYTES}\n", TARGET, A.text() + OOL.text(),
         ".fill 2048, 4, 0xBF800000\n", kd(KN, 512, sgpr=102, accum=256)]
    if opt.get("rep"):
        import reporter
        o[1] = f"; @launch kernel={KN} grid=(256,1,1) block=(256,1,1) lds={LDS_BYTES}\n; @launch kernel=rep_kernel grid=(1,1,1) block=(64,1,1) lds=0\n"
        o[4] = o[4] + reporter.text(opt["rep"], RT_OFF, ST_OFF, opt.get("repi", 0), opt.get("repk", 20))
        o.append(kd("rep_kernel", 32))
    return "".join(o)

if __name__ == "__main__":
    opt = {}
    out = sys.argv[1]
    for a_ in sys.argv[2:]:
        k, v = a_.split("=")
        try: v = int(v)
        except:
            try: v = float(v)
            except: pass
        opt[k] = v
    if "hooks" in opt: opt["hooks"] = [int(x) for x in str(opt["hooks"]).split(":")]
    import hazcheck
    t, n = hazcheck.fix(gen(opt))
    print("nops inserted:", n)
    open(out, "w").write(t)
```

```python
import sys, math, struct
from asmlib import *
from gen1 import Asm, f2u

KN = NAME + "_kernel"
TILE = 10240
BLK = 4 * TILE
RA = 1 << 20
RB = 4 << 20
X_OFF = 8 << 20
FA_OFF = 4096
FB_OFF = 8192
ST_OFF = 16 << 20
RT_OFF = 17 << 20
SCALE = math.log2(math.e) / math.sqrt(128.0)

LDS_K = 0
LDS_L = 9216
LDS_Q = LDS_L + 2048
LDS_T = LDS_Q + 16896
LDS_P = 45056
NPB = 3
LDS_BYTES = LDS_P + NPB * 16384
assert LDS_T + 16384 <= LDS_P

vT3, vW, vLANE, vK0, vK1, vV, vPW, vPR, vT, vLW, vLR, vOUT, vX, vT2 = 0, 1, 2, 3, 4, 5, 9, 10, 13, 14, 15, 16, 17, 18
vFB, V_L, V_TMP = 19, 20, 22
V_S = [24, 56]
V_PO = [88, 104]
COST = dict(l=8, r=4, w=20, e=8, a=4, c=4, bar=42)
A_Q = 0
A_K = [64, 96, 128]
A_P = 160
A_O = 208

def bitop(fn): return fn(0xF0, 0xCC, 0xAA) & 0xFF

def gen(opt):
    A = Asm()
    OOL = Asm()
    st = opt.get("stamps")
    stl = []; rtdone = []
    stsel = set(opt.get("st", "start,karg,issued,pre,ks,kconv,stored,mid,ackA,bar1,flagsA,mfma0,slot96,slot192,loopend,end").split(","))
    def stamp(name):
        if st and opt.get("rtst") == name and not rtdone:
            rtdone.append(1); A("s_memrealtime s[98:99]")
        if st and opt.get("rtst0") == name: A("s_memrealtime s[96:97]")
        if st and name in stsel and name not in stl:
            i = len(stl); stl.append(name); assert i < 16
            A(f"s_memtime s[{64+2*i}:{65+2*i}]")
    NVR = opt.get("nvr", 4 if opt.get("xtag", 1) else 3); NVE = opt.get("nve", 6); OARCH = opt.get("oarch", 1)
    V_VR = 120; V_VE = V_VR + NVR*8
    V_LV = [V_VE + NVE*4, V_VE + NVE*4 + 16]; V_RV = [V_LV[1] + 16, V_LV[1] + 32]
    V_O0 = V_RV[1] + 16
    V_END = V_O0 + (16 if OARCH else 0)
    if opt.get("xtag", 1):
        assert V_END <= 256 and OARCH
        vTAG, vPA, vPB = V_O0, V_O0+1, vOUT
        vXF = vXL = vXT = vLS = None
    else:
        assert V_END + 8 <= 256, V_END
        vTAG, vPB, vXF, vXL, vXT, vPA, vLS = V_END, V_END+1, V_END+2, V_END+3, V_END+4, V_END+5, V_END+6
    nfull = opt.get("nfull", 6); nsolo = 16 - 2*nfull; nblk = nfull + nsolo
    rounds = [[(r, 0), (r, 1)] for r in range(nfull)] + [[(nfull + 2*i, 0), (nfull + 2*i + 1, 0)] for i in range(nsolo//2)]
    n = len(rounds)
    nt = opt.get("ntfl", "")
    XTAG = opt.get("xtag", 1)
    XSC1 = opt.get("xsc1", 0) or XTAG
    if opt.get("pad") is not None:
        A.raw(f".text\n.p2align 12\n.fill {opt['pad']//4}, 4, 0xBF800000\n")
    A.raw(head(KN))
    A("""
    s_cmp_ge_u32 s2, 256
    s_cbranch_scc1 L_end
    s_load_dwordx16 s[4:19], s[0:1], 0
    s_load_dwordx2 s[22:23], s[0:1], 104
    s_getpc_b64 s[60:61]
    v_lshlrev_b32 v64, 5, v0
    """)
    A.vmem("global_load_dword v255, v64, s[60:61]", "cpf")
    stamp("start")
    if st: A("s_memrealtime s[96:97]")
    A(f"""
    s_and_b32 s52, s2, 7
    s_lshr_b32 s35, s2, 3
    s_lshl_b32 s57, s52, 5
    s_or_b32 s57, s57, s35
    s_lshl_b32 s53, s57, 14
    v_and_b32 v25, 7, v0
    v_lshrrev_b32 v26, 3, v0
    v_lshl_add_u32 v29, v25, 4, s53
    v_lshl_add_u32 v28, v26, 9, v29
    v_and_b32 v24, 7, v26
    v_lshrrev_b32 v{vW}, 6, v0
    v_lshl_add_u32 v29, v24, 11, v29
    v_lshl_add_u32 v29, v{vW}, 7, v29
    s_lshl_b32 s53, s57, 6
    v_lshl_add_u32 v27, v26, 1, s53
    s_waitcnt lgkmcnt(0)
    """)
    stamp("karg")
    if opt.get("tse", 1):
        A("s_and_b32 s53, s53, 0x3000\n v_lshl_add_u32 v70, v0, 4, s53")
        A.vmem(f"global_load_dwordx4 v[88:91], v70, s[14:15]", "TS")
        A.vmem(f"global_load_dwordx4 v[92:95], v70, s[16:17]", "TS")
    for i in range(4):
        A.vmem(f"global_load_dwordx4 v[{32+4*i}:{35+4*i}], v28, s[6:7] offset:{128*i} {nt}", "KR")
    A.vmem(f"global_load_ushort v30, v27, s[8:9] {nt}", "KR")
    A.vmem(f"global_load_ushort v31, v27, s[10:11] {nt}", "KR")
    for m in range(4):
        A.vmem(f"global_load_dwordx4 v[{48+4*m}:{51+4*m}], v29, s[12:13] offset:{512*m} {nt}", "VRAW")
    A(f"""
    v_readfirstlane_b32 s32, v{vW}
    v_and_b32 v{vLANE}, 63, v0
    s_lshr_b32 s33, s52, 1
    s_lshl_b32 s53, s33, 7
    s_load_dword s39, s[22:23], s53
    s_load_dwordx2 s[20:21], s[0:1], 88
    s_and_b32 s34, s52, 1
    s_lshl_b32 s59, s52, 8
    s_add_u32 s59, s59, {FA_OFF}
    s_and_b32 s36, s35, 1
    s_mov_b32 s24, s22
    s_and_b32 s25, s23, 0xffff
    s_mov_b32 s26, 0x10000000
    s_mov_b32 s27, 0x20000
    s_mul_i32 s58, s57, {TILE}
    s_add_u32 s58, s58, {RA}
    s_lshl_b32 s54, s2, 2
    s_add_u32 s54, s54, s32
    s_lshl_b32 s54, s54, 13
    s_add_u32 s54, s54, {X_OFF}
    """)
    stamp("issued")
    KF = -math.log2(10000.0) / 64
    def trig(idx, mul, pos, nn, t, P1, P2):
        A(f"""
        v_cvt_f32_u32 v{t}, v{idx}
        v_mul_f32 v{t}, {hex(f2u(KF*mul))}, v{t}
        v_exp_f32 v{t}, v{t}
        v_cvt_f32_u32 v{t+1}, v{pos}
        v_mul_f32 v{t}, v{t}, v{t+1}
        """)
        cst = [10000.0 ** (-(j % (nn//2) + 32*(j // (nn//2))) / 64.0) / (2*math.pi) for j in range(nn)]
        A(f"v_mul_f32 v{P2}, {hex(f2u(cst[0]))}, v{t}")
        for j in range(nn):
            A(f"v_cos_f32 v{t+2+2*(j%2)}, v{P2+j}")
            if j + 1 < nn: A(f"v_mul_f32 v{P2+j+1}, {hex(f2u(cst[j+1]))}, v{t}")
            if j: A(f"v_cvt_pk_bf16_f32 v{P1+j-1}, v{t+2+2*((j-1)%2)}, v{t+3+2*((j-1)%2)}")
            A(f"v_sin_f32 v{t+3+2*(j%2)}, v{P2+j}")
            if j: A(f"v_cvt_pk_bf16_f32 v{P2+j-1}, v{t+3+2*((j-1)%2)}, v{t+2+2*((j-1)%2)}")
        j = nn - 1
        A(f"v_cvt_pk_bf16_f32 v{P1+j}, v{t+2+2*(j%2)}, v{t+3+2*(j%2)}")
        A(f"v_cvt_pk_bf16_f32 v{P2+j}, v{t+3+2*(j%2)}, v{t+2+2*(j%2)}")
    KP1, KP2, QP1, QP2 = 96, 104, 112, 128
    def w_trigK():
        A("v_bfe_u32 v150, v27, 1, 11")
        trig(25, 4, 150, 8, 144, KP1, KP2)
    def w_kaddr():
        A(f"""
        v_mul_u32_u24 v173, 144, v26
        v_lshl_add_u32 v173, v25, 4, v173
        v_lshl_add_u32 v174, v{vW}, 3, v25
        v_mul_u32_u24 v172, 144, v174
        v_lshl_add_u32 v172, v24, 4, v172
        v_lshlrev_b32 v174, 4, v174
        v_lshl_add_u32 v174, v24, 9, v174
        v_add_u32 v175, 0x1000, v174
        v_lshlrev_b32 v176, 3, v0
        v_add_u32 v176, 0x2000, v176
        v_bfe_i32 v177, v0, 4, 1
        v_and_b32 v177, 0x02020202, v177
        v_or_b32 v177, 0x05040100, v177
        v_mov_b32 v178, 0x11111111
        s_add_u32 s37, s58, {RB - RA}
        """)
    def l_pt():
        A(f"""
        s_mul_i32 s52, s32, 2560
        s_add_u32 s52, s52, s58
        v_lshl_add_u32 v65, v{vLANE}, 7, s52
        v_mov_b32 v66, s59
        v_cmp_gt_u32 vcc, {opt.get("ptl", 20)}, v{vLANE}
        {"" if XTAG else "s_add_u32 s52, s54, 4352"}
        {"" if XTAG else "v_writelane_b32 v66, s52, 20"}
        v_cndmask_b32 v65, v66, v65, vcc
        """)
        A.vmem(f"buffer_load_dword v254, v65, s[24:27], 0 offen {opt.get('ptfl', '')}", "PT")
    def l_cpf2():
        NCL = opt.get("ncl", 128)
        A(f"""
        v_min_u32 v64, {NCL//32 - 1}, v{vLANE}
        v_lshl_add_u32 v64, v64, 2, v{vW}
        s_and_b32 s53, s35, 7
        s_add_u32 s53, s53, 64
        v_lshl_add_u32 v64, v64, 3, s53
        v_lshlrev_b32 v64, 7, v64
        """)
        A.vmem(f"global_load_dword v255, v64, s[60:61]", "cpf")
    def w_qaddr():
        A(f"""
        s_lshr_b32 s52, s32, 1
        s_xor_b32 s53, s57, s52
        s_lshl_b32 s53, s53, 5
        v_bfe_u32 v66, v0, 2, 5
        v_and_b32 v71, 3, v0
        v_add_u32 v67, s53, v66
        v_lshlrev_b32 v68, 8, v67
        v_lshl_add_u32 v68, v71, 4, v68
        v_and_b32 v67, 2047, v67
        s_mul_i32 s52, s52, 8448
        v_mul_u32_u24 v180, 1056, v71
        v_lshl_add_u32 v180, v66, 4, v180
        v_add_u32 v180, s52, v180
        """)
    def l_q():
        for k in range(0 if opt.get("noq") else 4):
            A.vmem(f"global_load_dwordx4 v[{72+4*k}:{75+4*k}], v68, s[4:5] offset:{64*k} {opt.get('qfl', '')}", "QR")
    def l_ts():
        A("s_lshl_b32 s53, s33, 12\n v_lshl_add_u32 v70, v0, 4, s53")
        A.vmem(f"global_load_dwordx4 v[88:91], v70, s[14:15]", "TS")
        A.vmem(f"global_load_dwordx4 v[92:95], v70, s[16:17]", "TS")
    def w_trigQ():
        trig(71, 8, 67, 16, 144, QP1, QP2)
    def w_blk():
        A(f"""
        s_lshl_b32 s52, s34, 3
        s_lshl_b32 s53, s36, 2
        s_add_u32 s18, s52, s53
        s_xor_b32 s52, s52, 8
        s_mul_i32 s53, s36, {nfull-4}
        s_add_u32 s19, s52, s53
        s_add_u32 s3, s52, {2*(nfull-4)}
        v_lshlrev_b32 v179, 5, v0
        v_lshrrev_b32 v151, 5, v{vLANE}
        v_lshlrev_b32 v152, 4, v151
        v_lshl_add_u32 v152, v{vW}, 7, v152
        s_lshl_b32 s52, s18, 9
        v_add_u32 v{vT}, s52, v152
        s_lshl_b32 s52, s19, 9
        v_add_u32 v{vT2}, s52, v152
        v_cmp_eq_u32 vcc, 0, v0
        s_lshl_b32 s52, s33, 4
        """)
        for src, reg, b0, b1 in (("s18", RA, 0, 4), ("s19", RB, 4, nfull), ("s3", RB, nfull, nblk)):
            if b1 > b0:
                A(f"s_add_u32 s53, s52, {src}\n s_mul_i32 s53, s53, {BLK}")
                for b_ in range(b0, b1): A(f"s_add_u32 s{42+b_}, s53, {reg + (b_-b0)*BLK}")
        A(f"""
        v_bfrev_b32 v153, 4
        v_cndmask_b32 v{vFB}, v153, 0, vcc
        s_lshl_b32 s53, s36, 6
        v_and_b32 v154, 15, v{vLANE}
        v_lshl_add_u32 v{vPA}, v154, 2, s53
        v_lshlrev_b32 v{vX}, 4, v{vLANE}
        v_lshl_add_u32 v23, v151, 4, v{vX}
        s_mul_i32 s52, s32, {TILE}
        v_add_u32 v{vK0}, s52, v{vX}
        v_add_u32 v{vK1}, 0x1000, v{vK0}
        s_getreg_b32 s41, hwreg(HW_REG_XCC_ID, 0, 4)
        """)
    def w_vaddr():
        A(f"""
        v_lshl_add_u32 v155, v151, 3, v25
        v_bfe_u32 v156, v{vLANE}, 3, 2
        v_lshl_add_u32 v155, v156, 4, v155
        v_lshlrev_b32 v155, 3, v155
        v_lshl_add_u32 v155, v{vW}, 9, v155
        v_add_u32 v156, {LDS_P}, v{vX}
        """)
        for i in range(4):
            A(f"s_add_u32 s52, s32, {i}\n s_and_b32 s52, s52, 3\n s_lshl_b32 s53, s52, 12\n v_add_u32 v{vPW+i}, s53, v156")
            A(f"s_mul_i32 s52, s52, {TILE}\n s_add_u32 s52, s52, 8192\n v_add_u32 v{vV+i}, s52, v155")
    late = []
    late2 = []
    def w_late():
        L_ = f"""
        v_mov_b32 v{V_L}, 0
        v_mov_b32 v{V_L+1}, 0
        v_and_b32 v{vPB}, 15, v{vLANE}
        v_lshl_add_u32 v{vPB}, v{vW}, 4, v{vPB}
        v_lshlrev_b32 v{vPB}, 6, v{vPB}
        v_and_b32 v{vLR}, 31, v{vLANE}
        v_lshrrev_b32 v{V_TMP}, 5, v{vLANE}
        v_lshlrev_b32 v{vLR}, 5, v{vLR}
        v_lshl_add_u32 v{vLW}, v{V_TMP}, 2, v{vLR}
        v_lshl_add_u32 v{vLW}, v{vW}, 3, v{vLW}
        s_sub_u32 s38, 2, s36
        s_mul_i32 s38, s38, {(nfull-4)*512}
        v_add_u32 v{vT3}, s38, v{vT2}
        s_xor_b32 s55, s54, 0x40000
        s_lshl_b32 s56, s57, 13
        s_lshl_b32 s38, s32, 6
        s_add_u32 s56, s56, s38
        s_mov_b32 s28, s20
        s_and_b32 s29, s21, 0xffff
        s_mov_b32 s30, 0x200000
        s_mov_b32 s31, 0x20000
        """
        if not XTAG: L_ += f"""
        s_xor_b32 s37, s35, 1
        s_lshl_b32 s37, s37, 2
        s_add_u32 s37, s37, s59
        v_lshrrev_b32 v{vXL}, 3, v{vLR}
        v_add_u32 v{vXL}, 4096, v{vXL}
        v_mov_b32 v{vXF}, 4352
        v_min_u32 v{vXT}, 32, v{vLANE}
        v_lshlrev_b32 v{vXT}, 7, v{vXT}
        """
        late.extend(x.strip() for x in L_.split("\n") if x.strip())
        late2.extend([f"v_and_b32 v{vOUT}, 32, v{vLANE}", f"v_lshl_add_u32 v{vOUT}, v{vLR}, 3, v{vOUT}"])
    def w_tables():
        A.need(["TS"])
        x = 184
        for k in range(4):
            A(f"v_lshlrev_b32 v{x+2*k}, 16, v{88+k}\n v_and_b32 v{x+2*k+1}, 0xffff0000, v{88+k}")
        A("s_mov_b32 s52, 0x3fc03fc0")
        ex = ["v_xor_b32 v92, s52, v92", "v_xor_b32 v93, s52, v93", "v_xor_b32 v94, s52, v94", "v_xor_b32 v95, s52, v95",
              "v_or3_b32 v92, v92, v93, v94", "v_or_b32 v92, v92, v95", "v_mov_b32 v95, 0x7fc00000", "v_cmp_eq_u32 s[52:53], 0, v92"]
        for k in range(8): A(f"v_log_f32 v{192+k}, v{x+k}\n {ex[k]}")
        ex = ["v_max3_f32 v93, |v192|, |v193|, |v194|", "v_max3_f32 v94, |v195|, |v196|, |v197|", "v_max3_f32 v93, |v198|, |v199|, v93", "v_max_f32 v93, v93, v94",
              "v_cmp_gt_f32 vcc, 0x41f00000, v93", "s_nop 0", "s_and_b64 vcc, vcc, s[52:53]", "s_nop 0"]
        A(f"v_rcp_f32 v200, v{x}")
        A.ds(f"ds_write_b128 v179, v[192:195] offset:{LDS_T}", "QW"); A.ds(f"ds_write_b128 v179, v[196:199] offset:{LDS_T+16}", "QW")
        for k in range(1, 8): A(f"{ex[k-1]}\n v_rcp_f32 v{200+k}, v{x+k}")
        A("v_cndmask_b32 v200, v95, v200, vcc")
        A.ds(f"ds_write_b128 v179, v[200:203] offset:{LDS_T+8192}", "QW"); A.ds(f"ds_write_b128 v179, v[204:207] offset:{LDS_T+8208}", "QW")
    def w_qrope():
        A.need(["QR"])
        A("s_mov_b32 s52, 0x05040100\n s_mov_b32 s53, 0x07060302")
        x = 32
        for k in range(8):
            A(f"v_perm_b32 v{x+2*k}, v{80+k}, v{72+k}, s52\n v_perm_b32 v{x+2*k+1}, v{80+k}, v{72+k}, s53")
        for half in range(2):
            js = [4*half + t for t in range(4)] + [8 + 4*half + t for t in range(4)]
            y = 48 + 16*half
            for t, j in enumerate(js): A(f"v_dot2_f32_bf16 v{y+t}, v{x+j}, v{QP1+j}, 0 neg_hi:[0,1,0]")
            for t, j in enumerate(js): A(f"v_dot2_f32_bf16 v{y+8+t}, v{x+j}, v{QP2+j}, 0")
        for half in range(2):
            y = 48 + 16*half; zz = 208 + 8*half
            for k in range(8): A(f"v_cvt_pk_bf16_f32 v{zz+k}, v{y+2*k}, v{y+2*k+1}")
            A.ds(f"ds_write_b128 v180, v[{zz}:{zz+3}] offset:{LDS_Q + 528*half}", "QW")
            A.ds(f"ds_write_b128 v180, v[{zz+4}:{zz+7}] offset:{LDS_Q + 528*half + 8*528}", "QW")
    def w_flush():
        for l_ in late: A(l_)
        late.clear()
    def w_warm():
        if opt.get("ihook"):
            A("s_mov_b64 exec, 0")
            for i in range(opt["ihook"]): A(f"s_cmp_eq_u32 s32, {i}\n s_cbranch_scc1 L_hook{i}")
            A.label("L_warmed"); A("s_mov_b64 exec, -1")
    W = dict(trigK=w_trigK, kaddr=w_kaddr, pt=l_pt, cpf2=l_cpf2, q=l_q, qaddr=w_qaddr, ts=l_ts, trigQ=w_trigQ, blk=w_blk, vaddr=w_vaddr,
             tables=w_tables, qrope=w_qrope, flush=w_flush, warm=w_warm)
    def run(seq):
        for x_ in seq.split("."):
            if x_: W[x_](); stamp(x_)
    w_late()
    run(opt.get("o1", "pt.trigK.kaddr.cpf2.qaddr.q.trigQ.blk.vaddr.tables"))
    stamp("pre")
    A.need(["KR"])
    stamp("ks")
    A(f"v_lshlrev_b32 v30, 16, v30\n v_lshlrev_b32 v31, 16, v31\n v_mul_f32 v30, {hex(f2u(SCALE))}, v30\n v_mul_f32 v31, v31, v30")
    for j in range(16): A(f"v_cvt_f32_i32 v{32+j}, v{32+j}")
    for j in range(16): A(f"v_fma_f32 v{32+j}, v{32+j}, v30, -v31")
    for j in range(8): A(f"v_cvt_pk_bf16_f32 v{32+j}, v{32+j}, v{40+j}")
    for j in range(8): A(f"v_dot2_f32_bf16 v{KP1+j}, v{32+j}, v{KP1+j}, 0 neg_hi:[0,1,0]")
    for j in range(8): A(f"v_dot2_f32_bf16 v{KP2+j}, v{32+j}, v{KP2+j}, 0")
    for p in range(4): A(f"v_cvt_pk_bf16_f32 v{40+p}, v{KP1+2*p}, v{KP1+2*p+1}")
    A("s_waitcnt lgkmcnt(0)"); A.lg = []
    A.ds("ds_write_b128 v172, v[40:43]", "KT")
    for p in range(4): A(f"v_cvt_pk_bf16_f32 v{44+p}, v{KP2+2*p}, v{KP2+2*p+1}")
    A.ds("ds_write_b128 v172, v[44:47] offset:4608", "KT")
    A.ds("ds_read_b128 v[160:163], v173", "KT2")
    A.ds("ds_read_b128 v[164:167], v173 offset:4608", "KT2")
    stamp("kconv")
    A.need(["VRAW"])
    for c in range(4): A(f"v_lshl_or_b32 v{48+c}, v{52+c}, 4, v{48+c}")
    for c in range(4): A(f"v_lshl_or_b32 v{56+c}, v{60+c}, 4, v{56+c}")
    for c in range(4): A(f"v_lshl_or_b32 v{48+c}, v{56+c}, 8, v{48+c}")
    A("v_lshl_or_b32 v48, v49, 16, v48\n v_lshl_or_b32 v49, v51, 16, v50")
    A("s_mov_b32 s52, 0x22222222\n s_mov_b32 s53, 0x88888888")
    A("v_permlane32_swap_b32 v48, v49")
    A("v_mov_b32 v50, v48\n v_mov_b32 v51, v49")
    A.need(ltags=["KT2"])
    A.vmem("buffer_store_dwordx4 v[160:163], v174, s[24:27], s58 offen", "SA")
    A.vmem("buffer_store_dwordx4 v[164:167], v175, s[24:27], s58 offen", "SA")
    A("v_permlane16_swap_b32 v48, v50\n v_permlane16_swap_b32 v49, v51")
    A("v_perm_b32 v168, v50, v48, v177\n v_perm_b32 v169, v51, v49, v177")
    t1 = bitop(lambda a, b, c: ~(a ^ b) & c); t2 = bitop(lambda a, b, c: (~a & b) | c)
    for r in (168, 169):
        A(f"v_lshlrev_b32 v55, 1, v{r}\n v_lshlrev_b32 v56, 2, v{r}")
        A(f"v_bitop3_b32 v55, v{r}, v55, s52 bitop3:{hex(t1)}")
        A(f"v_bitop3_b32 v56, v56, s53, v178 bitop3:{hex(t2)}")
        A(f"v_or_b32 v{r}, v55, v56")
    A.vmem("buffer_store_dwordx2 v[168:169], v176, s[24:27], s58 offen", "SA")
    run(opt.get("o2", ""))
    def st_b():
        A.vmem("buffer_store_dwordx4 v[160:163], v174, s[24:27], s37 offen sc1", "SB")
        A.vmem("buffer_store_dwordx4 v[164:167], v175, s[24:27], s37 offen sc1", "SB")
        A.vmem("buffer_store_dwordx2 v[168:169], v176, s[24:27], s37 offen sc1", "SB")
    W["sb"] = st_b
    if not opt.get("sbl", 1): st_b()
    stamp("stored")
    run(opt.get("o3", ""))
    A(f"""
    s_mul_i32 s40, s39, 0x9E3779B1
    s_add_u32 s40, s40, 0x7F4A7C15
    s_and_b32 s40, s40, 0xfffffff0
    s_or_b32 s62, s40, s41
    s_lshl_b32 s63, s35, 2
    s_add_u32 s63, s63, s59
    v_mov_b32 v24, s62
    s_or_b32 s61, s40, 8
    s_lshl_b32 s18, s57, 6
    s_add_u32 s18, s18, {FB_OFF}
    v_mov_b32 v{vTAG}, s61
    """)
    FBE = 2
    stamp("mid")
    A.need(["SA"])
    stamp("ackA")
    A("s_barrier")
    A.vmem(f"buffer_store_dword v24, v{vFB}, s[24:27], s63 offen", "FA")
    stamp("bar0")
    run(opt.get("o3b", "sb.qrope.flush"))
    A(f"""
    buffer_load_dword v26, v{vPA}, s[24:27], s59 offen sc1
    s_lshl_b32 s60, s33, 12
    s_add_u32 s60, s60, {FB_OFF}
    s_mov_b32 s3, 0
    s_mov_b32 s19, 0
    """)
    run(opt.get("o5", "warm"))
    A.label("L_pollA")
    A(f"""
    s_waitcnt vmcnt(0)
    v_cmp_eq_u32 vcc, s62, v26
    s_cmp_eq_u64 vcc, -1
    s_cbranch_scc0 L_pollA_more
    """)
    A.vm = []
    stamp("flagsA")
    OOL.label("L_pollA_more")
    OOL(f"""
    buffer_load_dword v26, v{vPA}, s[24:27], s59 offen sc1
    s_add_u32 s19, s19, 1
    s_cmp_lt_u32 s19, {opt.get("tmo", 64)}
    s_cbranch_scc1 L_pollA
    s_waitcnt vmcnt(0)
    s_waitcnt lgkmcnt(0)
    s_barrier
    buffer_store_dword v{vTAG}, v{vFB}, s[24:27], s18 offen sc1
    v_lshlrev_b32 v27, 4, v{vPA}
    s_lshl_b32 s52, s34, 11
    v_add_u32 v27, s52, v27
    s_mov_b32 s53, 0
    """)
    OOL.label("L_pollB0")
    OOL(f"""
    buffer_load_dword v26, v27, s[24:27], s60 offen sc1
    s_add_u32 s53, s53, 1
    s_waitcnt vmcnt(0)
    v_cmp_eq_u32 vcc, s61, v26
    s_cmp_eq_u64 vcc, -1
    s_cbranch_scc1 L_pollB0_ok
    s_sleep 4
    s_cmp_lt_u32 s53, 0x100000
    s_cbranch_scc1 L_pollB0
    """)
    OOL.label("L_pollB0_ok")
    for b_ in range(4): OOL(f"s_add_u32 s{42+b_}, s{42+b_}, {RB-RA}")
    OOL("s_mov_b32 s3, 1\n s_branch L_go")

    order = []
    for r in range(n):
        order.append(("QK", r))
        if r >= 1: order.append(("PV", r-1))
    order.append(("PV", n-1))
    mf = []; a = [0]*n; b = [0]*n
    for kind, r in order:
        if kind == "QK":
            a[r] = len(mf)
            if r < opt.get("smaj", 2):
                for s in range(8):
                    for u in range(2): mf.append(("QK", r, u, s))
            else:
                for u in range(2):
                    for s in range(8): mf.append(("QK", r, u, s))
        else:
            b[r] = len(mf)
            for kk in range(8):
                for u in range(2): mf.append(("PV", r, u, kk))
    nslots = len(mf)
    sready = {(m[1], m[2]): sl + 3 for sl, m in enumerate(mf) if m[0] == "QK"}
    q1last = {m[3]: sl for sl, m in enumerate(mf) if m[0] == "QK" and rounds[m[1]][m[2]][1] == 1}
    firstuse = {}; lastuse = {}
    for sl, m in enumerate(mf):
        blk = rounds[m[1]][m[2]][0]
        key = ("K" if m[0] == "QK" else "V", blk, m[3])
        firstuse.setdefault(key, sl); lastuse[key] = sl
    kbuf = {}; kfree = {}
    q1dead = a[nfull-1] + 15
    bases = list(A_K); hold = [None]*len(bases)
    if OARCH and opt.get("k4", 1): bases.append(224); hold.append(None)
    if nsolo: bases.append(A_Q + 32); hold.append("Q1")
    for blk in range(nblk):
        def rel(h): return -1 if h is None else (q1dead if h == "Q1" else lastuse[("K", h, 7)])
        i = min(range(len(bases)), key=lambda i: rel(hold[i]))
        for s in range(8):
            h = hold[i]
            kfree[(blk, s)] = -1 if h is None else (q1last[s] if h == "Q1" else lastuse[("K", h, s)])
        kbuf[blk] = bases[i]; hold[i] = blk
    def oreg(qt):
        if OARCH: return f"v[{V_O0}:{V_O0+15}]" if qt == 0 else f"a[{A_O}:{A_O+15}]"
        return f"a[{A_O+16*qt}:{A_O+16*qt+15}]"
    A_O1 = A_O if OARCH else A_O + 16
    vexp = sorted({k for k in firstuse if k[0] == "V"}, key=lambda k: firstuse[k])
    vereg = {k: V_VE + (i % NVE)*4 for i, k in enumerate(vexp)}
    vefree = {k: (-1 if i < NVE else lastuse[vexp[i-NVE]]) for i, k in enumerate(vexp)}
    vedone = {}
    barlead = opt.get("barlead", 2)
    gate = b[opt.get("gater", 1)] - barlead
    kl = [("K", blk, s) for blk in range(nblk) for s in range(8)]
    vl = sorted([("VR", blk, i) for blk in range(nblk) for i in range(4)], key=lambda k: firstuse[("V", k[1], 2*k[2])])
    need_at = {k: firstuse[k] for k in kl}
    need_at.update({k: firstuse[("V", k[1], 2*k[2])] - opt.get("vneed", 14) for k in vl})
    for i in range(4): need_at[("VR", 0, i)] = opt.get("v0need", 18) + i
    issued = set()
    def ld_free(key):
        f = -1
        if key[0] == "K": f = kfree[(key[1], key[2])]
        elif key[1] >= NVR: f = vedone.get(("V", key[1]-NVR, 2*key[2]+1), 10**6)
        if key[1] >= 4: f = max(f, gate)
        return f
    def ld(key):
        k, blk, f = key
        issued.add(key)
        if k == "K":
            rg = kbuf[blk] + 4*f
            A.vmem(f"buffer_load_dwordx4 a[{rg}:{rg+3}], v{vK0 + f//4}, s[24:27], s{42+blk} offen offset:{(f%4)*1024}", key)
        else:
            rg = V_VR + (blk % NVR)*8 + 2*f
            A.vmem(f"buffer_load_dwordx2 v[{rg}:{rg+1}], v{vV+f}, s[24:27], s{42+blk} offen", key)
    tb = []
    for r in range(n):
        for u in range(2):
            if not tb or tb[-1][0] != rounds[r][u][0]: tb.append((rounds[r][u][0], r, u))
    lvreg = {blk: V_LV[i % 2] for i, (blk, _, _) in enumerate(tb)}
    rvreg = {blk: V_RV[i % 2] for i, (blk, _, _) in enumerate(tb)}
    lv_use = {blk: firstuse[("K", blk, 0)] for blk, _, _ in tb}
    lv_last = {blk: lastuse[("K", blk, 0)] for blk, _, _ in tb}
    rv_done = {}
    lvq = [("LV", blk, q, i) for i, (blk, r, u) in enumerate(tb) for q in range(4)]
    rvq = [("RV", blk, q, i) for i, (blk, r, u) in enumerate(tb) for q in range(4)]
    tdone = {}
    A.label("L_go")
    def qread(i):
        A.ds(f"ds_read_b128 a[{A_Q+4*i}:{A_Q+4*i+3}], v23 offset:{LDS_Q + (i//8)*8448 + (i%8)*1056}", ("Q", i//8, i%8))
    qord = [x for s_ in range(8) for x in (s_, 8+s_)] if opt.get("smaj", 2) else list(range(16))
    for _ in range(opt.get("npre0", 2)): ld(kl.pop(0))
    A("s_cmp_eq_u32 s3, 0\n s_waitcnt lgkmcnt(0)\n s_cbranch_scc0 L_skip2\n s_barrier"); A.lg = []
    A.label("L_skip2")
    stamp("bar1")
    rd = [lambda q_=q_: A.ds(f"ds_read_b128 v[{V_LV[0]+4*q_}:{V_LV[0]+4*q_+3}], v{vT} offset:{LDS_T + q_*32}", ("LV", 0, q_)) for q_ in range(4)]
    rd += [lambda i=i: qread(i) for i in qord[:10]]
    for _ in range(opt.get("npre", 6) - opt.get("npre0", 2)):
        for _ in range(opt.get("gap0", 3)):
            if rd: rd.pop(0)()
        ld(kl.pop(0))
    while rd: rd.pop(0)()
    qrest = qord[10:]
    def tread(t, sl_):
        k, blk, q, i = t
        rg = (lvreg if k == "LV" else rvreg)[blk] + 4*q
        tb_, rel_ = (vT, blk) if blk < 4 else ((vT2, blk-4) if blk < nfull else (vT3, blk-nfull))
        A.ds(f"ds_read_b128 v[{rg}:{rg+3}], v{tb_} offset:{LDS_T + rel_*512 + q*32 + (8192 if k == 'RV' else 0)}", (k, blk, q))
        tdone[(k, blk, q)] = sl_
    for q_ in range(4): lvq.pop(0); tdone[("LV", 0, q_)] = -5
    wend = {r: b[r] - opt.get("smend", 5) for r in range(n)}
    items = {}
    for r in range(n):
        S = V_S[r % 2]; PO = V_PO[r % 2]; L = []
        for e in range(33):
            if e < 32: L.append(("e", e, f"v_exp_f32 v{S+e}, v{S+e}", None))
            if e >= 1:
                blk, qt = rounds[r][(e-1)//16]; j = (e-1) % 16
                L.append(("a", e, f"v_fmac_f32 v{V_L+qt}, v{rvreg[blk]+j}, v{S+e-1}", (blk, j//4, (e-1)//16 == 1 or rounds[r][0][0] != rounds[r][1][0], j % 4 == 3)))
            if e >= 2 and e % 2 == 0:
                L.append(("c", e, f"v_cvt_pk_bf16_f32 v{PO + (e-2)//2}, v{S+e-2}, v{S+e-1}", None))
        items[r] = L
    cur = 0; ci = 0; pendw = []; nw = {r: 0 for r in range(n)}
    bar_at = {b[r] - barlead: r for r in range(n)}
    prq = [(r, kk, u, (kk-2)*2+u) for r in range(n) for kk in range(2, 8) for u in range(2)]
    prdone = set(); lastw = -10
    send_slot = b[nfull-1] + 16 + 2
    inloop = send_slot + 6 < nslots
    flag_slot = send_slot + opt.get("flagdelay", 16)
    xpoll_slot = flag_slot + opt.get("xpolldelay", 10)
    xchk_slot = xpoll_slot + opt.get("xchkdelay", 8)
    xuse_slot = xchk_slot + opt.get("xusedelay", 8)
    pollB_slot = opt.get("pollslot", 40); chkB_slot = gate - opt.get("chklead", 3)
    XR = V_LV[0]
    def operands(m):
        blk = rounds[m[1]][m[2]][0]
        if m[0] == "QK":
            lt = [("Q", rounds[m[1]][m[2]][1], m[3])]
            if m[3] == 0: lt += [("LV", blk, q) for q in range(4)]
            return [("K", blk, m[3])], lt
        return [], [("PR", m[1], m[3], m[2])]
    def lsum(t_, dst):
        return [f"v_add_f32 v{t_}, v{t_}, v{t_+1}", f"v_add_f32 v{t_+2}, v{t_+2}, v{t_+3}", f"v_add_f32 v{t_+4}, v{t_+4}, v{t_+5}", f"v_add_f32 v{t_+6}, v{t_+6}, v{t_+7}",
                f"v_add_f32 v{t_}, v{t_}, v{t_+2}", f"v_add_f32 v{t_+4}, v{t_+4}, v{t_+6}", f"v_add_f32 v{dst}, v{t_}, v{t_+4}"]
    LT = [0, 0]
    uid = [0]
    def two_way(fn):
        if XSC1: fn(A, "sc1"); return
        uid[0] += 1; u_ = uid[0]
        A(f"s_cmp_eq_u32 s37, s62\n s_cbranch_scc0 L_far{u_}")
        fn(A, ""); A.label(f"L_join{u_}")
        OOL.label(f"L_far{u_}"); fn(OOL, "sc1"); OOL.vm = []; OOL(f"s_branch L_join{u_}")
    def send_payload(B, fl):
        for i in range(4):
            o = A_O1 + 4*i
            B.vmem(f"buffer_store_dwordx4 a[{o}:{o+3}], v{vX}, s[24:27], s54 offen offset:{i*1024} {fl}", "XS")
        B.vmem(f"buffer_store_dword v{vLS}, v{vXL}, s[24:27], s54 offen {fl}", "XS")
    def send_flag(B, fl):
        B.vmem(f"buffer_store_dword v{vTAG}, v{vXF}, s[24:27], s54 offen {fl}", "XF")
    def self_touch():
        if opt.get("selft", 1): A.vmem(f"buffer_load_dword v{vPB}, v{vXT}, s[24:27], s54 offen sc1", "ST")
    def recv_loads():
        A.vmem(f"buffer_load_dword v{XR+16}, v{vXL}, s[24:27], s55 offen sc1", "XR")
        for i in range(4):
            A.vmem(f"buffer_load_dwordx4 v[{XR+4*i}:{XR+4*i+3}], v{vX}, s[24:27], s55 offen offset:{i*1024} sc1", "XR")
    def xcheck():
        A(f"v_cmp_eq_u32 vcc, s61, v{V_TMP}\n s_cbranch_vccz L_xspin0")
        A.label("L_xok")
        OOL.label("L_xspin0"); OOL("s_mov_b32 s53, 0"); OOL.label("L_xspin")
        OOL(f"""
        buffer_load_dword v{V_TMP}, v{vXF}, s[24:27], s55 offen sc1
        s_add_u32 s53, s53, 1
        s_waitcnt vmcnt(0)
        v_cmp_eq_u32 vcc, s61, v{V_TMP}
        s_cbranch_vccnz L_xok
        s_cmp_lt_u32 s53, 0x100000
        s_cbranch_scc1 L_xspin
        s_branch L_xok
        """)
    def fin_pre():
        L_ = [f"v_add_f32 v{V_L}, v{V_L}, v{XR+16}", f"v_rcp_f32 v{V_TMP}, v{V_L}",
              f"v_cmp_lt_f32 vcc, 0x30800000, v{V_L}", f"v_cmp_gt_f32 s[52:53], s19, v{V_L}"]
        L_ += [f"v_mul_f32 v{XR+i}, v{XR+i}, v{V_TMP}" for i in range(16)]
        return L_
    XB = V_PO[(nfull-1) % 2]
    XL = V_LV[1]
    def xpos(k): return k + k//3
    def tag_pack():
        L_ = []
        for k in range(8):
            L_ += [f"v_accvgpr_read_b32 v{V_TMP}, a{A_O1+2*k}", f"v_accvgpr_read_b32 v{V_TMP+1}, a{A_O1+2*k+1}",
                   f"v_cvt_pk_bf16_f32 v{XB+xpos(k)}, v{V_TMP}, v{V_TMP+1}"]
            if k in (2, 5, 7): L_.append(("st", {2: 0, 5: 1, 7: 2}[k]))
        return L_
    def tag_recv(B):
        for i in range(3):
            B.vmem(f"buffer_load_dwordx4 v[{XL+4*i}:{XL+4*i+3}], v{vX}, s[24:27], s55 offen offset:{i*1024} sc1", "XR")
    def tag_cmp(B):
        B(f"v_cmp_eq_u32 vcc, s61, v{XL+3}\n v_cmp_eq_u32 s[52:53], s61, v{XL+7}\n v_cmp_eq_u32 s[20:21], s61, v{XL+11}")
        B("s_and_b64 vcc, vcc, s[52:53]\n s_and_b64 vcc, vcc, s[20:21]\n s_cmp_eq_u64 vcc, -1")
    def tag_check():
        tag_cmp(A); A("s_cbranch_scc0 L_xspin0"); A.label("L_xok")
        OOL.label("L_xspin0"); OOL("s_mov_b32 s38, 0"); OOL.label("L_xspin")
        tag_recv(OOL); OOL.vm = []
        OOL("s_add_u32 s38, s38, 1\n s_waitcnt vmcnt(0)"); tag_cmp(OOL)
        OOL("s_cbranch_scc1 L_xok\n s_cmp_lt_u32 s38, 0x100000\n s_cbranch_scc1 L_xspin\n s_branch L_xok")
    def tag_fin():
        L_ = [f"v_add_f32 v{V_L}, v{V_L}, v{XL+10}", f"v_rcp_f32 v{V_TMP}, v{V_L}",
              f"v_cmp_lt_f32 vcc, 0x30800000, v{V_L}", f"v_cmp_gt_f32 s[52:53], s19, v{V_L}"]
        for k in range(8):
            L_ += [f"v_lshlrev_b32 v{XR+2*k}, 16, v{XL+xpos(k)}", f"v_and_b32 v{XR+2*k+1}, 0xffff0000, v{XL+xpos(k)}"]
        L_ += [f"v_mul_f32 v{XR+i}, v{XR+i}, v{V_TMP}" for i in range(16)]
        return L_
    def emit_extra(x_):
        if isinstance(x_, tuple):
            A.vmem(f"buffer_store_dwordx4 v[{XB+4*x_[1]}:{XB+4*x_[1]+3}], v{vX}, s[24:27], s54 offen offset:{x_[1]*1024} sc1", "XS")
        else: A(x_)
    xld_slot = opt.get("xld", nslots - 22); xuse2 = opt.get("xuse", max(xld_slot + 10, nslots - 8))
    extra = []
    seenO = set(); vi = 0; vpart = 0
    vt, lt = operands(mf[0]); A.need(vt, lt)
    stamp("mfma0")
    totcost = []
    pace = opt.get("pace", 1.8); lastld = -10
    for sl in range(nslots):
        m = mf[sl]
        blk, qt = rounds[m[1]][m[2]]
        if m[0] == "QK":
            _, r, u, s = m
            d = V_S[r % 2] + u*16
            c = f"v[{lvreg[blk]}:{lvreg[blk]+15}]" if s == 0 else f"v[{d}:{d+15}]"
            if s == 0: assert all(("LV", blk, q_) in tdone for q_ in range(4)), ("lv not read", sl)
            assert ("K", blk, s) in issued, ("K not loaded", sl)
            assert qt*8+s not in qrest
            k = kbuf[blk] + 4*s; q = A_Q + (qt*8+s)*4
            A(f"v_mfma_f32_32x32x16_bf16 v[{d}:{d+15}], a[{k}:{k+3}], a[{q}:{q+3}], {c}")
        else:
            _, r, u, kk = m
            c = "0" if qt not in seenO else oreg(qt)
            seenO.add(qt)
            assert ("V", blk, kk) in vedone, ("V frag not expanded", sl, m)
            assert kk < 2 or (r, kk, u) in prdone, ("P not read", sl)
            v = vereg[("V", blk, kk)]
            ps = f"v[{V_PO[r%2] + (u*2+kk)*4}:{V_PO[r%2] + (u*2+kk)*4+3}]" if kk < 2 else f"a[{A_P + ((kk-2)*2+u)*4}:{A_P + ((kk-2)*2+u)*4+3}]"
            A(f"v_mfma_f32_32x32x16_bf16 {oreg(qt)}, v[{v}:{v+3}], {ps}, {c}")
        stamp(f"slot{sl}")
        bud = 24
        vt, lt = operands(mf[sl+1]) if sl + 1 < nslots else ([], [])
        vt = list(vt); lt = list(lt)
        if vi < len(vexp) and sl >= need_at[("VR", vexp[vi][1], vexp[vi][2]//2)]: vt.append(("VR", vexp[vi][1], vexp[vi][2]//2))
        if cur < n:
            for it in (items[cur][ci:] + (items[cur+1] if cur+1 < n and sl >= sready[(cur+1, 0)] - 1 else []))[:8]:
                if it[0] == "a" and sl >= sready[(cur, 0)] - 1 and tdone.get(("RV", it[3][0], it[3][1]), 10**6) <= sl - 2: lt.append(("RV", it[3][0], it[3][1]))
        if sl == chkB_slot: vt.append("PB")
        if inloop and not XTAG:
            if sl == flag_slot: vt.append("XS")
            if sl == xchk_slot: vt.append("XP")
            if sl == xuse_slot: vt.append("XR")
        if inloop and XTAG and sl == xuse2: vt.append("XR")
        if sl == b[nfull-1] + 4: lt.append(("LR", 1))
        if sl == b[n-1] + 4: lt.append(("LR", 0))
        if sl in bar_at:
            r = bar_at[sl]
            assert nw[r] == 4, ("P not written before barrier", r, sl)
            A.need(vt, lt + [("PW", r), "LW"])
            A("s_barrier")
            bud -= COST['bar']
            for q_ in ([1] if r == nfull-1 else []) + ([0] if r == n-1 else []):
                LT[q_] = V_S[r % 2] + 8*q_
                for hf in range(2):
                    A.ds(f"ds_read_b128 v[{LT[q_]+hf*4}:{LT[q_]+hf*4+3}], v{vLR} offset:{LDS_L + q_*1024 + hf*16}", ("LR", q_)); bud -= 4
        else:
            A.need(vt, lt)
        if sl == b[nfull-1] + 4:
            extra += lsum(LT[1], XB+10 if XTAG else vLS)
            if XTAG: extra += [f"v_mov_b32 v{XB+j}, s61" for j in (3, 7, 11)]
        if sl == b[n-1] + 4: extra += lsum(LT[0], V_L)
        hasw = bool(pendw) and sl not in bar_at and not (sl + 1 in bar_at)
        nr = 0
        while nr < opt.get("maxr", 2) and len(A.lg) < 13:
            c_ = []
            if prq:
                r, kk, u, idx = prq[0]
                if sl >= b[r] - barlead and (r == 0 or sl >= b[r-1] + 4 + idx): c_.append((b[r] + 4 + idx - 5, "p"))
            if qrest: c_.append((qord.index(qrest[0]) - 6, "q"))
            if lvq:
                _, tblk, q, i = lvq[0]
                if (i < 2 or lv_last[tb[i-2][0]] + 1 < sl): c_.append((lv_use[tblk] - 8 + q, "lv"))
            if rvq:
                _, tblk, q, i = rvq[0]
                if (i < 2 or (tb[i-2][0], q) in rv_done): c_.append((lv_use[tblk] + 4 + 2*q, "rv"))
            if not c_: break
            d_, k_ = min(c_)
            if sl == lastw + 1 and d_ > sl - 2: break
            if nr >= 1 and d_ > sl + 1: break
            if hasw and d_ > sl + 1: break
            if d_ > sl + opt.get("rlead", 24): break
            if k_ == "p":
                r, kk, u, idx = prq.pop(0); rg = A_P + idx*4
                A.ds(f"ds_read_b128 a[{rg}:{rg+3}], v{vPR+kk//2-1} offset:{(r%NPB)*16384 + (u*2+kk%2)*1024}", ("PR", r, kk, u)); prdone.add((r, kk, u))
            elif k_ == "q": qread(qrest.pop(0))
            elif k_ == "lv": tread(lvq.pop(0), sl)
            else: tread(rvq.pop(0), sl)
            bud -= COST["r"]; nr += 1
        if hasw:
            r, f = pendw.pop(0); PO = V_PO[r % 2]
            if f == 3:
                for q_ in ([1] if r == nfull-1 else []) + ([0] if r == n-1 else []):
                    A.ds(f"ds_write_b32 v{vLW}, v{V_L+q_} offset:{LDS_L + q_*1024}", "LW"); bud -= 8
            A.ds(f"ds_write_b128 v{vPW}, v[{PO+4*f}:{PO+4*f+3}] offset:{(r%NPB)*16384 + f*1024}", ("PW", r)); bud -= COST["w"]; nw[r] += 1
            lastw = sl
        if sl == opt.get("fbslot", 13) and FBE != 1:
            if not FBE:
                A("s_cmp_eq_u32 s3, 0\n s_cbranch_scc0 L_skip2\n s_barrier"); bud -= 42
                A.label("L_skip2")
            A.vmem(f"buffer_store_dword v{vTAG}, v{vFB}, s[24:27], s18 offen sc1", "FB"); bud -= 8
        elif sl == pollB_slot:
            assert not late
            A.vmem(f"buffer_load_dword v{V_TMP}, v{vPB}, s[24:27], s60 offen sc1", "PB"); bud -= 8
            if not XSC1: A.vmem(f"buffer_load_dword v{V_TMP+1}, off, s[24:27], s37 sc1", "PB"); bud -= 8
        elif (kl or vl) and not hasw and sl not in bar_at:
            c_ = [q_[0] for q_ in (kl, vl) if q_ and ld_free(q_[0]) <= sl and need_at[q_[0]] - sl <= opt.get("maxlead", 90)]
            if c_:
                key = min(c_, key=lambda k: need_at[k])
                if sl - lastld >= pace or need_at[key] - sl < min(opt.get("urg", 30), opt.get("urg0", 14) + sl * opt.get("urgs", 0.3)):
                    (kl if key[0] == "K" else vl).pop(0)
                    ld(key); bud -= COST["l"]
                    lastld = max(lastld + pace, sl - 1) if sl - lastld < 2*pace else sl
        if sl == chkB_slot:
            A(f"v_cmp_eq_u32 vcc, s61, v{V_TMP}")
            if not XSC1: A(f"v_readfirstlane_b32 s37, v{V_TMP+1}")
            A(f"s_cmp_eq_u64 vcc, -1\n s_cbranch_scc0 L_bspin0")
            A.label("L_bok")
            OOL.label("L_bspin0"); OOL("s_mov_b32 s53, 0"); OOL.label("L_bspin")
            OOL(f"""
            buffer_load_dword v{V_TMP}, v{vPB}, s[24:27], s60 offen sc1
            s_add_u32 s53, s53, 1
            s_waitcnt vmcnt(0)
            v_cmp_eq_u32 vcc, s61, v{V_TMP}
            s_cmp_eq_u64 vcc, -1
            s_cbranch_scc1 L_bok
            s_cmp_lt_u32 s53, 0x100000
            s_cbranch_scc1 L_bspin
            s_branch L_bok
            """)
            A("s_mov_b32 s19, 0x4e800000")
            for x_ in late2: A(x_)
            bud -= 32
        if sl == opt.get("wbslot", -1):
            A("s_or_b32 s38, s35, s32\n s_cbranch_scc0 L_dowb"); A.label("L_nowb"); bud -= 8
            OOL.label("L_dowb"); OOL("buffer_wbl2 sc1\n s_branch L_nowb")
        if inloop and XTAG:
            if sl == send_slot:
                assert not extra
                stamp("send"); extra += tag_pack()
            if sl == xld_slot:
                assert not kl and not vl and all(lv_last[t[0]] + 1 < sl for t in tb) and sl > send_slot + 8
                tag_recv(A); bud -= 24
            if sl == xuse2:
                assert sl > b[n-1] + 4 and all(lv_last[t[0]] < sl for t in tb)
                stamp("xr")
                while extra: emit_extra(extra.pop(0)); bud -= 4
                tag_check(); bud -= 28; extra += tag_fin()
        elif inloop:
            if sl == send_slot:
                assert not extra
                stamp("send"); two_way(send_payload); bud -= 60
                if not XSC1: self_touch(); bud -= 8
            if sl == flag_slot:
                stamp("xack"); two_way(send_flag); bud -= 16
            if sl == xpoll_slot:
                A.vmem(f"buffer_load_dword v{V_TMP}, v{vXF}, s[24:27], s55 offen sc1", "XP"); bud -= 8
            if sl == xchk_slot:
                assert not kl and not vl and all(lv_last[t[0]] < sl for t in tb)
                stamp("xp"); xcheck(); recv_loads(); bud -= 50
            if sl == xuse_slot:
                assert sl > b[n-1] + 4
                stamp("xr"); extra += fin_pre()
        def vexp_step():
            nonlocal vi, vpart, bud
            key = vexp[vi]; src = V_VR + (key[1] % NVR)*8 + key[2]
            A(f"v_cvt_scalef32_pk_bf16_fp4 v{vereg[key]+vpart}, v{src}, 1.0 op_sel:[{vpart&1},{vpart>>1},0]")
            bud -= 4; vpart += 1
            if vpart == 4: vedone[key] = sl; vi += 1; vpart = 0
        def vexp_ok():
            if vi >= len(vexp): return False
            key = vexp[vi]; tag = ("VR", key[1], key[2]//2)
            return vefree[key] <= sl and tag not in A.vm and tag in issued
        def sm_next():
            nonlocal cur, ci
            while cur < n and ci >= len(items[cur]): cur += 1; ci = 0
            if cur >= n: return None
            kind, e, txt, info = items[cur][ci]
            if sl < sready[(cur, 0)]: return None
            if kind == "e" and e == 16 and sl < sready[(cur, 1)]: return None
            if kind == "a" and tdone.get(("RV", info[0], info[1]), 10**6) > sl - 2: return None
            if kind == "c" and XTAG and cur == nfull + 1: assert not extra and sl > send_slot + 4
            rate = min(opt.get("smrate", 0.9), (wend[cur] - sready[(cur, 0)]) / 33.0)
            return wend[cur] - (32 - e) * rate
        def sm_step():
            nonlocal ci, bud
            kind, e, txt, info = items[cur][ci]
            if kind == "a":
                A.need(ltags=[("RV", info[0], info[1])])
                if info[2] and info[3]: rv_done[(info[0], info[1])] = sl
            A(txt); bud -= COST[kind]; ci += 1
            if kind == "c" and e % 8 == 0: pendw.append((cur, e//8 - 1))
        while True:
            ds_ = sm_next(); dv = None
            if vi < len(vexp):
                dl = firstuse[vexp[vi]] - 2 - (3 - vpart) * 0.25
                if vexp_ok(): dv = dl
                elif firstuse[vexp[vi]] - sl <= 2:
                    A.need([("VR", vexp[vi][1], vexp[vi][2]//2)])
                    assert vexp_ok(), ("cannot expand in time", sl, vexp[vi])
                    dv = dl
            cands = [(d, k) for d, k in ((ds_, "s"), (dv, "v")) if d is not None]
            if extra:
                if inloop and sl < send_slot: dx = b[nfull-1] + 10
                elif inloop and XTAG and sl < send_slot + 8: dx = send_slot + (27 - len(extra)) * opt.get("packrate", 0.12)
                else: dx = sl + 3
                cands.append((dx, "x"))
            if late: cands.append((8, "t"))
            if not cands: break
            d, k = min(cands)
            if bud <= opt.get("fillto", 0) and d > sl: break
            if k == "s": sm_step()
            elif k == "v": vexp_step()
            elif k == "x": emit_extra(extra.pop(0)); bud -= 4
            else: A(late.pop(0)); bud -= 4
        totcost.append(32 - bud)
    assert not kl and not vl
    if opt.get("verbose"):
        print("slot costs:", totcost, "sum:", sum(totcost), "sum max(32,c):", sum(max(32, c) for c in totcost), file=sys.stderr)
    stamp("loopend")
    for x_ in extra: emit_extra(x_)
    if XTAG:
        if not inloop:
            for x_ in tag_pack(): emit_extra(x_)
        if not inloop or xld_slot >= nslots: A.need(["XS"]); tag_recv(A)
        if not inloop or xuse2 >= nslots:
            A.need(["XR"]); stamp("xr"); tag_check()
            for x_ in tag_fin(): A(x_)
    else:
        if not inloop:
            A("s_nop 7"); two_way(send_payload)
            if not XSC1: self_touch()
        if not inloop or flag_slot >= nslots: A.need(["XS"]); two_way(send_flag)
        if not inloop or xpoll_slot >= nslots: A.vmem(f"buffer_load_dword v{V_TMP}, v{vXF}, s[24:27], s55 offen sc1", "XP")
        if not inloop or xchk_slot >= nslots: A.need(["XP"]); xcheck(); recv_loads()
        if not inloop or xuse_slot >= nslots:
            A.need(["XR"]); stamp("xr")
            for x_ in fin_pre(): A(x_)
    if not opt.get("noslow"): A("s_and_b64 vcc, vcc, s[52:53]\n s_cmp_eq_u64 vcc, -1\n s_cbranch_scc0 L_slow")
    O = V_O0
    if not OARCH:
        O = V_S[n % 2]
        for i in range(16): A(f"v_accvgpr_read_b32 v{O+i}, a{A_O+i}")
    pk = V_PO[0]
    for bq in range(4):
        for a_ in range(4): A(f"v_fmac_f32 v{XR+4*a_+bq}, v{O+4*a_+bq}, v{V_TMP}")
    A.label("L_pack")
    for bq in range(4):
        A(f"v_cvt_pk_bf16_f32 v{pk+2*bq}, v{XR+bq}, v{XR+4+bq}")
        A(f"v_cvt_pk_bf16_f32 v{pk+2*bq+1}, v{XR+8+bq}, v{XR+12+bq}")
        if bq == 1: A(f"buffer_store_dwordx4 v[{pk}:{pk+3}], v{vOUT}, s[28:31], s56 offen {opt.get('ofl','')}")
    A(f"buffer_store_dwordx4 v[{pk+4}:{pk+7}], v{vOUT}, s[28:31], s56 offen offset:16 {opt.get('ofl','')}")
    A(f"""
    s_and_b32 s52, s57, 63
    s_cbranch_scc1 L_nobump
    s_add_u32 s52, s39, 1
    s_lshl_b32 s53, s33, 7
    v_mov_b32 v{V_TMP}, s52
    buffer_store_dword v{V_TMP}, v{vFB}, s[24:27], s53 offen
    """)
    A.label("L_nobump")
    if st:
        A("s_waitcnt vmcnt(0)")
        stamp("end")
        A(("" if rtdone else "s_memrealtime s[98:99]\n") + "s_waitcnt lgkmcnt(0)")
        A(f"s_lshl_b32 s50, s2, 2\n s_add_u32 s50, s50, s32\n s_lshl_b32 s51, s50, 7\n s_add_u32 s51, s51, {ST_OFF}")
        A("s_mov_b64 exec, 1")
        open("stampnames.txt", "w").write(" ".join(stl))
        for i in range(len(stl)):
            A(f"v_mov_b32 v10, s{64+2*i}\n v_mov_b32 v11, s{65+2*i}\n buffer_store_dwordx2 v[10:11], off, s[24:27], s51 offset:{8*i}\n s_nop 1")
        A(f"s_lshl_b32 s50, s50, 4\n s_add_u32 s50, s50, {RT_OFF}")
        A(f"v_mov_b32 v24, s96\n v_mov_b32 v25, s97\n v_mov_b32 v26, s98\n v_mov_b32 v27, s99\n buffer_store_dwordx4 v[24:27], off, s[24:27], s50")
    A.label("L_end")
    A("s_endpgm")
    S = OOL
    S.label("L_slow")
    S(f"""
    s_waitcnt vmcnt(0) lgkmcnt(0)
    s_mul_i32 s40, s33, {64*TILE}
    s_add_u32 s40, s40, {RB}
    v_add_u32 v{vK1}, 0x1000, v{vX}
    v_mov_b32 v40, 0xff800000
    s_mov_b32 s41, s40
    s_mov_b32 s42, 0
    """)
    def slow_qk():
        for s in range(8): S(f"buffer_load_dwordx4 a[{64+4*s}:{67+4*s}], v{vX if s < 4 else vK1}, s[24:27], s41 offen offset:{(s%4)*1024} sc1")
        S("s_waitcnt vmcnt(0)")
        for s in range(8): S(f"v_mfma_f32_32x32x16_bf16 v[24:39], a[{64+4*s}:{67+4*s}], a[{4*s}:{4*s+3}], {'0' if s == 0 else 'v[24:39]'}")
        S("s_nop 15")
    S.label("L_slow1")
    slow_qk()
    for i in range(8): S(f"v_max3_f32 v40, v{24+2*i}, v{25+2*i}, v40")
    S(f"""
    s_add_u32 s41, s41, {TILE}
    s_add_u32 s42, s42, 1
    s_cmp_lt_u32 s42, 64
    s_cbranch_scc1 L_slow1
    v_mov_b32 v41, v40
    s_nop 1
    v_permlane32_swap_b32 v40, v41
    v_max_f32 v40, v40, v41
    v_mov_b32 v42, 0
    v_and_b32 v43, 7, v{vLANE}
    v_bfe_u32 v44, v{vLANE}, 3, 2
    v_lshl_add_u32 v43, v43, 2, v44
    v_lshl_add_u32 v43, v{vW}, 5, v43
    v_lshlrev_b32 v43, 2, v43
    v_lshrrev_b32 v44, 5, v{vLANE}
    s_lshl_b32 s52, s33, 11
    v_lshl_add_u32 v44, v44, 2, s52
    v_lshl_add_u32 v43, v44, 9, v43
    v_lshlrev_b32 v44, 1, v44
    s_mov_b32 s41, s40
    s_mov_b32 s42, 0
    """)
    for i in range(16): S(f"v_mov_b32 v{XR+i}, 0")
    S.label("L_slow2")
    for g in range(4):
        S(f"global_load_dwordx2 v[{64+2*g}:{65+2*g}], v44, s[14:15] offset:{16*g}")
        S(f"global_load_dwordx2 v[{72+2*g}:{73+2*g}], v44, s[16:17] offset:{16*g}")
        for b_ in range(4): S(f"global_load_dword v{48+4*g+b_}, v43, s[12:13] offset:{512*b_}")
        S("v_add_u32 v43, 0x1000, v43")
    S("v_add_u32 v44, 64, v44")
    slow_qk()
    for i in range(16): S(f"v_sub_f32 v{24+i}, v{24+i}, v40")
    for i in range(16): S(f"v_exp_f32 v{24+i}, v{24+i}")
    for i in range(16): S(f"v_add_f32 v42, v42, v{24+i}")
    for i in range(8): S(f"v_cvt_pk_bf16_f32 v{80+i}, v{24+2*i}, v{25+2*i}")
    for i in range(8):
        S(f"""
        v_cvt_f32_i32 v{48+2*i}, v{48+2*i}
        v_cvt_f32_i32 v{49+2*i}, v{49+2*i}
        v_lshlrev_b32 v45, 16, v{72+i}
        v_and_b32 v46, 0xffff0000, v{72+i}
        v_sub_f32 v{48+2*i}, v{48+2*i}, v45
        v_sub_f32 v{49+2*i}, v{49+2*i}, v46
        v_lshlrev_b32 v45, 16, v{64+i}
        v_and_b32 v46, 0xffff0000, v{64+i}
        v_mul_f32 v{48+2*i}, v{48+2*i}, v45
        v_mul_f32 v{49+2*i}, v{49+2*i}, v46
        v_cvt_pk_bf16_f32 v{88+i}, v{48+2*i}, v{49+2*i}
        """)
    S(f"""
    s_nop 1
    v_mfma_f32_32x32x16_bf16 v[{XR}:{XR+15}], v[88:91], v[80:83], v[{XR}:{XR+15}]
    v_mfma_f32_32x32x16_bf16 v[{XR}:{XR+15}], v[92:95], v[84:87], v[{XR}:{XR+15}]
    s_add_u32 s41, s41, {TILE}
    s_add_u32 s42, s42, 1
    s_cmp_lt_u32 s42, 64
    s_cbranch_scc1 L_slow2
    v_mov_b32 v41, v42
    s_nop 15
    v_permlane32_swap_b32 v42, v41
    v_add_f32 v42, v42, v41
    v_rcp_f32 v42, v42
    s_nop 0
    """)
    for i in range(16): S(f"v_mul_f32 v{XR+i}, v{XR+i}, v42")
    S("s_branch L_pack")
    o = ["; generated by gen5.py\n", f"; @launch grid=(256,1,1) block=(256,1,1) lds={LDS_BYTES}\n", TARGET, A.text() + OOL.text(),
         ".fill 2048, 4, 0xBF800000\n", kd(KN, 512, sgpr=102, accum=256)]
    if opt.get("rep"):
        import reporter
        o[1] = f"; @launch kernel={KN} grid=(256,1,1) block=(256,1,1) lds={LDS_BYTES}\n; @launch kernel=rep_kernel grid=(1,1,1) block=(64,1,1) lds=0\n"
        o[4] = o[4] + reporter.text(opt["rep"], RT_OFF, ST_OFF, opt.get("repi", 0), opt.get("repk", 20))
        o.append(kd("rep_kernel", 32))
    return "".join(o)

if __name__ == "__main__":
    opt = {}
    out = sys.argv[1]
    for a_ in sys.argv[2:]:
        k, v = a_.split("=")
        try: v = int(v)
        except:
            try: v = float(v)
            except: pass
        opt[k] = v
    import hazcheck, subprocess, re, os
    t, n = hazcheck.fix(gen(opt))
    if opt.get("ihook"):
        sys.path.insert(0, "cdna_kernels")
        import cdna_launch as cl
        lines = t.split("\n")
        go = lines.index("L_go:"); endl = lines.index("L_pack:")
        for h in range(opt["ihook"]):
            probe = list(lines)
            for i in range(go + 1, endl):
                if probe[i].strip() and not probe[i].endswith(":"): probe[i] = f"LP_{i}:\n" + probe[i]
            txt = "\n".join(probe)
            for k in range(h, opt["ihook"]): txt = txt.replace("L_end:", f"L_hook{k}:\nL_end:")
            open("_p.s", "w").write(cl.with_harness_metadata(txt, KN, 14, launch_lists=True))
            subprocess.run(["clang", "-x", "assembler", "-target", "amdgcn-amd-amdhsa", "-mcpu=gfx950", "-c", "_p.s", "-o", "_p.o"], check=True)
            assert opt.get("pad") is not None
            sy = subprocess.run(["llvm-objdump", "-t", "_p.o"], capture_output=True, text=True).stdout
            ad = sorted((int(m.group(1), 16) + opt.get("textva", 0), int(m.group(2))) for m in re.finditer(r"^([0-9a-f]+) .* LP_(\d+)$", sy, re.M))
            page = ad[0][0] // 4096 + 1 + h
            cand = [i for a_, i in ad if a_ >= page * 4096 + opt.get("hookoff", 0)]
            if not cand:
                lines.insert(lines.index("L_end:") + 2, f"L_hook{h}:\n  s_branch L_warmed"); continue
            lines.insert(cand[0], f"L_hook{h}:"); lines.insert(cand[0] + 1, "  s_cbranch_execz L_warmed"); endl += 2
        t = "\n".join(lines)
    print("nops inserted:", n)
    open(out, "w").write(t)
```

```python
import sys, math, struct
from asmlib import *
from gen1 import Asm, f2u

KN = NAME + "_kernel"
TILE = 10240
BLK = 4 * TILE
RA = 1 << 20
RB = 4 << 20
X_OFF = 8 << 20
FA_OFF = 4096
FB_OFF = 8192
ST_OFF = 16 << 20
RT_OFF = 17 << 20
SCALE = math.log2(math.e) / math.sqrt(128.0)

LDS_K = 0
LDS_L = 9216
LDS_Q = LDS_L + 2048
LDS_T = LDS_Q + 16896
LDS_R = LDS_T + 8192
LDS_P = 49152
NPB = 3
LDS_BYTES = LDS_P + NPB * 16384
assert LDS_R + 12288 <= LDS_P

vT3, vW, vLANE, vK0, vK1, vV, vPW, vPR, vT, vLW, vLR, vOUT, vX, vT2 = 0, 1, 2, 3, 4, 5, 9, 10, 13, 14, 15, 16, 17, 18
vFB, V_L, V_TMP = 19, 20, 22
V_S = [24, 56]
V_PO = [88, 104]
COST = dict(l=8, r=4, w=20, e=8, a=4, c=4, bar=42)
A_Q = 0
A_K = [64, 96, 128]
A_P = 160
A_O = 208

def bitop(fn): return fn(0xF0, 0xCC, 0xAA) & 0xFF

def gen(opt):
    A = Asm()
    OOL = Asm()
    st = opt.get("stamps")
    stl = []; rtdone = []
    stsel = set(opt.get("st", "start,karg,issued,pre,ks,kconv,stored,mid,ackA,bar1,flagsA,mfma0,slot96,slot192,loopend,end").split(","))
    def stamp(name):
        if st and opt.get("rtst") == name and not rtdone:
            rtdone.append(1); A("s_memrealtime s[98:99]")
        if st and opt.get("rtst0") == name: A("s_memrealtime s[96:97]")
        if st and name in stsel and name not in stl:
            i = len(stl); stl.append(name); assert i < 16
            A(f"s_memtime s[{64+2*i}:{65+2*i}]")
    NVR = opt.get("nvr", 4 if opt.get("xtag", 1) else 3); NVE = opt.get("nve", 7); OARCH = opt.get("oarch", 1)
    V_VR = 120; V_VE = V_VR + NVR*8
    V_LV = [V_VE + NVE*4, V_VE + NVE*4 + 16]; V_RV = [V_LV[1] + 16, V_LV[1] + 24]
    V_LA = V_RV[1] + 8
    V_O0 = V_LA + 8
    vR, vR2, vR3 = V_L + 1, vPR + 3 + 100, 0
    V_END = V_O0 + (16 if OARCH else 0)
    vR2, vR3 = V_END, V_END + 1; V_END += 2
    if opt.get("xtag", 1):
        assert V_END <= 256 and OARCH
        vTAG, vPA, vPB = V_O0, V_O0+1, vOUT
        vXF = vXL = vXT = vLS = None
    else:
        assert V_END + 8 <= 256, V_END
        vTAG, vPB, vXF, vXL, vXT, vPA, vLS = V_END, V_END+1, V_END+2, V_END+3, V_END+4, V_END+5, V_END+6
    nfull = opt.get("nfull", 6); nsolo = 16 - 2*nfull; nblk = nfull + nsolo
    rounds = [[(r, 0), (r, 1)] for r in range(nfull)] + [[(nfull + 2*i, 0), (nfull + 2*i + 1, 0)] for i in range(nsolo//2)]
    n = len(rounds)
    nt = opt.get("ntfl", "")
    XTAG = opt.get("xtag", 1)
    XSC1 = opt.get("xsc1", 0) or XTAG
    if opt.get("pad") is not None:
        A.raw(f".text\n.p2align 12\n.fill {opt['pad']//4}, 4, 0xBF800000\n")
    A.raw(head(KN))
    A("""
    s_cmp_ge_u32 s2, 256
    s_cbranch_scc1 L_end
    s_load_dwordx16 s[4:19], s[0:1], 0
    s_load_dwordx2 s[22:23], s[0:1], 104
    s_getpc_b64 s[60:61]
    v_lshlrev_b32 v64, 5, v0
    """)
    A.vmem("global_load_dword v255, v64, s[60:61]", "cpf")
    stamp("start")
    if st: A("s_memrealtime s[96:97]")
    A(f"""
    s_and_b32 s52, s2, 7
    s_lshr_b32 s35, s2, 3
    s_lshl_b32 s57, s52, 5
    s_or_b32 s57, s57, s35
    s_lshl_b32 s53, s57, 14
    v_and_b32 v25, 7, v0
    v_lshrrev_b32 v26, 3, v0
    v_lshl_add_u32 v29, v25, 4, s53
    v_lshl_add_u32 v28, v26, 9, v29
    v_and_b32 v24, 7, v26
    v_lshrrev_b32 v{vW}, 6, v0
    v_lshl_add_u32 v29, v24, 11, v29
    v_lshl_add_u32 v29, v{vW}, 7, v29
    s_lshl_b32 s53, s57, 6
    v_lshl_add_u32 v27, v26, 1, s53
    s_waitcnt lgkmcnt(0)
    """)
    stamp("karg")
    if opt.get("tse", 1):
        A("s_and_b32 s53, s53, 0x3000\n v_lshl_add_u32 v70, v0, 4, s53")
        A.vmem(f"global_load_dwordx4 v[88:91], v70, s[14:15]", "TS")
        A.vmem(f"global_load_dwordx4 v[92:95], v70, s[16:17]", "TS")
    for i in range(4):
        A.vmem(f"global_load_dwordx4 v[{32+4*i}:{35+4*i}], v28, s[6:7] offset:{128*i} {nt}", "KR")
    A.vmem(f"global_load_ushort v30, v27, s[8:9] {nt}", "KR")
    A.vmem(f"global_load_ushort v31, v27, s[10:11] {nt}", "KR")
    for m in range(4):
        A.vmem(f"global_load_dwordx4 v[{48+4*m}:{51+4*m}], v29, s[12:13] offset:{512*m} {nt}", "VRAW")
    A(f"""
    v_readfirstlane_b32 s32, v{vW}
    v_and_b32 v{vLANE}, 63, v0
    s_lshr_b32 s33, s52, 1
    s_lshl_b32 s53, s33, 7
    s_load_dword s39, s[22:23], s53
    s_load_dwordx2 s[20:21], s[0:1], 88
    s_and_b32 s34, s52, 1
    s_lshl_b32 s59, s52, 8
    s_add_u32 s59, s59, {FA_OFF}
    s_and_b32 s36, s35, 1
    s_mov_b32 s24, s22
    s_and_b32 s25, s23, 0xffff
    s_mov_b32 s26, 0x10000000
    s_mov_b32 s27, 0x20000
    s_mul_i32 s58, s57, {TILE}
    s_add_u32 s58, s58, {RA}
    s_lshl_b32 s54, s2, 2
    s_add_u32 s54, s54, s32
    s_lshl_b32 s54, s54, 13
    s_add_u32 s54, s54, {X_OFF}
    """)
    stamp("issued")
    KF = -math.log2(10000.0) / 64
    def trig(idx, mul, pos, nn, t, P1, P2):
        A(f"""
        v_cvt_f32_u32 v{t}, v{idx}
        v_mul_f32 v{t}, {hex(f2u(KF*mul))}, v{t}
        v_exp_f32 v{t}, v{t}
        v_cvt_f32_u32 v{t+1}, v{pos}
        v_mul_f32 v{t}, v{t}, v{t+1}
        """)
        cst = [10000.0 ** (-(j % (nn//2) + 32*(j // (nn//2))) / 64.0) / (2*math.pi) for j in range(nn)]
        A(f"v_mul_f32 v{P2}, {hex(f2u(cst[0]))}, v{t}")
        for j in range(nn):
            A(f"v_cos_f32 v{t+2+2*(j%2)}, v{P2+j}")
            if j + 1 < nn: A(f"v_mul_f32 v{P2+j+1}, {hex(f2u(cst[j+1]))}, v{t}")
            if j: A(f"v_cvt_pk_bf16_f32 v{P1+j-1}, v{t+2+2*((j-1)%2)}, v{t+3+2*((j-1)%2)}")
            A(f"v_sin_f32 v{t+3+2*(j%2)}, v{P2+j}")
            if j: A(f"v_cvt_pk_bf16_f32 v{P2+j-1}, v{t+3+2*((j-1)%2)}, v{t+2+2*((j-1)%2)}")
        j = nn - 1
        A(f"v_cvt_pk_bf16_f32 v{P1+j}, v{t+2+2*(j%2)}, v{t+3+2*(j%2)}")
        A(f"v_cvt_pk_bf16_f32 v{P2+j}, v{t+3+2*(j%2)}, v{t+2+2*(j%2)}")
    KP1, KP2, QP1, QP2 = 96, 104, 112, 128
    def w_trigK():
        A("v_bfe_u32 v150, v27, 1, 11")
        trig(25, 4, 150, 8, 144, KP1, KP2)
    def w_kaddr():
        A(f"""
        v_mul_u32_u24 v173, 144, v26
        v_lshl_add_u32 v173, v25, 4, v173
        v_lshl_add_u32 v174, v{vW}, 3, v25
        v_mul_u32_u24 v172, 144, v174
        v_lshl_add_u32 v172, v24, 4, v172
        v_lshlrev_b32 v174, 4, v174
        v_lshl_add_u32 v174, v24, 9, v174
        v_add_u32 v175, 0x1000, v174
        v_lshlrev_b32 v176, 3, v0
        v_add_u32 v176, 0x2000, v176
        v_bfe_i32 v177, v0, 4, 1
        v_and_b32 v177, 0x02020202, v177
        v_or_b32 v177, 0x05040100, v177
        v_mov_b32 v178, 0x11111111
        s_add_u32 s37, s58, {RB - RA}
        """)
    def l_pt():
        A(f"""
        s_mul_i32 s52, s32, 2560
        s_add_u32 s52, s52, s58
        v_lshl_add_u32 v65, v{vLANE}, 7, s52
        v_mov_b32 v66, s59
        v_cmp_gt_u32 vcc, {opt.get("ptl", 20)}, v{vLANE}
        {"" if XTAG else "s_add_u32 s52, s54, 4352"}
        {"" if XTAG else "v_writelane_b32 v66, s52, 20"}
        v_cndmask_b32 v65, v66, v65, vcc
        """)
        A.vmem(f"buffer_load_dword v254, v65, s[24:27], 0 offen {opt.get('ptfl', '')}", "PT")
    def l_cpf2():
        NCL = opt.get("ncl", 128)
        A(f"""
        v_min_u32 v64, {NCL//32 - 1}, v{vLANE}
        v_lshl_add_u32 v64, v64, 2, v{vW}
        s_and_b32 s53, s35, 7
        s_add_u32 s53, s53, 64
        v_lshl_add_u32 v64, v64, 3, s53
        v_lshlrev_b32 v64, 7, v64
        """)
        A.vmem(f"global_load_dword v255, v64, s[60:61]", "cpf")
    def w_qaddr():
        A(f"""
        s_lshr_b32 s52, s32, 1
        s_xor_b32 s53, s57, s52
        s_lshl_b32 s53, s53, 5
        v_bfe_u32 v66, v0, 2, 5
        v_and_b32 v71, 3, v0
        v_add_u32 v67, s53, v66
        v_lshlrev_b32 v68, 8, v67
        v_lshl_add_u32 v68, v71, 4, v68
        v_and_b32 v67, 2047, v67
        s_mul_i32 s52, s52, 8448
        v_mul_u32_u24 v180, 1056, v71
        v_lshl_add_u32 v180, v66, 4, v180
        v_add_u32 v180, s52, v180
        """)
    def l_q():
        for k in range(0 if opt.get("noq") else 4):
            A.vmem(f"global_load_dwordx4 v[{72+4*k}:{75+4*k}], v68, s[4:5] offset:{64*k} {opt.get('qfl', '')}", "QR")
    def l_ts():
        A("s_lshl_b32 s53, s33, 12\n v_lshl_add_u32 v70, v0, 4, s53")
        A.vmem(f"global_load_dwordx4 v[88:91], v70, s[14:15]", "TS")
        A.vmem(f"global_load_dwordx4 v[92:95], v70, s[16:17]", "TS")
    def w_trigQ():
        trig(71, 8, 67, 16, 144, QP1, QP2)
    def w_blk():
        A(f"""
        s_lshl_b32 s52, s34, 3
        s_lshl_b32 s53, s36, 2
        s_add_u32 s18, s52, s53
        s_xor_b32 s52, s52, 8
        s_mul_i32 s53, s36, {nfull-4}
        s_add_u32 s19, s52, s53
        s_add_u32 s3, s52, {2*(nfull-4)}
        v_lshlrev_b32 v179, 5, v0
        v_lshrrev_b32 v171, 1, v0
        v_mul_u32_u24 v171, 96, v171
        v_and_b32 v170, 1, v0
        v_lshl_add_u32 v171, v170, 3, v171
        v_add_u32 v171, {LDS_R}, v171
        v_bfe_u32 v157, v0, 4, 1
        v_bfe_u32 v158, v0, 1, 3
        v_cmp_eq_u32 vcc, v157, v158
        v_bfe_u32 v157, v0, 5, 3
        v_and_b32 v158, 1, v157
        v_cndmask_b32 v170, 2, v170, vcc
        v_mul_u32_u24 v158, 48, v158
        v_lshl_add_u32 v158, v170, 4, v158
        v_mul_u32_u24 v157, 192, v{vW}
        v_add_u32 v158, v158, v157
        s_mul_i32 s52, s18, 768
        v_add_u32 v{vR}, s52, v158
        s_mul_i32 s52, s19, 768
        v_add_u32 v{vR2}, s52, v158
        s_mul_i32 s52, s3, 768
        v_add_u32 v{vR3}, s52, v158
        v_lshrrev_b32 v151, 5, v{vLANE}
        v_lshlrev_b32 v152, 4, v151
        v_lshl_add_u32 v152, v{vW}, 7, v152
        s_lshl_b32 s52, s18, 9
        v_add_u32 v{vT}, s52, v152
        s_lshl_b32 s52, s19, 9
        v_add_u32 v{vT2}, s52, v152
        v_cmp_eq_u32 vcc, 0, v0
        s_lshl_b32 s52, s33, 4
        """)
        for src, reg, b0, b1 in (("s18", RA, 0, 4), ("s19", RB, 4, nfull), ("s3", RB, nfull, nblk)):
            if b1 > b0:
                A(f"s_add_u32 s53, s52, {src}\n s_mul_i32 s53, s53, {BLK}")
                for b_ in range(b0, b1): A(f"s_add_u32 s{42+b_}, s53, {reg + (b_-b0)*BLK}")
        A(f"""
        v_bfrev_b32 v153, 4
        v_cndmask_b32 v{vFB}, v153, 0, vcc
        s_lshl_b32 s53, s36, 6
        v_and_b32 v154, 15, v{vLANE}
        v_lshl_add_u32 v{vPA}, v154, 2, s53
        v_lshlrev_b32 v{vX}, 4, v{vLANE}
        v_lshl_add_u32 v23, v151, 4, v{vX}
        s_mul_i32 s52, s32, {TILE}
        v_add_u32 v{vK0}, s52, v{vX}
        v_add_u32 v{vK1}, 0x1000, v{vK0}
        s_getreg_b32 s41, hwreg(HW_REG_XCC_ID, 0, 4)
        """)
    def w_vaddr():
        A(f"""
        v_lshl_add_u32 v155, v151, 3, v25
        v_bfe_u32 v156, v{vLANE}, 3, 2
        v_lshl_add_u32 v155, v156, 4, v155
        v_lshlrev_b32 v155, 3, v155
        v_lshl_add_u32 v155, v{vW}, 9, v155
        v_add_u32 v156, {LDS_P}, v{vX}
        """)
        for i in range(4):
            A(f"s_add_u32 s52, s32, {i}\n s_and_b32 s52, s52, 3\n s_lshl_b32 s53, s52, 12\n v_add_u32 v{vPW+i}, s53, v156")
            A(f"s_mul_i32 s52, s52, {TILE}\n s_add_u32 s52, s52, 8192\n v_add_u32 v{vV+i}, s52, v155")
    late = []
    late2 = []
    def w_late():
        L_ = f"""
        {"v_lshlrev_b32 v%d, 6, v%d" % (vPB, vLANE) if opt.get("chk") else "v_and_b32 v%d, 15, v%d" % (vPB, vLANE)}
        {"" if opt.get("chk") else "v_lshl_add_u32 v%d, v%d, 4, v%d" % (vPB, vW, vPB)}
        {"" if opt.get("chk") else "v_lshlrev_b32 v%d, 6, v%d" % (vPB, vPB)}
        v_and_b32 v{vLR}, 31, v{vLANE}
        v_lshlrev_b32 v{vLR}, 5, v{vLR}
        v_lshlrev_b32 v{vLW}, 5, v{vLANE}
        v_lshl_add_u32 v{vLW}, v{vW}, 3, v{vLW}
        v_cmp_gt_u32 vcc, 16, v{vLANE}
        v_add_u32 v{V_TMP}, {LDS_L}, v{vLW}
        s_nop 0
        v_cndmask_b32 v{vLW}, v{vLW}, v{V_TMP}, vcc
        s_sub_u32 s38, 2, s36
        s_mul_i32 s38, s38, {(nfull-4)*512}
        v_add_u32 v{vT3}, s38, v{vT2}
        s_xor_b32 s55, s54, 0x40000
        s_lshl_b32 s56, s57, 13
        s_lshl_b32 s38, s32, 6
        s_add_u32 s56, s56, s38
        s_mov_b32 s28, s20
        s_and_b32 s29, s21, 0xffff
        s_mov_b32 s30, 0x200000
        s_mov_b32 s31, 0x20000
        """
        if not XTAG: L_ += f"""
        s_xor_b32 s37, s35, 1
        s_lshl_b32 s37, s37, 2
        s_add_u32 s37, s37, s59
        v_lshrrev_b32 v{vXL}, 3, v{vLR}
        v_add_u32 v{vXL}, 4096, v{vXL}
        v_mov_b32 v{vXF}, 4352
        v_min_u32 v{vXT}, 32, v{vLANE}
        v_lshlrev_b32 v{vXT}, 7, v{vXT}
        """
        late.extend(x.strip() for x in L_.split("\n") if x.strip())
        late2.extend([f"v_and_b32 v{vOUT}, 32, v{vLANE}", f"v_lshl_add_u32 v{vOUT}, v{vLR}, 3, v{vOUT}"])
    def w_tables():
        A.need(["TS"])
        x = 184
        for k in range(4):
            A(f"v_lshlrev_b32 v{x+2*k}, 16, v{88+k}\n v_and_b32 v{x+2*k+1}, 0xffff0000, v{88+k}")
        A("s_mov_b32 s52, 0x3fc03fc0")
        ex = ["v_xor_b32 v92, s52, v92", "v_xor_b32 v93, s52, v93", "v_xor_b32 v94, s52, v94", "v_xor_b32 v95, s52, v95",
              "v_or3_b32 v92, v92, v93, v94", "v_or_b32 v92, v92, v95", "v_mov_b32 v95, 0x7fc00000", "v_cmp_eq_u32 s[52:53], 0, v92"]
        for k in range(8): A(f"v_log_f32 v{192+k}, v{x+k}\n {ex[k]}")
        ex = ["v_max3_f32 v93, |v192|, |v193|, |v194|", "v_max3_f32 v94, |v195|, |v196|, |v197|", "v_max3_f32 v93, |v198|, |v199|, v93", "v_max_f32 v93, v93, v94",
              "v_cmp_gt_f32 vcc, 0x41f00000, v93", "s_nop 0", "s_and_b64 vcc, vcc, s[52:53]", "s_nop 0"]
        A(f"v_rcp_f32 v200, v{x}")
        A.ds(f"ds_write_b128 v179, v[192:195] offset:{LDS_T}", "QW"); A.ds(f"ds_write_b128 v179, v[196:199] offset:{LDS_T+16}", "QW")
        for k in range(1, 8): A(f"{ex[k-1]}\n v_rcp_f32 v{200+k}, v{x+k}")
        A("v_cndmask_b32 v200, v95, v200, vcc")
        for k in range(4): A(f"v_cvt_pk_bf16_f32 v{184+k}, v{200+2*k}, v{201+2*k}")
        A("v_mov_b32 v92, 0\n v_mov_b32 v93, 0")
        for k in range(4):
            A(f"v_lshlrev_b32 v94, 16, v{184+k}\n v_and_b32 v95, 0xffff0000, v{184+k}\n v_sub_f32 v94, v{200+2*k}, v94\n v_sub_f32 v95, v{201+2*k}, v95\n v_cvt_pk_bf16_f32 v{188+k}, v94, v95")
        A.ds("ds_write2_b64 v171, v[184:185], v[188:189] offset0:0 offset1:2", "QW")
        A.ds("ds_write2_b64 v171, v[186:187], v[190:191] offset0:6 offset1:8", "QW")
        A.ds("ds_write2_b64 v171, v[92:93], v[92:93] offset0:4 offset1:10", "QW")
    def w_qrope():
        A.need(["QR"])
        A("s_mov_b32 s52, 0x05040100\n s_mov_b32 s53, 0x07060302")
        x = 32
        for k in range(8):
            A(f"v_perm_b32 v{x+2*k}, v{80+k}, v{72+k}, s52\n v_perm_b32 v{x+2*k+1}, v{80+k}, v{72+k}, s53")
        for half in range(2):
            js = [4*half + t for t in range(4)] + [8 + 4*half + t for t in range(4)]
            y = 48 + 16*half
            for t, j in enumerate(js): A(f"v_dot2_f32_bf16 v{y+t}, v{x+j}, v{QP1+j}, 0 neg_hi:[0,1,0]")
            for t, j in enumerate(js): A(f"v_dot2_f32_bf16 v{y+8+t}, v{x+j}, v{QP2+j}, 0")
        for half in range(2):
            y = 48 + 16*half; zz = 208 + 8*half
            for k in range(8): A(f"v_cvt_pk_bf16_f32 v{zz+k}, v{y+2*k}, v{y+2*k+1}")
            A.ds(f"ds_write_b128 v180, v[{zz}:{zz+3}] offset:{LDS_Q + 528*half}", "QW")
            A.ds(f"ds_write_b128 v180, v[{zz+4}:{zz+7}] offset:{LDS_Q + 528*half + 8*528}", "QW")
    def w_flush():
        for l_ in late: A(l_)
        late.clear()
    def w_warm():
        if opt.get("ihook"):
            A("s_mov_b64 exec, 0")
            for i in range(opt["ihook"]): A(f"s_cmp_eq_u32 s32, {i}\n s_cbranch_scc1 L_hook{i}")
            A.label("L_warmed"); A("s_mov_b64 exec, -1")
    W = dict(trigK=w_trigK, kaddr=w_kaddr, pt=l_pt, cpf2=l_cpf2, q=l_q, qaddr=w_qaddr, ts=l_ts, trigQ=w_trigQ, blk=w_blk, vaddr=w_vaddr,
             tables=w_tables, qrope=w_qrope, flush=w_flush, warm=w_warm)
    def run(seq):
        for x_ in seq.split("."):
            if x_: W[x_](); stamp(x_)
    w_late()
    run(opt.get("o1", "pt.trigK.kaddr.cpf2.qaddr.q.trigQ.blk.vaddr.tables"))
    stamp("pre")
    A.need(["KR"])
    stamp("ks")
    A(f"v_lshlrev_b32 v30, 16, v30\n v_lshlrev_b32 v31, 16, v31\n v_mul_f32 v30, {hex(f2u(SCALE))}, v30\n v_mul_f32 v31, v31, v30")
    for j in range(16): A(f"v_cvt_f32_i32 v{32+j}, v{32+j}")
    for j in range(16): A(f"v_fma_f32 v{32+j}, v{32+j}, v30, -v31")
    for j in range(8): A(f"v_cvt_pk_bf16_f32 v{32+j}, v{32+j}, v{40+j}")
    for j in range(8): A(f"v_dot2_f32_bf16 v{KP1+j}, v{32+j}, v{KP1+j}, 0 neg_hi:[0,1,0]")
    for j in range(8): A(f"v_dot2_f32_bf16 v{KP2+j}, v{32+j}, v{KP2+j}, 0")
    for p in range(4): A(f"v_cvt_pk_bf16_f32 v{40+p}, v{KP1+2*p}, v{KP1+2*p+1}")
    A("s_waitcnt lgkmcnt(0)"); A.lg = []
    A.ds("ds_write_b128 v172, v[40:43]", "KT")
    for p in range(4): A(f"v_cvt_pk_bf16_f32 v{44+p}, v{KP2+2*p}, v{KP2+2*p+1}")
    A.ds("ds_write_b128 v172, v[44:47] offset:4608", "KT")
    A.ds("ds_read_b128 v[160:163], v173", "KT2")
    A.ds("ds_read_b128 v[164:167], v173 offset:4608", "KT2")
    stamp("kconv")
    A.need(["VRAW"])
    for c in range(4): A(f"v_lshl_or_b32 v{48+c}, v{52+c}, 4, v{48+c}")
    for c in range(4): A(f"v_lshl_or_b32 v{56+c}, v{60+c}, 4, v{56+c}")
    for c in range(4): A(f"v_lshl_or_b32 v{48+c}, v{56+c}, 8, v{48+c}")
    A("v_lshl_or_b32 v48, v49, 16, v48\n v_lshl_or_b32 v49, v51, 16, v50")
    A("s_mov_b32 s52, 0x22222222\n s_mov_b32 s53, 0x88888888")
    A("v_permlane32_swap_b32 v48, v49")
    A("v_mov_b32 v50, v48\n v_mov_b32 v51, v49")
    A.need(ltags=["KT2"])
    A.vmem("buffer_store_dwordx4 v[160:163], v174, s[24:27], s58 offen", "SA")
    A.vmem("buffer_store_dwordx4 v[164:167], v175, s[24:27], s58 offen", "SA")
    A("v_permlane16_swap_b32 v48, v50\n v_permlane16_swap_b32 v49, v51")
    A("v_perm_b32 v168, v50, v48, v177\n v_perm_b32 v169, v51, v49, v177")
    t1 = bitop(lambda a, b, c: ~(a ^ b) & c); t2 = bitop(lambda a, b, c: (~a & b) | c)
    for r in (168, 169):
        A(f"v_lshlrev_b32 v55, 1, v{r}\n v_lshlrev_b32 v56, 2, v{r}")
        A(f"v_bitop3_b32 v55, v{r}, v55, s52 bitop3:{hex(t1)}")
        A(f"v_bitop3_b32 v56, v56, s53, v178 bitop3:{hex(t2)}")
        A(f"v_or_b32 v{r}, v55, v56")
    A.vmem("buffer_store_dwordx2 v[168:169], v176, s[24:27], s58 offen", "SA")
    run(opt.get("o2", ""))
    def st_b():
        A.vmem("buffer_store_dwordx4 v[160:163], v174, s[24:27], s37 offen sc1", "SB")
        A.vmem("buffer_store_dwordx4 v[164:167], v175, s[24:27], s37 offen sc1", "SB")
        A.vmem("buffer_store_dwordx2 v[168:169], v176, s[24:27], s37 offen sc1", "SB")
    W["sb"] = st_b
    if not opt.get("sbl", 1): st_b()
    stamp("stored")
    run(opt.get("o3", ""))
    A(f"""
    s_mul_i32 s40, s39, 0x9E3779B1
    s_add_u32 s40, s40, 0x7F4A7C15
    s_and_b32 s40, s40, 0xfffffff0
    s_or_b32 s62, s40, s41
    s_lshl_b32 s63, s35, 2
    s_add_u32 s63, s63, s59
    v_mov_b32 v24, s62
    s_or_b32 s61, s40, 8
    s_lshl_b32 s18, s57, 6
    s_add_u32 s18, s18, {FB_OFF}
    v_mov_b32 v{vTAG}, s61
    """)
    FBE = 2
    stamp("mid")
    A.need(["SA"])
    stamp("ackA")
    A("s_barrier")
    A.vmem(f"buffer_store_dword v24, v{vFB}, s[24:27], s63 offen", "FA")
    stamp("bar0")
    run(opt.get("o3b", "sb.qrope.flush"))
    A(f"""
    buffer_load_dword v26, v{vPA}, s[24:27], s59 offen sc1
    s_lshl_b32 s60, s33, 12
    s_add_u32 s60, s60, {FB_OFF}
    s_mov_b32 s3, 0
    s_mov_b32 s19, 0
    """)
    run(opt.get("o5", "warm"))
    A.label("L_pollA")
    A(f"""
    s_waitcnt vmcnt(0)
    v_cmp_eq_u32 vcc, s62, v26
    s_cmp_eq_u64 vcc, -1
    s_cbranch_scc0 L_pollA_more
    """)
    A.vm = []
    stamp("flagsA")
    OOL.label("L_pollA_more")
    OOL(f"""
    buffer_load_dword v26, v{vPA}, s[24:27], s59 offen sc1
    s_add_u32 s19, s19, 1
    s_cmp_lt_u32 s19, {opt.get("tmo", 64)}
    s_cbranch_scc1 L_pollA
    s_waitcnt vmcnt(0)
    s_waitcnt lgkmcnt(0)
    s_barrier
    buffer_store_dword v{vTAG}, v{vFB}, s[24:27], s18 offen sc1
    v_lshlrev_b32 v27, 4, v{vPA}
    s_lshl_b32 s52, s34, 11
    v_add_u32 v27, s52, v27
    s_mov_b32 s53, 0
    """)
    OOL.label("L_pollB0")
    OOL(f"""
    buffer_load_dword v26, v27, s[24:27], s60 offen sc1
    s_add_u32 s53, s53, 1
    s_waitcnt vmcnt(0)
    v_cmp_eq_u32 vcc, s61, v26
    s_cmp_eq_u64 vcc, -1
    s_cbranch_scc1 L_pollB0_ok
    s_sleep 4
    s_cmp_lt_u32 s53, 0x100000
    s_cbranch_scc1 L_pollB0
    """)
    OOL.label("L_pollB0_ok")
    for b_ in range(4): OOL(f"s_add_u32 s{42+b_}, s{42+b_}, {RB-RA}")
    OOL("s_mov_b32 s3, 1\n s_branch L_go")

    order = []
    for r in range(n):
        order.append(("QK", r))
        if r >= 1: order.append(("PV", r-1))
    order.append(("PV", n-1))
    mf = []; a = [0]*n; b = [0]*n
    for kind, r in order:
        if kind == "QK":
            a[r] = len(mf)
            if r < opt.get("smaj", 2):
                for s in range(8):
                    for u in range(2): mf.append(("QK", r, u, s))
            else:
                for u in range(2):
                    for s in range(8): mf.append(("QK", r, u, s))
        else:
            b[r] = len(mf)
            for kk in range(8):
                for u in range(2): mf.append(("PV", r, u, kk))
    nslots = len(mf)
    sready = {(m[1], m[2]): sl + 3 for sl, m in enumerate(mf) if m[0] == "QK"}
    q1last = {m[3]: sl for sl, m in enumerate(mf) if m[0] == "QK" and rounds[m[1]][m[2]][1] == 1}
    firstuse = {}; lastuse = {}
    for sl, m in enumerate(mf):
        blk = rounds[m[1]][m[2]][0]
        key = ("K" if m[0] == "QK" else "V", blk, m[3])
        firstuse.setdefault(key, sl); lastuse[key] = sl
    kbuf = {}; kfree = {}
    q1dead = a[nfull-1] + 15
    bases = list(A_K); hold = [None]*len(bases)
    if OARCH and opt.get("k4", 1): bases.append(224); hold.append(None)
    if nsolo: bases.append(A_Q + 32); hold.append("Q1")
    for blk in range(nblk):
        def rel(h): return -1 if h is None else (q1dead if h == "Q1" else lastuse[("K", h, 7)])
        i = min(range(len(bases)), key=lambda i: rel(hold[i]))
        for s in range(8):
            h = hold[i]
            kfree[(blk, s)] = -1 if h is None else (q1last[s] if h == "Q1" else lastuse[("K", h, s)])
        kbuf[blk] = bases[i]; hold[i] = blk
    def oreg(qt):
        if OARCH: return f"v[{V_O0}:{V_O0+15}]" if qt == 0 else f"a[{A_O}:{A_O+15}]"
        return f"a[{A_O+16*qt}:{A_O+16*qt+15}]"
    A_O1 = A_O if OARCH else A_O + 16
    vexp = sorted({k for k in firstuse if k[0] == "V"}, key=lambda k: firstuse[k])
    vereg = {k: V_VE + (i % NVE)*4 for i, k in enumerate(vexp)}
    vefree = {k: (-1 if i < NVE else lastuse[vexp[i-NVE]]) for i, k in enumerate(vexp)}
    vedone = {}
    barlead = opt.get("barlead", 2)
    gate = opt["chk"] + 1 if opt.get("chk") else b[opt.get("gater", 1)] - barlead
    kl = [("K", blk, s) for blk in range(nblk) for s in range(8)]
    vl = sorted([("VR", blk, i) for blk in range(nblk) for i in range(4)], key=lambda k: firstuse[("V", k[1], 2*k[2])])
    need_at = {k: firstuse[k] for k in kl}
    need_at.update({k: firstuse[("V", k[1], 2*k[2])] - opt.get("vneed", 20) for k in vl})
    for i in range(4): need_at[("VR", 0, i)] = opt.get("v0need", 26) + i
    for i in range(4): need_at[("VR", 1, i)] = max(need_at[("VR", 1, i)], opt.get("v1need", 56) + 2*i)
    issued = set()
    def ld_free(key):
        f = -1
        if key[0] == "K": f = kfree[(key[1], key[2])]
        elif key[1] >= NVR: f = vedone.get(("V", key[1]-NVR, 2*key[2]+1), 10**6)
        if key[1] >= 4: f = max(f, gate)
        return f
    def ld(key):
        k, blk, f = key
        issued.add(key)
        if k == "K":
            rg = kbuf[blk] + 4*f
            A.vmem(f"buffer_load_dwordx4 a[{rg}:{rg+3}], v{vK0 + f//4}, s[24:27], s{42+blk} offen offset:{(f%4)*1024}", key)
        else:
            rg = V_VR + (blk % NVR)*8 + 2*f
            A.vmem(f"buffer_load_dwordx2 v[{rg}:{rg+1}], v{vV+f}, s[24:27], s{42+blk} offen", key)
    tb = []
    for r in range(n):
        for u in range(2):
            if not tb or tb[-1][0] != rounds[r][u][0]: tb.append((rounds[r][u][0], r, u))
    lvreg = {blk: V_LV[i % 2] for i, (blk, _, _) in enumerate(tb)}
    rvreg = {blk: V_RV[i % 2] for i, (blk, _, _) in enumerate(tb)}
    lv_use = {blk: firstuse[("K", blk, 0)] for blk, _, _ in tb}
    lv_last = {blk: lastuse[("K", blk, 0)] for blk, _, _ in tb}
    rv_done = {}
    lvq = [("LV", blk, q, i) for i, (blk, r, u) in enumerate(tb) for q in range(4)]
    rvq = [("RV", blk, q, i) for i, (blk, r, u) in enumerate(tb) for q in range(2)]
    tdone = {}
    A.label("L_go")
    def qread(i):
        A.ds(f"ds_read_b128 a[{A_Q+4*i}:{A_Q+4*i+3}], v23 offset:{LDS_Q + (i//8)*8448 + (i%8)*1056}", ("Q", i//8, i%8))
    qord = [x for s_ in range(8) for x in (s_, 8+s_)] if opt.get("smaj", 2) else list(range(16))
    for _ in range(opt.get("npre0", 2)): ld(kl.pop(0))
    A("s_cmp_eq_u32 s3, 0\n s_waitcnt lgkmcnt(0)\n s_cbranch_scc0 L_skip2\n s_barrier"); A.lg = []
    A.label("L_skip2")
    stamp("bar1")
    rd = [lambda q_=q_: A.ds(f"ds_read_b128 v[{V_LV[0]+4*q_}:{V_LV[0]+4*q_+3}], v{vT} offset:{LDS_T + q_*32}", ("LV", 0, q_)) for q_ in range(4)]
    rd += [lambda i=i: qread(i) for i in qord[:10]]
    for _ in range(opt.get("npre", 6) - opt.get("npre0", 2)):
        for _ in range(opt.get("gap0", 3)):
            if rd: rd.pop(0)()
        ld(kl.pop(0))
    while rd: rd.pop(0)()
    qrest = qord[10:]
    def tread(t, sl_):
        k, blk, q, i = t
        rg = (lvreg if k == "LV" else rvreg)[blk] + 4*q
        j_, rel_ = (0, blk) if blk < 4 else ((1, blk-4) if blk < nfull else (2, blk-nfull))
        if k == "LV": A.ds(f"ds_read_b128 v[{rg}:{rg+3}], v{(vT, vT2, vT3)[j_]} offset:{LDS_T + rel_*512 + q*32}", (k, blk, q))
        else: A.ds(f"ds_read_b128 v[{rg}:{rg+3}], v{(vR, vR2, vR3)[j_]} offset:{LDS_R + rel_*768 + q*96}", (k, blk, q))
        tdone[(k, blk, q)] = sl_
    for q_ in range(4): lvq.pop(0); tdone[("LV", 0, q_)] = -5
    wend = {r: b[r] - opt.get("smend", 5) - (opt.get("lx", 2) if r in (nfull-1, n-1) else 0) for r in range(n)}
    items = {}
    for r in range(n):
        S = V_S[r % 2]; PO = V_PO[r % 2]; L = []
        for e in range(33):
            if e < 32: L.append(("e", e, f"v_exp_f32 v{S+e}, v{S+e}", None))
            if e >= 2 and e % 2 == 0:
                L.append(("c", e, f"v_cvt_pk_bf16_f32 v{PO + (e-2)//2}, v{S+e-2}, v{S+e-1}", None))
        items[r] = L
    cur = 0; ci = 0; pendw = []; nw = {r: 0 for r in range(n)}
    pendm = []; seenL = set(); pendl = []; lwr = set()
    bar_at = {b[r] - barlead: r for r in range(n)}
    prq = [(r, kk, u, (kk-2)*2+u) for r in range(n) for kk in range(2, 8) for u in range(2)]
    prdone = set(); lastw = -10
    send_slot = b[nfull-1] + 16 + 2
    inloop = send_slot + 6 < nslots
    flag_slot = send_slot + opt.get("flagdelay", 16)
    xpoll_slot = flag_slot + opt.get("xpolldelay", 10)
    xchk_slot = xpoll_slot + opt.get("xchkdelay", 8)
    xuse_slot = xchk_slot + opt.get("xusedelay", 8)
    pollB_slot = opt.get("pollslot", 60); chkB_slot = opt.get("chk") or gate - opt.get("chklead", 3)
    XR = V_LV[0]
    def operands(m):
        blk = rounds[m[1]][m[2]][0]
        if m[0] == "QK":
            lt = [("Q", rounds[m[1]][m[2]][1], m[3])]
            if m[3] == 0: lt += [("LV", blk, q) for q in range(4)]
            return [("K", blk, m[3])], lt
        return [], [("PR", m[1], m[3], m[2])]
    def lsum(t_, dst):
        return [f"v_add_f32 v{t_}, v{t_}, v{t_+1}", f"v_add_f32 v{t_+2}, v{t_+2}, v{t_+3}", f"v_add_f32 v{t_+4}, v{t_+4}, v{t_+5}", f"v_add_f32 v{t_+6}, v{t_+6}, v{t_+7}",
                f"v_add_f32 v{t_}, v{t_}, v{t_+2}", f"v_add_f32 v{t_+4}, v{t_+4}, v{t_+6}", f"v_add_f32 v{dst}, v{t_}, v{t_+4}"]
    LT = [0, 0]
    uid = [0]
    def two_way(fn):
        if XSC1: fn(A, "sc1"); return
        uid[0] += 1; u_ = uid[0]
        A(f"s_cmp_eq_u32 s37, s62\n s_cbranch_scc0 L_far{u_}")
        fn(A, ""); A.label(f"L_join{u_}")
        OOL.label(f"L_far{u_}"); fn(OOL, "sc1"); OOL.vm = []; OOL(f"s_branch L_join{u_}")
    def send_payload(B, fl):
        for i in range(4):
            o = A_O1 + 4*i
            B.vmem(f"buffer_store_dwordx4 a[{o}:{o+3}], v{vX}, s[24:27], s54 offen offset:{i*1024} {fl}", "XS")
        B.vmem(f"buffer_store_dword v{vLS}, v{vXL}, s[24:27], s54 offen {fl}", "XS")
    def send_flag(B, fl):
        B.vmem(f"buffer_store_dword v{vTAG}, v{vXF}, s[24:27], s54 offen {fl}", "XF")
    def self_touch():
        if opt.get("selft", 1): A.vmem(f"buffer_load_dword v{vPB}, v{vXT}, s[24:27], s54 offen sc1", "ST")
    def recv_loads():
        A.vmem(f"buffer_load_dword v{XR+16}, v{vXL}, s[24:27], s55 offen sc1", "XR")
        for i in range(4):
            A.vmem(f"buffer_load_dwordx4 v[{XR+4*i}:{XR+4*i+3}], v{vX}, s[24:27], s55 offen offset:{i*1024} sc1", "XR")
    def xcheck():
        A(f"v_cmp_eq_u32 vcc, s61, v{V_TMP}\n s_cbranch_vccz L_xspin0")
        A.label("L_xok")
        OOL.label("L_xspin0"); OOL("s_mov_b32 s53, 0"); OOL.label("L_xspin")
        OOL(f"""
        buffer_load_dword v{V_TMP}, v{vXF}, s[24:27], s55 offen sc1
        s_add_u32 s53, s53, 1
        s_waitcnt vmcnt(0)
        v_cmp_eq_u32 vcc, s61, v{V_TMP}
        s_cbranch_vccnz L_xok
        s_cmp_lt_u32 s53, 0x100000
        s_cbranch_scc1 L_xspin
        s_branch L_xok
        """)
    def fin_pre():
        L_ = [f"v_add_f32 v{V_L}, v{V_L}, v{XR+16}", f"v_rcp_f32 v{V_TMP}, v{V_L}",
              f"v_cmp_lt_f32 vcc, 0x30800000, v{V_L}", f"v_cmp_gt_f32 s[52:53], s19, v{V_L}"]
        L_ += [f"v_mul_f32 v{XR+i}, v{XR+i}, v{V_TMP}" for i in range(16)]
        return L_
    XB = V_PO[(nfull-1) % 2]
    XL = V_LV[1]
    def xpos(k): return k + k//3
    def tag_pack():
        L_ = []
        for k in range(8):
            L_ += [f"v_accvgpr_read_b32 v{V_TMP}, a{A_O1+2*k}", f"v_accvgpr_read_b32 v{V_TMP+1}, a{A_O1+2*k+1}",
                   f"v_cvt_pk_bf16_f32 v{XB+xpos(k)}, v{V_TMP}, v{V_TMP+1}"]
            if k in (2, 5, 7): L_.append(("st", {2: 0, 5: 1, 7: 2}[k]))
        return L_
    def tag_recv(B):
        for i in range(3):
            B.vmem(f"buffer_load_dwordx4 v[{XL+4*i}:{XL+4*i+3}], v{vX}, s[24:27], s55 offen offset:{i*1024} sc1", "XR")
    def tag_cmp(B):
        B(f"v_cmp_eq_u32 vcc, s61, v{XL+3}\n v_cmp_eq_u32 s[52:53], s61, v{XL+7}\n v_cmp_eq_u32 s[20:21], s61, v{XL+11}")
        B("s_and_b64 vcc, vcc, s[52:53]\n s_and_b64 vcc, vcc, s[20:21]\n s_cmp_eq_u64 vcc, -1")
    def tag_check():
        tag_cmp(A); A("s_cbranch_scc0 L_xspin0"); A.label("L_xok")
        OOL.label("L_xspin0"); OOL("s_mov_b32 s38, 0"); OOL.label("L_xspin")
        tag_recv(OOL); OOL.vm = []
        OOL("s_add_u32 s38, s38, 1\n s_waitcnt vmcnt(0)"); tag_cmp(OOL)
        OOL("s_cbranch_scc1 L_xok\n s_cmp_lt_u32 s38, 0x100000\n s_cbranch_scc1 L_xspin\n s_branch L_xok")
    def tag_fin():
        L_ = [f"v_add_f32 v{V_L}, v{V_L}, v{XL+10}", f"v_rcp_f32 v{V_TMP}, v{V_L}",
              f"v_cmp_lt_f32 vcc, 0x30800000, v{V_L}", f"v_cmp_gt_f32 s[52:53], s19, v{V_L}"]
        for k in range(8):
            L_ += [f"v_lshlrev_b32 v{XR+2*k}, 16, v{XL+xpos(k)}", f"v_and_b32 v{XR+2*k+1}, 0xffff0000, v{XL+xpos(k)}"]
        L_ += [f"v_mul_f32 v{XR+i}, v{XR+i}, v{V_TMP}" for i in range(16)]
        return L_
    def emit_extra(x_):
        if isinstance(x_, tuple):
            A.vmem(f"buffer_store_dwordx4 v[{XB+4*x_[1]}:{XB+4*x_[1]+3}], v{vX}, s[24:27], s54 offen offset:{x_[1]*1024} sc1", "XS")
        else: A(x_)
    xld_slot = opt.get("xld", nslots - 22); xuse2 = opt.get("xuse", max(xld_slot + 10, nslots - 8))
    extra = []
    seenO = set(); vi = 0; vpart = 0
    vt, lt = operands(mf[0]); A.need(vt, lt)
    stamp("mfma0")
    totcost = []; fb_done = []; pb_done = []; ldlog = []
    pipe = opt.get("pipe0", 200)
    for sl in range(nslots):
        m = mf[sl]
        blk, qt = rounds[m[1]][m[2]]
        if m[0] == "QK":
            _, r, u, s = m
            d = V_S[r % 2] + u*16
            c = f"v[{lvreg[blk]}:{lvreg[blk]+15}]" if s == 0 else f"v[{d}:{d+15}]"
            if s == 0: assert all(("LV", blk, q_) in tdone for q_ in range(4)), ("lv not read", sl)
            assert ("K", blk, s) in issued, ("K not loaded", sl)
            assert qt*8+s not in qrest
            k = kbuf[blk] + 4*s; q = A_Q + (qt*8+s)*4
            A(f"v_mfma_f32_32x32x16_bf16 v[{d}:{d+15}], a[{k}:{k+3}], a[{q}:{q+3}], {c}")
        else:
            _, r, u, kk = m
            c = "0" if qt not in seenO else oreg(qt)
            seenO.add(qt)
            assert ("V", blk, kk) in vedone, ("V frag not expanded", sl, m)
            assert kk < 2 or (r, kk, u) in prdone, ("P not read", sl)
            v = vereg[("V", blk, kk)]
            ps = f"v[{V_PO[r%2] + (u*2+kk)*4}:{V_PO[r%2] + (u*2+kk)*4+3}]" if kk < 2 else f"a[{A_P + ((kk-2)*2+u)*4}:{A_P + ((kk-2)*2+u)*4+3}]"
            A(f"v_mfma_f32_32x32x16_bf16 {oreg(qt)}, v[{v}:{v+3}], {ps}, {c}")
        stamp(f"slot{sl}")
        bud = 24
        vt, lt = operands(mf[sl+1]) if sl + 1 < nslots else ([], [])
        vt = list(vt); lt = list(lt)
        if vi < len(vexp) and sl >= need_at[("VR", vexp[vi][1], vexp[vi][2]//2)]: vt.append(("VR", vexp[vi][1], vexp[vi][2]//2))
        if pendm and tdone.get(("RV", rounds[pendm[0][0]][pendm[0][1]//2][0], pendm[0][1] % 2), 10**6) <= sl - 2:
            lt.append(("RV", rounds[pendm[0][0]][pendm[0][1]//2][0], pendm[0][1] % 2))
        if sl == chkB_slot: vt.append("PB")
        if inloop and not XTAG:
            if sl == flag_slot: vt.append("XS")
            if sl == xchk_slot: vt.append("XP")
            if sl == xuse_slot: vt.append("XR")
        if inloop and XTAG and sl == xuse2: vt.append("XR")
        if sl == b[nfull-1] + 4: lt.append(("LR", 1))
        if sl == b[n-1] + 4: lt.append(("LR", 0))
        if sl in bar_at:
            r = bar_at[sl]
            assert nw[r] == 4, ("P not written before barrier", r, sl)
            for q_ in ([1] if r == nfull-1 else []) + ([0] if r == n-1 else []): assert q_ in lwr, ("l not written", sl)
            A.need(vt, lt + [("PW", r), "LW"])
            A("s_barrier")
            bud -= COST['bar']
            for q_ in ([1] if r == nfull-1 else []) + ([0] if r == n-1 else []):
                LT[q_] = V_S[r % 2] + 8*q_
                for hf in range(2):
                    A.ds(f"ds_read_b128 v[{LT[q_]+hf*4}:{LT[q_]+hf*4+3}], v{vLR} offset:{LDS_L + q_*1024 + hf*16}", ("LR", q_)); bud -= 4
        else:
            A.need(vt, lt)
        if sl == b[nfull-1] + 4:
            extra += lsum(LT[1], XB+10 if XTAG else vLS)
            if XTAG: extra += [f"v_mov_b32 v{XB+j}, s61" for j in (3, 7, 11)]
        if sl == b[n-1] + 4: extra += lsum(LT[0], V_L)
        hasw = bool(pendw) and sl not in bar_at and not (sl + 1 in bar_at)
        nr = 0
        while nr < opt.get("maxr", 2) and len(A.lg) < 13:
            c_ = []
            if prq:
                r, kk, u, idx = prq[0]
                if sl >= b[r] - barlead and (r == 0 or sl >= b[r-1] + 4 + idx): c_.append((b[r] + 4 + idx - 5, "p"))
            if qrest: c_.append((qord.index(qrest[0]) - 6, "q"))
            if lvq:
                _, tblk, q, i = lvq[0]
                if (i < 2 or lv_last[tb[i-2][0]] + 1 < sl): c_.append((lv_use[tblk] - 8 + q, "lv"))
            if rvq:
                _, tblk, q, i = rvq[0]
                if (i < 2 or (tb[i-2][0], q) in rv_done): c_.append((lv_use[tblk] + 8 + 4*q, "rv"))
            if not c_: break
            d_, k_ = min(c_)
            if sl == lastw + 1 and d_ > sl - 2: break
            if nr >= 1 and d_ > sl + 1: break
            if hasw and d_ > sl + 1: break
            if d_ > sl + opt.get("rlead", 24): break
            if k_ == "p":
                r, kk, u, idx = prq.pop(0); rg = A_P + idx*4
                A.ds(f"ds_read_b128 a[{rg}:{rg+3}], v{vPR+kk//2-1} offset:{(r%NPB)*16384 + (u*2+kk%2)*1024}", ("PR", r, kk, u)); prdone.add((r, kk, u))
            elif k_ == "q": qread(qrest.pop(0))
            elif k_ == "lv": tread(lvq.pop(0), sl)
            else: tread(rvq.pop(0), sl)
            bud -= COST["r"]; nr += 1
        if hasw:
            r, f = pendw.pop(0); PO = V_PO[r % 2]
            A.ds(f"ds_write_b128 v{vPW}, v[{PO+4*f}:{PO+4*f+3}] offset:{(r%NPB)*16384 + f*1024}", ("PW", r)); bud -= COST["w"]; nw[r] += 1
            lastw = sl
        if pendl and pendl[0][0] <= sl:
            _, q_ = pendl.pop(0); lwr.add(q_)
            A.ds(f"ds_write_b64 v{vLW}, v[{V_LA+4*q_}:{V_LA+4*q_+1}] offset:{q_*1024}", "LW")
            A.ds(f"ds_write_b64 v{vLW}, v[{V_LA+4*q_+2}:{V_LA+4*q_+3}] offset:{q_*1024+512}", "LW"); bud -= 24
        nxt_ = min([need_at[q_[0]] for q_ in (kl, vl) if q_ and (q_[0][1] < 4 or sl >= gate)] + [10**6]) - sl
        if not fb_done and sl >= opt.get("fbslot", 13) and (nxt_ >= opt.get("fbgap", 20) or sl >= opt.get("fbmax", 29)):
            fb_done.append(sl); assert sl < b[0]
            if not FBE:
                A("s_cmp_eq_u32 s3, 0\n s_cbranch_scc0 L_skip2\n s_barrier"); bud -= 42
                A.label("L_skip2")
            A.vmem(f"buffer_store_dword v{vTAG}, v{vFB}, s[24:27], s18 offen sc1", "FB"); bud -= 8
        elif not pb_done and sl >= pollB_slot and (nxt_ >= opt.get("pollgap", 24) or sl >= chkB_slot - opt.get("pollmin", 18)):
            pb_done.append(sl)
            assert not late
            A.vmem(f"buffer_load_dword v{V_TMP}, v{vPB}, s[24:27], s60 offen sc1", "PB"); bud -= 8
            if not XSC1: A.vmem(f"buffer_load_dword v{V_TMP+1}, off, s[24:27], s37 sc1", "PB"); bud -= 8
        elif (kl or vl) and not hasw and sl not in bar_at:
            c_ = [q_[0] for q_ in (kl, vl) if q_ and ld_free(q_[0]) <= sl and need_at[q_[0]] - sl <= opt.get("maxlead", 70)]
            if c_:
                key = min(c_, key=lambda k: need_at[k])
                now = sum(max(32, c) for c in totcost)
                if pipe - now <= opt.get("qmax", 60) or need_at[key] - sl < opt.get("urg", 10):
                    (kl if key[0] == "K" else vl).pop(0)
                    ld(key); bud -= COST["l"]; ldlog.append((sl, key, need_at[key] - sl))
                    pipe = max(pipe, now) + (opt.get("kdur", 74) if key[0] == "K" else opt.get("vdur", 38))
        if sl == chkB_slot:
            A(f"v_cmp_eq_u32 vcc, s61, v{V_TMP}")
            if not XSC1: A(f"v_readfirstlane_b32 s37, v{V_TMP+1}")
            A(f"s_cmp_eq_u64 vcc, -1\n s_cbranch_scc0 L_bspin0")
            A.label("L_bok")
            OOL.label("L_bspin0"); OOL("s_mov_b32 s53, 0"); OOL.label("L_bspin")
            OOL(f"""
            buffer_load_dword v{V_TMP}, v{vPB}, s[24:27], s60 offen sc1
            s_add_u32 s53, s53, 1
            s_waitcnt vmcnt(0)
            v_cmp_eq_u32 vcc, s61, v{V_TMP}
            s_cmp_eq_u64 vcc, -1
            s_cbranch_scc1 L_bok
            s_cmp_lt_u32 s53, 0x100000
            s_cbranch_scc1 L_bspin
            s_branch L_bok
            """)
            A("s_mov_b32 s19, 0x4e800000")
            for x_ in late2: A(x_)
            bud -= 32
        if sl == opt.get("wbslot", -1):
            A("s_or_b32 s38, s35, s32\n s_cbranch_scc0 L_dowb"); A.label("L_nowb"); bud -= 8
            OOL.label("L_dowb"); OOL("buffer_wbl2 sc1\n s_branch L_nowb")
        if inloop and XTAG:
            if sl == send_slot:
                assert not extra
                stamp("send"); extra += tag_pack()
            if sl == xld_slot:
                assert not kl and not vl and all(lv_last[t[0]] + 1 < sl for t in tb) and sl > send_slot + 8
                tag_recv(A); bud -= 24
            if sl == xuse2:
                assert sl > b[n-1] + 4 and all(lv_last[t[0]] < sl for t in tb)
                stamp("xr")
                while extra: emit_extra(extra.pop(0)); bud -= 4
                tag_check(); bud -= 28; extra += tag_fin()
        elif inloop:
            if sl == send_slot:
                assert not extra
                stamp("send"); two_way(send_payload); bud -= 60
                if not XSC1: self_touch(); bud -= 8
            if sl == flag_slot:
                stamp("xack"); two_way(send_flag); bud -= 16
            if sl == xpoll_slot:
                A.vmem(f"buffer_load_dword v{V_TMP}, v{vXF}, s[24:27], s55 offen sc1", "XP"); bud -= 8
            if sl == xchk_slot:
                assert not kl and not vl and all(lv_last[t[0]] < sl for t in tb)
                stamp("xp"); xcheck(); recv_loads(); bud -= 50
            if sl == xuse_slot:
                assert sl > b[n-1] + 4
                stamp("xr"); extra += fin_pre()
        def vexp_step():
            nonlocal vi, vpart, bud
            key = vexp[vi]; src = V_VR + (key[1] % NVR)*8 + key[2]
            A(f"v_cvt_scalef32_pk_bf16_fp4 v{vereg[key]+vpart}, v{src}, 1.0 op_sel:[{vpart&1},{vpart>>1},0]")
            bud -= 4; vpart += 1
            if vpart == 4: vedone[key] = sl; vi += 1; vpart = 0
        def vexp_ok():
            if vi >= len(vexp): return False
            key = vexp[vi]; tag = ("VR", key[1], key[2]//2)
            return vefree[key] <= sl and tag not in A.vm and tag in issued
        def sm_next():
            nonlocal cur, ci
            while cur < n and ci >= len(items[cur]): cur += 1; ci = 0
            if cur >= n: return None
            kind, e, txt, info = items[cur][ci]
            if sl < sready[(cur, 0)]: return None
            if kind == "e" and e == 16 and sl < sready[(cur, 1)]: return None
            if kind == "c" and XTAG and cur == nfull + 1: assert not extra and sl > send_slot + 4
            rate = min(opt.get("smrate", 0.7), (wend[cur] - sready[(cur, 0)]) / 33.0)
            return wend[cur] - (32 - e) * rate
        def sm_step():
            nonlocal ci, bud
            kind, e, txt, info = items[cur][ci]
            A(txt); bud -= COST[kind]; ci += 1
            if kind == "c" and e % 8 == 0: pendw.append((cur, e//8 - 1)); newm.append((cur, e//8 - 1))
        newm = []
        def fill():
          nonlocal bud
          while True:
            ds_ = sm_next(); dv = None
            if vi < len(vexp):
                dl = firstuse[vexp[vi]] - 2 - (3 - vpart) * 0.25
                if vexp_ok(): dv = dl
                elif firstuse[vexp[vi]] - sl <= 2:
                    A.need([("VR", vexp[vi][1], vexp[vi][2]//2)])
                    assert vexp_ok(), ("cannot expand in time", sl, vexp[vi])
                    dv = dl
            cands = [(d, k) for d, k in ((ds_, "s"), (dv, "v")) if d is not None]
            if extra:
                if inloop and sl < send_slot: dx = b[nfull-1] + 10
                elif inloop and XTAG and sl < send_slot + 8: dx = send_slot + (27 - len(extra)) * opt.get("packrate", 0.12)
                else: dx = sl + 3
                cands.append((dx, "x"))
            if late: cands.append((8, "t"))
            if not cands: break
            d, k = min(cands)
            if d > sl:
                if bud <= 0: break
                if d > sl + opt.get("fitslack", 2) and k == "s" and COST[items[cur][ci][0]] > bud:
                    cands = [c for c in cands if c[1] != "s"]
                    if not cands: break
                    d, k = min(cands)
            if k == "s": sm_step()
            elif k == "v": vexp_step()
            elif k == "x": emit_extra(extra.pop(0)); bud -= 4
            else: A(late.pop(0)); bud -= 4
        fill()
        mcost = 0
        if pendm:
            r_, f_ = pendm[0]; blk_, qt_ = rounds[r_][f_//2]; tag = ("RV", blk_, f_ % 2)
            if tag in tdone and tag not in A.lg:
                pendm.pop(0)
                la = V_LA + 4*qt_; rv_ = rvreg[blk_] + 4*(f_ % 2); po_ = V_PO[r_ % 2] + 4*f_
                A(f"v_mfma_f32_16x16x32_bf16 v[{la}:{la+3}], v[{rv_}:{rv_+3}], v[{po_}:{po_+3}], {'v[%d:%d]' % (la, la+3) if qt_ in seenL else '0'}")
                seenL.add(qt_)
                if f_ >= 2 or rounds[r_][0][0] != rounds[r_][1][0]: rv_done[(blk_, f_ % 2)] = sl
                if f_ == 3:
                    for q_ in ([1] if r_ == nfull-1 else []) + ([0] if r_ == n-1 else []): pendl.append((sl + 1, q_))
                b0 = bud; bud = opt.get("mbud", 4); fill(); mcost = max(16, 16 - bud); bud = min(b0, 0) - mcost
        pendm += newm
        totcost.append(32 - bud)
    assert not kl and not vl
    if opt.get("verbose"):
        print("fb", fb_done, "pb", pb_done, "loads", " ".join(f"{s_}:{k_[0]}{k_[1]}.{k_[2]}(+{d_})" for s_, k_, d_ in ldlog), file=sys.stderr)
        print("slot costs:", totcost, "sum:", sum(totcost), "sum max(32,c):", sum(max(32, c) for c in totcost), file=sys.stderr)
    stamp("loopend")
    for x_ in extra: emit_extra(x_)
    if XTAG:
        if not inloop:
            for x_ in tag_pack(): emit_extra(x_)
        if not inloop or xld_slot >= nslots: A.need(["XS"]); tag_recv(A)
        if not inloop or xuse2 >= nslots:
            A.need(["XR"]); stamp("xr"); tag_check()
            for x_ in tag_fin(): A(x_)
    else:
        if not inloop:
            A("s_nop 7"); two_way(send_payload)
            if not XSC1: self_touch()
        if not inloop or flag_slot >= nslots: A.need(["XS"]); two_way(send_flag)
        if not inloop or xpoll_slot >= nslots: A.vmem(f"buffer_load_dword v{V_TMP}, v{vXF}, s[24:27], s55 offen sc1", "XP")
        if not inloop or xchk_slot >= nslots: A.need(["XP"]); xcheck(); recv_loads()
        if not inloop or xuse_slot >= nslots:
            A.need(["XR"]); stamp("xr")
            for x_ in fin_pre(): A(x_)
    if not opt.get("noslow"): A("s_and_b64 vcc, vcc, s[52:53]\n s_cmp_eq_u64 vcc, -1\n s_cbranch_scc0 L_slow")
    O = V_O0
    if not OARCH:
        O = V_S[n % 2]
        for i in range(16): A(f"v_accvgpr_read_b32 v{O+i}, a{A_O+i}")
    pk = V_PO[0]
    for bq in range(4):
        for a_ in range(4): A(f"v_fmac_f32 v{XR+4*a_+bq}, v{O+4*a_+bq}, v{V_TMP}")
    A.label("L_pack")
    for bq in range(4):
        A(f"v_cvt_pk_bf16_f32 v{pk+2*bq}, v{XR+bq}, v{XR+4+bq}")
        A(f"v_cvt_pk_bf16_f32 v{pk+2*bq+1}, v{XR+8+bq}, v{XR+12+bq}")
        if bq == 1: A(f"buffer_store_dwordx4 v[{pk}:{pk+3}], v{vOUT}, s[28:31], s56 offen {opt.get('ofl','')}")
    A(f"buffer_store_dwordx4 v[{pk+4}:{pk+7}], v{vOUT}, s[28:31], s56 offen offset:16 {opt.get('ofl','')}")
    A(f"""
    s_and_b32 s52, s57, 63
    s_cbranch_scc1 L_nobump
    s_add_u32 s52, s39, 1
    s_lshl_b32 s53, s33, 7
    v_mov_b32 v{V_TMP}, s52
    buffer_store_dword v{V_TMP}, v{vFB}, s[24:27], s53 offen
    """)
    A.label("L_nobump")
    if st:
        A("s_waitcnt vmcnt(0)")
        stamp("end")
        A(("" if rtdone else "s_memrealtime s[98:99]\n") + "s_waitcnt lgkmcnt(0)")
        A(f"s_lshl_b32 s50, s2, 2\n s_add_u32 s50, s50, s32\n s_lshl_b32 s51, s50, 7\n s_add_u32 s51, s51, {ST_OFF}")
        A("s_mov_b64 exec, 1")
        open("stampnames.txt", "w").write(" ".join(stl))
        for i in range(len(stl)):
            A(f"v_mov_b32 v10, s{64+2*i}\n v_mov_b32 v11, s{65+2*i}\n buffer_store_dwordx2 v[10:11], off, s[24:27], s51 offset:{8*i}\n s_nop 1")
        A(f"s_lshl_b32 s50, s50, 4\n s_add_u32 s50, s50, {RT_OFF}")
        A(f"v_mov_b32 v24, s96\n v_mov_b32 v25, s97\n v_mov_b32 v26, s98\n v_mov_b32 v27, s99\n buffer_store_dwordx4 v[24:27], off, s[24:27], s50")
    A.label("L_end")
    A("s_endpgm")
    S = OOL
    S.label("L_slow")
    S(f"""
    s_waitcnt vmcnt(0) lgkmcnt(0)
    s_mul_i32 s40, s33, {64*TILE}
    s_add_u32 s40, s40, {RB}
    v_add_u32 v{vK1}, 0x1000, v{vX}
    v_mov_b32 v40, 0xff800000
    s_mov_b32 s41, s40
    s_mov_b32 s42, 0
    """)
    def slow_qk():
        for s in range(8): S(f"buffer_load_dwordx4 a[{64+4*s}:{67+4*s}], v{vX if s < 4 else vK1}, s[24:27], s41 offen offset:{(s%4)*1024} sc1")
        S("s_waitcnt vmcnt(0)")
        for s in range(8): S(f"v_mfma_f32_32x32x16_bf16 v[24:39], a[{64+4*s}:{67+4*s}], a[{4*s}:{4*s+3}], {'0' if s == 0 else 'v[24:39]'}")
        S("s_nop 15")
    S.label("L_slow1")
    slow_qk()
    for i in range(8): S(f"v_max3_f32 v40, v{24+2*i}, v{25+2*i}, v40")
    S(f"""
    s_add_u32 s41, s41, {TILE}
    s_add_u32 s42, s42, 1
    s_cmp_lt_u32 s42, 64
    s_cbranch_scc1 L_slow1
    v_mov_b32 v41, v40
    s_nop 1
    v_permlane32_swap_b32 v40, v41
    v_max_f32 v40, v40, v41
    v_mov_b32 v42, 0
    v_and_b32 v43, 7, v{vLANE}
    v_bfe_u32 v44, v{vLANE}, 3, 2
    v_lshl_add_u32 v43, v43, 2, v44
    v_lshl_add_u32 v43, v{vW}, 5, v43
    v_lshlrev_b32 v43, 2, v43
    v_lshrrev_b32 v44, 5, v{vLANE}
    s_lshl_b32 s52, s33, 11
    v_lshl_add_u32 v44, v44, 2, s52
    v_lshl_add_u32 v43, v44, 9, v43
    v_lshlrev_b32 v44, 1, v44
    s_mov_b32 s41, s40
    s_mov_b32 s42, 0
    """)
    for i in range(16): S(f"v_mov_b32 v{XR+i}, 0")
    S.label("L_slow2")
    for g in range(4):
        S(f"global_load_dwordx2 v[{64+2*g}:{65+2*g}], v44, s[14:15] offset:{16*g}")
        S(f"global_load_dwordx2 v[{72+2*g}:{73+2*g}], v44, s[16:17] offset:{16*g}")
        for b_ in range(4): S(f"global_load_dword v{48+4*g+b_}, v43, s[12:13] offset:{512*b_}")
        S("v_add_u32 v43, 0x1000, v43")
    S("v_add_u32 v44, 64, v44")
    slow_qk()
    for i in range(16): S(f"v_sub_f32 v{24+i}, v{24+i}, v40")
    for i in range(16): S(f"v_exp_f32 v{24+i}, v{24+i}")
    for i in range(16): S(f"v_add_f32 v42, v42, v{24+i}")
    for i in range(8): S(f"v_cvt_pk_bf16_f32 v{80+i}, v{24+2*i}, v{25+2*i}")
    for i in range(8):
        S(f"""
        v_cvt_f32_i32 v{48+2*i}, v{48+2*i}
        v_cvt_f32_i32 v{49+2*i}, v{49+2*i}
        v_lshlrev_b32 v45, 16, v{72+i}
        v_and_b32 v46, 0xffff0000, v{72+i}
        v_sub_f32 v{48+2*i}, v{48+2*i}, v45
        v_sub_f32 v{49+2*i}, v{49+2*i}, v46
        v_lshlrev_b32 v45, 16, v{64+i}
        v_and_b32 v46, 0xffff0000, v{64+i}
        v_mul_f32 v{48+2*i}, v{48+2*i}, v45
        v_mul_f32 v{49+2*i}, v{49+2*i}, v46
        v_cvt_pk_bf16_f32 v{88+i}, v{48+2*i}, v{49+2*i}
        """)
    S(f"""
    s_nop 1
    v_mfma_f32_32x32x16_bf16 v[{XR}:{XR+15}], v[88:91], v[80:83], v[{XR}:{XR+15}]
    v_mfma_f32_32x32x16_bf16 v[{XR}:{XR+15}], v[92:95], v[84:87], v[{XR}:{XR+15}]
    s_add_u32 s41, s41, {TILE}
    s_add_u32 s42, s42, 1
    s_cmp_lt_u32 s42, 64
    s_cbranch_scc1 L_slow2
    v_mov_b32 v41, v42
    s_nop 15
    v_permlane32_swap_b32 v42, v41
    v_add_f32 v42, v42, v41
    v_rcp_f32 v42, v42
    s_nop 0
    """)
    for i in range(16): S(f"v_mul_f32 v{XR+i}, v{XR+i}, v42")
    S("s_branch L_pack")
    o = ["; generated by gen6.py\n", f"; @launch grid=(256,1,1) block=(256,1,1) lds={LDS_BYTES}\n", TARGET, A.text() + OOL.text(),
         ".fill 2048, 4, 0xBF800000\n", kd(KN, 512, sgpr=102, accum=256)]
    if opt.get("rep"):
        import reporter
        o[1] = f"; @launch kernel={KN} grid=(256,1,1) block=(256,1,1) lds={LDS_BYTES}\n; @launch kernel=rep_kernel grid=(1,1,1) block=(64,1,1) lds=0\n"
        o[4] = o[4] + reporter.text(opt["rep"], RT_OFF, ST_OFF, opt.get("repi", 0), opt.get("repk", 20))
        o.append(kd("rep_kernel", 32))
    return "".join(o)

if __name__ == "__main__":
    opt = {}
    out = sys.argv[1]
    for a_ in sys.argv[2:]:
        k, v = a_.split("=")
        try: v = int(v)
        except:
            try: v = float(v)
            except: pass
        opt[k] = v
    opt.setdefault("pad", 3328); opt.setdefault("ihook", 3); opt.setdefault("chk", 80)
    import hazcheck, subprocess, re, os
    t, n = hazcheck.fix(gen(opt))
    if opt.get("ihook"):
        sys.path.insert(0, "cdna_kernels")
        import cdna_launch as cl
        lines = t.split("\n")
        go = lines.index("L_go:"); endl = lines.index("L_pack:")
        for h in range(opt["ihook"]):
            probe = list(lines)
            for i in range(go + 1, endl):
                if probe[i].strip() and not probe[i].endswith(":"): probe[i] = f"LP_{i}:\n" + probe[i]
            txt = "\n".join(probe)
            for k in range(h, opt["ihook"]): txt = txt.replace("L_end:", f"L_hook{k}:\nL_end:")
            open("_p.s", "w").write(cl.with_harness_metadata(txt, KN, 14, launch_lists=True))
            subprocess.run(["clang", "-x", "assembler", "-target", "amdgcn-amd-amdhsa", "-mcpu=gfx950", "-c", "_p.s", "-o", "_p.o"], check=True)
            assert opt.get("pad") is not None
            sy = subprocess.run(["llvm-objdump", "-t", "_p.o"], capture_output=True, text=True).stdout
            ad = sorted((int(m.group(1), 16) + opt.get("textva", 0), int(m.group(2))) for m in re.finditer(r"^([0-9a-f]+) .* LP_(\d+)$", sy, re.M))
            page = ad[0][0] // 4096 + 1 + h
            cand = [i for a_, i in ad if a_ >= page * 4096 + opt.get("hookoff", 0)]
            if not cand:
                lines.insert(lines.index("L_end:") + 2, f"L_hook{h}:\n  s_branch L_warmed"); continue
            lines.insert(cand[0], f"L_hook{h}:"); lines.insert(cand[0] + 1, "  s_cbranch_execz L_warmed"); endl += 2
        t = "\n".join(lines)
    print("nops inserted:", n)
    open(out, "w").write(t)
```

```python
import sys, math, struct
from asmlib import *
from gen1 import Asm, f2u

KN = NAME + "_kernel"
TILE = 10240
BLK = 4 * TILE
RA = 1 << 20
RB = 4 << 20
X_OFF = 8 << 20
FA_OFF = 4096
FB_OFF = 8192
ST_OFF = 16 << 20
RT_OFF = 17 << 20
SCALE = math.log2(math.e) / math.sqrt(128.0)

LDS_K = 0
LDS_L = 9216
LDS_Q = LDS_L + 2048
LDS_T = LDS_Q + 16896
LDS_R = LDS_T + 8192
LDS_P = 49152
NPB = 3
LDS_BYTES = LDS_P + NPB * 16384
assert LDS_R + 12288 <= LDS_P

vT3, vW, vLANE, vK0, vK1, vV, vPW, vPR, vT, vLW, vLR, vOUT, vX, vT2 = 0, 1, 2, 3, 4, 5, 9, 10, 13, 14, 15, 16, 17, 18
vFB, V_L, V_TMP = 19, 20, 22
V_S = [24, 56]
V_PO = [88, 104]
COST = dict(l=8, r=4, w=20, e=8, a=4, c=4, bar=42)
A_Q = 0
A_K = [64, 96, 128]
A_P = 160
A_O = 208

def bitop(fn): return fn(0xF0, 0xCC, 0xAA) & 0xFF

def gen(opt):
    A = Asm()
    OOL = Asm()
    st = opt.get("stamps")
    stl = []; rtdone = []
    stsel = set(opt.get("st", "start,karg,issued,pre,ks,kconv,stored,mid,ackA,bar1,flagsA,mfma0,slot96,slot192,loopend,end").split(","))
    def stamp(name):
        if st and opt.get("rtst") == name and not rtdone:
            rtdone.append(1); A("s_memrealtime s[98:99]")
        if st and opt.get("rtst0") == name: A("s_memrealtime s[96:97]")
        if st and name in stsel and name not in stl:
            i = len(stl); stl.append(name); assert i < 16
            A(f"s_memtime s[{64+2*i}:{65+2*i}]")
    NVR = opt.get("nvr", 4 if opt.get("xtag", 1) else 3); NVE = opt.get("nve", 7); OARCH = opt.get("oarch", 1)
    V_VR = 120; V_VE = V_VR + NVR*8
    V_LV = [V_VE + NVE*4, V_VE + NVE*4 + 16]; V_RV = [V_LV[1] + 16, V_LV[1] + 24]
    V_LA = V_RV[1] + 8
    V_O0 = V_LA + 8
    vR, vR2, vR3 = V_L + 1, vPR + 3 + 100, 0
    V_END = V_O0 + (16 if OARCH else 0)
    vR2, vR3 = V_END, V_END + 1; V_END += 2
    if opt.get("xtag", 1):
        assert V_END <= 256 and OARCH
        vTAG, vPA, vPB = V_O0, V_O0+1, vOUT
        vXF = vXL = vXT = vLS = None
    else:
        assert V_END + 8 <= 256, V_END
        vTAG, vPB, vXF, vXL, vXT, vPA, vLS = V_END, V_END+1, V_END+2, V_END+3, V_END+4, V_END+5, V_END+6
    nfull = opt.get("nfull", 6); nsolo = 16 - 2*nfull; nblk = nfull + nsolo
    rounds = [[(r, 0), (r, 1)] for r in range(nfull)] + [[(nfull + 2*i, 0), (nfull + 2*i + 1, 0)] for i in range(nsolo//2)]
    n = len(rounds)
    nt = opt.get("ntfl", "")
    XTAG = opt.get("xtag", 1)
    XSC1 = opt.get("xsc1", 0) or XTAG
    if opt.get("pad") is not None:
        A.raw(f".text\n.p2align 12\n.fill {opt['pad']//4}, 4, 0xBF800000\n")
    A.raw(head(KN))
    A("""
    s_cmp_ge_u32 s2, 256
    s_cbranch_scc1 L_end
    s_load_dwordx16 s[4:19], s[0:1], 0
    s_load_dwordx2 s[22:23], s[0:1], 104
    s_getpc_b64 s[60:61]
    v_lshlrev_b32 v64, 5, v0
    """)
    A.vmem("global_load_dword v255, v64, s[60:61]", "cpf")
    stamp("start")
    if st: A("s_memrealtime s[96:97]")
    A(f"""
    s_and_b32 s52, s2, 7
    s_lshr_b32 s35, s2, 3
    s_lshl_b32 s57, s52, 5
    s_or_b32 s57, s57, s35
    s_lshl_b32 s53, s57, 14
    v_and_b32 v25, 7, v0
    v_lshrrev_b32 v26, 3, v0
    v_lshl_add_u32 v29, v25, 4, s53
    v_lshl_add_u32 v28, v26, 9, v29
    v_and_b32 v24, 7, v26
    v_lshrrev_b32 v{vW}, 6, v0
    v_lshl_add_u32 v29, v24, 11, v29
    v_lshl_add_u32 v29, v{vW}, 7, v29
    s_lshl_b32 s53, s57, 6
    v_lshl_add_u32 v27, v26, 1, s53
    s_waitcnt lgkmcnt(0)
    """)
    stamp("karg")
    if opt.get("tse", 1):
        A("s_and_b32 s53, s53, 0x3000\n v_lshl_add_u32 v70, v0, 4, s53")
        A.vmem(f"global_load_dwordx4 v[88:91], v70, s[14:15]", "TS")
        A.vmem(f"global_load_dwordx4 v[92:95], v70, s[16:17]", "TS")
    for i in range(4):
        A.vmem(f"global_load_dwordx4 v[{32+4*i}:{35+4*i}], v28, s[6:7] offset:{128*i} {nt}", "KR")
    A.vmem(f"global_load_ushort v30, v27, s[8:9] {nt}", "KR")
    A.vmem(f"global_load_ushort v31, v27, s[10:11] {nt}", "KR")
    def l_v():
        for m in range(4):
            A.vmem(f"global_load_dwordx4 v[{48+4*m}:{51+4*m}], v29, s[12:13] offset:{512*m} {nt}", "VRAW")
    if not opt.get("vlate"): l_v()
    A(f"""
    v_readfirstlane_b32 s32, v{vW}
    v_and_b32 v{vLANE}, 63, v0
    s_lshr_b32 s33, s52, 1
    s_lshl_b32 s53, s33, 7
    s_load_dword s39, s[22:23], s53
    s_load_dwordx2 s[20:21], s[0:1], 88
    s_and_b32 s34, s52, 1
    s_lshl_b32 s59, s52, 8
    s_add_u32 s59, s59, {FA_OFF}
    s_and_b32 s36, s35, 1
    s_mov_b32 s24, s22
    s_and_b32 s25, s23, 0xffff
    s_mov_b32 s26, 0x10000000
    s_mov_b32 s27, 0x20000
    s_mul_i32 s58, s57, {TILE}
    s_add_u32 s58, s58, {RA}
    s_lshl_b32 s54, s2, 2
    s_add_u32 s54, s54, s32
    s_lshl_b32 s54, s54, 13
    s_add_u32 s54, s54, {X_OFF}
    """)
    stamp("issued")
    KF = -math.log2(10000.0) / 64
    def trig(idx, mul, pos, nn, t, P1, P2):
        A(f"""
        v_cvt_f32_u32 v{t}, v{idx}
        v_mul_f32 v{t}, {hex(f2u(KF*mul))}, v{t}
        v_exp_f32 v{t}, v{t}
        v_cvt_f32_u32 v{t+1}, v{pos}
        v_mul_f32 v{t}, v{t}, v{t+1}
        """)
        cst = [10000.0 ** (-(j % (nn//2) + 32*(j // (nn//2))) / 64.0) / (2*math.pi) for j in range(nn)]
        A(f"v_mul_f32 v{P2}, {hex(f2u(cst[0]))}, v{t}")
        for j in range(nn):
            A(f"v_cos_f32 v{t+2+2*(j%2)}, v{P2+j}")
            if j + 1 < nn: A(f"v_mul_f32 v{P2+j+1}, {hex(f2u(cst[j+1]))}, v{t}")
            if j: A(f"v_cvt_pk_bf16_f32 v{P1+j-1}, v{t+2+2*((j-1)%2)}, v{t+3+2*((j-1)%2)}")
            A(f"v_sin_f32 v{t+3+2*(j%2)}, v{P2+j}")
            if j: A(f"v_cvt_pk_bf16_f32 v{P2+j-1}, v{t+3+2*((j-1)%2)}, v{t+2+2*((j-1)%2)}")
        j = nn - 1
        A(f"v_cvt_pk_bf16_f32 v{P1+j}, v{t+2+2*(j%2)}, v{t+3+2*(j%2)}")
        A(f"v_cvt_pk_bf16_f32 v{P2+j}, v{t+3+2*(j%2)}, v{t+2+2*(j%2)}")
    KP1, KP2, QP1, QP2 = 96, 104, 112, 128
    def w_trigK():
        A("v_bfe_u32 v150, v27, 1, 11")
        trig(25, 4, 150, 8, 144, KP1, KP2)
    def w_kaddr():
        A(f"""
        v_mul_u32_u24 v173, 144, v26
        v_lshl_add_u32 v173, v25, 4, v173
        v_lshl_add_u32 v174, v{vW}, 3, v25
        v_mul_u32_u24 v172, 144, v174
        v_lshl_add_u32 v172, v24, 4, v172
        v_lshlrev_b32 v174, 4, v174
        v_lshl_add_u32 v174, v24, 9, v174
        v_add_u32 v175, 0x1000, v174
        v_lshlrev_b32 v176, 3, v0
        v_add_u32 v176, 0x2000, v176
        v_bfe_i32 v177, v0, 4, 1
        v_and_b32 v177, 0x02020202, v177
        v_or_b32 v177, 0x05040100, v177
        v_mov_b32 v178, 0x11111111
        s_add_u32 s37, s58, {RB - RA}
        """)
    def l_pt():
        A(f"""
        s_mul_i32 s52, s32, 2560
        s_add_u32 s52, s52, s58
        v_lshl_add_u32 v65, v{vLANE}, 7, s52
        v_mov_b32 v66, s59
        v_cmp_gt_u32 vcc, {opt.get("ptl", 0)}, v{vLANE}
        {"" if XTAG else "s_add_u32 s52, s54, 4352"}
        {"" if XTAG else "v_writelane_b32 v66, s52, 20"}
        {"s_add_u32 s52, s54, 6144" if opt.get("tlb", 0) & 1 else ""}
        {"v_writelane_b32 v66, s52, 21" if opt.get("tlb", 0) & 1 else ""}
        {"s_add_u32 s52, s58, %d" % (RB - RA) if opt.get("tlb", 0) & 2 else ""}
        {"v_writelane_b32 v66, s52, 22" if opt.get("tlb", 0) & 2 else ""}
        v_cndmask_b32 v65, v66, v65, vcc
        """)
        A.vmem(f"buffer_load_dword v254, v65, s[24:27], 0 offen {opt.get('ptfl', '')}", "PT")
    def l_cpf2():
        NCL = opt.get("ncl", 128)
        A(f"""
        v_min_u32 v64, {NCL//32 - 1}, v{vLANE}
        v_lshl_add_u32 v64, v64, 2, v{vW}
        s_and_b32 s53, s35, 7
        s_add_u32 s53, s53, 64
        v_lshl_add_u32 v64, v64, 3, s53
        v_lshlrev_b32 v64, 7, v64
        """)
        A.vmem(f"global_load_dword v255, v64, s[60:61]", "cpf")
    def w_qaddr():
        A(f"""
        s_lshr_b32 s52, s32, 1
        s_xor_b32 s53, s57, s52
        s_lshl_b32 s53, s53, 5
        v_bfe_u32 v66, v0, 2, 5
        v_and_b32 v71, 3, v0
        v_add_u32 v67, s53, v66
        v_lshlrev_b32 v68, 8, v67
        v_lshl_add_u32 v68, v71, 4, v68
        v_and_b32 v67, 2047, v67
        s_mul_i32 s52, s52, 8448
        v_mul_u32_u24 v180, 1056, v71
        v_lshl_add_u32 v180, v66, 4, v180
        v_add_u32 v180, s52, v180
        """)
    def l_q():
        for k in range(0 if opt.get("noq") else 4):
            A.vmem(f"global_load_dwordx4 v[{72+4*k}:{75+4*k}], v68, s[4:5] offset:{64*k} {opt.get('qfl', '')}", "QR")
    def l_ts():
        A("s_lshl_b32 s53, s33, 12\n v_lshl_add_u32 v70, v0, 4, s53")
        A.vmem(f"global_load_dwordx4 v[88:91], v70, s[14:15]", "TS")
        A.vmem(f"global_load_dwordx4 v[92:95], v70, s[16:17]", "TS")
    def w_trigQ():
        trig(71, 8, 67, 16, 144, QP1, QP2)
    def w_blk():
        A(f"""
        s_lshl_b32 s52, s34, 3
        s_lshl_b32 s53, s36, 2
        s_add_u32 s18, s52, s53
        s_xor_b32 s52, s52, 8
        s_mul_i32 s53, s36, {nfull-4}
        s_add_u32 s19, s52, s53
        s_add_u32 s3, s52, {2*(nfull-4)}
        v_lshlrev_b32 v179, 5, v0
        v_lshrrev_b32 v171, 1, v0
        v_mul_u32_u24 v171, 96, v171
        v_and_b32 v170, 1, v0
        v_lshl_add_u32 v171, v170, 3, v171
        v_add_u32 v171, {LDS_R}, v171
        v_bfe_u32 v157, v0, 4, 1
        v_bfe_u32 v158, v0, 1, 3
        v_cmp_eq_u32 vcc, v157, v158
        v_bfe_u32 v157, v0, 5, 3
        v_and_b32 v158, 1, v157
        v_cndmask_b32 v170, 2, v170, vcc
        v_mul_u32_u24 v158, 48, v158
        v_lshl_add_u32 v158, v170, 4, v158
        v_mul_u32_u24 v157, 192, v{vW}
        v_add_u32 v158, v158, v157
        s_mul_i32 s52, s18, 768
        v_add_u32 v{vR}, s52, v158
        s_mul_i32 s52, s19, 768
        v_add_u32 v{vR2}, s52, v158
        s_mul_i32 s52, s3, 768
        v_add_u32 v{vR3}, s52, v158
        v_lshrrev_b32 v151, 5, v{vLANE}
        v_lshlrev_b32 v152, 4, v151
        v_lshl_add_u32 v152, v{vW}, 7, v152
        s_lshl_b32 s52, s18, 9
        v_add_u32 v{vT}, s52, v152
        s_lshl_b32 s52, s19, 9
        v_add_u32 v{vT2}, s52, v152
        v_cmp_eq_u32 vcc, 0, v0
        s_lshl_b32 s52, s33, 4
        """)
        for src, reg, b0, b1 in (("s18", RB if opt.get("noa", 1) else RA, 0, 4), ("s19", RB, 4, nfull), ("s3", RB, nfull, nblk)):
            if b1 > b0:
                A(f"s_add_u32 s53, s52, {src}\n s_mul_i32 s53, s53, {BLK}")
                for b_ in range(b0, b1): A(f"s_add_u32 s{42+b_}, s53, {reg + (b_-b0)*BLK}")
        A(f"""
        v_bfrev_b32 v153, 4
        v_cndmask_b32 v{vFB}, v153, 0, vcc
        s_lshl_b32 s53, s36, 6
        v_and_b32 v154, 15, v{vLANE}
        v_lshl_add_u32 v{vPA}, v154, 2, s53
        v_lshlrev_b32 v{vX}, 4, v{vLANE}
        v_lshl_add_u32 v23, v151, 4, v{vX}
        s_mul_i32 s52, s32, {TILE}
        v_add_u32 v{vK0}, s52, v{vX}
        v_add_u32 v{vK1}, 0x1000, v{vK0}
        s_getreg_b32 s41, hwreg(HW_REG_XCC_ID, 0, 4)
        """)
    def w_vaddr():
        A(f"""
        v_lshl_add_u32 v155, v151, 3, v25
        v_bfe_u32 v156, v{vLANE}, 3, 2
        v_lshl_add_u32 v155, v156, 4, v155
        v_lshlrev_b32 v155, 3, v155
        v_lshl_add_u32 v155, v{vW}, 9, v155
        v_add_u32 v156, {LDS_P}, v{vX}
        """)
        for i in range(4):
            A(f"s_add_u32 s52, s32, {i}\n s_and_b32 s52, s52, 3\n s_lshl_b32 s53, s52, 12\n v_add_u32 v{vPW+i}, s53, v156")
            A(f"s_mul_i32 s52, s52, {TILE}\n s_add_u32 s52, s52, 8192\n v_add_u32 v{vV+i}, s52, v155")
    late = []
    late2 = []; late3 = []
    def w_late():
        L_ = f"""
        {"v_lshlrev_b32 v%d, 6, v%d" % (vPB, vLANE) if opt.get("chk") else "v_and_b32 v%d, 15, v%d" % (vPB, vLANE)}
        {"" if opt.get("chk") else "v_lshl_add_u32 v%d, v%d, 4, v%d" % (vPB, vW, vPB)}
        {"" if opt.get("chk") else "v_lshlrev_b32 v%d, 6, v%d" % (vPB, vPB)}
        v_and_b32 v{vLR}, 31, v{vLANE}
        v_lshlrev_b32 v{vLR}, 5, v{vLR}
        v_lshlrev_b32 v{vLW}, 5, v{vLANE}
        v_lshl_add_u32 v{vLW}, v{vW}, 3, v{vLW}
        v_cmp_gt_u32 vcc, 16, v{vLANE}
        v_add_u32 v{V_TMP}, {LDS_L}, v{vLW}
        s_nop 0
        v_cndmask_b32 v{vLW}, v{vLW}, v{V_TMP}, vcc
        s_sub_u32 s38, 2, s36
        s_mul_i32 s38, s38, {(nfull-4)*512}
        v_add_u32 v{vT3}, s38, v{vT2}
        s_xor_b32 s55, s54, 0x40000
        s_lshl_b32 s56, s57, 13
        s_lshl_b32 s38, s32, 6
        s_add_u32 s56, s56, s38
        s_mov_b32 s28, s20
        s_and_b32 s29, s21, 0xffff
        s_mov_b32 s30, 0x200000
        s_mov_b32 s31, 0x20000
        """
        if not XTAG: L_ += f"""
        s_xor_b32 s37, s35, 1
        s_lshl_b32 s37, s37, 2
        s_add_u32 s37, s37, s59
        v_lshrrev_b32 v{vXL}, 3, v{vLR}
        v_add_u32 v{vXL}, 4096, v{vXL}
        v_mov_b32 v{vXF}, 4352
        v_min_u32 v{vXT}, 32, v{vLANE}
        v_lshlrev_b32 v{vXT}, 7, v{vXT}
        """
        late.extend(x.strip() for x in L_.split("\n") if x.strip())
        if not opt.get("otr", 1): late2.extend([f"v_and_b32 v{vOUT}, 32, v{vLANE}", f"v_lshl_add_u32 v{vOUT}, v{vLR}, 3, v{vOUT}"])
        else:
            late3.extend([f"v_and_b32 v{vT}, 31, v{vLANE}", f"v_lshl_add_u32 v{vT}, v{vW}, 5, v{vT}", f"v_mul_u32_u24 v{vT}, 80, v{vT}",
                          f"v_and_b32 v{vOUT}, 32, v{vLANE}", f"v_add_u32 v{vT}, v{vT}, v{vOUT}",
                          f"v_lshrrev_b32 v{vOUT}, 2, v{vLANE}", f"v_lshl_add_u32 v{vT2}, v{vW}, 5, v{vOUT}", f"v_mul_u32_u24 v{vT2}, 80, v{vT2}",
                          f"v_and_b32 v{vR}, 48, v{vX}", f"v_add_u32 v{vT2}, v{vT2}, v{vR}", f"v_lshl_add_u32 v{vOUT}, v{vOUT}, 8, v{vR}"])
    def w_tables():
        A.need(["TS"])
        x = 184
        for k in range(4):
            A(f"v_lshlrev_b32 v{x+2*k}, 16, v{88+k}\n v_and_b32 v{x+2*k+1}, 0xffff0000, v{88+k}")
        A("s_mov_b32 s52, 0x3fc03fc0")
        ex = ["v_xor_b32 v92, s52, v92", "v_xor_b32 v93, s52, v93", "v_xor_b32 v94, s52, v94", "v_xor_b32 v95, s52, v95",
              "v_or3_b32 v92, v92, v93, v94", "v_or_b32 v92, v92, v95", "v_mov_b32 v95, 0x7fc00000", "v_cmp_eq_u32 s[52:53], 0, v92"]
        for k in range(8): A(f"v_log_f32 v{192+k}, v{x+k}\n {ex[k]}")
        ex = ["v_max3_f32 v93, |v192|, |v193|, |v194|", "v_max3_f32 v94, |v195|, |v196|, |v197|", "v_max3_f32 v93, |v198|, |v199|, v93", "v_max_f32 v93, v93, v94",
              "v_cmp_gt_f32 vcc, 0x41f00000, v93", "s_nop 0", "s_and_b64 vcc, vcc, s[52:53]", "s_nop 0"]
        A(f"v_rcp_f32 v200, v{x}")
        A.ds(f"ds_write_b128 v179, v[192:195] offset:{LDS_T}", "QW"); A.ds(f"ds_write_b128 v179, v[196:199] offset:{LDS_T+16}", "QW")
        for k in range(1, 8): A(f"{ex[k-1]}\n v_rcp_f32 v{200+k}, v{x+k}")
        A("v_cndmask_b32 v200, v95, v200, vcc")
        for k in range(4): A(f"v_cvt_pk_bf16_f32 v{184+k}, v{200+2*k}, v{201+2*k}")
        A("v_mov_b32 v92, 0\n v_mov_b32 v93, 0")
        for k in range(4):
            A(f"v_lshlrev_b32 v94, 16, v{184+k}\n v_and_b32 v95, 0xffff0000, v{184+k}\n v_sub_f32 v94, v{200+2*k}, v94\n v_sub_f32 v95, v{201+2*k}, v95\n v_cvt_pk_bf16_f32 v{188+k}, v94, v95")
        A.ds("ds_write2_b64 v171, v[184:185], v[188:189] offset0:0 offset1:2", "QW")
        A.ds("ds_write2_b64 v171, v[186:187], v[190:191] offset0:6 offset1:8", "QW")
        A.ds("ds_write2_b64 v171, v[92:93], v[92:93] offset0:4 offset1:10", "QW")
    def w_qrope():
        A.need(["QR"])
        A("s_mov_b32 s52, 0x05040100\n s_mov_b32 s53, 0x07060302")
        x = 32
        for k in range(8):
            A(f"v_perm_b32 v{x+2*k}, v{80+k}, v{72+k}, s52\n v_perm_b32 v{x+2*k+1}, v{80+k}, v{72+k}, s53")
        for half in range(2):
            js = [4*half + t for t in range(4)] + [8 + 4*half + t for t in range(4)]
            y = 224 - 32 + 16*half
            for t, j in enumerate(js): A(f"v_dot2_f32_bf16 v{y+t}, v{x+j}, v{QP1+j}, 0 neg_hi:[0,1,0]")
            for t, j in enumerate(js): A(f"v_dot2_f32_bf16 v{y+8+t}, v{x+j}, v{QP2+j}, 0")
        for half in range(2):
            y = 224 - 32 + 16*half; zz = 72 + 8*half
            for k in range(8): A(f"v_cvt_pk_bf16_f32 v{zz+k}, v{y+2*k}, v{y+2*k+1}")
            A.ds(f"ds_write_b128 v180, v[{zz}:{zz+3}] offset:{LDS_Q + 528*half}", "QW")
            A.ds(f"ds_write_b128 v180, v[{zz+4}:{zz+7}] offset:{LDS_Q + 528*half + 8*528}", "QW")
    def w_staddr():
        A(f"""
        v_lshlrev_b32 v159, 7, v{vW}
        v_lshl_add_u32 v159, v{vLANE}, 9, v159
        v_and_b32 v64, 3, v{vLANE}
        v_lshl_add_u32 v64, v{vW}, 2, v64
        v_cmp_gt_u32 vcc, 16, v{vLANE}
        v_lshlrev_b32 v64, 7, v64
        v_add_u32 v64, 0x2000, v64
        v_cndmask_b32 v159, v64, v159, vcc
        """)
    def w_otlb():
        A("s_lshl_b32 s52, s57, 13\n v_mov_b32 v64, s52\n s_waitcnt lgkmcnt(0)"); A.lg = []
        A.vmem("global_load_dword v255, v64, s[20:21]", "cpf")
    def w_flush():
        for l_ in late: A(l_)
        late.clear()
    def w_warm():
        if opt.get("ihook"):
            A("s_mov_b64 exec, 0")
            for i in range(opt["ihook"]): A(f"s_cmp_eq_u32 s32, {i}\n s_cbranch_scc1 L_hook{i}")
            A.label("L_warmed"); A("s_mov_b64 exec, -1")
    W = dict(trigK=w_trigK, kaddr=w_kaddr, pt=l_pt, cpf2=l_cpf2, q=l_q, qaddr=w_qaddr, ts=l_ts, trigQ=w_trigQ, blk=w_blk, vaddr=w_vaddr,
             tables=w_tables, qrope=w_qrope, flush=w_flush, otlb=w_otlb, staddr=w_staddr, v=l_v, warm=w_warm)
    def run(seq):
        for x_ in seq.split("."):
            if x_: W[x_](); stamp(x_)
    w_late()
    run(opt.get("o1", "pt.trigK.kaddr.cpf2.qaddr.trigQ.blk.q"))
    stamp("pre")
    A.need(["KR"])
    stamp("ks")
    A(f"v_lshlrev_b32 v30, 16, v30\n v_lshlrev_b32 v31, 16, v31\n v_mul_f32 v30, {hex(f2u(SCALE))}, v30\n v_mul_f32 v31, v31, v30")
    for j in range(16): A(f"v_cvt_f32_i32 v{32+j}, v{32+j}")
    for j in range(16): A(f"v_fma_f32 v{32+j}, v{32+j}, v30, -v31")
    for j in range(8): A(f"v_cvt_pk_bf16_f32 v{32+j}, v{32+j}, v{40+j}")
    for j in range(8): A(f"v_dot2_f32_bf16 v{KP1+j}, v{32+j}, v{KP1+j}, 0 neg_hi:[0,1,0]")
    for j in range(8): A(f"v_dot2_f32_bf16 v{KP2+j}, v{32+j}, v{KP2+j}, 0")
    for p in range(4): A(f"v_cvt_pk_bf16_f32 v{40+p}, v{KP1+2*p}, v{KP1+2*p+1}")
    A("s_waitcnt lgkmcnt(0)"); A.lg = []
    A.ds("ds_write_b128 v172, v[40:43]", "KT")
    for p in range(4): A(f"v_cvt_pk_bf16_f32 v{44+p}, v{KP2+2*p}, v{KP2+2*p+1}")
    A.ds("ds_write_b128 v172, v[44:47] offset:4608", "KT")
    A.ds("ds_read_b128 v[160:163], v173", "KT2")
    A.ds("ds_read_b128 v[164:167], v173 offset:4608", "KT2")
    stamp("kconv")
    NOA = opt.get("noa", 1)
    sa = "s37 offen sc1" if NOA else "s58 offen"
    if opt.get("kfirst"):
        A.need(ltags=["KT2"])
        A.vmem(f"buffer_store_dwordx4 v[160:163], v174, s[24:27], {sa}", "SA")
        A.vmem(f"buffer_store_dwordx4 v[164:167], v175, s[24:27], {sa}", "SA")
        run(opt.get("o1b", ""))
    A.need(["VRAW"])
    for c in range(4): A(f"v_lshl_or_b32 v{48+c}, v{52+c}, 4, v{48+c}")
    for c in range(4): A(f"v_lshl_or_b32 v{56+c}, v{60+c}, 4, v{56+c}")
    for c in range(4): A(f"v_lshl_or_b32 v{48+c}, v{56+c}, 8, v{48+c}")
    A("v_lshl_or_b32 v48, v49, 16, v48\n v_lshl_or_b32 v49, v51, 16, v50")
    A("s_mov_b32 s52, 0x22222222\n s_mov_b32 s53, 0x88888888")
    A("v_permlane32_swap_b32 v48, v49")
    A("v_mov_b32 v50, v48\n v_mov_b32 v51, v49")
    A.need(ltags=["KT2"])
    if not opt.get("kfirst"):
        A.vmem(f"buffer_store_dwordx4 v[160:163], v174, s[24:27], {sa}", "SA")
        A.vmem(f"buffer_store_dwordx4 v[164:167], v175, s[24:27], {sa}", "SA")
    A("v_permlane16_swap_b32 v48, v50\n v_permlane16_swap_b32 v49, v51")
    A("v_perm_b32 v168, v50, v48, v177\n v_perm_b32 v169, v51, v49, v177")
    t1 = bitop(lambda a, b, c: ~(a ^ b) & c); t2 = bitop(lambda a, b, c: (~a & b) | c)
    for r in (168, 169):
        A(f"v_lshlrev_b32 v55, 1, v{r}\n v_lshlrev_b32 v56, 2, v{r}")
        A(f"v_bitop3_b32 v55, v{r}, v55, s52 bitop3:{hex(t1)}")
        A(f"v_bitop3_b32 v56, v56, s53, v178 bitop3:{hex(t2)}")
        A(f"v_or_b32 v{r}, v55, v56")
    A.vmem(f"buffer_store_dwordx2 v[168:169], v176, s[24:27], {sa}", "SA")
    run(opt.get("o2", ""))
    def st_b():
        if NOA: return
        A.vmem("buffer_store_dwordx4 v[160:163], v174, s[24:27], s37 offen sc1", "SB")
        A.vmem("buffer_store_dwordx4 v[164:167], v175, s[24:27], s37 offen sc1", "SB")
        A.vmem("buffer_store_dwordx2 v[168:169], v176, s[24:27], s37 offen sc1", "SB")
    W["sb"] = st_b
    if not opt.get("sbl", 1): st_b()
    stamp("stored")
    run(opt.get("o3", "staddr.vaddr.tables.flush"))
    A(f"""
    s_mul_i32 s40, s39, 0x9E3779B1
    s_add_u32 s40, s40, 0x7F4A7C15
    s_and_b32 s40, s40, 0xfffffff0
    s_or_b32 s62, s40, s41
    s_lshl_b32 s63, s35, 2
    s_add_u32 s63, s63, s59
    v_mov_b32 v24, s62
    s_or_b32 s61, s40, 8
    s_lshl_b32 s18, s57, 6
    s_add_u32 s18, s18, {FB_OFF}
    v_mov_b32 v{vTAG}, s61
    """)
    FBE = 2
    stamp("mid")
    A.need(["SA"])
    stamp("ackA")
    if opt.get("stch", 1) == 1: A.vmem(f"buffer_load_dword v254, v159, s[24:27], s37 offen sc1", "ST")
    A("s_barrier")
    A.vmem(f"buffer_store_dword v24, v{vFB}, s[24:27], s63 offen", "FA")
    if opt.get("fb0", 1): A.vmem(f"buffer_store_dword v{vTAG}, v{vFB}, s[24:27], s18 offen sc1", "FB")
    if opt.get("stch", 1) == 2: A.vmem(f"buffer_load_dword v254, v159, s[24:27], s37 offen sc1", "ST")
    stamp("bar0")
    run(opt.get("o3b", "sb.qrope"))
    A(f"""
    buffer_load_dword v26, v{vPA}, s[24:27], s59 offen sc1
    s_lshl_b32 s60, s33, 12
    s_add_u32 s60, s60, {FB_OFF}
    s_mov_b32 s3, 0
    s_mov_b32 s19, 0
    """)
    run(opt.get("o5", "warm"))
    A.label("L_pollA")
    A(f"""
    s_waitcnt vmcnt(0)
    v_cmp_eq_u32 vcc, s62, v26
    s_cmp_eq_u64 vcc, -1
    s_cbranch_scc0 L_pollA_more
    """)
    A.vm = []
    stamp("flagsA")
    OOL.label("L_pollA_more")
    OOL(f"""
    buffer_load_dword v26, v{vPA}, s[24:27], s59 offen sc1
    s_add_u32 s19, s19, 1
    s_cmp_lt_u32 s19, {opt.get("tmo", 64)}
    s_cbranch_scc1 L_pollA
    s_waitcnt vmcnt(0)
    s_waitcnt lgkmcnt(0)
    s_barrier
    buffer_store_dword v{vTAG}, v{vFB}, s[24:27], s18 offen sc1
    v_lshlrev_b32 v27, 4, v{vPA}
    s_lshl_b32 s52, s34, 11
    v_add_u32 v27, s52, v27
    s_mov_b32 s53, 0
    """)
    OOL.label("L_pollB0")
    OOL(f"""
    buffer_load_dword v26, v27, s[24:27], s60 offen sc1
    s_add_u32 s53, s53, 1
    s_waitcnt vmcnt(0)
    v_cmp_eq_u32 vcc, s61, v26
    s_cmp_eq_u64 vcc, -1
    s_cbranch_scc1 L_pollB0_ok
    s_sleep 4
    s_cmp_lt_u32 s53, 0x100000
    s_cbranch_scc1 L_pollB0
    """)
    OOL.label("L_pollB0_ok")
    for b_ in range(0 if opt.get("noa", 1) else 4): OOL(f"s_add_u32 s{42+b_}, s{42+b_}, {RB-RA}")
    OOL("s_mov_b32 s3, 1\n s_branch L_go")

    order = []
    for r in range(n):
        order.append(("QK", r))
        if r >= 1: order.append(("PV", r-1))
    order.append(("PV", n-1))
    mf = []; a = [0]*n; b = [0]*n
    for kind, r in order:
        if kind == "QK":
            a[r] = len(mf)
            if r < opt.get("smaj", 2):
                for s in range(8):
                    for u in range(2): mf.append(("QK", r, u, s))
            else:
                for u in range(2):
                    for s in range(8): mf.append(("QK", r, u, s))
        else:
            b[r] = len(mf)
            for kk in range(8):
                for u in range(2): mf.append(("PV", r, u, kk))
    nslots = len(mf)
    sready = {(m[1], m[2]): sl + 3 for sl, m in enumerate(mf) if m[0] == "QK"}
    q1last = {m[3]: sl for sl, m in enumerate(mf) if m[0] == "QK" and rounds[m[1]][m[2]][1] == 1}
    firstuse = {}; lastuse = {}
    for sl, m in enumerate(mf):
        blk = rounds[m[1]][m[2]][0]
        key = ("K" if m[0] == "QK" else "V", blk, m[3])
        firstuse.setdefault(key, sl); lastuse[key] = sl
    kbuf = {}; kfree = {}
    q1dead = a[nfull-1] + 15
    bases = list(A_K); hold = [None]*len(bases)
    if OARCH and opt.get("k4", 1): bases.append(224); hold.append(None)
    if nsolo: bases.append(A_Q + 32); hold.append("Q1")
    for blk in range(nblk):
        def rel(h): return -1 if h is None else (q1dead if h == "Q1" else lastuse[("K", h, 7)])
        i = min(range(len(bases)), key=lambda i: rel(hold[i]))
        for s in range(8):
            h = hold[i]
            kfree[(blk, s)] = -1 if h is None else (q1last[s] if h == "Q1" else lastuse[("K", h, s)])
        kbuf[blk] = bases[i]; hold[i] = blk
    def oreg(qt):
        if OARCH: return f"v[{V_O0}:{V_O0+15}]" if qt == 0 else f"a[{A_O}:{A_O+15}]"
        return f"a[{A_O+16*qt}:{A_O+16*qt+15}]"
    A_O1 = A_O if OARCH else A_O + 16
    vexp = sorted({k for k in firstuse if k[0] == "V"}, key=lambda k: firstuse[k])
    vereg = {k: V_VE + (i % NVE)*4 for i, k in enumerate(vexp)}
    vefree = {k: (-1 if i < NVE else lastuse[vexp[i-NVE]]) for i, k in enumerate(vexp)}
    vedone = {}
    barlead = opt.get("barlead", 2)
    gate = opt["chk"] + 1 if opt.get("chk") else b[opt.get("gater", 1)] - barlead
    kl = [("K", blk, s) for blk in range(nblk) for s in range(8)]
    vl = sorted([("VR", blk, i) for blk in range(nblk) for i in range(4)], key=lambda k: firstuse[("V", k[1], 2*k[2])])
    need_at = {k: firstuse[k] for k in kl}
    need_at.update({k: firstuse[("V", k[1], 2*k[2])] - opt.get("vneed", 20) for k in vl})
    for i in range(4): need_at[("VR", 0, i)] = opt.get("v0need", 26) + i
    for i in range(4): need_at[("VR", 1, i)] = max(need_at[("VR", 1, i)], opt.get("v1need", 56) + 2*i)
    issued = set()
    def ld_free(key):
        f = -1
        if key[0] == "K": f = kfree[(key[1], key[2])]
        elif key[1] >= NVR: f = vedone.get(("V", key[1]-NVR, 2*key[2]+1), 10**6)
        if key[1] >= 4: f = max(f, gate)
        return f
    def ld(key):
        k, blk, f = key
        issued.add(key)
        if k == "K":
            rg = kbuf[blk] + 4*f
            A.vmem(f"buffer_load_dwordx4 a[{rg}:{rg+3}], v{vK0 + f//4}, s[24:27], s{42+blk} offen offset:{(f%4)*1024}", key)
        else:
            rg = V_VR + (blk % NVR)*8 + 2*f
            A.vmem(f"buffer_load_dwordx2 v[{rg}:{rg+1}], v{vV+f}, s[24:27], s{42+blk} offen", key)
    tb = []
    for r in range(n):
        for u in range(2):
            if not tb or tb[-1][0] != rounds[r][u][0]: tb.append((rounds[r][u][0], r, u))
    lvreg = {blk: V_LV[i % 2] for i, (blk, _, _) in enumerate(tb)}
    rvreg = {blk: V_RV[i % 2] for i, (blk, _, _) in enumerate(tb)}
    lv_use = {blk: firstuse[("K", blk, 0)] for blk, _, _ in tb}
    lv_last = {blk: lastuse[("K", blk, 0)] for blk, _, _ in tb}
    rv_done = {}
    lvq = [("LV", blk, q, i) for i, (blk, r, u) in enumerate(tb) for q in range(4)]
    rvq = [("RV", blk, q, i) for i, (blk, r, u) in enumerate(tb) for q in range(2)]
    tdone = {}
    A.label("L_go")
    def qread(i):
        A.ds(f"ds_read_b128 a[{A_Q+4*i}:{A_Q+4*i+3}], v23 offset:{LDS_Q + (i//8)*8448 + (i%8)*1056}", ("Q", i//8, i%8))
    qord = [x for s_ in range(8) for x in (s_, 8+s_)] if opt.get("smaj", 2) else list(range(16))
    for _ in range(opt.get("npre0", 2)): ld(kl.pop(0))
    if opt.get("stch", 1) == 3: A.vmem(f"buffer_load_dword v254, v159, s[24:27], s37 offen sc1", "ST")
    A("s_cmp_eq_u32 s3, 0\n s_waitcnt lgkmcnt(0)\n s_cbranch_scc0 L_skip2\n s_barrier"); A.lg = []
    A.label("L_skip2")
    stamp("bar1")
    rd = [lambda q_=q_: A.ds(f"ds_read_b128 v[{V_LV[0]+4*q_}:{V_LV[0]+4*q_+3}], v{vT} offset:{LDS_T + q_*32}", ("LV", 0, q_)) for q_ in range(4)]
    rd += [lambda i=i: qread(i) for i in qord[:10]]
    for _ in range(opt.get("npre", 6) - opt.get("npre0", 2)):
        for _ in range(opt.get("gap0", 3)):
            if rd: rd.pop(0)()
        ld(kl.pop(0))
    while rd: rd.pop(0)()
    qrest = qord[10:]
    def tread(t, sl_):
        k, blk, q, i = t
        rg = (lvreg if k == "LV" else rvreg)[blk] + 4*q
        j_, rel_ = (0, blk) if blk < 4 else ((1, blk-4) if blk < nfull else (2, blk-nfull))
        if k == "LV": A.ds(f"ds_read_b128 v[{rg}:{rg+3}], v{(vT, vT2, vT3)[j_]} offset:{LDS_T + rel_*512 + q*32}", (k, blk, q))
        else: A.ds(f"ds_read_b128 v[{rg}:{rg+3}], v{(vR, vR2, vR3)[j_]} offset:{LDS_R + rel_*768 + q*96}", (k, blk, q))
        tdone[(k, blk, q)] = sl_
    for q_ in range(4): lvq.pop(0); tdone[("LV", 0, q_)] = -5
    wend = {r: b[r] - opt.get("smend", 5) - (opt.get("lx", 2) if r in (nfull-1, n-1) else 0) for r in range(n)}
    items = {}
    for r in range(n):
        S = V_S[r % 2]; PO = V_PO[r % 2]; L = []
        for e in range(33):
            if e < 32: L.append(("e", e, f"v_exp_f32 v{S+e}, v{S+e}", None))
            if e >= 2 and e % 2 == 0:
                L.append(("c", e, f"v_cvt_pk_bf16_f32 v{PO + (e-2)//2}, v{S+e-2}, v{S+e-1}", None))
        items[r] = L
    cur = 0; ci = 0; pendw = []; nw = {r: 0 for r in range(n)}
    pendm = []; seenL = set(); pendl = []; lwr = set()
    bar_at = {b[r] - barlead: r for r in range(n)}
    prq = [(r, kk, u, (kk-2)*2+u) for r in range(n) for kk in range(2, 8) for u in range(2)]
    prdone = set(); lastw = -10
    send_slot = b[nfull-1] + 16 + 2
    inloop = send_slot + 6 < nslots
    flag_slot = send_slot + opt.get("flagdelay", 16)
    xpoll_slot = flag_slot + opt.get("xpolldelay", 10)
    xchk_slot = xpoll_slot + opt.get("xchkdelay", 8)
    xuse_slot = xchk_slot + opt.get("xusedelay", 8)
    pollB_slot = opt.get("pollslot", 44); chkB_slot = opt.get("chk") or gate - opt.get("chklead", 3)
    XR = V_LV[0]
    def operands(m):
        blk = rounds[m[1]][m[2]][0]
        if m[0] == "QK":
            lt = [("Q", rounds[m[1]][m[2]][1], m[3])]
            if m[3] == 0: lt += [("LV", blk, q) for q in range(4)]
            return [("K", blk, m[3])], lt
        return [], [("PR", m[1], m[3], m[2])]
    def lsum(t_, dst):
        return [f"v_add_f32 v{t_}, v{t_}, v{t_+1}", f"v_add_f32 v{t_+2}, v{t_+2}, v{t_+3}", f"v_add_f32 v{t_+4}, v{t_+4}, v{t_+5}", f"v_add_f32 v{t_+6}, v{t_+6}, v{t_+7}",
                f"v_add_f32 v{t_}, v{t_}, v{t_+2}", f"v_add_f32 v{t_+4}, v{t_+4}, v{t_+6}", f"v_add_f32 v{dst}, v{t_}, v{t_+4}"]
    LT = [0, 0]
    uid = [0]
    def two_way(fn):
        if XSC1: fn(A, "sc1"); return
        uid[0] += 1; u_ = uid[0]
        A(f"s_cmp_eq_u32 s37, s62\n s_cbranch_scc0 L_far{u_}")
        fn(A, ""); A.label(f"L_join{u_}")
        OOL.label(f"L_far{u_}"); fn(OOL, "sc1"); OOL.vm = []; OOL(f"s_branch L_join{u_}")
    def send_payload(B, fl):
        for i in range(4):
            o = A_O1 + 4*i
            B.vmem(f"buffer_store_dwordx4 a[{o}:{o+3}], v{vX}, s[24:27], s54 offen offset:{i*1024} {fl}", "XS")
        B.vmem(f"buffer_store_dword v{vLS}, v{vXL}, s[24:27], s54 offen {fl}", "XS")
    def send_flag(B, fl):
        B.vmem(f"buffer_store_dword v{vTAG}, v{vXF}, s[24:27], s54 offen {fl}", "XF")
    def self_touch():
        if opt.get("selft", 1): A.vmem(f"buffer_load_dword v{vPB}, v{vXT}, s[24:27], s54 offen sc1", "ST")
    def recv_loads():
        A.vmem(f"buffer_load_dword v{XR+16}, v{vXL}, s[24:27], s55 offen sc1", "XR")
        for i in range(4):
            A.vmem(f"buffer_load_dwordx4 v[{XR+4*i}:{XR+4*i+3}], v{vX}, s[24:27], s55 offen offset:{i*1024} sc1", "XR")
    def xcheck():
        A(f"v_cmp_eq_u32 vcc, s61, v{V_TMP}\n s_cbranch_vccz L_xspin0")
        A.label("L_xok")
        OOL.label("L_xspin0"); OOL("s_mov_b32 s53, 0"); OOL.label("L_xspin")
        OOL(f"""
        buffer_load_dword v{V_TMP}, v{vXF}, s[24:27], s55 offen sc1
        s_add_u32 s53, s53, 1
        s_waitcnt vmcnt(0)
        v_cmp_eq_u32 vcc, s61, v{V_TMP}
        s_cbranch_vccnz L_xok
        s_cmp_lt_u32 s53, 0x100000
        s_cbranch_scc1 L_xspin
        s_branch L_xok
        """)
    def fin_pre():
        L_ = [f"v_add_f32 v{V_L}, v{V_L}, v{XR+16}", f"v_rcp_f32 v{V_TMP}, v{V_L}",
              f"v_cmp_lt_f32 vcc, 0x30800000, v{V_L}", f"v_cmp_gt_f32 s[52:53], s19, v{V_L}"]
        L_ += [f"v_mul_f32 v{XR+i}, v{XR+i}, v{V_TMP}" for i in range(16)]
        return L_
    XB = V_PO[(nfull-1) % 2]
    XL = V_LV[1]
    def xpos(k): return k + k//3
    def tag_pack():
        L_ = []
        for k in range(8):
            L_ += [f"v_accvgpr_read_b32 v{V_TMP}, a{A_O1+2*k}", f"v_accvgpr_read_b32 v{V_TMP+1}, a{A_O1+2*k+1}",
                   f"v_cvt_pk_bf16_f32 v{XB+xpos(k)}, v{V_TMP}, v{V_TMP+1}"]
            if k in (2, 5, 7): L_.append(("st", {2: 0, 5: 1, 7: 2}[k]))
        return L_
    def tag_recv(B):
        for i in range(3):
            B.vmem(f"buffer_load_dwordx4 v[{XL+4*i}:{XL+4*i+3}], v{vX}, s[24:27], s55 offen offset:{i*1024} sc1", "XR")
    def tag_cmp(B):
        B(f"v_cmp_eq_u32 vcc, s61, v{XL+3}\n v_cmp_eq_u32 s[52:53], s61, v{XL+7}\n v_cmp_eq_u32 s[20:21], s61, v{XL+11}")
        B("s_and_b64 vcc, vcc, s[52:53]\n s_and_b64 vcc, vcc, s[20:21]\n s_cmp_eq_u64 vcc, -1")
    def tag_check():
        tag_cmp(A); A("s_cbranch_scc0 L_xspin0"); A.label("L_xok")
        OOL.label("L_xspin0"); OOL("s_mov_b32 s38, 0"); OOL.label("L_xspin")
        tag_recv(OOL); OOL.vm = []
        OOL("s_add_u32 s38, s38, 1\n s_waitcnt vmcnt(0)"); tag_cmp(OOL)
        OOL("s_cbranch_scc1 L_xok\n s_cmp_lt_u32 s38, 0x100000\n s_cbranch_scc1 L_xspin\n s_branch L_xok")
    def tag_fin():
        L_ = [f"v_add_f32 v{V_L}, v{V_L}, v{XL+10}", f"v_rcp_f32 v{V_TMP}, v{V_L}",
              f"v_cmp_lt_f32 vcc, 0x30800000, v{V_L}", f"v_cmp_gt_f32 s[52:53], s19, v{V_L}"]
        for k in range(8):
            L_ += [f"v_lshlrev_b32 v{XR+2*k}, 16, v{XL+xpos(k)}", f"v_and_b32 v{XR+2*k+1}, 0xffff0000, v{XL+xpos(k)}"]
        L_ += [f"v_mul_f32 v{XR+i}, v{XR+i}, v{V_TMP}" for i in range(16)]
        return L_
    def emit_extra(x_):
        if isinstance(x_, tuple):
            A.vmem(f"buffer_store_dwordx4 v[{XB+4*x_[1]}:{XB+4*x_[1]+3}], v{vX}, s[24:27], s54 offen offset:{x_[1]*1024} sc1", "XS")
        else: A(x_)
    xld_slot = opt.get("xld", nslots - 22); xuse2 = opt.get("xuse", max(xld_slot + 10, nslots - 8))
    extra = []
    seenO = set(); vi = 0; vpart = 0
    vt, lt = operands(mf[0]); A.need(vt, lt)
    stamp("mfma0")
    totcost = []; fb_done = []; pb_done = []; ldlog = []
    pipe = opt.get("pipe0", 200)
    for sl in range(nslots):
        m = mf[sl]
        blk, qt = rounds[m[1]][m[2]]
        if m[0] == "QK":
            _, r, u, s = m
            d = V_S[r % 2] + u*16
            c = f"v[{lvreg[blk]}:{lvreg[blk]+15}]" if s == 0 else f"v[{d}:{d+15}]"
            if s == 0: assert all(("LV", blk, q_) in tdone for q_ in range(4)), ("lv not read", sl)
            assert ("K", blk, s) in issued, ("K not loaded", sl)
            assert qt*8+s not in qrest
            k = kbuf[blk] + 4*s; q = A_Q + (qt*8+s)*4
            A(f"v_mfma_f32_32x32x16_bf16 v[{d}:{d+15}], a[{k}:{k+3}], a[{q}:{q+3}], {c}")
        else:
            _, r, u, kk = m
            c = "0" if qt not in seenO else oreg(qt)
            seenO.add(qt)
            assert ("V", blk, kk) in vedone, ("V frag not expanded", sl, m)
            assert kk < 2 or (r, kk, u) in prdone, ("P not read", sl)
            v = vereg[("V", blk, kk)]
            ps = f"v[{V_PO[r%2] + (u*2+kk)*4}:{V_PO[r%2] + (u*2+kk)*4+3}]" if kk < 2 else f"a[{A_P + ((kk-2)*2+u)*4}:{A_P + ((kk-2)*2+u)*4+3}]"
            A(f"v_mfma_f32_32x32x16_bf16 {oreg(qt)}, v[{v}:{v+3}], {ps}, {c}")
        stamp(f"slot{sl}")
        bud = 24
        vt, lt = operands(mf[sl+1]) if sl + 1 < nslots else ([], [])
        vt = list(vt); lt = list(lt)
        if vi < len(vexp) and sl >= need_at[("VR", vexp[vi][1], vexp[vi][2]//2)]: vt.append(("VR", vexp[vi][1], vexp[vi][2]//2))
        if pendm and tdone.get(("RV", rounds[pendm[0][0]][pendm[0][1]//2][0], pendm[0][1] % 2), 10**6) <= sl - 2:
            lt.append(("RV", rounds[pendm[0][0]][pendm[0][1]//2][0], pendm[0][1] % 2))
        if sl == chkB_slot: vt.append("PB")
        if inloop and not XTAG:
            if sl == flag_slot: vt.append("XS")
            if sl == xchk_slot: vt.append("XP")
            if sl == xuse_slot: vt.append("XR")
        if inloop and XTAG and sl == xuse2: vt.append("XR")
        if sl == b[nfull-1] + 4: lt.append(("LR", 1))
        if sl == b[n-1] + 4: lt.append(("LR", 0))
        if sl in bar_at:
            r = bar_at[sl]
            assert nw[r] == 4, ("P not written before barrier", r, sl)
            for q_ in ([1] if r == nfull-1 else []) + ([0] if r == n-1 else []): assert q_ in lwr, ("l not written", sl)
            A.need(vt, lt + [("PW", r), "LW"])
            A("s_barrier")
            bud -= COST['bar']
            for q_ in ([1] if r == nfull-1 else []) + ([0] if r == n-1 else []):
                LT[q_] = V_S[r % 2] + 8*q_
                for hf in range(2):
                    A.ds(f"ds_read_b128 v[{LT[q_]+hf*4}:{LT[q_]+hf*4+3}], v{vLR} offset:{LDS_L + q_*1024 + hf*16}", ("LR", q_)); bud -= 4
        else:
            A.need(vt, lt)
        if sl == b[nfull-1] + 4:
            extra += lsum(LT[1], XB+10 if XTAG else vLS)
            if XTAG: extra += [f"v_mov_b32 v{XB+j}, s61" for j in (3, 7, 11)]
        if sl == b[n-1] + 4: extra += lsum(LT[0], V_L)
        hasw = bool(pendw) and sl not in bar_at and not (sl + 1 in bar_at)
        nr = 0
        while nr < opt.get("maxr", 2) and len(A.lg) < 13:
            c_ = []
            if prq:
                r, kk, u, idx = prq[0]
                if sl >= b[r] - barlead and (r == 0 or sl >= b[r-1] + 4 + idx): c_.append((b[r] + 4 + idx - 5, "p"))
            if qrest: c_.append((qord.index(qrest[0]) - 6, "q"))
            if lvq:
                _, tblk, q, i = lvq[0]
                if (i < 2 or lv_last[tb[i-2][0]] + 1 < sl): c_.append((lv_use[tblk] - 8 + q, "lv"))
            if rvq:
                _, tblk, q, i = rvq[0]
                if (i < 2 or (tb[i-2][0], q) in rv_done): c_.append((lv_use[tblk] + 8 + 4*q, "rv"))
            if not c_: break
            d_, k_ = min(c_)
            if sl == lastw + 1 and d_ > sl - 2: break
            if nr >= 1 and d_ > sl + 1: break
            if hasw and d_ > sl + 1: break
            if d_ > sl + opt.get("rlead", 24): break
            if k_ == "p":
                r, kk, u, idx = prq.pop(0); rg = A_P + idx*4
                A.ds(f"ds_read_b128 a[{rg}:{rg+3}], v{vPR+kk//2-1} offset:{(r%NPB)*16384 + (u*2+kk%2)*1024}", ("PR", r, kk, u)); prdone.add((r, kk, u))
            elif k_ == "q": qread(qrest.pop(0))
            elif k_ == "lv": tread(lvq.pop(0), sl)
            else: tread(rvq.pop(0), sl)
            bud -= COST["r"]; nr += 1
        if hasw:
            r, f = pendw.pop(0); PO = V_PO[r % 2]
            A.ds(f"ds_write_b128 v{vPW}, v[{PO+4*f}:{PO+4*f+3}] offset:{(r%NPB)*16384 + f*1024}", ("PW", r)); bud -= COST["w"]; nw[r] += 1
            lastw = sl
        if pendl and pendl[0][0] <= sl:
            _, q_ = pendl.pop(0); lwr.add(q_)
            A.ds(f"ds_write_b64 v{vLW}, v[{V_LA+4*q_}:{V_LA+4*q_+1}] offset:{q_*1024}", "LW")
            A.ds(f"ds_write_b64 v{vLW}, v[{V_LA+4*q_+2}:{V_LA+4*q_+3}] offset:{q_*1024+512}", "LW"); bud -= 24
        nxt_ = min([need_at[q_[0]] for q_ in (kl, vl) if q_ and (q_[0][1] < 4 or sl >= gate)] + [10**6]) - sl
        if not fb_done and not opt.get("fb0", 1) and sl >= opt.get("fbslot", 13) and (nxt_ >= opt.get("fbgap", 20) or sl >= opt.get("fbmax", 29)):
            fb_done.append(sl); assert sl < b[0]
            if not FBE:
                A("s_cmp_eq_u32 s3, 0\n s_cbranch_scc0 L_skip2\n s_barrier"); bud -= 42
                A.label("L_skip2")
            A.vmem(f"buffer_store_dword v{vTAG}, v{vFB}, s[24:27], s18 offen sc1", "FB"); bud -= 8
        elif not pb_done and sl >= pollB_slot and (nxt_ >= opt.get("pollgap", 24) or sl >= chkB_slot - opt.get("pollmin", 18)):
            pb_done.append(sl)
            assert not late
            A.vmem(f"buffer_load_dword v{V_TMP}, v{vPB}, s[24:27], s60 offen sc1", "PB"); bud -= 8
            if not XSC1: A.vmem(f"buffer_load_dword v{V_TMP+1}, off, s[24:27], s37 sc1", "PB"); bud -= 8
        elif (kl or vl) and not hasw and sl not in bar_at:
            c_ = [q_[0] for q_ in (kl, vl) if q_ and ld_free(q_[0]) <= sl and need_at[q_[0]] - sl <= opt.get("maxlead", 70)]
            if c_:
                key = min(c_, key=lambda k: need_at[k])
                now = sum(max(32, c) for c in totcost)
                if pipe - now <= opt.get("qmax", 60) or need_at[key] - sl < opt.get("urg", 10):
                    (kl if key[0] == "K" else vl).pop(0)
                    ld(key); bud -= COST["l"]; ldlog.append((sl, key, need_at[key] - sl))
                    pipe = max(pipe, now) + (opt.get("kdur", 74) if key[0] == "K" else opt.get("vdur", 38))
        if sl == chkB_slot:
            A(f"v_cmp_eq_u32 vcc, s61, v{V_TMP}")
            if not XSC1: A(f"v_readfirstlane_b32 s37, v{V_TMP+1}")
            A(f"s_cmp_eq_u64 vcc, -1\n s_cbranch_scc0 L_bspin0")
            A.label("L_bok")
            OOL.label("L_bspin0"); OOL("s_mov_b32 s53, 0"); OOL.label("L_bspin")
            OOL(f"""
            buffer_load_dword v{V_TMP}, v{vPB}, s[24:27], s60 offen sc1
            s_add_u32 s53, s53, 1
            s_waitcnt vmcnt(0)
            v_cmp_eq_u32 vcc, s61, v{V_TMP}
            s_cmp_eq_u64 vcc, -1
            s_cbranch_scc1 L_bok
            s_cmp_lt_u32 s53, 0x100000
            s_cbranch_scc1 L_bspin
            s_branch L_bok
            """)
            A("s_mov_b32 s19, 0x4e800000")
            for x_ in late2: A(x_)
            bud -= 32
        if sl == opt.get("wbslot", -1):
            A("s_or_b32 s38, s35, s32\n s_cbranch_scc0 L_dowb"); A.label("L_nowb"); bud -= 8
            OOL.label("L_dowb"); OOL("buffer_wbl2 sc1\n s_branch L_nowb")
        if inloop and XTAG:
            if sl == send_slot:
                assert not extra
                stamp("send"); extra += tag_pack()
            if sl == xld_slot:
                assert not kl and not vl and all(lv_last[t[0]] + 1 < sl for t in tb) and sl > send_slot + 8
                tag_recv(A); bud -= 24
            if sl == xuse2:
                assert sl > b[n-1] + 4 and all(lv_last[t[0]] < sl for t in tb)
                stamp("xr")
                while extra: emit_extra(extra.pop(0)); bud -= 4
                tag_check(); bud -= 28; extra += tag_fin()
        elif inloop:
            if sl == send_slot:
                assert not extra
                stamp("send"); two_way(send_payload); bud -= 60
                if not XSC1: self_touch(); bud -= 8
            if sl == flag_slot:
                stamp("xack"); two_way(send_flag); bud -= 16
            if sl == xpoll_slot:
                A.vmem(f"buffer_load_dword v{V_TMP}, v{vXF}, s[24:27], s55 offen sc1", "XP"); bud -= 8
            if sl == xchk_slot:
                assert not kl and not vl and all(lv_last[t[0]] < sl for t in tb)
                stamp("xp"); xcheck(); recv_loads(); bud -= 50
            if sl == xuse_slot:
                assert sl > b[n-1] + 4
                stamp("xr"); extra += fin_pre()
        def vexp_step():
            nonlocal vi, vpart, bud
            key = vexp[vi]; src = V_VR + (key[1] % NVR)*8 + key[2]
            A(f"v_cvt_scalef32_pk_bf16_fp4 v{vereg[key]+vpart}, v{src}, 1.0 op_sel:[{vpart&1},{vpart>>1},0]")
            bud -= 4; vpart += 1
            if vpart == 4: vedone[key] = sl; vi += 1; vpart = 0
        def vexp_ok():
            if vi >= len(vexp): return False
            key = vexp[vi]; tag = ("VR", key[1], key[2]//2)
            return vefree[key] <= sl and tag not in A.vm and tag in issued
        def sm_next():
            nonlocal cur, ci
            while cur < n and ci >= len(items[cur]): cur += 1; ci = 0
            if cur >= n: return None
            kind, e, txt, info = items[cur][ci]
            if sl < sready[(cur, 0)]: return None
            if kind == "e" and e == 16 and sl < sready[(cur, 1)]: return None
            if kind == "c" and XTAG and cur == nfull + 1: assert not extra and sl > send_slot + 4
            rate = min(opt.get("smrate", 0.7), (wend[cur] - sready[(cur, 0)]) / 33.0)
            return wend[cur] - (32 - e) * rate
        def sm_step():
            nonlocal ci, bud
            kind, e, txt, info = items[cur][ci]
            A(txt); bud -= COST[kind]; ci += 1
            if kind == "c" and e % 8 == 0: pendw.append((cur, e//8 - 1)); newm.append((cur, e//8 - 1))
        newm = []
        def fill():
          nonlocal bud
          while True:
            ds_ = sm_next(); dv = None
            if vi < len(vexp):
                dl = firstuse[vexp[vi]] - 2 - (3 - vpart) * 0.25
                if vexp_ok(): dv = dl
                elif firstuse[vexp[vi]] - sl <= 2:
                    A.need([("VR", vexp[vi][1], vexp[vi][2]//2)])
                    assert vexp_ok(), ("cannot expand in time", sl, vexp[vi])
                    dv = dl
            cands = [(d, k) for d, k in ((ds_, "s"), (dv, "v")) if d is not None]
            if extra:
                if inloop and sl < send_slot: dx = b[nfull-1] + 10
                elif inloop and XTAG and sl < send_slot + 8: dx = send_slot + (27 - len(extra)) * opt.get("packrate", 0.12)
                else: dx = sl + 3
                cands.append((dx, "x"))
            if late: cands.append((8, "t"))
            if late3 and nsolo and all(t_[1] >= nfull for t_ in lvq + rvq) and sl > chkB_slot: cands.append((b[nfull-1] + 8, "u"))
            if not cands: break
            d, k = min(cands)
            if d > sl:
                if bud <= 0: break
                if d > sl + opt.get("fitslack", 2) and k == "s" and COST[items[cur][ci][0]] > bud:
                    cands = [c for c in cands if c[1] != "s"]
                    if not cands: break
                    d, k = min(cands)
            if k == "s": sm_step()
            elif k == "v": vexp_step()
            elif k == "x": emit_extra(extra.pop(0)); bud -= 4
            elif k == "u": A(late3.pop(0)); bud -= 4
            else: A(late.pop(0)); bud -= 4
        fill()
        mcost = 0
        if pendm:
            r_, f_ = pendm[0]; blk_, qt_ = rounds[r_][f_//2]; tag = ("RV", blk_, f_ % 2)
            if tag in tdone and tag not in A.lg:
                pendm.pop(0)
                la = V_LA + 4*qt_; rv_ = rvreg[blk_] + 4*(f_ % 2); po_ = V_PO[r_ % 2] + 4*f_
                A(f"v_mfma_f32_16x16x32_bf16 v[{la}:{la+3}], v[{rv_}:{rv_+3}], v[{po_}:{po_+3}], {'v[%d:%d]' % (la, la+3) if qt_ in seenL else '0'}")
                seenL.add(qt_)
                if f_ >= 2 or rounds[r_][0][0] != rounds[r_][1][0]: rv_done[(blk_, f_ % 2)] = sl
                if f_ == 3:
                    for q_ in ([1] if r_ == nfull-1 else []) + ([0] if r_ == n-1 else []): pendl.append((sl + 1, q_))
                b0 = bud; bud = opt.get("mbud", 4); fill(); mcost = max(16, 16 - bud); bud = min(b0, 0) - mcost
        pendm += newm
        totcost.append(32 - bud)
    assert not kl and not vl
    if opt.get("verbose"):
        print("fb", fb_done, "pb", pb_done, "loads", " ".join(f"{s_}:{k_[0]}{k_[1]}.{k_[2]}(+{d_})" for s_, k_, d_ in ldlog), file=sys.stderr)
        print("slot costs:", totcost, "sum:", sum(totcost), "sum max(32,c):", sum(max(32, c) for c in totcost), file=sys.stderr)
    stamp("loopend")
    for x_ in late3: A(x_)
    for x_ in extra: emit_extra(x_)
    if XTAG:
        if not inloop:
            for x_ in tag_pack(): emit_extra(x_)
        if not inloop or xld_slot >= nslots: A.need(["XS"]); tag_recv(A)
        if not inloop or xuse2 >= nslots:
            A.need(["XR"]); stamp("xr"); tag_check()
            for x_ in tag_fin(): A(x_)
    else:
        if not inloop:
            A("s_nop 7"); two_way(send_payload)
            if not XSC1: self_touch()
        if not inloop or flag_slot >= nslots: A.need(["XS"]); two_way(send_flag)
        if not inloop or xpoll_slot >= nslots: A.vmem(f"buffer_load_dword v{V_TMP}, v{vXF}, s[24:27], s55 offen sc1", "XP")
        if not inloop or xchk_slot >= nslots: A.need(["XP"]); xcheck(); recv_loads()
        if not inloop or xuse_slot >= nslots:
            A.need(["XR"]); stamp("xr")
            for x_ in fin_pre(): A(x_)
    if not opt.get("noslow"): A("s_and_b64 vcc, vcc, s[52:53]\n s_cmp_eq_u64 vcc, -1\n s_cbranch_scc0 L_slow")
    O = V_O0
    if not OARCH:
        O = V_S[n % 2]
        for i in range(16): A(f"v_accvgpr_read_b32 v{O+i}, a{A_O+i}")
    pk = V_PO[0]
    for bq in range(4):
        for a_ in range(4): A(f"v_fmac_f32 v{XR+4*a_+bq}, v{O+4*a_+bq}, v{V_TMP}")
    A.label("L_pack")
    OT = opt.get("otr", 1)
    for bq in range(4):
        A(f"v_cvt_pk_bf16_f32 v{pk+2*bq}, v{XR+bq}, v{XR+4+bq}")
        A(f"v_cvt_pk_bf16_f32 v{pk+2*bq+1}, v{XR+8+bq}, v{XR+12+bq}")
        if bq == 1:
            if OT: A(f"ds_write_b128 v{vT}, v[{pk}:{pk+3}] offset:{LDS_Q}")
            else: A(f"buffer_store_dwordx4 v[{pk}:{pk+3}], v{vOUT}, s[28:31], s56 offen {opt.get('ofl','')}")
    if OT:
        A(f"""
        ds_write_b128 v{vT}, v[{pk+4}:{pk+7}] offset:{LDS_Q+16}
        ds_read_b128 v[{pk+8}:{pk+11}], v{vT2} offset:{LDS_Q}
        ds_read_b128 v[{pk+12}:{pk+15}], v{vT2} offset:{LDS_Q+1280}
        s_add_u32 s52, s56, 4096
        s_waitcnt lgkmcnt(1)
        buffer_store_dwordx4 v[{pk+8}:{pk+11}], v{vOUT}, s[28:31], s56 offen {opt.get('ofl','')}
        s_waitcnt lgkmcnt(0)
        buffer_store_dwordx4 v[{pk+12}:{pk+15}], v{vOUT}, s[28:31], s52 offen {opt.get('ofl','')}
        """)
    else:
        A(f"buffer_store_dwordx4 v[{pk+4}:{pk+7}], v{vOUT}, s[28:31], s56 offen offset:16 {opt.get('ofl','')}")
    A(f"""
    s_and_b32 s52, s57, 63
    s_cbranch_scc1 L_nobump
    s_add_u32 s52, s39, 1
    s_lshl_b32 s53, s33, 7
    v_mov_b32 v{V_TMP}, s52
    buffer_store_dword v{V_TMP}, v{vFB}, s[24:27], s53 offen
    """)
    A.label("L_nobump")
    if st:
        A("s_waitcnt vmcnt(0)")
        stamp("end")
        A(("" if rtdone else "s_memrealtime s[98:99]\n") + "s_waitcnt lgkmcnt(0)")
        A(f"s_lshl_b32 s50, s2, 2\n s_add_u32 s50, s50, s32\n s_lshl_b32 s51, s50, 7\n s_add_u32 s51, s51, {ST_OFF}")
        A("s_mov_b64 exec, 1")
        open("stampnames.txt", "w").write(" ".join(stl))
        for i in range(len(stl)):
            A(f"v_mov_b32 v10, s{64+2*i}\n v_mov_b32 v11, s{65+2*i}\n buffer_store_dwordx2 v[10:11], off, s[24:27], s51 offset:{8*i}\n s_nop 1")
        A(f"s_lshl_b32 s50, s50, 4\n s_add_u32 s50, s50, {RT_OFF}")
        A(f"v_mov_b32 v24, s96\n v_mov_b32 v25, s97\n v_mov_b32 v26, s98\n v_mov_b32 v27, s99\n buffer_store_dwordx4 v[24:27], off, s[24:27], s50")
    A.label("L_end")
    A("s_endpgm")
    S = OOL
    S.label("L_slow")
    S(f"""
    s_waitcnt vmcnt(0) lgkmcnt(0)
    s_mul_i32 s40, s33, {64*TILE}
    s_add_u32 s40, s40, {RB}
    v_add_u32 v{vK1}, 0x1000, v{vX}
    v_mov_b32 v40, 0xff800000
    s_mov_b32 s41, s40
    s_mov_b32 s42, 0
    """)
    def slow_qk():
        for s in range(8): S(f"buffer_load_dwordx4 a[{64+4*s}:{67+4*s}], v{vX if s < 4 else vK1}, s[24:27], s41 offen offset:{(s%4)*1024} sc1")
        S("s_waitcnt vmcnt(0)")
        for s in range(8): S(f"v_mfma_f32_32x32x16_bf16 v[24:39], a[{64+4*s}:{67+4*s}], a[{4*s}:{4*s+3}], {'0' if s == 0 else 'v[24:39]'}")
        S("s_nop 15")
    S.label("L_slow1")
    slow_qk()
    for i in range(8): S(f"v_max3_f32 v40, v{24+2*i}, v{25+2*i}, v40")
    S(f"""
    s_add_u32 s41, s41, {TILE}
    s_add_u32 s42, s42, 1
    s_cmp_lt_u32 s42, 64
    s_cbranch_scc1 L_slow1
    v_mov_b32 v41, v40
    s_nop 1
    v_permlane32_swap_b32 v40, v41
    v_max_f32 v40, v40, v41
    v_mov_b32 v42, 0
    v_and_b32 v43, 7, v{vLANE}
    v_bfe_u32 v44, v{vLANE}, 3, 2
    v_lshl_add_u32 v43, v43, 2, v44
    v_lshl_add_u32 v43, v{vW}, 5, v43
    v_lshlrev_b32 v43, 2, v43
    v_lshrrev_b32 v44, 5, v{vLANE}
    s_lshl_b32 s52, s33, 11
    v_lshl_add_u32 v44, v44, 2, s52
    v_lshl_add_u32 v43, v44, 9, v43
    v_lshlrev_b32 v44, 1, v44
    s_mov_b32 s41, s40
    s_mov_b32 s42, 0
    """)
    for i in range(16): S(f"v_mov_b32 v{XR+i}, 0")
    S.label("L_slow2")
    for g in range(4):
        S(f"global_load_dwordx2 v[{64+2*g}:{65+2*g}], v44, s[14:15] offset:{16*g}")
        S(f"global_load_dwordx2 v[{72+2*g}:{73+2*g}], v44, s[16:17] offset:{16*g}")
        for b_ in range(4): S(f"global_load_dword v{48+4*g+b_}, v43, s[12:13] offset:{512*b_}")
        S("v_add_u32 v43, 0x1000, v43")
    S("v_add_u32 v44, 64, v44")
    slow_qk()
    for i in range(16): S(f"v_sub_f32 v{24+i}, v{24+i}, v40")
    for i in range(16): S(f"v_exp_f32 v{24+i}, v{24+i}")
    for i in range(16): S(f"v_add_f32 v42, v42, v{24+i}")
    for i in range(8): S(f"v_cvt_pk_bf16_f32 v{80+i}, v{24+2*i}, v{25+2*i}")
    for i in range(8):
        S(f"""
        v_cvt_f32_i32 v{48+2*i}, v{48+2*i}
        v_cvt_f32_i32 v{49+2*i}, v{49+2*i}
        v_lshlrev_b32 v45, 16, v{72+i}
        v_and_b32 v46, 0xffff0000, v{72+i}
        v_sub_f32 v{48+2*i}, v{48+2*i}, v45
        v_sub_f32 v{49+2*i}, v{49+2*i}, v46
        v_lshlrev_b32 v45, 16, v{64+i}
        v_and_b32 v46, 0xffff0000, v{64+i}
        v_mul_f32 v{48+2*i}, v{48+2*i}, v45
        v_mul_f32 v{49+2*i}, v{49+2*i}, v46
        v_cvt_pk_bf16_f32 v{88+i}, v{48+2*i}, v{49+2*i}
        """)
    S(f"""
    s_nop 1
    v_mfma_f32_32x32x16_bf16 v[{XR}:{XR+15}], v[88:91], v[80:83], v[{XR}:{XR+15}]
    v_mfma_f32_32x32x16_bf16 v[{XR}:{XR+15}], v[92:95], v[84:87], v[{XR}:{XR+15}]
    s_add_u32 s41, s41, {TILE}
    s_add_u32 s42, s42, 1
    s_cmp_lt_u32 s42, 64
    s_cbranch_scc1 L_slow2
    v_mov_b32 v41, v42
    s_nop 15
    v_permlane32_swap_b32 v42, v41
    v_add_f32 v42, v42, v41
    v_rcp_f32 v42, v42
    s_nop 0
    """)
    for i in range(16): S(f"v_mul_f32 v{XR+i}, v{XR+i}, v42")
    S("s_branch L_pack")
    o = ["; generated by gen6.py\n", f"; @launch grid=(256,1,1) block=(256,1,1) lds={LDS_BYTES}\n", TARGET, A.text() + OOL.text(),
         ".fill 2048, 4, 0xBF800000\n", kd(KN, 512, sgpr=102, accum=256)]
    if opt.get("rep"):
        import reporter
        o[1] = f"; @launch kernel={KN} grid=(256,1,1) block=(256,1,1) lds={LDS_BYTES}\n; @launch kernel=rep_kernel grid=(1,1,1) block=(64,1,1) lds=0\n"
        o[4] = o[4] + reporter.text(opt["rep"], RT_OFF, ST_OFF, opt.get("repi", 0), opt.get("repk", 20))
        o.append(kd("rep_kernel", 32))
    return "".join(o)

if __name__ == "__main__":
    opt = {}
    out = sys.argv[1]
    for a_ in sys.argv[2:]:
        k, v = a_.split("=")
        try: v = int(v)
        except:
            try: v = float(v)
            except: pass
        opt[k] = v
    opt.setdefault("pad", 3328); opt.setdefault("ihook", 3); opt.setdefault("chk", 64)
    import hazcheck, subprocess, re, os
    t, n = hazcheck.fix(gen(opt))
    if opt.get("ihook"):
        sys.path.insert(0, "cdna_kernels")
        import cdna_launch as cl
        lines = t.split("\n")
        go = lines.index("L_go:"); endl = lines.index("L_pack:")
        for h in range(opt["ihook"]):
            probe = list(lines)
            for i in range(go + 1, endl):
                if probe[i].strip() and not probe[i].endswith(":"): probe[i] = f"LP_{i}:\n" + probe[i]
            txt = "\n".join(probe)
            for k in range(h, opt["ihook"]): txt = txt.replace("L_end:", f"L_hook{k}:\nL_end:")
            open("_p.s", "w").write(cl.with_harness_metadata(txt, KN, 14, launch_lists=True))
            subprocess.run(["clang", "-x", "assembler", "-target", "amdgcn-amd-amdhsa", "-mcpu=gfx950", "-c", "_p.s", "-o", "_p.o"], check=True)
            assert opt.get("pad") is not None
            sy = subprocess.run(["llvm-objdump", "-t", "_p.o"], capture_output=True, text=True).stdout
            ad = sorted((int(m.group(1), 16) + opt.get("textva", 0), int(m.group(2))) for m in re.finditer(r"^([0-9a-f]+) .* LP_(\d+)$", sy, re.M))
            page = ad[0][0] // 4096 + 1 + h
            cand = [i for a_, i in ad if a_ >= page * 4096 + opt.get("hookoff", 0)]
            if not cand:
                lines.insert(lines.index("L_end:") + 2, f"L_hook{h}:\n  s_branch L_warmed"); continue
            lines.insert(cand[0], f"L_hook{h}:"); lines.insert(cand[0] + 1, "  s_cbranch_execz L_warmed"); endl += 2
        t = "\n".join(lines)
    print("nops inserted:", n)
    open(out, "w").write(t)
```

```python
import sys, math, struct
from asmlib import *
from gen1 import Asm, f2u

KN = NAME + "_kernel"
TILE = 10240
BLK = 4 * TILE
RA = 1 << 20
RB = 4 << 20
X_OFF = 8 << 20
FA_OFF = 4096
FB_OFF = 8192
ST_OFF = 16 << 20
RT_OFF = 17 << 20
SCALE = math.log2(math.e) / math.sqrt(128.0)

LDS_K = 0
LDS_L = 9216
LDS_Q = LDS_L + 2048
LDS_T = LDS_Q + 16896
LDS_R = LDS_T + 8192
LDS_P = 49152
NPB = 3
LDS_BYTES = LDS_P + NPB * 16384
assert LDS_R + 12288 <= LDS_P

vT3, vW, vLANE, vK0, vK1, vV, vPW, vPR, vT, vLW, vLR, vOUT, vX, vT2 = 0, 1, 2, 3, 4, 5, 9, 10, 13, 14, 15, 16, 17, 18
vFB, V_L, V_TMP = 19, 20, 22
vOW, vOR = 7, 8
V_S = [24, 56]
V_PO = [88, 104]
COST = dict(l=8, r=4, w=20, e=8, a=4, c=4, bar=42)
A_Q = 0
A_K = [64, 96, 128]
A_P = 160
A_O = 208

def bitop(fn): return fn(0xF0, 0xCC, 0xAA) & 0xFF

def gen(opt):
    A = Asm()
    OOL = Asm()
    st = opt.get("stamps")
    stl = []; rtdone = []
    stsel = set(opt.get("st", "start,karg,issued,pre,ks,kconv,stored,mid,ackA,bar1,flagsA,mfma0,slot96,slot192,loopend,end").split(","))
    def stamp(name):
        if st and opt.get("rtst") == name and not rtdone:
            rtdone.append(1); A("s_memrealtime s[98:99]")
        if st and opt.get("rtst0") == name: A("s_memrealtime s[96:97]")
        if st and name in stsel and name not in stl:
            i = len(stl); stl.append(name); assert i < 16
            A(f"s_memtime s[{64+2*i}:{65+2*i}]")
    NVR = opt.get("nvr", 4 if opt.get("xtag", 1) else 3); NVE = opt.get("nve", 7); OARCH = opt.get("oarch", 1)
    V_VR = 120; V_VE = V_VR + NVR*8
    V_LV = [V_VE + NVE*4, V_VE + NVE*4 + 16]; V_RV = [V_LV[1] + 16, V_LV[1] + 24]
    V_LA = V_RV[1] + 8
    V_O0 = V_LA + 8
    vR, vR2, vR3 = V_L + 1, vPR + 3 + 100, 0
    V_END = V_O0 + (16 if OARCH else 0)
    vR2, vR3 = V_END, V_END + 1; V_END += 2
    if opt.get("xtag", 1):
        assert V_END <= 256 and OARCH
        vTAG, vPA, vPB = V_O0, V_O0+1, V_L
        vXF = vXL = vXT = vLS = None
    else:
        assert V_END + 8 <= 256, V_END
        vTAG, vPB, vXF, vXL, vXT, vPA, vLS = V_END, V_END+1, V_END+2, V_END+3, V_END+4, V_END+5, V_END+6
    nfull = opt.get("nfull", 6); nsolo = 16 - 2*nfull; nblk = nfull + nsolo
    rounds = [[(r, 0), (r, 1)] for r in range(nfull)] + [[(nfull + 2*i, 0), (nfull + 2*i + 1, 0)] for i in range(nsolo//2)]
    n = len(rounds)
    nt = opt.get("ntfl", "")
    XTAG = opt.get("xtag", 1)
    XSC1 = opt.get("xsc1", 0) or XTAG
    if opt.get("pad") is not None:
        A.raw(f".text\n.p2align 12\n.fill {opt['pad']//4}, 4, 0xBF800000\n")
    A.raw(head(KN))
    A("""
    s_load_dwordx16 s[4:19], s[0:1], 0
    s_getpc_b64 s[60:61]
    v_lshlrev_b32 v64, 5, v0
    """)
    A.vmem("global_load_dword v255, v64, s[60:61]", "cpf")
    A("s_cmpk_ge_u32 s2, 256\n s_cbranch_scc1 L_end")
    stamp("start")
    if st: A("s_memrealtime s[96:97]")
    def a_v():
        A(f"""
        s_and_b32 s3, s57, 1
        s_mul_i32 s3, s3, {256 - 16384}
        v_bfe_u32 v64, v0, 4, 2
        v_lshl_add_u32 v29, v64, 12, v29
        v_bfe_u32 v64, v0, 3, 1
        v_lshl_add_u32 v29, v64, 14, v29
        v_bfe_u32 v64, v0, 6, 1
        v_lshl_add_u32 v29, v64, 11, v29
        v_and_b32 v64, 128, v0
        v_add3_u32 v29, v29, v64, s3
        """)
    A(f"""
    s_and_b32 s52, s2, 7
    s_lshr_b32 s35, s2, 3
    s_lshl_b32 s57, s52, 5
    s_or_b32 s57, s57, s35
    s_lshl_b32 s53, s57, 14
    v_and_b32 v25, 7, v0
    v_lshrrev_b32 v26, 3, v0
    v_lshl_add_u32 v29, v25, 4, s53
    v_lshl_add_u32 v28, v26, 9, v29
    """)
    if opt.get("vpre"): a_v()
    A("s_waitcnt lgkmcnt(0)")
    stamp("karg")
    def l_ts0():
        A("s_and_b32 s3, s53, 0x3000\n v_lshl_add_u32 v70, v0, 4, s3")
        A.vmem(f"global_load_dwordx4 v[88:91], v70, s[14:15]", "TS")
        A.vmem(f"global_load_dwordx4 v[92:95], v70, s[16:17]", "TS")
    for i in range(4):
        A.vmem(f"global_load_dwordx4 v[{32+4*i}:{35+4*i}], v28, s[6:7] offset:{128*i} {nt}", "KR")
    A("s_load_dwordx2 s[22:23], s[0:1], 104\n s_load_dwordx2 s[20:21], s[0:1], 88\n s_lshl_b32 s53, s57, 6\n v_lshl_add_u32 v27, v26, 1, s53")
    A.vmem(f"global_load_ushort v30, v27, s[8:9] {nt}", "KR")
    A.vmem(f"global_load_ushort v31, v27, s[10:11] {nt}", "KR")
    if opt.get("tse", 1) == 1: l_ts0()
    def l_v():
        if not opt.get("vpre"): a_v()
        for m in range(4):
            A.vmem(f"global_load_dwordx4 v[{48+4*m}:{51+4*m}], v29, s[12:13] offset:{512*m} {nt}", "VRAW")
    if not opt.get("vlate"): l_v()
    if opt.get("tse", 1) == 2: l_ts0()
    A(f"""
    v_lshrrev_b32 v{vW}, 6, v0
    v_and_b32 v24, 7, v26
    v_readfirstlane_b32 s32, v{vW}
    v_and_b32 v{vLANE}, 63, v0
    s_lshr_b32 s33, s52, 1
    s_lshl_b32 s53, s33, 7
    s_waitcnt lgkmcnt(0)
    s_load_dword s39, s[22:23], s53
    s_and_b32 s34, s52, 1
    s_lshl_b32 s59, s52, 8
    s_add_u32 s59, s59, {FA_OFF}
    s_and_b32 s36, s35, 1
    s_mov_b32 s24, s22
    s_and_b32 s25, s23, 0xffff
    s_mov_b32 s26, 0x10000000
    s_mov_b32 s27, 0x20000
    s_mul_i32 s58, s57, {TILE}
    s_add_u32 s58, s58, {RA}
    s_lshl_b32 s54, s2, 2
    s_add_u32 s54, s54, s32
    s_lshl_b32 s54, s54, 13
    s_add_u32 s54, s54, {X_OFF}
    """)
    stamp("issued")
    KF = -math.log2(10000.0) / 64
    def trig(idx, mul, pos, nn, t, P1, P2):
        A(f"""
        v_cvt_f32_u32 v{t}, v{idx}
        v_mul_f32 v{t}, {hex(f2u(KF*mul))}, v{t}
        v_exp_f32 v{t}, v{t}
        v_cvt_f32_u32 v{t+1}, v{pos}
        v_mul_f32 v{t}, v{t}, v{t+1}
        """)
        cst = [10000.0 ** (-(j % (nn//2) + 32*(j // (nn//2))) / 64.0) / (2*math.pi) for j in range(nn)]
        A(f"v_mul_f32 v{P2}, {hex(f2u(cst[0]))}, v{t}")
        for j in range(nn):
            A(f"v_cos_f32 v{t+2+2*(j%2)}, v{P2+j}")
            if j + 1 < nn: A(f"v_mul_f32 v{P2+j+1}, {hex(f2u(cst[j+1]))}, v{t}")
            if j: A(f"v_cvt_pk_bf16_f32 v{P1+j-1}, v{t+2+2*((j-1)%2)}, v{t+3+2*((j-1)%2)}")
            A(f"v_sin_f32 v{t+3+2*(j%2)}, v{P2+j}")
            if j: A(f"v_cvt_pk_bf16_f32 v{P2+j-1}, v{t+3+2*((j-1)%2)}, v{t+2+2*((j-1)%2)}")
        j = nn - 1
        A(f"v_cvt_pk_bf16_f32 v{P1+j}, v{t+2+2*(j%2)}, v{t+3+2*(j%2)}")
        A(f"v_cvt_pk_bf16_f32 v{P2+j}, v{t+3+2*(j%2)}, v{t+2+2*(j%2)}")
    KP1, KP2, QP1, QP2 = 96, 104, 112, 128
    def w_trigK():
        A("v_bfe_u32 v150, v27, 1, 11")
        trig(25, 4, 150, 8, 144, KP1, KP2)
    def w_kaddr():
        A(f"""
        v_mul_u32_u24 v173, 144, v26
        v_lshl_add_u32 v173, v25, 4, v173
        v_lshl_add_u32 v174, v{vW}, 3, v25
        v_mul_u32_u24 v172, 144, v174
        v_lshl_add_u32 v172, v24, 4, v172
        v_lshlrev_b32 v174, 4, v174
        v_lshl_add_u32 v174, v24, 9, v174
        v_add_u32 v175, 0x1000, v174
        v_lshrrev_b32 v176, 4, v0
        v_xor_b32 v177, v176, v0
        v_lshl_add_u32 v176, v176, 3, v25
        v_bfe_u32 v177, v177, 3, 1
        v_lshlrev_b32 v176, 4, v176
        v_lshl_add_u32 v176, v177, 29, v176
        v_add_u32 v176, 0x2000, v176
        v_bfe_i32 v177, v0, 4, 1
        v_and_b32 v177, 0x02020202, v177
        v_or_b32 v177, 0x05040100, v177
        v_mov_b32 v178, 0x11111111
        s_add_u32 s37, s58, {RB - RA}
        """)
    def l_pt():
        A(f"""
        s_mul_i32 s52, s32, 2560
        s_add_u32 s52, s52, s58
        v_lshl_add_u32 v65, v{vLANE}, 7, s52
        v_mov_b32 v66, s59
        v_cmp_gt_u32 vcc, {opt.get("ptl", 0)}, v{vLANE}
        {"" if XTAG else "s_add_u32 s52, s54, 4352"}
        {"" if XTAG else "v_writelane_b32 v66, s52, 20"}
        {"s_add_u32 s52, s54, 6144" if opt.get("tlb", 0) & 1 else ""}
        {"v_writelane_b32 v66, s52, 21" if opt.get("tlb", 0) & 1 else ""}
        {"s_add_u32 s52, s58, %d" % (RB - RA) if opt.get("tlb", 0) & 2 else ""}
        {"v_writelane_b32 v66, s52, 22" if opt.get("tlb", 0) & 2 else ""}
        v_cndmask_b32 v65, v66, v65, vcc
        """)
        A.vmem(f"buffer_load_dword v254, v65, s[24:27], 0 offen {opt.get('ptfl', '')}", "PT")
    def l_cpf2():
        NCL = opt.get("ncl", 128)
        A(f"""
        v_min_u32 v64, {NCL//32 - 1}, v{vLANE}
        v_lshl_add_u32 v64, v64, 2, v{vW}
        s_and_b32 s53, s35, 7
        s_add_u32 s53, s53, 64
        v_lshl_add_u32 v64, v64, 3, s53
        v_lshlrev_b32 v64, 7, v64
        """)
        A.vmem(f"global_load_dword v255, v64, s[60:61]", "cpf")
    def w_qaddr():
        A(f"""
        s_lshr_b32 s52, s32, 1
        s_xor_b32 s53, s57, s52
        s_lshl_b32 s53, s53, 5
        v_bfe_u32 v66, v0, 2, 5
        v_and_b32 v71, 3, v0
        v_add_u32 v67, s53, v66
        v_lshlrev_b32 v68, 8, v67
        v_lshl_add_u32 v68, v71, 4, v68
        v_and_b32 v67, 2047, v67
        s_mul_i32 s52, s52, 8448
        v_mul_u32_u24 v180, 1056, v71
        v_lshl_add_u32 v180, v66, 4, v180
        v_add_u32 v180, s52, v180
        """)
    def l_q():
        for k in range(0 if opt.get("noq") else 4):
            A.vmem(f"global_load_dwordx4 v[{72+4*k}:{75+4*k}], v68, s[4:5] offset:{64*k} {opt.get('qfl', '')}", "QR")
    def l_ts():
        A("s_lshl_b32 s53, s33, 12\n v_lshl_add_u32 v70, v0, 4, s53")
        A.vmem(f"global_load_dwordx4 v[88:91], v70, s[14:15]", "TS")
        A.vmem(f"global_load_dwordx4 v[92:95], v70, s[16:17]", "TS")
    def w_trigQ():
        trig(71, 8, 67, 16, 144, QP1, QP2)
    def w_blk():
        A(f"""
        s_lshl_b32 s52, s34, 3
        s_lshl_b32 s53, s36, 2
        s_add_u32 s18, s52, s53
        s_xor_b32 s52, s52, 8
        s_mul_i32 s53, s36, {nfull-4}
        s_add_u32 s19, s52, s53
        s_add_u32 s3, s52, {2*(nfull-4)}
        v_lshlrev_b32 v179, 5, v0
        v_lshrrev_b32 v171, 1, v0
        v_mul_u32_u24 v171, 96, v171
        v_and_b32 v170, 1, v0
        v_lshl_add_u32 v171, v170, 3, v171
        v_add_u32 v171, {LDS_R}, v171
        v_bfe_u32 v157, v0, 4, 1
        v_bfe_u32 v158, v0, 1, 3
        v_cmp_eq_u32 vcc, v157, v158
        v_bfe_u32 v157, v0, 5, 3
        v_and_b32 v158, 1, v157
        v_cndmask_b32 v170, 2, v170, vcc
        v_mul_u32_u24 v158, 48, v158
        v_lshl_add_u32 v158, v170, 4, v158
        v_mul_u32_u24 v157, 192, v{vW}
        v_add_u32 v158, v158, v157
        s_mul_i32 s52, s18, 768
        v_add_u32 v{vR}, s52, v158
        s_mul_i32 s52, s19, 768
        v_add_u32 v{vR2}, s52, v158
        s_mul_i32 s52, s3, 768
        v_add_u32 v{vR3}, s52, v158
        v_lshrrev_b32 v151, 5, v{vLANE}
        v_lshlrev_b32 v152, 4, v151
        v_lshl_add_u32 v152, v{vW}, 7, v152
        s_lshl_b32 s52, s18, 9
        v_add_u32 v{vT}, s52, v152
        s_lshl_b32 s52, s19, 9
        v_add_u32 v{vT2}, s52, v152
        v_cmp_eq_u32 vcc, 0, v0
        s_lshl_b32 s52, s33, 4
        """)
        for src, reg, b0, b1 in (("s18", RB if opt.get("noa", 1) else RA, 0, 4), ("s19", RB, 4, nfull), ("s3", RB, nfull, nblk)):
            if b1 > b0:
                A(f"s_add_u32 s53, s52, {src}\n s_mul_i32 s53, s53, {BLK}")
                for b_ in range(b0, b1): A(f"s_add_u32 s{42+b_}, s53, {reg + (b_-b0)*BLK}")
        A(f"""
        v_bfrev_b32 v153, 4
        v_cndmask_b32 v{vFB}, v153, 0, vcc
        {"v_and_b32 v154, 31, v%d" % vLANE if opt.get("p32", 1) else "s_lshl_b32 s53, s36, 6"}
        {"v_lshlrev_b32 v%d, 2, v154" % vPA if opt.get("p32", 1) else "v_and_b32 v154, 15, v%d" % vLANE}
        {"" if opt.get("p32", 1) else "v_lshl_add_u32 v%d, v154, 2, s53" % vPA}
        v_lshlrev_b32 v{vX}, 4, v{vLANE}
        v_lshl_add_u32 v23, v151, 4, v{vX}
        s_mul_i32 s52, s32, {TILE}
        v_add_u32 v{vK0}, s52, v{vX}
        v_add_u32 v{vK1}, 0x1000, v{vK0}
        s_getreg_b32 s41, hwreg(HW_REG_XCC_ID, 0, 4)
        """)
    def w_vaddr():
        A(f"""
        s_lshr_b32 s52, s32, 1
        s_and_b32 s53, s32, 1
        s_lshl_b32 s53, s53, 10
        s_add_u32 s53, s53, 8192
        s_mul_i32 s38, s52, {3*TILE}
        s_add_u32 s38, s38, s53
        v_add_u32 v{vV}, s38, v{vX}
        s_mul_i32 s38, s52, {-TILE}
        s_add_u32 s38, s38, {2*TILE}
        s_add_u32 s38, s38, s53
        v_add_u32 v{vV+1}, s38, v{vX}
        v_lshl_add_u32 v{vPW}, v{vW}, 12, v{vX}
        v_add_u32 v{vPW}, {LDS_P}, v{vPW}
        v_xor_b32 v{vPW+1}, 0x1000, v{vPW}
        v_xor_b32 v{vPW+2}, 0x2000, v{vPW}
        v_xor_b32 v{vPW+3}, 0x3000, v{vPW}
        """)
    late = []
    late2 = []; late3 = []
    def w_late():
        L_ = f"""
        {"v_lshlrev_b32 v%d, 6, v%d" % (vPB, vLANE) if opt.get("chk") else "v_and_b32 v%d, 15, v%d" % (vPB, vLANE)}
        {"" if opt.get("chk") else "v_lshl_add_u32 v%d, v%d, 4, v%d" % (vPB, vW, vPB)}
        {"" if opt.get("chk") else "v_lshlrev_b32 v%d, 6, v%d" % (vPB, vPB)}
        v_and_b32 v{vLR}, 31, v{vLANE}
        v_lshlrev_b32 v{vLR}, 5, v{vLR}
        v_lshlrev_b32 v{vLW}, 5, v{vLANE}
        v_lshl_add_u32 v{vLW}, v{vW}, 3, v{vLW}
        v_cmp_gt_u32 vcc, 16, v{vLANE}
        v_add_u32 v{V_TMP}, {LDS_L}, v{vLW}
        s_nop 0
        v_cndmask_b32 v{vLW}, v{vLW}, v{V_TMP}, vcc
        s_sub_u32 s38, 2, s36
        s_mul_i32 s38, s38, {(nfull-4)*512}
        v_add_u32 v{vT3}, s38, v{vT2}
        s_xor_b32 s55, s54, 0x40000
        s_lshl_b32 s56, s57, 13
        s_lshl_b32 s38, s32, 6
        s_add_u32 s56, s56, s38
        s_mov_b32 s28, s20
        s_and_b32 s29, s21, 0xffff
        s_mov_b32 s30, 0x200000
        s_mov_b32 s31, 0x20000
        """
        if not XTAG: L_ += f"""
        s_xor_b32 s37, s35, 1
        s_lshl_b32 s37, s37, 2
        s_add_u32 s37, s37, s59
        v_lshrrev_b32 v{vXL}, 3, v{vLR}
        v_add_u32 v{vXL}, 4096, v{vXL}
        v_mov_b32 v{vXF}, 4352
        v_min_u32 v{vXT}, 32, v{vLANE}
        v_lshlrev_b32 v{vXT}, 7, v{vXT}
        """
        late.extend(x.strip() for x in L_.split("\n") if x.strip())
        late.extend([f"v_and_b32 v{vOW}, 31, v{vLANE}", f"v_lshl_add_u32 v{vOW}, v{vW}, 5, v{vOW}", f"v_mul_u32_u24 v{vOW}, 80, v{vOW}",
                     f"v_and_b32 v{V_TMP}, 32, v{vLANE}", f"v_add_u32 v{vOW}, v{vOW}, v{V_TMP}",
                     f"v_lshrrev_b32 v{vOUT}, 2, v{vLANE}", f"v_lshl_add_u32 v{vOR}, v{vW}, 5, v{vOUT}", f"v_mul_u32_u24 v{vOR}, 80, v{vOR}",
                     f"v_and_b32 v{V_TMP}, 48, v{vX}", f"v_add_u32 v{vOR}, v{vOR}, v{V_TMP}", f"v_lshl_add_u32 v{vOUT}, v{vOUT}, 8, v{V_TMP}"])
    def w_tables():
        A.need(["TS"])
        x = 184
        for k in range(4):
            A(f"v_lshlrev_b32 v{x+2*k}, 16, v{88+k}\n v_and_b32 v{x+2*k+1}, 0xffff0000, v{88+k}")
        A("s_mov_b32 s52, 0x3fc03fc0")
        ex = ["v_xor_b32 v92, s52, v92", "v_xor_b32 v93, s52, v93", "v_xor_b32 v94, s52, v94", "v_xor_b32 v95, s52, v95",
              "v_or3_b32 v92, v92, v93, v94", "v_or_b32 v92, v92, v95", "v_mov_b32 v95, 0x7fc00000", "v_cmp_eq_u32 s[52:53], 0, v92"]
        for k in range(8): A(f"v_log_f32 v{192+k}, v{x+k}\n {ex[k]}")
        ex = ["v_max3_f32 v93, |v192|, |v193|, |v194|", "v_max3_f32 v94, |v195|, |v196|, |v197|", "v_max3_f32 v93, |v198|, |v199|, v93", "v_max_f32 v93, v93, v94",
              "v_cmp_gt_f32 vcc, 0x41f00000, v93", "s_nop 0", "s_and_b64 vcc, vcc, s[52:53]", "s_nop 0"]
        A(f"v_rcp_f32 v200, v{x}")
        A.ds(f"ds_write_b128 v179, v[192:195] offset:{LDS_T}", "QW"); A.ds(f"ds_write_b128 v179, v[196:199] offset:{LDS_T+16}", "QW")
        for k in range(1, 8): A(f"{ex[k-1]}\n v_rcp_f32 v{200+k}, v{x+k}")
        A("v_cndmask_b32 v200, v95, v200, vcc")
        for k in range(4): A(f"v_cvt_pk_bf16_f32 v{184+k}, v{200+2*k}, v{201+2*k}")
        A("v_mov_b32 v92, 0\n v_mov_b32 v93, 0")
        for k in range(4):
            A(f"v_lshlrev_b32 v94, 16, v{184+k}\n v_and_b32 v95, 0xffff0000, v{184+k}\n v_sub_f32 v94, v{200+2*k}, v94\n v_sub_f32 v95, v{201+2*k}, v95\n v_cvt_pk_bf16_f32 v{188+k}, v94, v95")
        A.ds("ds_write2_b64 v171, v[184:185], v[188:189] offset0:0 offset1:2", "QW")
        A.ds("ds_write2_b64 v171, v[186:187], v[190:191] offset0:6 offset1:8", "QW")
        A.ds("ds_write2_b64 v171, v[92:93], v[92:93] offset0:4 offset1:10", "QW")
    def w_qrope():
        A.need(["QR"])
        A("s_mov_b32 s52, 0x05040100\n s_mov_b32 s53, 0x07060302")
        x = 32
        for k in range(8):
            A(f"v_perm_b32 v{x+2*k}, v{80+k}, v{72+k}, s52\n v_perm_b32 v{x+2*k+1}, v{80+k}, v{72+k}, s53")
        for half in range(2):
            js = [4*half + t for t in range(4)] + [8 + 4*half + t for t in range(4)]
            y = 224 - 32 + 16*half
            for t, j in enumerate(js): A(f"v_dot2_f32_bf16 v{y+t}, v{x+j}, v{QP1+j}, 0 neg_hi:[0,1,0]")
            for t, j in enumerate(js): A(f"v_dot2_f32_bf16 v{y+8+t}, v{x+j}, v{QP2+j}, 0")
        for half in range(2):
            y = 224 - 32 + 16*half; zz = 72 + 8*half
            for k in range(8): A(f"v_cvt_pk_bf16_f32 v{zz+k}, v{y+2*k}, v{y+2*k+1}")
            A.ds(f"ds_write_b128 v180, v[{zz}:{zz+3}] offset:{LDS_Q + 528*half}", "QW")
            A.ds(f"ds_write_b128 v180, v[{zz+4}:{zz+7}] offset:{LDS_Q + 528*half + 8*528}", "QW")
    def w_staddr():
        A(f"""
        v_lshlrev_b32 v159, 7, v{vW}
        v_lshl_add_u32 v159, v{vLANE}, 9, v159
        v_and_b32 v64, 3, v{vLANE}
        v_lshl_add_u32 v64, v{vW}, 2, v64
        v_cmp_gt_u32 vcc, 16, v{vLANE}
        v_lshlrev_b32 v64, 7, v64
        v_add_u32 v64, 0x2000, v64
        v_cndmask_b32 v159, v64, v159, vcc
        """)
    def w_otlb():
        A("s_lshl_b32 s52, s57, 13\n v_mov_b32 v64, s52\n s_waitcnt lgkmcnt(0)"); A.lg = []
        A.vmem("global_load_dword v255, v64, s[20:21]", "cpf")
    def w_flush():
        for l_ in late: A(l_)
        late.clear()
    def w_warm():
        if opt.get("ihook"):
            A("s_mov_b64 exec, 0")
            for i in range(opt["ihook"]): A(f"s_cmp_eq_u32 s32, {i}\n s_cbranch_scc1 L_hook{i}")
            A.label("L_warmed"); A("s_mov_b64 exec, -1")
    W = dict(trigK=w_trigK, kaddr=w_kaddr, pt=l_pt, cpf2=l_cpf2, q=l_q, qaddr=w_qaddr, ts=l_ts, trigQ=w_trigQ, blk=w_blk, vaddr=w_vaddr,
             tables=w_tables, qrope=w_qrope, flush=w_flush, otlb=w_otlb, staddr=w_staddr, v=l_v, warm=w_warm)
    def run(seq):
        for x_ in seq.split("."):
            if x_: W[x_](); stamp(x_)
    w_late()
    run(opt.get("o1", "pt.trigK.kaddr.cpf2.qaddr.trigQ.blk.q"))
    stamp("pre")
    A.need(["KR"])
    stamp("ks")
    A(f"v_lshlrev_b32 v30, 16, v30\n v_lshlrev_b32 v31, 16, v31\n v_mul_f32 v30, {hex(f2u(SCALE))}, v30\n v_mul_f32 v31, v31, v30")
    for j in range(16): A(f"v_cvt_f32_i32 v{32+j}, v{32+j}")
    for j in range(16): A(f"v_fma_f32 v{32+j}, v{32+j}, v30, -v31")
    for j in range(8): A(f"v_cvt_pk_bf16_f32 v{32+j}, v{32+j}, v{40+j}")
    for j in range(8): A(f"v_dot2_f32_bf16 v{KP1+j}, v{32+j}, v{KP1+j}, 0 neg_hi:[0,1,0]")
    for j in range(8): A(f"v_dot2_f32_bf16 v{KP2+j}, v{32+j}, v{KP2+j}, 0")
    for p in range(4): A(f"v_cvt_pk_bf16_f32 v{40+p}, v{KP1+2*p}, v{KP1+2*p+1}")
    A("s_waitcnt lgkmcnt(0)"); A.lg = []
    A.ds("ds_write_b128 v172, v[40:43]", "KT")
    for p in range(4): A(f"v_cvt_pk_bf16_f32 v{44+p}, v{KP2+2*p}, v{KP2+2*p+1}")
    A.ds("ds_write_b128 v172, v[44:47] offset:4608", "KT")
    A.ds("ds_read_b128 v[160:163], v173", "KT2")
    A.ds("ds_read_b128 v[164:167], v173 offset:4608", "KT2")
    stamp("kconv")
    NOA = opt.get("noa", 1)
    sa = "s37 offen sc1" if NOA else "s58 offen"
    if opt.get("kfirst"):
        A.need(ltags=["KT2"])
        A.vmem(f"buffer_store_dwordx4 v[160:163], v174, s[24:27], {sa}", "SA")
        A.vmem(f"buffer_store_dwordx4 v[164:167], v175, s[24:27], {sa}", "SA")
        run(opt.get("o1b", ""))
    def w_vconv():
        A.need(["VRAW"])
        for c in range(4): A(f"v_lshl_or_b32 v{48+c}, v{52+c}, 4, v{48+c}")
        for c in range(4): A(f"v_lshl_or_b32 v{56+c}, v{60+c}, 4, v{56+c}")
        for c in range(4): A(f"v_lshl_or_b32 v{48+c}, v{56+c}, 8, v{48+c}")
        A("v_lshl_or_b32 v48, v49, 16, v48\n v_lshl_or_b32 v49, v51, 16, v50")
        A("s_mov_b32 s52, 0x22222222\n s_mov_b32 s53, 0x88888888")
        A("v_permlane32_swap_b32 v48, v49")
        A("v_mov_b32 v50, v48\n v_mov_b32 v51, v49")
        A.need(ltags=["KT2"])
        if not opt.get("kfirst"):
            A.vmem(f"buffer_store_dwordx4 v[160:163], v174, s[24:27], {sa}", "SA")
            A.vmem(f"buffer_store_dwordx4 v[164:167], v175, s[24:27], {sa}", "SA")
        A("v_permlane16_swap_b32 v48, v50\n v_permlane16_swap_b32 v49, v51")
        A("v_perm_b32 v144, v50, v48, v177\n v_perm_b32 v145, v51, v49, v177")
        t1 = bitop(lambda a, b, c: ~(a ^ b) & c); t2 = bitop(lambda a, b, c: (~a & b) | c)
        for r in (144, 145):
            A(f"v_lshlrev_b32 v55, 1, v{r}\n v_lshlrev_b32 v56, 2, v{r}")
            A(f"v_bitop3_b32 v55, v{r}, v55, s52 bitop3:{hex(t1)}")
            A(f"v_bitop3_b32 v56, v56, s53, v178 bitop3:{hex(t2)}")
            A(f"v_or_b32 v{r}, v55, v56")
        A("v_mov_b32_dpp v146, v144 row_ror:8 row_mask:0xf bank_mask:0xf\n v_mov_b32_dpp v147, v145 row_ror:8 row_mask:0xf bank_mask:0xf")
        A.vmem(f"buffer_store_dwordx4 v[144:147], v176, s[24:27], {sa}", "SA")
    W["vconv"] = w_vconv
    if not opt.get("vdefer"): w_vconv()
    run(opt.get("o2", ""))
    def st_b():
        if NOA: return
        A.vmem("buffer_store_dwordx4 v[160:163], v174, s[24:27], s37 offen sc1", "SB")
        A.vmem("buffer_store_dwordx4 v[164:167], v175, s[24:27], s37 offen sc1", "SB")
        A.vmem("buffer_store_dwordx4 v[144:147], v176, s[24:27], s37 offen sc1", "SB")
    W["sb"] = st_b
    if not opt.get("sbl", 1): st_b()
    stamp("stored")
    run(opt.get("o3", "staddr.vaddr.tables.flush"))
    A(f"""
    s_mul_i32 s40, s39, 0x9E3779B1
    s_add_u32 s40, s40, 0x7F4A7C15
    s_and_b32 s40, s40, 0xfffffff0
    s_or_b32 s62, s40, s41
    s_lshl_b32 s63, s35, 2
    s_add_u32 s63, s63, s59
    v_mov_b32 v24, s62
    s_or_b32 s61, s40, 8
    s_lshl_b32 s18, s57, 6
    s_add_u32 s18, s18, {FB_OFF}
    v_mov_b32 v{vTAG}, s61
    """)
    FBE = 2
    stamp("mid")
    if opt.get("adapt"):
        A.vmem(f"buffer_load_dword v26, v{vPA}, s[24:27], s59 offen sc1", "SA")
    A.need(["SA"], ["QW"])
    stamp("ackA")
    if opt.get("adapt"):
        A(f"""
        v_cmp_eq_u32 vcc, s62, v26
        s_bcnt1_i32_b32 s52, vcc_lo
        s_cmp_ge_u32 s52, {opt["adapt"]}
        s_cselect_b32 s52, 0x20000000, s37
        s_cselect_b32 s37, s37, 0x20000000
        """)
        A.vmem(f"buffer_load_dword v254, v159, s[24:27], s52 offen sc1", "ST")
    elif opt.get("stch", 1) == 1: A.vmem(f"buffer_load_dword v254, v159, s[24:27], s37 offen sc1", "ST")
    A("s_barrier")
    A.vmem(f"buffer_store_dword v24, v{vFB}, s[24:27], s63 offen", "FA")
    if opt.get("fb0", 1): A.vmem(f"buffer_store_dword v{vTAG}, v{vFB}, s[24:27], s18 offen sc1", "FB")
    if opt.get("stch", 1) == 2: A.vmem(f"buffer_load_dword v254, v159, s[24:27], s37 offen sc1", "ST")
    stamp("bar0")
    run(opt.get("o3b", "sb.qrope"))
    A(f"""
    buffer_load_dword v26, v{vPA}, s[24:27], s59 offen sc1
    s_lshl_b32 s60, s33, 12
    s_add_u32 s60, s60, {FB_OFF}
    s_mov_b32 s3, 0
    s_mov_b32 s19, 0
    """)
    run(opt.get("o5", "warm"))
    A.label("L_pollA")
    A(f"""
    s_waitcnt vmcnt(0)
    v_cmp_eq_u32 vcc, s62, v26
    s_cmp_eq_u64 vcc, -1
    s_cbranch_scc0 L_pollA_more
    """)
    A.vm = []
    stamp("flagsA")
    OOL.label("L_pollA_more")
    OOL(f"""
    buffer_load_dword v26, v{vPA}, s[24:27], s59 offen sc1
    s_add_u32 s19, s19, 1
    s_cmp_lt_u32 s19, {opt.get("tmo", 64)}
    s_cbranch_scc1 L_pollA
    s_waitcnt vmcnt(0)
    {"" if opt.get("fb0", 1) else "s_waitcnt lgkmcnt(0)"}
    {"" if opt.get("fb0", 1) else "s_barrier"}
    {"" if opt.get("fb0", 1) else "buffer_store_dword v%d, v%d, s[24:27], s18 offen sc1" % (vTAG, vFB)}
    v_lshlrev_b32 v27, 4, v{vPA}
    s_lshl_b32 s52, s34, 11
    v_add_u32 v27, s52, v27
    s_mov_b32 s53, 0
    """)
    OOL.label("L_pollB0")
    OOL(f"""
    buffer_load_dword v26, v27, s[24:27], s60 offen sc1
    s_add_u32 s53, s53, 1
    s_waitcnt vmcnt(0)
    v_cmp_eq_u32 vcc, s61, v26
    s_cmp_eq_u64 vcc, -1
    s_cbranch_scc1 L_pollB0_ok
    s_sleep 4
    s_cmp_lt_u32 s53, 0x100000
    s_cbranch_scc1 L_pollB0
    """)
    OOL.label("L_pollB0_ok")
    for b_ in range(0 if opt.get("noa", 1) else 4): OOL(f"s_add_u32 s{42+b_}, s{42+b_}, {RB-RA}")
    OOL("s_mov_b32 s3, 1\n s_branch L_go")

    order = []
    for r in range(n):
        order.append(("QK", r))
        if r >= 1: order.append(("PV", r-1))
    order.append(("PV", n-1))
    mf = []; a = [0]*n; b = [0]*n
    for kind, r in order:
        if kind == "QK":
            a[r] = len(mf)
            if r < opt.get("smaj", 2):
                for s in range(8):
                    for u in range(2): mf.append(("QK", r, u, s))
            else:
                for u in range(2):
                    for s in range(8): mf.append(("QK", r, u, s))
        else:
            b[r] = len(mf)
            if r == nfull-1 and opt.get("early", 1):
                for kk in range(2):
                    for u in (1, 0): mf.append(("PV", r, u, kk))
                for u in (1, 0):
                    for kk in range(2, 8): mf.append(("PV", r, u, kk))
            else:
                for kk in range(8):
                    for u in range(2): mf.append(("PV", r, u, kk))
    nslots = len(mf)
    sready = {(m[1], m[2]): sl + 3 for sl, m in enumerate(mf) if m[0] == "QK"}
    q1last = {m[3]: sl for sl, m in enumerate(mf) if m[0] == "QK" and rounds[m[1]][m[2]][1] == 1}
    firstuse = {}; lastuse = {}
    for sl, m in enumerate(mf):
        blk = rounds[m[1]][m[2]][0]
        key = ("K" if m[0] == "QK" else "V", blk, m[3])
        firstuse.setdefault(key, sl); lastuse[key] = sl
    kbuf = {}; kfree = {}
    q1dead = a[nfull-1] + 15
    bases = list(A_K); hold = [None]*len(bases)
    if OARCH and opt.get("k4", 1): bases.append(224); hold.append(None)
    if nsolo: bases.append(A_Q + 32); hold.append("Q1")
    for blk in range(nblk):
        def rel(h): return -1 if h is None else (q1dead if h == "Q1" else lastuse[("K", h, 7)])
        i = min(range(len(bases)), key=lambda i: rel(hold[i]))
        for s in range(8):
            h = hold[i]
            kfree[(blk, s)] = -1 if h is None else (q1last[s] if h == "Q1" else lastuse[("K", h, s)])
        kbuf[blk] = bases[i]; hold[i] = blk
    def oreg(qt):
        if OARCH: return f"v[{V_O0}:{V_O0+15}]" if qt == 0 else f"a[{A_O}:{A_O+15}]"
        return f"a[{A_O+16*qt}:{A_O+16*qt+15}]"
    A_O1 = A_O if OARCH else A_O + 16
    vexp = sorted({k for k in firstuse if k[0] == "V"}, key=lambda k: firstuse[k])
    vereg = {k: V_VE + (i % NVE)*4 for i, k in enumerate(vexp)}
    vefree = {k: (-1 if i < NVE else lastuse[vexp[i-NVE]]) for i, k in enumerate(vexp)}
    vedone = {}
    barlead = opt.get("barlead", 3)
    gate = opt["chk"] + 1 if opt.get("chk") else b[opt.get("gater", 1)] - barlead
    kl = [("K", blk, s) for blk in range(nblk) for s in range(8)]
    vl = sorted([("VR", blk, i) for blk in range(nblk) for i in range(2)], key=lambda k: firstuse[("V", k[1], 4*k[2])])
    need_at = {k: firstuse[k] for k in kl}
    need_at.update({k: firstuse[("V", k[1], 4*k[2])] - opt.get("vneed", 20) for k in vl})
    for i in range(2): need_at[("VR", 0, i)] = opt.get("v0need", 26) + opt.get("v0d", 6)*i
    for i in range(2): need_at[("VR", 1, i)] = max(need_at[("VR", 1, i)], opt.get("v1need", 56) + 4*i)
    issued = set()
    def ld_free(key):
        f = -1
        if key[0] == "K": f = kfree[(key[1], key[2])]
        elif key[1] >= NVR: f = vedone.get(("V", key[1]-NVR, 4*key[2]+3), 10**6)
        if key[1] >= 4: f = max(f, gate)
        return f
    def ld(key):
        k, blk, f = key
        issued.add(key)
        if k == "K":
            rg = kbuf[blk] + 4*f
            A.vmem(f"buffer_load_dwordx4 a[{rg}:{rg+3}], v{vK0 + f//4}, s[24:27], s{42+blk} offen offset:{(f%4)*1024}", key)
        else:
            rg = V_VR + (blk % NVR)*8 + 4*f
            A.vmem(f"buffer_load_dwordx4 v[{rg}:{rg+3}], v{vV+f}, s[24:27], s{42+blk} offen", key)
    tb = []
    for r in range(n):
        for u in range(2):
            if not tb or tb[-1][0] != rounds[r][u][0]: tb.append((rounds[r][u][0], r, u))
    lvreg = {blk: V_LV[i % 2] for i, (blk, _, _) in enumerate(tb)}
    rvreg = {blk: V_RV[i % 2] for i, (blk, _, _) in enumerate(tb)}
    lv_use = {blk: firstuse[("K", blk, 0)] for blk, _, _ in tb}
    lv_last = {blk: lastuse[("K", blk, 0)] for blk, _, _ in tb}
    rv_done = {}
    lvq = [("LV", blk, q, i) for i, (blk, r, u) in enumerate(tb) for q in range(4)]
    rvq = [("RV", blk, q, i) for i, (blk, r, u) in enumerate(tb) for q in range(2)]
    tdone = {}
    A.label("L_go")
    def qread(i):
        A.ds(f"ds_read_b128 a[{A_Q+4*i}:{A_Q+4*i+3}], v23 offset:{LDS_Q + (i//8)*8448 + (i%8)*1056}", ("Q", i//8, i%8))
    qord = [x for s_ in range(8) for x in (s_, 8+s_)] if opt.get("smaj", 2) else list(range(16))
    for _ in range(opt.get("npre0", 2)): ld(kl.pop(0))
    if opt.get("stch", 1) == 3: A.vmem(f"buffer_load_dword v254, v159, s[24:27], s37 offen sc1", "ST")
    assert opt.get("fb0", 1) or not opt.get("o6")
    run(opt.get("o6", ""))
    if opt.get("fb0", 1):
        if A.lg: A("s_waitcnt lgkmcnt(0)\n s_barrier"); A.lg = []
    else:
        A("s_cmp_eq_u32 s3, 0\n s_waitcnt lgkmcnt(0)\n s_cbranch_scc0 L_skip2\n s_barrier"); A.lg = []
        A.label("L_skip2")
    stamp("bar1")
    rd = [lambda q_=q_: A.ds(f"ds_read_b128 v[{V_LV[0]+4*q_}:{V_LV[0]+4*q_+3}], v{vT} offset:{LDS_T + q_*32}", ("LV", 0, q_)) for q_ in range(4)]
    rd += [lambda i=i: qread(i) for i in qord[:10]]
    for _ in range(opt.get("npre", 6) - opt.get("npre0", 2)):
        for _ in range(opt.get("gap0", 3)):
            if rd: rd.pop(0)()
        ld(kl.pop(0))
    while rd: rd.pop(0)()
    qrest = qord[10:]
    def tread(t, sl_):
        k, blk, q, i = t
        rg = (lvreg if k == "LV" else rvreg)[blk] + 4*q
        j_, rel_ = (0, blk) if blk < 4 else ((1, blk-4) if blk < nfull else (2, blk-nfull))
        if k == "LV": A.ds(f"ds_read_b128 v[{rg}:{rg+3}], v{(vT, vT2, vT3)[j_]} offset:{LDS_T + rel_*512 + q*32}", (k, blk, q))
        else: A.ds(f"ds_read_b128 v[{rg}:{rg+3}], v{(vR, vR2, vR3)[j_]} offset:{LDS_R + rel_*768 + q*96}", (k, blk, q))
        tdone[(k, blk, q)] = sl_
    for q_ in range(4): lvq.pop(0); tdone[("LV", 0, q_)] = -5
    wend = {r: b[r] - opt.get("smend", 6) - (opt.get("lx", 2) if r in (nfull-1, n-1) else 0) for r in range(n)}
    items = {}
    for r in range(n):
        S = V_S[r % 2]; PO = V_PO[r % 2]; L = []
        for e in range(33):
            if e < 32: L.append(("e", e, f"v_exp_f32 v{S+e}, v{S+e}", None))
            if e >= 2 and e % 2 == 0:
                L.append(("c", e, f"v_cvt_pk_bf16_f32 v{PO + (e-2)//2}, v{S+e-2}, v{S+e-1}", None))
        items[r] = L
    cur = 0; ci = 0; pendw = []; nw = {r: 0 for r in range(n)}
    pendm = []; seenL = set(); pendl = []; lwr = set()
    bar_at = {b[r] - barlead: r for r in range(n)}
    pslot = {(m[1], m[3], m[2]): sl for sl, m in enumerate(mf) if m[0] == "PV"}
    prq = sorted([(r, kk, u, (kk-2)*2+u) for r in range(n) for kk in range(2, 8) for u in range(2)], key=lambda x: pslot[x[:3]])
    prdone = set(); lastw = -10
    send_slot = pslot[(nfull-1, 7, 1)] + 3
    inloop = send_slot + 6 < nslots
    flag_slot = send_slot + opt.get("flagdelay", 16)
    xpoll_slot = flag_slot + opt.get("xpolldelay", 10)
    xchk_slot = xpoll_slot + opt.get("xchkdelay", 8)
    xuse_slot = xchk_slot + opt.get("xusedelay", 8)
    pollB_slot = opt.get("pollslot", 54); chkB_slot = opt.get("chk") or gate - opt.get("chklead", 3)
    XR = V_LV[0]
    def operands(m):
        blk = rounds[m[1]][m[2]][0]
        if m[0] == "QK":
            lt = [("Q", rounds[m[1]][m[2]][1], m[3])]
            if m[3] == 0: lt += [("LV", blk, q) for q in range(4)]
            return [("K", blk, m[3])], lt
        return [], [("PR", m[1], m[3], m[2])]
    def lsum(t_, dst):
        return [f"v_add_f32 v{t_}, v{t_}, v{t_+1}", f"v_add_f32 v{t_+2}, v{t_+2}, v{t_+3}", f"v_add_f32 v{t_+4}, v{t_+4}, v{t_+5}", f"v_add_f32 v{t_+6}, v{t_+6}, v{t_+7}",
                f"v_add_f32 v{t_}, v{t_}, v{t_+2}", f"v_add_f32 v{t_+4}, v{t_+4}, v{t_+6}", f"v_add_f32 v{dst}, v{t_}, v{t_+4}"]
    LT = [0, 0]
    uid = [0]
    def two_way(fn):
        if XSC1: fn(A, "sc1"); return
        uid[0] += 1; u_ = uid[0]
        A(f"s_cmp_eq_u32 s37, s62\n s_cbranch_scc0 L_far{u_}")
        fn(A, ""); A.label(f"L_join{u_}")
        OOL.label(f"L_far{u_}"); fn(OOL, "sc1"); OOL.vm = []; OOL(f"s_branch L_join{u_}")
    def send_payload(B, fl):
        for i in range(4):
            o = A_O1 + 4*i
            B.vmem(f"buffer_store_dwordx4 a[{o}:{o+3}], v{vX}, s[24:27], s54 offen offset:{i*1024} {fl}", "XS")
        B.vmem(f"buffer_store_dword v{vLS}, v{vXL}, s[24:27], s54 offen {fl}", "XS")
    def send_flag(B, fl):
        B.vmem(f"buffer_store_dword v{vTAG}, v{vXF}, s[24:27], s54 offen {fl}", "XF")
    def self_touch():
        if opt.get("selft", 1): A.vmem(f"buffer_load_dword v{vPB}, v{vXT}, s[24:27], s54 offen sc1", "ST")
    def recv_loads():
        A.vmem(f"buffer_load_dword v{XR+16}, v{vXL}, s[24:27], s55 offen sc1", "XR")
        for i in range(4):
            A.vmem(f"buffer_load_dwordx4 v[{XR+4*i}:{XR+4*i+3}], v{vX}, s[24:27], s55 offen offset:{i*1024} sc1", "XR")
    def xcheck():
        A(f"v_cmp_eq_u32 vcc, s61, v{V_TMP}\n s_cbranch_vccz L_xspin0")
        A.label("L_xok")
        OOL.label("L_xspin0"); OOL("s_mov_b32 s53, 0"); OOL.label("L_xspin")
        OOL(f"""
        buffer_load_dword v{V_TMP}, v{vXF}, s[24:27], s55 offen sc1
        s_add_u32 s53, s53, 1
        s_waitcnt vmcnt(0)
        v_cmp_eq_u32 vcc, s61, v{V_TMP}
        s_cbranch_vccnz L_xok
        s_cmp_lt_u32 s53, 0x100000
        s_cbranch_scc1 L_xspin
        s_branch L_xok
        """)
    def fin_pre():
        L_ = [f"v_add_f32 v{V_L}, v{V_L}, v{XR+16}", f"v_rcp_f32 v{V_TMP}, v{V_L}",
              f"v_cmp_lt_f32 vcc, 0x30800000, v{V_L}", f"v_cmp_gt_f32 s[52:53], s19, v{V_L}"]
        L_ += [f"v_mul_f32 v{XR+i}, v{XR+i}, v{V_TMP}" for i in range(16)]
        return L_
    XB = V_PO[(nfull-1) % 2]
    XL = V_LV[1]
    def xpos(k): return k + k//3
    def tag_pack():
        L_ = []
        for k in range(8):
            L_ += [f"v_accvgpr_read_b32 v{V_TMP}, a{A_O1+2*k}", f"v_accvgpr_read_b32 v{V_TMP+1}, a{A_O1+2*k+1}",
                   f"v_cvt_pk_bf16_f32 v{XB+xpos(k)}, v{V_TMP}, v{V_TMP+1}"]
            if k in (2, 5, 7): L_.append(("st", {2: 0, 5: 1, 7: 2}[k]))
        return L_
    def tag_recv(B):
        for i in range(3):
            B.vmem(f"buffer_load_dwordx4 v[{XL+4*i}:{XL+4*i+3}], v{vX}, s[24:27], s55 offen offset:{i*1024} sc1", "XR")
    def tag_cmp(B):
        B(f"v_cmp_eq_u32 vcc, s61, v{XL+3}\n v_cmp_eq_u32 s[52:53], s61, v{XL+7}\n v_cmp_eq_u32 s[20:21], s61, v{XL+11}")
        B("s_and_b64 vcc, vcc, s[52:53]\n s_and_b64 vcc, vcc, s[20:21]\n s_cmp_eq_u64 vcc, -1")
    def tag_check():
        tag_cmp(A); A("s_cbranch_scc0 L_xspin0"); A.label("L_xok")
        OOL.label("L_xspin0"); OOL("s_mov_b32 s38, 0"); OOL.label("L_xspin")
        tag_recv(OOL); OOL.vm = []
        OOL("s_add_u32 s38, s38, 1\n s_waitcnt vmcnt(0)"); tag_cmp(OOL)
        OOL("s_cbranch_scc1 L_xok\n s_cmp_lt_u32 s38, 0x100000\n s_cbranch_scc1 L_xspin\n s_branch L_xok")
    def tag_fin():
        L_ = [f"v_add_f32 v{V_L}, v{V_L}, v{XL+10}", f"v_rcp_f32 v{V_TMP}, v{V_L}",
              f"v_cmp_lt_f32 vcc, 0x30800000, v{V_L}", f"v_cmp_gt_f32 s[52:53], s19, v{V_L}"]
        for k in range(8):
            L_ += [f"v_lshlrev_b32 v{XR+2*k}, 16, v{XL+xpos(k)}", f"v_and_b32 v{XR+2*k+1}, 0xffff0000, v{XL+xpos(k)}"]
        L_ += [f"v_mul_f32 v{XR+i}, v{XR+i}, v{V_TMP}" for i in range(16)]
        return L_
    def emit_extra(x_):
        if isinstance(x_, tuple):
            A.vmem(f"buffer_store_dwordx4 v[{XB+4*x_[1]}:{XB+4*x_[1]+3}], v{vX}, s[24:27], s54 offen offset:{x_[1]*1024} sc1", "XS")
        else: A(x_)
    xld_slot = opt.get("xld", nslots - 22); xuse2 = opt.get("xuse", max(xld_slot + 10, nslots - 8))
    extra = []
    seenO = set(); vi = 0; vpart = 0
    vt, lt = operands(mf[0]); A.need(vt, lt)
    stamp("mfma0")
    totcost = []; fb_done = []; pb_done = []; ldlog = []
    pipe = opt.get("pipe0", 200)
    for sl in range(nslots):
        m = mf[sl]
        blk, qt = rounds[m[1]][m[2]]
        if m[0] == "QK":
            _, r, u, s = m
            d = V_S[r % 2] + u*16
            c = f"v[{lvreg[blk]}:{lvreg[blk]+15}]" if s == 0 else f"v[{d}:{d+15}]"
            if s == 0: assert all(("LV", blk, q_) in tdone for q_ in range(4)), ("lv not read", sl)
            assert ("K", blk, s) in issued, ("K not loaded", sl)
            assert qt*8+s not in qrest
            k = kbuf[blk] + 4*s; q = A_Q + (qt*8+s)*4
            A(f"v_mfma_f32_32x32x16_bf16 v[{d}:{d+15}], a[{k}:{k+3}], a[{q}:{q+3}], {c}")
        else:
            _, r, u, kk = m
            c = "0" if qt not in seenO else oreg(qt)
            seenO.add(qt)
            assert ("V", blk, kk) in vedone, ("V frag not expanded", sl, m)
            assert kk < 2 or (r, kk, u) in prdone, ("P not read", sl)
            v = vereg[("V", blk, kk)]
            ps = f"v[{V_PO[r%2] + (u*2+kk)*4}:{V_PO[r%2] + (u*2+kk)*4+3}]" if kk < 2 else f"a[{A_P + ((kk-2)*2+u)*4}:{A_P + ((kk-2)*2+u)*4+3}]"
            A(f"v_mfma_f32_32x32x16_bf16 {oreg(qt)}, v[{v}:{v+3}], {ps}, {c}")
        stamp(f"slot{sl}")
        bud = 24
        vt, lt = operands(mf[sl+1]) if sl + 1 < nslots else ([], [])
        vt = list(vt); lt = list(lt)
        if vi < len(vexp) and sl >= need_at[("VR", vexp[vi][1], vexp[vi][2]//4)]: vt.append(("VR", vexp[vi][1], vexp[vi][2]//4))
        if pendm and tdone.get(("RV", rounds[pendm[0][0]][pendm[0][1]//2][0], pendm[0][1] % 2), 10**6) <= sl - 2:
            lt.append(("RV", rounds[pendm[0][0]][pendm[0][1]//2][0], pendm[0][1] % 2))
        if sl == chkB_slot: vt.append("PB")
        if inloop and not XTAG:
            if sl == flag_slot: vt.append("XS")
            if sl == xchk_slot: vt.append("XP")
            if sl == xuse_slot: vt.append("XR")
        if inloop and XTAG and sl == xuse2: vt.append("XR")
        if sl == b[nfull-1] + 4: lt.append(("LR", 1))
        if sl == b[n-1] + 4: lt.append(("LR", 0))
        if sl in bar_at:
            r = bar_at[sl]
            assert nw[r] == 4, ("P not written before barrier", r, sl)
            for q_ in ([1] if r == nfull-1 else []) + ([0] if r == n-1 else []): assert q_ in lwr, ("l not written", sl)
            A.need(vt, lt + [("PW", r), "LW"])
            A("s_barrier")
            bud -= COST['bar']
            for q_ in ([1] if r == nfull-1 else []) + ([0] if r == n-1 else []):
                LT[q_] = V_S[r % 2] + 8*q_
                for hf in range(2):
                    A.ds(f"ds_read_b128 v[{LT[q_]+hf*4}:{LT[q_]+hf*4+3}], v{vLR} offset:{LDS_L + q_*1024 + hf*16}", ("LR", q_)); bud -= 4
        else:
            A.need(vt, lt)
        if sl == b[nfull-1] + 4:
            extra += lsum(LT[1], XB+10 if XTAG else vLS)
            if XTAG: extra += [f"v_mov_b32 v{XB+j}, s61" for j in (3, 7, 11)]
        if sl == b[n-1] + 4: extra += lsum(LT[0], V_L)
        hasw = bool(pendw) and sl not in bar_at and not (sl + 1 in bar_at)
        nr = 0
        while nr < opt.get("maxr", 2) and len(A.lg) < 13:
            c_ = []
            if prq:
                r, kk, u, idx = prq[0]
                if sl >= b[r] - barlead and (r == 0 or sl >= pslot[(r-1, kk, u)]): c_.append((pslot[(r, kk, u)] - 5, "p"))
            if qrest: c_.append((qord.index(qrest[0]) - 6, "q"))
            if lvq:
                _, tblk, q, i = lvq[0]
                if (i < 2 or lv_last[tb[i-2][0]] + 1 < sl): c_.append((lv_use[tblk] - 8 + q, "lv"))
            if rvq:
                _, tblk, q, i = rvq[0]
                if (i < 2 or (tb[i-2][0], q) in rv_done): c_.append((lv_use[tblk] + 8 + 4*q, "rv"))
            if not c_: break
            d_, k_ = min(c_)
            if sl == lastw + 1 and d_ > sl - 2: break
            if nr >= 1 and d_ > sl + 1: break
            if hasw and d_ > sl + 1: break
            if d_ > sl + opt.get("rlead", 24): break
            if k_ == "p":
                r, kk, u, idx = prq.pop(0); rg = A_P + idx*4
                A.ds(f"ds_read_b128 a[{rg}:{rg+3}], v{vPR+kk//2-1} offset:{(r%NPB)*16384 + (u*2+kk%2)*1024}", ("PR", r, kk, u)); prdone.add((r, kk, u))
            elif k_ == "q": qread(qrest.pop(0))
            elif k_ == "lv": tread(lvq.pop(0), sl)
            else: tread(rvq.pop(0), sl)
            bud -= COST["r"]; nr += 1
        if hasw:
            r, f = pendw.pop(0); PO = V_PO[r % 2]
            A.ds(f"ds_write_b128 v{vPW}, v[{PO+4*f}:{PO+4*f+3}] offset:{(r%NPB)*16384 + f*1024}", ("PW", r)); bud -= COST["w"]; nw[r] += 1
            lastw = sl
        if pendl and pendl[0][0] <= sl:
            _, q_ = pendl.pop(0); lwr.add(q_)
            A.ds(f"ds_write_b64 v{vLW}, v[{V_LA+4*q_}:{V_LA+4*q_+1}] offset:{q_*1024}", "LW")
            A.ds(f"ds_write_b64 v{vLW}, v[{V_LA+4*q_+2}:{V_LA+4*q_+3}] offset:{q_*1024+512}", "LW"); bud -= 24
        nxt_ = min([need_at[q_[0]] for q_ in (kl, vl) if q_ and (q_[0][1] < 4 or sl >= gate)] + [10**6]) - sl
        if not fb_done and not opt.get("fb0", 1) and sl >= opt.get("fbslot", 13) and (nxt_ >= opt.get("fbgap", 20) or sl >= opt.get("fbmax", 29)):
            fb_done.append(sl); assert sl < b[0]
            if not FBE:
                A("s_cmp_eq_u32 s3, 0\n s_cbranch_scc0 L_skip2\n s_barrier"); bud -= 42
                A.label("L_skip2")
            A.vmem(f"buffer_store_dword v{vTAG}, v{vFB}, s[24:27], s18 offen sc1", "FB"); bud -= 8
        elif not pb_done and sl >= pollB_slot and (nxt_ >= opt.get("pollgap", 24) or sl >= chkB_slot - opt.get("pollmin", 18)):
            pb_done.append(sl)
            assert not late
            A.vmem(f"buffer_load_dword v{V_TMP}, v{vPB}, s[24:27], s60 offen sc1", "PB"); bud -= 8
            if not XSC1: A.vmem(f"buffer_load_dword v{V_TMP+1}, off, s[24:27], s37 sc1", "PB"); bud -= 8
        elif (kl or vl) and not hasw and sl not in bar_at:
            c_ = [q_[0] for q_ in (kl, vl) if q_ and ld_free(q_[0]) <= sl and need_at[q_[0]] - sl <= opt.get("maxlead", 60)]
            if c_:
                key = min(c_, key=lambda k: need_at[k])
                now = sum(max(32, c) for c in totcost)
                if pipe - now <= opt.get("qmax", 60) or need_at[key] - sl < opt.get("urg", 10):
                    (kl if key[0] == "K" else vl).pop(0)
                    ld(key); bud -= COST["l"]; ldlog.append((sl, key, need_at[key] - sl))
                    pipe = max(pipe, now) + (opt.get("kdur", 74) if key[0] == "K" else opt.get("vdur", 74))
        if sl == chkB_slot:
            A(f"v_cmp_eq_u32 vcc, s61, v{V_TMP}")
            if not XSC1: A(f"v_readfirstlane_b32 s37, v{V_TMP+1}")
            A(f"s_cmp_eq_u64 vcc, -1\n s_cbranch_scc0 L_bspin0")
            A.label("L_bok")
            OOL.label("L_bspin0"); OOL("s_mov_b32 s53, 0"); OOL.label("L_bspin")
            OOL(f"""
            buffer_load_dword v{V_TMP}, v{vPB}, s[24:27], s60 offen sc1
            s_add_u32 s53, s53, 1
            s_waitcnt vmcnt(0)
            v_cmp_eq_u32 vcc, s61, v{V_TMP}
            s_cmp_eq_u64 vcc, -1
            s_cbranch_scc1 L_bok
            s_cmp_lt_u32 s53, 0x100000
            s_cbranch_scc1 L_bspin
            s_branch L_bok
            """)
            A("s_mov_b32 s19, 0x4e800000")
            for x_ in late2: A(x_)
            bud -= 20
        if sl == opt.get("wbslot", -1):
            A("s_or_b32 s38, s35, s32\n s_cbranch_scc0 L_dowb"); A.label("L_nowb"); bud -= 8
            OOL.label("L_dowb"); OOL("buffer_wbl2 sc1\n s_branch L_nowb")
        if inloop and XTAG:
            if sl == send_slot:
                assert not extra
                stamp("send"); extra += tag_pack()
            if sl == xld_slot:
                assert not kl and not vl and all(lv_last[t[0]] + 1 < sl for t in tb) and sl > send_slot + 8
                tag_recv(A); bud -= 24
            if sl == xuse2:
                assert sl > b[n-1] + 4 and all(lv_last[t[0]] < sl for t in tb)
                stamp("xr")
                while extra: emit_extra(extra.pop(0)); bud -= 4
                tag_check(); bud -= 28; extra += tag_fin()
        elif inloop:
            if sl == send_slot:
                assert not extra
                stamp("send"); two_way(send_payload); bud -= 60
                if not XSC1: self_touch(); bud -= 8
            if sl == flag_slot:
                stamp("xack"); two_way(send_flag); bud -= 16
            if sl == xpoll_slot:
                A.vmem(f"buffer_load_dword v{V_TMP}, v{vXF}, s[24:27], s55 offen sc1", "XP"); bud -= 8
            if sl == xchk_slot:
                assert not kl and not vl and all(lv_last[t[0]] < sl for t in tb)
                stamp("xp"); xcheck(); recv_loads(); bud -= 50
            if sl == xuse_slot:
                assert sl > b[n-1] + 4
                stamp("xr"); extra += fin_pre()
        def vexp_step():
            nonlocal vi, vpart, bud
            key = vexp[vi]; src = V_VR + (key[1] % NVR)*8 + key[2]
            A(f"v_cvt_scalef32_pk_bf16_fp4 v{vereg[key]+vpart}, v{src}, 1.0 op_sel:[{vpart&1},{vpart>>1},0]")
            bud -= 4; vpart += 1
            if vpart == 4: vedone[key] = sl; vi += 1; vpart = 0
        def vexp_ok():
            if vi >= len(vexp): return False
            key = vexp[vi]; tag = ("VR", key[1], key[2]//4)
            return vefree[key] <= sl and tag not in A.vm and tag in issued
        def sm_next():
            nonlocal cur, ci
            while cur < n and ci >= len(items[cur]): cur += 1; ci = 0
            if cur >= n: return None
            kind, e, txt, info = items[cur][ci]
            if sl < sready[(cur, 0)]: return None
            if kind == "e" and e == 16 and sl < sready[(cur, 1)]: return None
            if kind == "c" and XTAG and cur == nfull + 1: assert not extra and sl > send_slot + 4
            rate = min(opt.get("smrate", 0.7), (wend[cur] - sready[(cur, 0)]) / 33.0)
            return wend[cur] - (32 - e) * rate
        def sm_step():
            nonlocal ci, bud
            kind, e, txt, info = items[cur][ci]
            A(txt); bud -= COST[kind]; ci += 1
            if kind == "c" and e % 8 == 0: pendw.append((cur, e//8 - 1)); newm.append((cur, e//8 - 1))
        newm = []
        def fill():
          nonlocal bud
          while True:
            ds_ = sm_next(); dv = None
            if vi < len(vexp):
                dl = firstuse[vexp[vi]] - 2 - (3 - vpart) * 0.25
                if vexp_ok(): dv = dl
                elif firstuse[vexp[vi]] - sl <= 2:
                    A.need([("VR", vexp[vi][1], vexp[vi][2]//4)])
                    assert vexp_ok(), ("cannot expand in time", sl, vexp[vi])
                    dv = dl
            cands = [(d, k) for d, k in ((ds_, "s"), (dv, "v")) if d is not None]
            if extra:
                if inloop and sl < send_slot: dx = send_slot - 3
                elif inloop and XTAG and sl < send_slot + 8: dx = send_slot + (27 - len(extra)) * opt.get("packrate", 0.12)
                else: dx = sl + 3
                cands.append((dx, "x"))
            if late: cands.append((8, "t"))
            if late3 and nsolo and all(t_[1] >= nfull for t_ in lvq + rvq) and sl > chkB_slot: cands.append((b[nfull-1] + 8, "u"))
            if not cands: break
            d, k = min(cands)
            if d > sl:
                if bud <= 0: break
                if d > sl + opt.get("fitslack", 2) and k == "s" and COST[items[cur][ci][0]] > bud:
                    cands = [c for c in cands if c[1] != "s"]
                    if not cands: break
                    d, k = min(cands)
            if k == "s": sm_step()
            elif k == "v": vexp_step()
            elif k == "x": emit_extra(extra.pop(0)); bud -= 4
            elif k == "u": A(late3.pop(0)); bud -= 4
            else: A(late.pop(0)); bud -= 4
        fill()
        mcost = 0
        if pendm:
            r_, f_ = pendm[0]; blk_, qt_ = rounds[r_][f_//2]; tag = ("RV", blk_, f_ % 2)
            if tag in tdone and tag not in A.lg:
                pendm.pop(0)
                la = V_LA + 4*qt_; rv_ = rvreg[blk_] + 4*(f_ % 2); po_ = V_PO[r_ % 2] + 4*f_
                A(f"v_mfma_f32_16x16x32_bf16 v[{la}:{la+3}], v[{rv_}:{rv_+3}], v[{po_}:{po_+3}], {'v[%d:%d]' % (la, la+3) if qt_ in seenL else '0'}")
                seenL.add(qt_)
                if f_ >= 2 or rounds[r_][0][0] != rounds[r_][1][0]: rv_done[(blk_, f_ % 2)] = sl
                if f_ == 3:
                    for q_ in ([1] if r_ == nfull-1 else []) + ([0] if r_ == n-1 else []): pendl.append((sl + 1, q_))
                b0 = bud; bud = opt.get("mbud", 8); fill(); mcost = max(16, 16 - bud); bud = min(b0, 0) - mcost
        pendm += newm
        totcost.append(32 - bud)
    assert not kl and not vl
    if opt.get("verbose"):
        print("fb", fb_done, "pb", pb_done, "loads", " ".join(f"{s_}:{k_[0]}{k_[1]}.{k_[2]}(+{d_})" for s_, k_, d_ in ldlog), file=sys.stderr)
        print("slot costs:", totcost, "sum:", sum(totcost), "sum max(32,c):", sum(max(32, c) for c in totcost), file=sys.stderr)
    stamp("loopend")
    for x_ in late3: A(x_)
    for x_ in extra: emit_extra(x_)
    if XTAG:
        if not inloop:
            for x_ in tag_pack(): emit_extra(x_)
        if not inloop or xld_slot >= nslots: A.need(["XS"]); tag_recv(A)
        if not inloop or xuse2 >= nslots:
            A.need(["XR"]); stamp("xr"); tag_check()
            for x_ in tag_fin(): A(x_)
    else:
        if not inloop:
            A("s_nop 7"); two_way(send_payload)
            if not XSC1: self_touch()
        if not inloop or flag_slot >= nslots: A.need(["XS"]); two_way(send_flag)
        if not inloop or xpoll_slot >= nslots: A.vmem(f"buffer_load_dword v{V_TMP}, v{vXF}, s[24:27], s55 offen sc1", "XP")
        if not inloop or xchk_slot >= nslots: A.need(["XP"]); xcheck(); recv_loads()
        if not inloop or xuse_slot >= nslots:
            A.need(["XR"]); stamp("xr")
            for x_ in fin_pre(): A(x_)
    if not opt.get("noslow"): A("s_and_b64 vcc, vcc, s[52:53]\n s_cmp_eq_u64 vcc, -1\n s_cbranch_scc0 L_slow")
    O = V_O0
    if not OARCH:
        O = V_S[n % 2]
        for i in range(16): A(f"v_accvgpr_read_b32 v{O+i}, a{A_O+i}")
    pk = V_PO[0]
    for bq in range(4):
        for a_ in range(4): A(f"v_fmac_f32 v{XR+4*a_+bq}, v{O+4*a_+bq}, v{V_TMP}")
    A.label("L_pack")
    OT = opt.get("otr", 1)
    for bq in range(4):
        A(f"v_cvt_pk_bf16_f32 v{pk+2*bq}, v{XR+bq}, v{XR+4+bq}")
        A(f"v_cvt_pk_bf16_f32 v{pk+2*bq+1}, v{XR+8+bq}, v{XR+12+bq}")
        if bq == 1:
            if OT: A(f"ds_write_b128 v{vOW}, v[{pk}:{pk+3}] offset:{LDS_Q}")
            else: A(f"buffer_store_dwordx4 v[{pk}:{pk+3}], v{vOUT}, s[28:31], s56 offen {opt.get('ofl','')}")
    if OT:
        A(f"""
        ds_write_b128 v{vOW}, v[{pk+4}:{pk+7}] offset:{LDS_Q+16}
        ds_read_b128 v[{pk+8}:{pk+11}], v{vOR} offset:{LDS_Q}
        ds_read_b128 v[{pk+12}:{pk+15}], v{vOR} offset:{LDS_Q+1280}
        s_add_u32 s52, s56, 4096
        s_waitcnt lgkmcnt(1)
        buffer_store_dwordx4 v[{pk+8}:{pk+11}], v{vOUT}, s[28:31], s56 offen {opt.get('ofl','')}
        s_waitcnt lgkmcnt(0)
        buffer_store_dwordx4 v[{pk+12}:{pk+15}], v{vOUT}, s[28:31], s52 offen {opt.get('ofl','')}
        """)
    else:
        A(f"buffer_store_dwordx4 v[{pk+4}:{pk+7}], v{vOUT}, s[28:31], s56 offen offset:16 {opt.get('ofl','')}")
    A(f"""
    s_and_b32 s52, s57, 63
    s_cbranch_scc1 L_nobump
    s_add_u32 s52, s39, 1
    s_lshl_b32 s53, s33, 7
    v_mov_b32 v{V_TMP}, s52
    buffer_store_dword v{V_TMP}, v{vFB}, s[24:27], s53 offen
    """)
    A.label("L_nobump")
    if st:
        A("s_waitcnt vmcnt(0)")
        stamp("end")
        A(("" if rtdone else "s_memrealtime s[98:99]\n") + "s_waitcnt lgkmcnt(0)")
        A(f"s_lshl_b32 s50, s2, 2\n s_add_u32 s50, s50, s32\n s_lshl_b32 s51, s50, 7\n s_add_u32 s51, s51, {ST_OFF}")
        A("s_mov_b64 exec, 1")
        open("stampnames.txt", "w").write(" ".join(stl))
        for i in range(len(stl)):
            A(f"v_mov_b32 v10, s{64+2*i}\n v_mov_b32 v11, s{65+2*i}\n buffer_store_dwordx2 v[10:11], off, s[24:27], s51 offset:{8*i}\n s_nop 1")
        A(f"s_lshl_b32 s50, s50, 4\n s_add_u32 s50, s50, {RT_OFF}")
        A(f"v_mov_b32 v24, s96\n v_mov_b32 v25, s97\n v_mov_b32 v26, s98\n v_mov_b32 v27, s99\n buffer_store_dwordx4 v[24:27], off, s[24:27], s50")
    A.label("L_end")
    A("s_endpgm")
    S = OOL
    S.label("L_slow")
    S(f"""
    s_waitcnt vmcnt(0) lgkmcnt(0)
    s_mul_i32 s40, s33, {64*TILE}
    s_add_u32 s40, s40, {RB}
    v_add_u32 v{vK1}, 0x1000, v{vX}
    v_mov_b32 v40, 0xff800000
    s_mov_b32 s41, s40
    s_mov_b32 s42, 0
    """)
    def slow_qk():
        for s in range(8): S(f"buffer_load_dwordx4 a[{64+4*s}:{67+4*s}], v{vX if s < 4 else vK1}, s[24:27], s41 offen offset:{(s%4)*1024} sc1")
        S("s_waitcnt vmcnt(0)")
        for s in range(8): S(f"v_mfma_f32_32x32x16_bf16 v[24:39], a[{64+4*s}:{67+4*s}], a[{4*s}:{4*s+3}], {'0' if s == 0 else 'v[24:39]'}")
        S("s_nop 15")
    S.label("L_slow1")
    slow_qk()
    for i in range(8): S(f"v_max3_f32 v40, v{24+2*i}, v{25+2*i}, v40")
    S(f"""
    s_add_u32 s41, s41, {TILE}
    s_add_u32 s42, s42, 1
    s_cmp_lt_u32 s42, 64
    s_cbranch_scc1 L_slow1
    v_mov_b32 v41, v40
    s_nop 1
    v_permlane32_swap_b32 v40, v41
    v_max_f32 v40, v40, v41
    v_mov_b32 v42, 0
    v_and_b32 v43, 7, v{vLANE}
    v_bfe_u32 v44, v{vLANE}, 3, 2
    v_lshl_add_u32 v43, v43, 2, v44
    v_lshl_add_u32 v43, v{vW}, 5, v43
    v_lshlrev_b32 v43, 2, v43
    v_lshrrev_b32 v44, 5, v{vLANE}
    s_lshl_b32 s52, s33, 11
    v_lshl_add_u32 v44, v44, 2, s52
    v_lshl_add_u32 v43, v44, 9, v43
    v_lshlrev_b32 v44, 1, v44
    s_mov_b32 s41, s40
    s_mov_b32 s42, 0
    """)
    for i in range(16): S(f"v_mov_b32 v{XR+i}, 0")
    S.label("L_slow2")
    for g in range(4):
        S(f"global_load_dwordx2 v[{64+2*g}:{65+2*g}], v44, s[14:15] offset:{16*g}")
        S(f"global_load_dwordx2 v[{72+2*g}:{73+2*g}], v44, s[16:17] offset:{16*g}")
        for b_ in range(4): S(f"global_load_dword v{48+4*g+b_}, v43, s[12:13] offset:{512*b_}")
        S("v_add_u32 v43, 0x1000, v43")
    S("v_add_u32 v44, 64, v44")
    slow_qk()
    for i in range(16): S(f"v_sub_f32 v{24+i}, v{24+i}, v40")
    for i in range(16): S(f"v_exp_f32 v{24+i}, v{24+i}")
    for i in range(16): S(f"v_add_f32 v42, v42, v{24+i}")
    for i in range(8): S(f"v_cvt_pk_bf16_f32 v{80+i}, v{24+2*i}, v{25+2*i}")
    for i in range(8):
        S(f"""
        v_cvt_f32_i32 v{48+2*i}, v{48+2*i}
        v_cvt_f32_i32 v{49+2*i}, v{49+2*i}
        v_lshlrev_b32 v45, 16, v{72+i}
        v_and_b32 v46, 0xffff0000, v{72+i}
        v_sub_f32 v{48+2*i}, v{48+2*i}, v45
        v_sub_f32 v{49+2*i}, v{49+2*i}, v46
        v_lshlrev_b32 v45, 16, v{64+i}
        v_and_b32 v46, 0xffff0000, v{64+i}
        v_mul_f32 v{48+2*i}, v{48+2*i}, v45
        v_mul_f32 v{49+2*i}, v{49+2*i}, v46
        v_cvt_pk_bf16_f32 v{88+i}, v{48+2*i}, v{49+2*i}
        """)
    S(f"""
    s_nop 1
    v_mfma_f32_32x32x16_bf16 v[{XR}:{XR+15}], v[88:91], v[80:83], v[{XR}:{XR+15}]
    v_mfma_f32_32x32x16_bf16 v[{XR}:{XR+15}], v[92:95], v[84:87], v[{XR}:{XR+15}]
    s_add_u32 s41, s41, {TILE}
    s_add_u32 s42, s42, 1
    s_cmp_lt_u32 s42, 64
    s_cbranch_scc1 L_slow2
    v_mov_b32 v41, v42
    s_nop 15
    v_permlane32_swap_b32 v42, v41
    v_add_f32 v42, v42, v41
    v_rcp_f32 v42, v42
    s_nop 0
    """)
    for i in range(16): S(f"v_mul_f32 v{XR+i}, v{XR+i}, v42")
    S("s_branch L_pack")
    o = ["; generated by gen8.py\n", f"; @launch grid=(256,1,1) block=(256,1,1) lds={LDS_BYTES}\n", TARGET, A.text() + OOL.text(),
         ".fill 2048, 4, 0xBF800000\n", kd(KN, 512, sgpr=102, accum=256)]
    if opt.get("rep"):
        import reporter
        o[1] = f"; @launch kernel={KN} grid=(256,1,1) block=(256,1,1) lds={LDS_BYTES}\n; @launch kernel=rep_kernel grid=(1,1,1) block=(64,1,1) lds=0\n"
        o[4] = o[4] + reporter.text(opt["rep"], RT_OFF, ST_OFF, opt.get("repi", 0), opt.get("repk", 20))
        o.append(kd("rep_kernel", 32))
    return "".join(o)

if __name__ == "__main__":
    opt = {}
    out = sys.argv[1]
    for a_ in sys.argv[2:]:
        k, v = a_.split("=")
        try: v = int(v)
        except:
            try: v = float(v)
            except: pass
        opt[k] = v
    opt.setdefault("pad", 3328); opt.setdefault("ihook", 3); opt.setdefault("chk", 72)
    import hazcheck, subprocess, re, os
    t, n = hazcheck.fix(gen(opt))
    if opt.get("ihook"):
        sys.path.insert(0, "cdna_kernels")
        import cdna_launch as cl
        lines = t.split("\n")
        go = lines.index("L_go:"); endl = lines.index("L_pack:")
        for h in range(opt["ihook"]):
            probe = list(lines)
            for i in range(go + 1, endl):
                if probe[i].strip() and not probe[i].endswith(":"): probe[i] = f"LP_{i}:\n" + probe[i]
            txt = "\n".join(probe)
            for k in range(h, opt["ihook"]): txt = txt.replace("L_end:", f"L_hook{k}:\nL_end:")
            open("_p.s", "w").write(cl.with_harness_metadata(txt, KN, 14, launch_lists=True))
            subprocess.run(["clang", "-x", "assembler", "-target", "amdgcn-amd-amdhsa", "-mcpu=gfx950", "-c", "_p.s", "-o", "_p.o"], check=True)
            assert opt.get("pad") is not None
            sy = subprocess.run(["llvm-objdump", "-t", "_p.o"], capture_output=True, text=True).stdout
            ad = sorted((int(m.group(1), 16) + opt.get("textva", 0), int(m.group(2))) for m in re.finditer(r"^([0-9a-f]+) .* LP_(\d+)$", sy, re.M))
            page = ad[0][0] // 4096 + 1 + h
            cand = [i for a_, i in ad if a_ >= page * 4096 + opt.get("hookoff", 0)]
            if not cand:
                lines.insert(lines.index("L_end:") + 2, f"L_hook{h}:\n  s_branch L_warmed"); continue
            lines.insert(cand[0], f"L_hook{h}:"); lines.insert(cand[0] + 1, "  s_cbranch_execz L_warmed"); endl += 2
        t = "\n".join(lines)
    print("nops inserted:", n)
    open(out, "w").write(t)
```

```python
import sys, math, struct
from asmlib import *
from gen1 import Asm, f2u

KN = NAME + "_kernel"
TILE = 10240
BLK = 4 * TILE
RA = 1 << 20
RB = 4 << 20
X_OFF = 8 << 20
FA_OFF = 4096
FB_OFF = 8192
ST_OFF = 16 << 20
RT_OFF = 17 << 20
SCALE = math.log2(math.e) / math.sqrt(128.0)

LDS_K = 0
LDS_L = 9216
LDS_Q = LDS_L + 2048
LDS_T = LDS_Q + 16896
LDS_R = LDS_T + 8192
LDS_P = 49152
NPB = 3
LDS_BYTES = LDS_P + (NPB + 1) * 16384
assert LDS_R + 12288 <= LDS_P

vT3, vW, vLANE, vK0, vK1, vV, vPW, vPR, vT, vLW, vLR, vOUT, vX, vT2 = 0, 1, 2, 3, 4, 5, 9, 10, 13, 14, 15, 16, 17, 18
vFB, V_L, V_TMP = 19, 20, 22
vOW, vOR = 7, 8
V_S = [24, 56]
V_PO = [88, 104]
COST = dict(l=8, r=6, w=24, e=8, a=4, c=4, bar=42)
A_Q = 0
A_K = [64, 96, 128]
A_P = 160
A_O = 208

HEADER = """; Fused attention over a 2-bit KV cache (dequant + RoPE + softmax(QK^T)V), gfx950, one launch.
"""
def bitop(fn): return fn(0xF0, 0xCC, 0xAA) & 0xFF

def gen(opt):
    for k_ in ("l", "r", "w", "bar"):
        if "c" + k_ in opt: COST[k_] = opt["c" + k_]
    A = Asm()
    OOL = Asm()
    st = opt.get("stamps")
    stl = []; rtdone = []
    stsel = set(opt.get("st", "start,karg,issued,pre,ks,kconv,stored,mid,ackA,bar1,flagsA,mfma0,slot96,slot192,loopend,end").split(","))
    def stamp(name):
        if st and opt.get("rtst") == name and not rtdone:
            rtdone.append(1); A("s_memrealtime s[98:99]")
        if st and opt.get("rtst0") == name: A("s_memrealtime s[96:97]")
        if st and name in stsel and name not in stl:
            i = len(stl); stl.append(name); assert i < 16
            A(f"s_memtime s[{64+2*i}:{65+2*i}]")
    NVR = opt.get("nvr", 4 if opt.get("xtag", 1) else 3); NVE = opt.get("nve", 7); OARCH = opt.get("oarch", 1)
    V_VR = 120; V_VE = V_VR + NVR*8
    V_LV = [V_VE + NVE*4, V_VE + NVE*4 + 16]; V_RV = [V_LV[1] + 16, V_LV[1] + 24]
    V_LA = V_RV[1] + 8
    V_O0 = V_LA + 8
    vR, vR2, vR3 = V_L + 1, vPR + 3 + 100, 0
    V_END = V_O0 + (16 if OARCH else 0)
    vR2, vR3 = V_END, V_END + 1; V_END += 2
    if opt.get("xtag", 1):
        assert V_END <= 256 and OARCH
        vTAG, vPA, vPB = V_O0, V_O0+1, V_L
        vXF = vXL = vXT = vLS = None
    else:
        assert V_END + 8 <= 256, V_END
        vTAG, vPB, vXF, vXL, vXT, vPA, vLS = V_END, V_END+1, V_END+2, V_END+3, V_END+4, V_END+5, V_END+6
    assert opt.get("p32", 1)
    nfull = opt.get("nfull", 6); nsolo = 16 - 2*nfull; nblk = nfull + nsolo
    rounds = [[(r, 0), (r, 1)] for r in range(nfull)] + [[(nfull + 2*i, 0), (nfull + 2*i + 1, 0)] for i in range(nsolo//2)]
    n = len(rounds)
    nt = opt.get("ntfl", "")
    XTAG = opt.get("xtag", 1)
    XSC1 = opt.get("xsc1", 0) or XTAG
    if opt.get("pad") is not None:
        A.raw(f".text\n.p2align 12\n.fill {opt['pad']//4}, 4, 0xBF800000\n")
    A.raw(head(KN))
    A(f"""
    s_load_dwordx16 s[4:19], s[0:1], 0
    s_getpc_b64 s[60:61]
    v_lshlrev_b32 v64, {opt.get("cpfs", 5)}, v0
    """)
    A.vmem("global_load_dword v255, v64, s[60:61]", "cpf")
    A("s_cmpk_ge_u32 s2, 256\n s_cbranch_scc1 L_end")
    stamp("start")
    if st: A("s_memrealtime s[96:97]")
    def a_v():
        A(f"""
        s_and_b32 s3, s57, 1
        s_mul_i32 s3, s3, {256 - 16384}
        v_bfe_u32 v64, v0, 4, 2
        v_lshl_add_u32 v29, v64, 12, v29
        v_bfe_u32 v64, v0, 3, 1
        v_lshl_add_u32 v29, v64, 14, v29
        v_bfe_u32 v64, v0, 6, 1
        v_lshl_add_u32 v29, v64, 11, v29
        v_and_b32 v64, 128, v0
        v_add3_u32 v29, v29, v64, s3
        """)
    A(f"""
    s_and_b32 s52, s2, 7
    s_lshr_b32 s35, s2, 3
    s_lshl_b32 s57, s52, 5
    s_or_b32 s57, s57, s35
    s_lshl_b32 s53, s57, 14
    v_and_b32 v25, 7, v0
    v_lshrrev_b32 v26, 3, v0
    v_lshl_add_u32 v29, v25, 4, s53
    v_lshl_add_u32 v28, v26, 9, v29
    """)
    if opt.get("vpre"): a_v()
    A("s_waitcnt lgkmcnt(0)")
    stamp("karg")
    def l_ts0():
        A("s_and_b32 s3, s53, 0x3000\n v_lshl_add_u32 v70, v0, 4, s3")
        A.vmem(f"global_load_dwordx4 v[88:91], v70, s[14:15]", "TS")
        A.vmem(f"global_load_dwordx4 v[92:95], v70, s[16:17]", "TS")
    for i in range(4):
        A.vmem(f"global_load_dwordx4 v[{32+4*i}:{35+4*i}], v28, s[6:7] offset:{128*i} {nt}", "KR")
    A("s_load_dwordx2 s[22:23], s[0:1], 104\n s_load_dwordx2 s[20:21], s[0:1], 88\n s_lshl_b32 s53, s57, 6\n v_lshl_add_u32 v27, v26, 1, s53")
    A.vmem(f"global_load_ushort v30, v27, s[8:9] {nt}", "KR")
    A.vmem(f"global_load_ushort v31, v27, s[10:11] {nt}", "KR")
    if opt.get("tse", 1) == 1: l_ts0()
    def l_v():
        if not opt.get("vpre"): a_v()
        for m in range(4):
            A.vmem(f"global_load_dwordx4 v[{48+4*m}:{51+4*m}], v29, s[12:13] offset:{512*m} {nt}", "VRAW")
    if not opt.get("vlate"): l_v()
    if opt.get("tse", 1) == 2: l_ts0()
    A(f"""
    v_lshrrev_b32 v{vW}, 6, v0
    v_and_b32 v24, 7, v26
    v_readfirstlane_b32 s32, v{vW}
    v_and_b32 v{vLANE}, 63, v0
    s_lshr_b32 s33, s52, 1
    s_lshl_b32 s53, s33, 7
    s_waitcnt lgkmcnt(0)
    s_load_dword s39, s[22:23], s53
    s_and_b32 s34, s52, 1
    s_lshl_b32 s59, s52, 8
    s_add_u32 s59, s59, {FA_OFF}
    s_and_b32 s36, s35, 1
    s_mov_b32 s24, s22
    s_and_b32 s25, s23, 0xffff
    s_mov_b32 s26, 0x10000000
    s_mov_b32 s27, 0x20000
    s_mul_i32 s58, s57, {TILE}
    s_add_u32 s58, s58, {RA}
    s_lshl_b32 s54, s2, 2
    s_add_u32 s54, s54, s32
    s_lshl_b32 s54, s54, 13
    s_add_u32 s54, s54, {X_OFF}
    """)
    stamp("issued")
    KF = -math.log2(10000.0) / 64
    def trig(idx, mul, pos, nn, t, P1, P2):
        A(f"""
        v_cvt_f32_u32 v{t}, v{idx}
        v_mul_f32 v{t}, {hex(f2u(KF*mul))}, v{t}
        v_exp_f32 v{t}, v{t}
        v_cvt_f32_u32 v{t+1}, v{pos}
        v_mul_f32 v{t}, v{t}, v{t+1}
        """)
        cst = [10000.0 ** (-(j % (nn//2) + 32*(j // (nn//2))) / 64.0) / (2*math.pi) for j in range(nn)]
        A(f"v_mul_f32 v{P2}, {hex(f2u(cst[0]))}, v{t}")
        for j in range(nn):
            A(f"v_cos_f32 v{t+2+2*(j%2)}, v{P2+j}")
            if j + 1 < nn: A(f"v_mul_f32 v{P2+j+1}, {hex(f2u(cst[j+1]))}, v{t}")
            if j: A(f"v_cvt_pk_bf16_f32 v{P1+j-1}, v{t+2+2*((j-1)%2)}, v{t+3+2*((j-1)%2)}")
            A(f"v_sin_f32 v{t+3+2*(j%2)}, v{P2+j}")
            if j: A(f"v_cvt_pk_bf16_f32 v{P2+j-1}, v{t+3+2*((j-1)%2)}, v{t+2+2*((j-1)%2)}")
        j = nn - 1
        A(f"v_cvt_pk_bf16_f32 v{P1+j}, v{t+2+2*(j%2)}, v{t+3+2*(j%2)}")
        A(f"v_cvt_pk_bf16_f32 v{P2+j}, v{t+3+2*(j%2)}, v{t+2+2*(j%2)}")
    KP1, KP2, QP1, QP2 = 96, 104, 112, 128
    def w_trigK():
        A("v_bfe_u32 v150, v27, 1, 11")
        trig(25, 4, 150, 8, 144, KP1, KP2)
    def w_kaddr():
        A(f"""
        v_mul_u32_u24 v173, 144, v26
        v_lshl_add_u32 v173, v25, 4, v173
        v_lshl_add_u32 v174, v{vW}, 3, v25
        v_mul_u32_u24 v172, 144, v174
        v_lshl_add_u32 v172, v24, 4, v172
        v_lshlrev_b32 v174, 4, v174
        v_lshl_add_u32 v174, v24, 9, v174
        v_add_u32 v175, 0x1000, v174
        v_lshrrev_b32 v176, 4, v0
        v_xor_b32 v177, v176, v0
        v_lshl_add_u32 v176, v176, 3, v25
        v_bfe_u32 v177, v177, 3, 1
        v_lshlrev_b32 v176, 4, v176
        v_lshl_add_u32 v176, v177, 29, v176
        v_add_u32 v176, 0x2000, v176
        v_bfe_i32 v177, v0, 4, 1
        v_and_b32 v177, 0x02020202, v177
        v_or_b32 v177, 0x05040100, v177
        v_mov_b32 v178, 0x11111111
        s_add_u32 s37, s58, {RB - RA}
        """)
    def l_pt():
        A(f"""
        s_mul_i32 s52, s32, 2560
        s_add_u32 s52, s52, s58
        v_lshl_add_u32 v65, v{vLANE}, 7, s52
        v_mov_b32 v66, s59
        v_cmp_gt_u32 vcc, {opt.get("ptl", 0)}, v{vLANE}
        {"" if XTAG else "s_add_u32 s52, s54, 4352"}
        {"" if XTAG else "v_writelane_b32 v66, s52, 20"}
        {"s_add_u32 s52, s54, 6144" if opt.get("tlb", 0) & 1 else ""}
        {"v_writelane_b32 v66, s52, 21" if opt.get("tlb", 0) & 1 else ""}
        {"s_add_u32 s52, s58, %d" % (RB - RA) if opt.get("tlb", 0) & 2 else ""}
        {"v_writelane_b32 v66, s52, 22" if opt.get("tlb", 0) & 2 else ""}
        v_cndmask_b32 v65, v66, v65, vcc
        """)
        A.vmem(f"buffer_load_dword v254, v65, s[24:27], 0 offen {opt.get('ptfl', '')}", "PT")
    def l_cpf2():
        NCL = opt.get("ncl", 128)
        A(f"""
        v_min_u32 v64, {NCL//32 - 1}, v{vLANE}
        v_lshl_add_u32 v64, v64, 2, v{vW}
        s_and_b32 s53, s35, 7
        s_add_u32 s53, s53, {2 << opt.get('cpfs', 5)}
        v_lshl_add_u32 v64, v64, 3, s53
        v_lshlrev_b32 v64, 7, v64
        """)
        A.vmem(f"global_load_dword v255, v64, s[60:61]", "cpf")
    def w_qaddr():
        A(f"""
        s_lshr_b32 s52, s32, 1
        s_xor_b32 s53, s57, s52
        s_lshl_b32 s53, s53, 5
        v_bfe_u32 v66, v0, 2, 5
        v_and_b32 v71, 3, v0
        v_add_u32 v67, s53, v66
        v_lshlrev_b32 v68, 8, v67
        v_lshl_add_u32 v68, v71, 4, v68
        v_and_b32 v67, 2047, v67
        s_mul_i32 s52, s52, 8448
        v_mul_u32_u24 v180, 1056, v71
        v_lshl_add_u32 v180, v66, 4, v180
        v_add_u32 v180, s52, v180
        """)
    QS2 = opt.get("qs", 0)
    def l_q():
        if QS2: A("s_lshl_b32 s52, s36, 7\n v_add_u32 v68, s52, v68")
        for k in range(0 if opt.get("noq") else (2 if QS2 else 4)):
            A.vmem(f"global_load_dwordx4 v[{72+4*k}:{75+4*k}], v68, s[4:5] offset:{64*k} {opt.get('qfl', '')}", "QR")
    def l_q2():
        A("v_xor_b32 v68, 128, v68")
        for k in range(2):
            A.vmem(f"global_load_dwordx4 v[{80+4*k}:{83+4*k}], v68, s[4:5] offset:{64*k}", "QR")
    def l_ts():
        A("s_lshl_b32 s53, s33, 12\n v_lshl_add_u32 v70, v0, 4, s53")
        A.vmem(f"global_load_dwordx4 v[88:91], v70, s[14:15]", "TS")
        A.vmem(f"global_load_dwordx4 v[92:95], v70, s[16:17]", "TS")
    def w_trigQ():
        trig(71, 8, 67, 16, 144, QP1, QP2)
    def w_blk():
        A(f"""
        s_lshl_b32 s52, s34, 3
        s_lshl_b32 s53, s36, 2
        s_add_u32 s18, s52, s53
        s_xor_b32 s52, s52, 8
        s_mul_i32 s53, s36, {nfull-4}
        s_add_u32 s19, s52, s53
        s_add_u32 s3, s52, {2*(nfull-4)}
        v_lshlrev_b32 v179, 5, v0
        v_lshrrev_b32 v171, 1, v0
        v_mul_u32_u24 v171, 96, v171
        v_and_b32 v170, 1, v0
        v_lshl_add_u32 v171, v170, 3, v171
        v_add_u32 v171, {LDS_R}, v171
        v_bfe_u32 v157, v0, 4, 1
        v_bfe_u32 v158, v0, 1, 3
        v_cmp_eq_u32 vcc, v157, v158
        v_bfe_u32 v157, v0, 5, 3
        v_and_b32 v158, 1, v157
        v_cndmask_b32 v170, 2, v170, vcc
        v_mul_u32_u24 v158, 48, v158
        v_lshl_add_u32 v158, v170, 4, v158
        v_mul_u32_u24 v157, 192, v{vW}
        v_add_u32 v158, v158, v157
        s_mul_i32 s52, s18, 768
        v_add_u32 v{vR}, s52, v158
        s_mul_i32 s52, s19, 768
        v_add_u32 v{vR2}, s52, v158
        s_mul_i32 s52, s3, 768
        v_add_u32 v{vR3}, s52, v158
        v_lshrrev_b32 v151, 5, v{vLANE}
        v_lshlrev_b32 v152, 4, v151
        v_lshl_add_u32 v152, v{vW}, 7, v152
        s_lshl_b32 s52, s18, 9
        v_add_u32 v{vT}, s52, v152
        s_lshl_b32 s52, s19, 9
        v_add_u32 v{vT2}, s52, v152
        v_cmp_eq_u32 vcc, 0, v0
        s_lshl_b32 s52, s33, 4
        """)
        for src, reg, b0, b1 in (("s18", RB if opt.get("noa", 1) else RA, 0, 4), ("s19", RB, 4, nfull), ("s3", RB, nfull, nblk)):
            if b1 > b0:
                A(f"s_add_u32 s53, s52, {src}\n s_mul_i32 s53, s53, {BLK}")
                for b_ in range(b0, b1): A(f"s_add_u32 s{42+b_}, s53, {reg + (b_-b0)*BLK}")
        A(f"""
        v_bfrev_b32 v153, 4
        v_cndmask_b32 v{vFB}, v153, 0, vcc
        {"v_and_b32 v154, 31, v%d" % vLANE if opt.get("p32", 1) else "s_lshl_b32 s53, s36, 6"}
        {"v_lshlrev_b32 v%d, 2, v154" % vPA if opt.get("p32", 1) else "v_and_b32 v154, 15, v%d" % vLANE}
        {"" if opt.get("p32", 1) else "v_lshl_add_u32 v%d, v154, 2, s53" % vPA}
        v_lshlrev_b32 v{vX}, 4, v{vLANE}
        v_lshl_add_u32 v23, v151, 4, v{vX}
        s_mul_i32 s52, s32, {TILE}
        v_add_u32 v{vK0}, s52, v{vX}
        v_add_u32 v{vK1}, 0x1000, v{vK0}
        s_getreg_b32 s41, hwreg(HW_REG_XCC_ID, 0, 4)
        """)
    def w_vaddr():
        A(f"""
        s_lshr_b32 s52, s32, 1
        s_and_b32 s53, s32, 1
        s_lshl_b32 s53, s53, 10
        s_add_u32 s53, s53, 8192
        s_mul_i32 s38, s52, {3*TILE}
        s_add_u32 s38, s38, s53
        v_add_u32 v{vV}, s38, v{vX}
        s_mul_i32 s38, s52, {-TILE}
        s_add_u32 s38, s38, {2*TILE}
        s_add_u32 s38, s38, s53
        v_add_u32 v{vV+1}, s38, v{vX}
        v_lshl_add_u32 v{vPW}, v{vW}, 12, v{vX}
        v_add_u32 v{vPW}, {LDS_P}, v{vPW}
        v_xor_b32 v{vPW+1}, 0x1000, v{vPW}
        v_xor_b32 v{vPW+2}, 0x2000, v{vPW}
        v_xor_b32 v{vPW+3}, 0x3000, v{vPW}
        """)
    late = []
    late2 = []; late3 = []
    def w_late():
        L_ = f"""
        s_xor_b32 s38, s34, 1
        s_lshl_b32 s38, s38, 11
        v_and_b32 v{vPB}, {31 if opt.get("chk") else 7}, v{vLANE}
        {"" if opt.get("chk") else "v_lshl_add_u32 v%d, v%d, 3, v%d" % (vPB, vW, vPB)}
        v_lshl_add_u32 v{vPB}, v{vPB}, 6, s38
        v_and_b32 v{vLR}, 31, v{vLANE}
        v_lshlrev_b32 v{vLR}, 5, v{vLR}
        v_lshlrev_b32 v{vLW}, 5, v{vLANE}
        v_lshl_add_u32 v{vLW}, v{vW}, 3, v{vLW}
        v_cmp_gt_u32 vcc, 16, v{vLANE}
        v_add_u32 v{V_TMP}, {LDS_L}, v{vLW}
        s_nop 0
        v_cndmask_b32 v{vLW}, v{vLW}, v{V_TMP}, vcc
        s_sub_u32 s38, 2, s36
        s_mul_i32 s38, s38, {(nfull-4)*512}
        v_add_u32 v{vT3}, s38, v{vT2}
        s_xor_b32 s55, s54, 0x40000
        s_lshl_b32 s56, s57, 13
        s_lshl_b32 s38, s32, 6
        s_add_u32 s56, s56, s38
        s_mov_b32 s28, s20
        s_and_b32 s29, s21, 0xffff
        s_mov_b32 s30, 0x200000
        s_mov_b32 s31, 0x20000
        """
        if not XTAG: L_ += f"""
        s_xor_b32 s37, s35, 1
        s_lshl_b32 s37, s37, 2
        s_add_u32 s37, s37, s59
        v_lshrrev_b32 v{vXL}, 3, v{vLR}
        v_add_u32 v{vXL}, 4096, v{vXL}
        v_mov_b32 v{vXF}, 4352
        v_min_u32 v{vXT}, 32, v{vLANE}
        v_lshlrev_b32 v{vXT}, 7, v{vXT}
        """
        late.extend(x.strip() for x in L_.split("\n") if x.strip())
        late.extend([f"v_and_b32 v{vOW}, 31, v{vLANE}", f"v_lshl_add_u32 v{vOW}, v{vW}, 5, v{vOW}", f"v_mul_u32_u24 v{vOW}, 80, v{vOW}",
                     f"v_and_b32 v{V_TMP}, 32, v{vLANE}", f"v_add_u32 v{vOW}, v{vOW}, v{V_TMP}",
                     f"v_lshrrev_b32 v{vOUT}, 2, v{vLANE}", f"v_lshl_add_u32 v{vOR}, v{vW}, 5, v{vOUT}", f"v_mul_u32_u24 v{vOR}, 80, v{vOR}",
                     f"v_and_b32 v{V_TMP}, 48, v{vX}", f"v_add_u32 v{vOR}, v{vOR}, v{V_TMP}", f"v_lshl_add_u32 v{vOUT}, v{vOUT}, 8, v{V_TMP}"])
    def w_tables():
        A.need(["TS"])
        x = 184
        for k in range(4):
            A(f"v_lshlrev_b32 v{x+2*k}, 16, v{88+k}\n v_and_b32 v{x+2*k+1}, 0xffff0000, v{88+k}")
        A("s_mov_b32 s52, 0x3fc03fc0")
        ex = ["v_xor_b32 v92, s52, v92", "v_xor_b32 v93, s52, v93", "v_xor_b32 v94, s52, v94", "v_xor_b32 v95, s52, v95",
              "v_or3_b32 v92, v92, v93, v94", "v_or_b32 v92, v92, v95", "v_mov_b32 v95, 0x7fc00000", "v_cmp_eq_u32 s[52:53], 0, v92"]
        for k in range(8): A(f"v_log_f32 v{192+k}, v{x+k}\n {ex[k]}")
        ex = ["v_max3_f32 v93, |v192|, |v193|, |v194|", "v_max3_f32 v94, |v195|, |v196|, |v197|", "v_max3_f32 v93, |v198|, |v199|, v93", "v_max_f32 v93, v93, v94",
              "v_cmp_gt_f32 vcc, 0x41f00000, v93", "s_nop 0", "s_and_b64 vcc, vcc, s[52:53]", "s_nop 0"]
        A(f"v_rcp_f32 v200, v{x}")
        A.ds(f"ds_write_b128 v179, v[192:195] offset:{LDS_T}", "QW"); A.ds(f"ds_write_b128 v179, v[196:199] offset:{LDS_T+16}", "QW")
        for k in range(1, 8): A(f"{ex[k-1]}\n v_rcp_f32 v{200+k}, v{x+k}")
        A("v_cndmask_b32 v200, v95, v200, vcc")
        for k in range(4): A(f"v_cvt_pk_bf16_f32 v{184+k}, v{200+2*k}, v{201+2*k}")
        A("v_mov_b32 v92, 0\n v_mov_b32 v93, 0")
        for k in range(4):
            A(f"v_lshlrev_b32 v94, 16, v{184+k}\n v_and_b32 v95, 0xffff0000, v{184+k}\n v_sub_f32 v94, v{200+2*k}, v94\n v_sub_f32 v95, v{201+2*k}, v95\n v_cvt_pk_bf16_f32 v{188+k}, v94, v95")
        A.ds("ds_write2_b64 v171, v[184:185], v[188:189] offset0:0 offset1:2", "QW")
        A.ds("ds_write2_b64 v171, v[186:187], v[190:191] offset0:6 offset1:8", "QW")
        A.ds("ds_write2_b64 v171, v[92:93], v[92:93] offset0:4 offset1:10", "QW")
    def w_qrope():
        A.need(["QR"])
        if QS2: A("s_cmp_eq_u32 s36, 0\n s_mov_b32 s53, 0x01000504\n s_cselect_b32 s52, 0x05040100, s53\n s_add_u32 s53, s52, 0x02020202")
        else: A("s_mov_b32 s52, 0x05040100\n s_mov_b32 s53, 0x07060302")
        x = 32
        pend = []
        for half in range(2):
            for k in (2*half, 2*half+1, 4+2*half, 5+2*half):
                A(f"v_perm_b32 v{x+2*k}, v{80+k}, v{72+k}, s52\n v_perm_b32 v{x+2*k+1}, v{80+k}, v{72+k}, s53")
            js = [4*half + t for t in range(4)] + [8 + 4*half + t for t in range(4)]
            for o_, (P_, md) in enumerate(((QP1, " neg_hi:[0,1,0]"), (QP2, ""))):
                y = 192 + 8*o_; zz = 208 + 8*half + 4*o_
                for t, j in enumerate(js): A(f"v_dot2_f32_bf16 v{y+t}, v{x+j}, v{P_+j}, 0{md}")
                for p_ in pend: p_()
                for k in range(4): A(f"v_cvt_pk_bf16_f32 v{zz+k}, v{y+2*k}, v{y+2*k+1}")
                pend = [lambda zz=zz, off=LDS_Q + 528*half + 8*528*o_: A.ds(f"ds_write_b128 v180, v[{zz}:{zz+3}] offset:{off}", "QW")]
        for p_ in pend: p_()
    def w_staddr():
        A(f"""
        v_lshlrev_b32 v159, 7, v{vW}
        v_lshl_add_u32 v159, v{vLANE}, 9, v159
        v_and_b32 v64, 3, v{vLANE}
        v_lshl_add_u32 v64, v{vW}, 2, v64
        v_cmp_gt_u32 vcc, 16, v{vLANE}
        v_lshlrev_b32 v64, 7, v64
        v_add_u32 v64, 0x2000, v64
        v_cndmask_b32 v159, v64, v159, vcc
        """)
    def w_st2():
        A(f"""
        v_and_b32 v159, 15, v{vLANE}
        v_lshlrev_b32 v159, 9, v159
        v_lshl_add_u32 v159, v{vW}, 7, v159
        v_and_b32 v{V_O0+2}, 3, v{vLANE}
        v_lshl_add_u32 v{V_O0+2}, v{vW}, 2, v{V_O0+2}
        v_lshlrev_b32 v{V_O0+2}, 7, v{V_O0+2}
        v_add_u32 v{V_O0+2}, 0x2000, v{V_O0+2}
        """)
    def w_tk():
        A.need(["SK"]); stamp("ackK")
        A.vmem(f"buffer_load_dword v254, v159, s[24:27], s37 offen sc1", "ST")
    def w_ident():
        A(f"""
        v_bfe_u32 v232, v{vLANE}, 3, 2
        v_bfe_u32 v233, v{vLANE}, 1, 1
        v_lshl_add_u32 v232, v232, 1, v233
        v_lshrrev_b32 v233, 3, v{vLANE}
        v_xor_b32 v233, v233, v{vLANE}
        v_and_b32 v233, 4, v233
        v_lshl_add_u32 v232, v233, 1, v232
        v_and_b32 v233, 1, v{vLANE}
        v_lshlrev_b32 v233, 4, v233
        v_mov_b32 v234, 0x3f80
        v_lshlrev_b32 v233, v233, v234
        """)
        msk = ["vcc", "s[52:53]", "s[100:101]"]
        for k in range(10):
            if k < 8: A(f"v_cmp_eq_u32 {msk[k%3]}, {k}, v232")
            if k >= 2: A(f"v_cndmask_b32 v{224+k-2}, 0, v233, {msk[(k-2)%3]}")
        A.ds(f"ds_write_b128 v{vPW}, v[224:227] offset:{NPB*16384}", "QW")
        A.ds(f"ds_write_b128 v{vPW}, v[228:231] offset:{NPB*16384+1024}", "QW")
    def w_rb():
        for r_ in (174, 175, 176): A.vmem(f"buffer_load_dword v254, v{r_}, s[24:27], s37 offen sc1", "ST")
    def w_wpt(): A.need(["PT"])
    def w_wcpf(): A.need(["cpf"])
    def w_wq(): A.need(["QR"])
    def w_otlb():
        A("s_lshl_b32 s52, s57, 13\n v_mov_b32 v64, s52\n s_waitcnt lgkmcnt(0)"); A.lg = []
        A.vmem("global_load_dword v255, v64, s[20:21]", "cpf")
    def w_flush():
        for l_ in late: A(l_)
        late.clear()
    def w_warm():
        if opt.get("ihook"):
            A("s_mov_b64 exec, 0")
            for i in range(opt["ihook"]): A(f"s_cmp_eq_u32 s32, {i}\n s_cbranch_scc1 L_hook{i}")
            A.label("L_warmed"); A("s_mov_b64 exec, -1")
    W = dict(trigK=w_trigK, kaddr=w_kaddr, pt=l_pt, cpf2=l_cpf2, q=l_q, q2=l_q2, qaddr=w_qaddr, ts=l_ts, trigQ=w_trigQ, blk=w_blk, vaddr=w_vaddr,
             tables=w_tables, qrope=w_qrope, flush=w_flush, otlb=w_otlb, staddr=w_staddr, rb=w_rb, ident=w_ident, wpt=w_wpt, wcpf=w_wcpf, wq=w_wq, st2=w_st2, tk=w_tk, v=l_v, warm=w_warm)
    def run(seq):
        for x_ in seq.split("."):
            if x_: W[x_](); stamp(x_)
    w_late()
    run(opt.get("o1", "pt.trigK.kaddr.cpf2.qaddr.trigQ.blk.q"))
    stamp("pre")
    A.need(["KR"])
    stamp("ks")
    A(f"v_lshlrev_b32 v30, 16, v30\n v_lshlrev_b32 v31, 16, v31\n v_mul_f32 v30, {hex(f2u(SCALE))}, v30\n v_mul_f32 v31, v31, v30")
    for j in range(16): A(f"v_cvt_f32_i32 v{32+j}, v{32+j}")
    for j in range(16): A(f"v_fma_f32 v{32+j}, v{32+j}, v30, -v31")
    for j in range(8): A(f"v_cvt_pk_bf16_f32 v{32+j}, v{32+j}, v{40+j}")
    for j in range(8): A(f"v_dot2_f32_bf16 v{KP1+j}, v{32+j}, v{KP1+j}, 0 neg_hi:[0,1,0]")
    for j in range(8): A(f"v_dot2_f32_bf16 v{KP2+j}, v{32+j}, v{KP2+j}, 0")
    for p in range(4): A(f"v_cvt_pk_bf16_f32 v{40+p}, v{KP1+2*p}, v{KP1+2*p+1}")
    A("s_waitcnt lgkmcnt(0)"); A.lg = []
    A.ds("ds_write_b128 v172, v[40:43]", "KT")
    for p in range(4): A(f"v_cvt_pk_bf16_f32 v{44+p}, v{KP2+2*p}, v{KP2+2*p+1}")
    A.ds("ds_write_b128 v172, v[44:47] offset:4608", "KT")
    A.ds("ds_read_b128 v[160:163], v173", "KT2")
    A.ds("ds_read_b128 v[164:167], v173 offset:4608", "KT2")
    stamp("kconv")
    NOA = opt.get("noa", 1)
    sa = "s37 offen sc1" if NOA else "s58 offen"
    if opt.get("kfirst"):
        A.need(ltags=["KT2"])
        A.vmem(f"buffer_store_dwordx4 v[160:163], v174, s[24:27], {sa}", "SK")
        A.vmem(f"buffer_store_dwordx4 v[164:167], v175, s[24:27], {sa}", "SK")
        run(opt.get("o1b", ""))
    def w_vconv():
        A.need(["VRAW"])
        for c in range(4): A(f"v_lshl_or_b32 v{48+c}, v{52+c}, 4, v{48+c}")
        for c in range(4): A(f"v_lshl_or_b32 v{56+c}, v{60+c}, 4, v{56+c}")
        for c in range(4): A(f"v_lshl_or_b32 v{48+c}, v{56+c}, 8, v{48+c}")
        A("v_lshl_or_b32 v48, v49, 16, v48\n v_lshl_or_b32 v49, v51, 16, v50")
        A("s_mov_b32 s52, 0x22222222\n s_mov_b32 s53, 0x88888888")
        A("v_permlane32_swap_b32 v48, v49")
        A("v_mov_b32 v50, v48\n v_mov_b32 v51, v49")
        A.need(ltags=["KT2"])
        if not opt.get("kfirst"):
            A.vmem(f"buffer_store_dwordx4 v[160:163], v174, s[24:27], {sa}", "SA")
            A.vmem(f"buffer_store_dwordx4 v[164:167], v175, s[24:27], {sa}", "SA")
        A("v_permlane16_swap_b32 v48, v50\n v_permlane16_swap_b32 v49, v51")
        A("v_perm_b32 v144, v50, v48, v177\n v_perm_b32 v145, v51, v49, v177")
        t1 = bitop(lambda a, b, c: ~(a ^ b) & c); t2 = bitop(lambda a, b, c: (~a & b) | c)
        for r in (144, 145):
            A(f"v_lshlrev_b32 v55, 1, v{r}\n v_lshlrev_b32 v56, 2, v{r}")
            A(f"v_bitop3_b32 v55, v{r}, v55, s52 bitop3:{hex(t1)}")
            A(f"v_bitop3_b32 v56, v56, s53, v178 bitop3:{hex(t2)}")
            A(f"v_or_b32 v{r}, v55, v56")
        A("v_mov_b32_dpp v146, v144 row_ror:8 row_mask:0xf bank_mask:0xf\n v_mov_b32_dpp v147, v145 row_ror:8 row_mask:0xf bank_mask:0xf")
        A.vmem(f"buffer_store_dwordx4 v[144:147], v176, s[24:27], {sa}", "SA")
    W["vconv"] = w_vconv
    if not opt.get("vdefer"): w_vconv()
    run(opt.get("o2", ""))
    def st_b():
        if NOA: return
        A.vmem("buffer_store_dwordx4 v[160:163], v174, s[24:27], s37 offen sc1", "SB")
        A.vmem("buffer_store_dwordx4 v[164:167], v175, s[24:27], s37 offen sc1", "SB")
        A.vmem("buffer_store_dwordx4 v[144:147], v176, s[24:27], s37 offen sc1", "SB")
    W["sb"] = st_b
    if not opt.get("sbl", 1): st_b()
    stamp("stored")
    run(opt.get("o3", "staddr.vaddr.tables.flush"))
    A(f"""
    s_mul_i32 s40, s39, 0x9E3779B1
    s_add_u32 s40, s40, 0x7F4A7C15
    s_and_b32 s40, s40, 0xfffffff0
    s_or_b32 s62, s40, s41
    s_lshl_b32 s63, s35, 2
    s_add_u32 s63, s63, s59
    v_mov_b32 v24, s62
    s_or_b32 s61, s40, 8
    s_lshl_b32 s18, s57, 6
    s_add_u32 s18, s18, {FB_OFF}
    v_mov_b32 v{vTAG}, s61
    """)
    FBE = 2
    stamp("mid")
    if opt.get("adapt"):
        A.vmem(f"buffer_load_dword v26, v{vPA}, s[24:27], s59 offen sc1", "SA")
    A.need(["SA"], ["QW"])
    stamp("ackA")
    if opt.get("adapt"):
        A(f"""
        v_cmp_eq_u32 vcc, s62, v26
        s_bcnt1_i32_b32 s52, vcc_lo
        s_cmp_ge_u32 s52, {opt["adapt"]}
        s_cselect_b32 s52, 0x20000000, s37
        s_cselect_b32 s37, s37, 0x20000000
        """)
        A.vmem(f"buffer_load_dword v254, v159, s[24:27], s52 offen sc1", "ST")
    elif opt.get("stch", 1) == 1: A.vmem(f"buffer_load_dword v254, v159, s[24:27], s37 offen sc1", "ST")
    A("s_barrier")
    A.vmem(f"buffer_store_dword v24, v{vFB}, s[24:27], s63 offen", "FA")
    if opt.get("fb0", 1): A.vmem(f"buffer_store_dword v{vTAG}, v{vFB}, s[24:27], s18 offen sc1", "FB")
    if opt.get("stch", 1) == 2: A.vmem(f"buffer_load_dword v254, v159, s[24:27], s37 offen sc1", "ST")
    stamp("bar0")
    run(opt.get("o3b", "qrope.ident"))
    A(f"""
    buffer_load_dword v26, v{vPA}, s[24:27], s59 offen sc1
    s_lshl_b32 s60, s33, 12
    s_add_u32 s60, s60, {FB_OFF}
    s_mov_b32 s3, 0
    s_mov_b32 s19, 0
    """)
    run(opt.get("o5", "warm"))
    A.label("L_pollA")
    A(f"""
    s_waitcnt vmcnt(0)
    v_cmp_eq_u32 vcc, s62, v26
    s_cmp_eq_u64 vcc, -1
    s_cbranch_scc0 L_pollA_more
    """)
    A.vm = []
    stamp("flagsA")
    OOL.label("L_pollA_more")
    OOL(f"""
    buffer_load_dword v26, v{vPA}, s[24:27], s59 offen sc1
    s_add_u32 s19, s19, 1
    s_cmp_lt_u32 s19, {opt.get("tmo", 64)}
    s_cbranch_scc1 L_pollA
    s_waitcnt vmcnt(0)
    {"" if opt.get("fb0", 1) else "s_waitcnt lgkmcnt(0)"}
    {"" if opt.get("fb0", 1) else "s_barrier"}
    {"" if opt.get("fb0", 1) else "buffer_store_dword v%d, v%d, s[24:27], s18 offen sc1" % (vTAG, vFB)}
    v_lshlrev_b32 v27, 4, v{vPA}
    s_lshl_b32 s52, s34, 11
    v_add_u32 v27, s52, v27
    s_mov_b32 s53, 0
    """)
    OOL.label("L_pollB0")
    OOL(f"""
    buffer_load_dword v26, v27, s[24:27], s60 offen sc1
    s_add_u32 s53, s53, 1
    s_waitcnt vmcnt(0)
    v_cmp_eq_u32 vcc, s61, v26
    s_cmp_eq_u64 vcc, -1
    s_cbranch_scc1 L_pollB0_ok
    s_sleep 4
    s_cmp_lt_u32 s53, 0x100000
    s_cbranch_scc1 L_pollB0
    """)
    OOL.label("L_pollB0_ok")
    for b_ in range(0 if opt.get("noa", 1) else 4): OOL(f"s_add_u32 s{42+b_}, s{42+b_}, {RB-RA}")
    OOL("s_mov_b32 s3, 1\n s_branch L_go")

    order = []
    for r in range(n):
        order.append(("QK", r))
        if r >= 1: order.append(("PV", r-1))
    order.append(("PV", n-1))
    mf = []; a = [0]*n; b = [0]*n
    for kind, r in order:
        if kind == "QK":
            a[r] = len(mf)
            if r < opt.get("smaj", 2):
                for s in range(8):
                    for u in range(2): mf.append(("QK", r, u, s))
            else:
                for u in range(2):
                    for s in range(8): mf.append(("QK", r, u, s))
        else:
            b[r] = len(mf)
            if r == nfull-1 and opt.get("early", 1):
                for kk in range(2):
                    for u in (1, 0): mf.append(("PV", r, u, kk))
                for u in (1, 0):
                    for kk in range(2, 8): mf.append(("PV", r, u, kk))
            else:
                for kk in range(8):
                    for u in range(2): mf.append(("PV", r, u, kk))
    nslots = len(mf)
    sready = {(m[1], m[2]): sl + 3 for sl, m in enumerate(mf) if m[0] == "QK"}
    q1last = {m[3]: sl for sl, m in enumerate(mf) if m[0] == "QK" and rounds[m[1]][m[2]][1] == 1}
    firstuse = {}; lastuse = {}
    for sl, m in enumerate(mf):
        blk = rounds[m[1]][m[2]][0]
        key = ("K" if m[0] == "QK" else "V", blk, m[3])
        firstuse.setdefault(key, sl); lastuse[key] = sl
    kbuf = {}; kfree = {}
    q1dead = a[nfull-1] + 15
    bases = list(A_K); hold = [None]*len(bases)
    if OARCH and opt.get("k4", 1): bases.append(224); hold.append(None)
    if nsolo: bases.append(A_Q + 32); hold.append("Q1")
    for blk in range(nblk):
        def rel(h): return -1 if h is None else (q1dead if h == "Q1" else lastuse[("K", h, 7)])
        i = min(range(len(bases)), key=lambda i: rel(hold[i]))
        for s in range(8):
            h = hold[i]
            kfree[(blk, s)] = -1 if h is None else (q1last[s] if h == "Q1" else lastuse[("K", h, s)])
        kbuf[blk] = bases[i]; hold[i] = blk
    def oreg(qt):
        if OARCH: return f"v[{V_O0}:{V_O0+15}]" if qt == 0 else f"a[{A_O}:{A_O+15}]"
        return f"a[{A_O+16*qt}:{A_O+16*qt+15}]"
    A_O1 = A_O if OARCH else A_O + 16
    vexp = sorted({k for k in firstuse if k[0] == "V"}, key=lambda k: firstuse[k])
    vereg = {k: V_VE + (i % NVE)*4 for i, k in enumerate(vexp)}
    vefree = {k: (-1 if i < NVE else lastuse[vexp[i-NVE]]) for i, k in enumerate(vexp)}
    vedone = {}
    barlead = opt.get("barlead", 3)
    gate = opt["chk"] + 1 if opt.get("chk") else b[opt.get("gater", 1)] - barlead
    kl = [("K", blk, s) for blk in range(nblk) for s in range(8)]
    vl = sorted([("VR", blk, i) for blk in range(nblk) for i in range(2)], key=lambda k: firstuse[("V", k[1], 4*k[2])])
    need_at = {k: firstuse[k] for k in kl}
    need_at.update({k: firstuse[("V", k[1], 4*k[2])] - opt.get("vneed", 20) for k in vl})
    for i in range(2): need_at[("VR", 0, i)] = opt.get("v0need", 26) + opt.get("v0d", 6)*i
    for i in range(2): need_at[("VR", 1, i)] = max(need_at[("VR", 1, i)], opt.get("v1need", 56) + 4*i)
    issued = set()
    def ld_free(key):
        f = -1
        if key[0] == "K": f = kfree[(key[1], key[2])]
        elif key[1] >= NVR: f = vedone.get(("V", key[1]-NVR, 4*key[2]+3), 10**6)
        if key[1] >= 4: f = max(f, gate)
        return f
    def ld(key):
        k, blk, f = key
        issued.add(key)
        if k == "K":
            rg = kbuf[blk] + 4*f
            A.vmem(f"buffer_load_dwordx4 a[{rg}:{rg+3}], v{vK0 + f//4}, s[24:27], s{42+blk} offen offset:{(f%4)*1024} {opt.get('kvfl', 'sc1')}", key)
        else:
            rg = V_VR + (blk % NVR)*8 + 4*f
            A.vmem(f"buffer_load_dwordx4 v[{rg}:{rg+3}], v{vV+f}, s[24:27], s{42+blk} offen {opt.get('kvfl', 'sc1')}", key)
    tb = []
    for r in range(n):
        for u in range(2):
            if not tb or tb[-1][0] != rounds[r][u][0]: tb.append((rounds[r][u][0], r, u))
    lvreg = {blk: V_LV[i % 2] for i, (blk, _, _) in enumerate(tb)}
    rvreg = {blk: V_RV[i % 2] for i, (blk, _, _) in enumerate(tb)}
    lv_use = {blk: firstuse[("K", blk, 0)] for blk, _, _ in tb}
    lv_last = {blk: lastuse[("K", blk, 0)] for blk, _, _ in tb}
    rv_done = {}
    lvq = [("LV", blk, q, i) for i, (blk, r, u) in enumerate(tb) for q in range(4)]
    rvq = [("RV", blk, q, i) for i, (blk, r, u) in enumerate(tb) for q in range(2)]
    tdone = {}
    A.label("L_go")
    def qread(i):
        A.ds(f"ds_read_b128 a[{A_Q+4*i}:{A_Q+4*i+3}], v23 offset:{LDS_Q + (i//8)*8448 + (i%8)*1056}", ("Q", i//8, i%8))
    qord = [x for s_ in range(8) for x in (s_, 8+s_)] if opt.get("smaj", 2) else list(range(16))
    for _ in range(opt.get("npre0", 2)): ld(kl.pop(0))
    if opt.get("stch", 1) == 3: A.vmem(f"buffer_load_dword v254, v159, s[24:27], s37 offen sc1", "ST")
    assert opt.get("fb0", 1) or not opt.get("o6")
    run(opt.get("o6", ""))
    if opt.get("fb0", 1):
        if A.lg: A("s_waitcnt lgkmcnt(0)\n s_barrier"); A.lg = []
    else:
        A("s_cmp_eq_u32 s3, 0\n s_waitcnt lgkmcnt(0)\n s_cbranch_scc0 L_skip2\n s_barrier"); A.lg = []
        A.label("L_skip2")
    stamp("bar1")
    rd = [lambda q_=q_: A.ds(f"ds_read_b128 v[{V_LV[0]+4*q_}:{V_LV[0]+4*q_+3}], v{vT} offset:{LDS_T + q_*32}", ("LV", 0, q_)) for q_ in range(4)]
    rd += [lambda i=i: qread(i) for i in qord[:10]]
    for _ in range(opt.get("npre", 6) - opt.get("npre0", 2)):
        for _ in range(opt.get("gap0", 3)):
            if rd: rd.pop(0)()
        ld(kl.pop(0))
    if opt.get("tv") == -1: A.vmem(f"buffer_load_dword v255, v{V_O0+2}, s[24:27], s37 offen sc1", "ST")
    while rd: rd.pop(0)()
    qrest = qord[10:]
    def tread(t, sl_):
        k, blk, q, i = t
        rg = (lvreg if k == "LV" else rvreg)[blk] + 4*q
        j_, rel_ = (0, blk) if blk < 4 else ((1, blk-4) if blk < nfull else (2, blk-nfull))
        if k == "LV": A.ds(f"ds_read_b128 v[{rg}:{rg+3}], v{(vT, vT2, vT3)[j_]} offset:{LDS_T + rel_*512 + q*32}", (k, blk, q))
        else: A.ds(f"ds_read_b128 v[{rg}:{rg+3}], v{(vR, vR2, vR3)[j_]} offset:{LDS_R + rel_*768 + q*96}", (k, blk, q))
        tdone[(k, blk, q)] = sl_
    for q_ in range(4): lvq.pop(0); tdone[("LV", 0, q_)] = -5
    bl = {r: (opt.get("bl0", barlead) if r == 0 else opt.get("bl7", barlead) if r == n-1 else barlead) for r in range(n)}
    wend = {r: b[r] - (opt.get("smend", 6) - barlead + bl[r]) - (opt.get("lx", 2) if r in (nfull-1, n-1) else 0) for r in range(n)}
    items = {}
    for r in range(n):
        S = V_S[r % 2]; PO = V_PO[r % 2]; L = []
        for e in range(33):
            if e < 32: L.append(("e", e, f"v_exp_f32 v{S+e}, v{S+e}", None))
            if e >= 2 and e % 2 == 0:
                L.append(("c", e, f"v_cvt_pk_bf16_f32 v{PO + (e-2)//2}, v{S+e-2}, v{S+e-1}", None))
        items[r] = L
    cur = 0; ci = 0; pendw = []; nw = {r: 0 for r in range(n)}
    pendm = []; seenL = set(); pendl = []; lwr = set()
    bar_at = {b[r] - bl[r]: r for r in range(n)}
    pslot = {(m[1], m[3], m[2]): sl for sl, m in enumerate(mf) if m[0] == "PV"}
    prq = sorted([(r, kk, u, (kk-2)*2+u) for r in range(n) for kk in range(2, 8) for u in range(2)], key=lambda x: pslot[x[:3]])
    prdone = set(); lastw = -10
    send_slot = pslot[(nfull-1, 7, 1)] + 3
    inloop = send_slot + 6 < nslots
    flag_slot = send_slot + opt.get("flagdelay", 16)
    xpoll_slot = flag_slot + opt.get("xpolldelay", 10)
    xchk_slot = xpoll_slot + opt.get("xchkdelay", 8)
    xuse_slot = xchk_slot + opt.get("xusedelay", 8)
    pollB_slot = opt.get("pollslot", 56); chkB_slot = opt.get("chk") or gate - opt.get("chklead", 3)
    XR = V_LV[0]
    def operands(m):
        blk = rounds[m[1]][m[2]][0]
        if m[0] == "QK":
            lt = [("Q", rounds[m[1]][m[2]][1], m[3])]
            if m[3] == 0: lt += [("LV", blk, q) for q in range(4)]
            return [("K", blk, m[3])], lt
        return [], [("PR", m[1], m[3], m[2])]
    def lsum(t_, dst):
        return [f"v_add_f32 v{t_}, v{t_}, v{t_+1}", f"v_add_f32 v{t_+2}, v{t_+2}, v{t_+3}", f"v_add_f32 v{t_+4}, v{t_+4}, v{t_+5}", f"v_add_f32 v{t_+6}, v{t_+6}, v{t_+7}",
                f"v_add_f32 v{t_}, v{t_}, v{t_+2}", f"v_add_f32 v{t_+4}, v{t_+4}, v{t_+6}", f"v_add_f32 v{dst}, v{t_}, v{t_+4}"]
    LT = [0, 0]
    uid = [0]
    def two_way(fn):
        if XSC1: fn(A, "sc1"); return
        uid[0] += 1; u_ = uid[0]
        A(f"s_cmp_eq_u32 s37, s62\n s_cbranch_scc0 L_far{u_}")
        fn(A, ""); A.label(f"L_join{u_}")
        OOL.label(f"L_far{u_}"); fn(OOL, "sc1"); OOL.vm = []; OOL(f"s_branch L_join{u_}")
    def send_payload(B, fl):
        for i in range(4):
            o = A_O1 + 4*i
            B.vmem(f"buffer_store_dwordx4 a[{o}:{o+3}], v{vX}, s[24:27], s54 offen offset:{i*1024} {fl}", "XS")
        B.vmem(f"buffer_store_dword v{vLS}, v{vXL}, s[24:27], s54 offen {fl}", "XS")
    def send_flag(B, fl):
        B.vmem(f"buffer_store_dword v{vTAG}, v{vXF}, s[24:27], s54 offen {fl}", "XF")
    def self_touch():
        if opt.get("selft", 1): A.vmem(f"buffer_load_dword v{vPB}, v{vXT}, s[24:27], s54 offen sc1", "ST")
    def recv_loads():
        A.vmem(f"buffer_load_dword v{XR+16}, v{vXL}, s[24:27], s55 offen sc1", "XR")
        for i in range(4):
            A.vmem(f"buffer_load_dwordx4 v[{XR+4*i}:{XR+4*i+3}], v{vX}, s[24:27], s55 offen offset:{i*1024} sc1", "XR")
    def xcheck():
        A(f"v_cmp_eq_u32 vcc, s61, v{V_TMP}\n s_cbranch_vccz L_xspin0")
        A.label("L_xok")
        OOL.label("L_xspin0"); OOL("s_mov_b32 s53, 0"); OOL.label("L_xspin")
        OOL(f"""
        buffer_load_dword v{V_TMP}, v{vXF}, s[24:27], s55 offen sc1
        s_add_u32 s53, s53, 1
        s_waitcnt vmcnt(0)
        v_cmp_eq_u32 vcc, s61, v{V_TMP}
        s_cbranch_vccnz L_xok
        s_cmp_lt_u32 s53, 0x100000
        s_cbranch_scc1 L_xspin
        s_branch L_xok
        """)
    def fin_pre():
        L_ = [f"v_add_f32 v{V_L}, v{V_L}, v{XR+16}", f"v_rcp_f32 v{V_TMP}, v{V_L}",
              f"v_cmp_lt_f32 vcc, 0x30800000, v{V_L}", f"v_cmp_gt_f32 s[52:53], s19, v{V_L}"]
        L_ += [f"v_mul_f32 v{XR+i}, v{XR+i}, v{V_TMP}" for i in range(16)]
        return L_
    XB = V_PO[(nfull-1) % 2]
    XL = V_LV[1]
    def xpos(k): return {3: 8, 7: 9}.get(k, k)
    def tag_pack():
        L_ = []
        for k in range(8):
            L_ += [f"v_accvgpr_read_b32 v{V_TMP}, a{A_O1+2*k}", f"v_accvgpr_read_b32 v{V_TMP+1}, a{A_O1+2*k+1}",
                   f"v_cvt_pk_bf16_f32 v{XB+xpos(k)}, v{V_TMP}, v{V_TMP+1}"]
            if k in (2, 6, 7): L_.append(("st", {2: 0, 6: 1, 7: 2}[k]))
        return L_
    def tag_recv(B):
        for i in range(3):
            B.vmem(f"buffer_load_dwordx4 v[{XL+4*i}:{XL+4*i+3}], v{vX}, s[24:27], s55 offen offset:{i*1024} sc1", "XR")
    def tag_cmp(B):
        B(f"v_cmp_eq_u32 vcc, s61, v{XL+3}\n v_cmp_eq_u32 s[52:53], s61, v{XL+7}\n v_cmp_eq_u32 s[20:21], s61, v{XL+11}")
        B("s_and_b64 vcc, vcc, s[52:53]\n s_and_b64 vcc, vcc, s[20:21]\n s_cmp_eq_u64 vcc, -1")
    def tag_check():
        tag_cmp(A); A("s_cbranch_scc0 L_xspin0"); A.label("L_xok")
        OOL.label("L_xspin0"); OOL("s_mov_b32 s38, 0"); OOL.label("L_xspin")
        tag_recv(OOL); OOL.vm = []
        OOL("s_add_u32 s38, s38, 1\n s_waitcnt vmcnt(0)"); tag_cmp(OOL)
        OOL("s_cbranch_scc1 L_xok\n s_cmp_lt_u32 s38, 0x100000\n s_cbranch_scc1 L_xspin\n s_branch L_xok")
    def tag_fin():
        return [f"v_mov_b32 v{XL+3}, v{XL+8}", f"v_mov_b32 v{XL+7}, v{XL+9}", f"v_add_f32 v{V_L}, v{V_L}, v{XL+10}"]
    def emit_extra(x_):
        if isinstance(x_, tuple):
            A.vmem(f"buffer_store_dwordx4 v[{XB+4*x_[1]}:{XB+4*x_[1]+3}], v{vX}, s[24:27], s54 offen offset:{x_[1]*1024} sc1", "XS")
        else: A(x_)
    xld_slot = opt.get("xld", nslots - 22); xuse2 = opt.get("xuse", nslots - 4)
    extra = []
    seenO = set(); vi = 0; vpart = 0
    vt, lt = operands(mf[0]); A.need(vt, lt)
    stamp("mfma0")
    totcost = []; fb_done = []; pb_done = []; ldlog = []
    pipe = opt.get("pipe0", 200)
    for sl in range(nslots):
        m = mf[sl]
        blk, qt = rounds[m[1]][m[2]]
        if m[0] == "QK":
            _, r, u, s = m
            d = V_S[r % 2] + u*16
            c = f"v[{lvreg[blk]}:{lvreg[blk]+15}]" if s == 0 else f"v[{d}:{d+15}]"
            if s == 0: assert all(("LV", blk, q_) in tdone for q_ in range(4)), ("lv not read", sl)
            assert ("K", blk, s) in issued, ("K not loaded", sl)
            assert qt*8+s not in qrest
            k = kbuf[blk] + 4*s; q = A_Q + (qt*8+s)*4
            A(f"v_mfma_f32_32x32x16_bf16 v[{d}:{d+15}], a[{k}:{k+3}], a[{q}:{q+3}], {c}")
        else:
            _, r, u, kk = m
            c = "0" if qt not in seenO else oreg(qt)
            seenO.add(qt)
            assert ("V", blk, kk) in vedone, ("V frag not expanded", sl, m)
            assert kk < 2 or (r, kk, u) in prdone, ("P not read", sl)
            assert kk >= 2 or cur > r or (cur == r and (ci >= len(items[r]) or items[r][ci][1] > 8*(2*u+kk+1))), ("own P not packed", sl)
            v = vereg[("V", blk, kk)]
            ps = f"v[{V_PO[r%2] + (u*2+kk)*4}:{V_PO[r%2] + (u*2+kk)*4+3}]" if kk < 2 else f"a[{A_P + ((kk-2)*2+u)*4}:{A_P + ((kk-2)*2+u)*4+3}]"
            A(f"v_mfma_f32_32x32x16_bf16 {oreg(qt)}, v[{v}:{v+3}], {ps}, {c}")
        stamp(f"slot{sl}")
        bud = 24
        vt, lt = operands(mf[sl+1]) if sl + 1 < nslots else ([], [])
        vt = list(vt); lt = list(lt)
        if vi < len(vexp) and sl >= need_at[("VR", vexp[vi][1], vexp[vi][2]//4)]: vt.append(("VR", vexp[vi][1], vexp[vi][2]//4))
        if pendm and tdone.get(("RV", rounds[pendm[0][0]][pendm[0][1]//2][0], pendm[0][1] % 2), 10**6) <= sl - 2:
            lt.append(("RV", rounds[pendm[0][0]][pendm[0][1]//2][0], pendm[0][1] % 2))
        if sl == chkB_slot: vt.append("PB")
        if inloop and not XTAG:
            if sl == flag_slot: vt.append("XS")
            if sl == xchk_slot: vt.append("XP")
            if sl == xuse_slot: vt.append("XR")
        if inloop and XTAG and sl == xuse2: vt.append("XR")
        if sl == b[nfull-1] + 4: lt.append(("LR", 1))
        if sl == b[n-1] + 4: lt.append(("LR", 0))
        if sl in bar_at:
            r = bar_at[sl]
            assert nw[r] == 4, ("P not written before barrier", r, sl)
            for q_ in ([1] if r == nfull-1 else []) + ([0] if r == n-1 else []): assert q_ in lwr, ("l not written", sl)
            A.need(vt, lt + [("PW", r), "LW"])
            A("s_barrier")
            bud -= COST['bar']
            for q_ in ([1] if r == nfull-1 else []) + ([0] if r == n-1 else []):
                LT[q_] = V_S[r % 2] + 8*q_
                for hf in range(2):
                    A.ds(f"ds_read_b128 v[{LT[q_]+hf*4}:{LT[q_]+hf*4+3}], v{vLR} offset:{LDS_L + q_*1024 + hf*16}", ("LR", q_)); bud -= 4
        else:
            A.need(vt, lt)
        if sl == b[nfull-1] + 4:
            extra += lsum(LT[1], XB+10 if XTAG else vLS)
            if XTAG: extra += [f"v_mov_b32 v{XB+j}, s61" for j in (3, 7, 11)]
        if sl == b[n-1] + 4: extra += lsum(LT[0], V_L)
        hasw = bool(pendw) and sl not in bar_at and not (sl + 1 in bar_at)
        nr = 0
        while nr < opt.get("maxr", 2) and len(A.lg) < 13:
            c_ = []
            if prq:
                r, kk, u, idx = prq[0]
                if sl >= b[r] - bl[r] and (r == 0 or sl >= pslot[(r-1, kk, u)]): c_.append((pslot[(r, kk, u)] - 5, "p"))
            if qrest: c_.append((qord.index(qrest[0]) - 6, "q"))
            if lvq:
                _, tblk, q, i = lvq[0]
                if (i < 2 or lv_last[tb[i-2][0]] + 1 < sl): c_.append((lv_use[tblk] - 8 + q, "lv"))
            if rvq:
                _, tblk, q, i = rvq[0]
                if (i < 2 or (tb[i-2][0], q) in rv_done): c_.append((lv_use[tblk] + 8 + 4*q, "rv"))
            if not c_: break
            d_, k_ = min(c_)
            if sl == lastw + 1 and d_ > sl - 2: break
            if nr >= 1 and d_ > sl + 1: break
            if hasw and d_ > sl + 1: break
            if d_ > sl + opt.get("rlead", 24): break
            if k_ == "p":
                r, kk, u, idx = prq.pop(0); rg = A_P + idx*4
                A.ds(f"ds_read_b128 a[{rg}:{rg+3}], v{vPR+kk//2-1} offset:{(r%NPB)*16384 + (u*2+kk%2)*1024}", ("PR", r, kk, u)); prdone.add((r, kk, u))
            elif k_ == "q": qread(qrest.pop(0))
            elif k_ == "lv": tread(lvq.pop(0), sl)
            else: tread(rvq.pop(0), sl)
            bud -= COST["r"]; nr += 1
        if hasw:
            r, f = pendw.pop(0); PO = V_PO[r % 2]
            A.ds(f"ds_write_b128 v{vPW}, v[{PO+4*f}:{PO+4*f+3}] offset:{(r%NPB)*16384 + f*1024}", ("PW", r)); bud -= COST["w"]; nw[r] += 1
            lastw = sl
        if pendl and pendl[0][0] <= sl:
            _, q_ = pendl.pop(0); lwr.add(q_)
            A.ds(f"ds_write_b64 v{vLW}, v[{V_LA+4*q_}:{V_LA+4*q_+1}] offset:{q_*1024}", "LW")
            A.ds(f"ds_write_b64 v{vLW}, v[{V_LA+4*q_+2}:{V_LA+4*q_+3}] offset:{q_*1024+512}", "LW"); bud -= 24
        nxt_ = min([need_at[q_[0]] for q_ in (kl, vl) if q_ and (q_[0][1] < 4 or sl >= gate)] + [10**6]) - sl
        if not fb_done and not opt.get("fb0", 1) and sl >= opt.get("fbslot", 13) and (nxt_ >= opt.get("fbgap", 20) or sl >= opt.get("fbmax", 29)):
            fb_done.append(sl); assert sl < b[0]
            if not FBE:
                A("s_cmp_eq_u32 s3, 0\n s_cbranch_scc0 L_skip2\n s_barrier"); bud -= 42
                A.label("L_skip2")
            A.vmem(f"buffer_store_dword v{vTAG}, v{vFB}, s[24:27], s18 offen sc1", "FB"); bud -= 8
        elif sl == opt.get("tv", -5):
            A.vmem(f"buffer_load_dword v255, v{V_O0+2}, s[24:27], s37 offen sc1", "ST"); bud -= 8
        elif not pb_done and sl >= pollB_slot and (nxt_ >= opt.get("pollgap", 24) or sl >= chkB_slot - opt.get("pollmin", 18)):
            pb_done.append(sl)
            assert not late
            A.vmem(f"buffer_load_dword v{V_TMP}, v{vPB}, s[24:27], s60 offen sc1", "PB"); bud -= 8
            if not XSC1: A.vmem(f"buffer_load_dword v{V_TMP+1}, off, s[24:27], s37 sc1", "PB"); bud -= 8
        elif (kl or vl) and not hasw and sl not in bar_at:
            c_ = [q_[0] for q_ in (kl, vl) if q_ and ld_free(q_[0]) <= sl and need_at[q_[0]] - sl <= opt.get("maxlead", 60)]
            if c_:
                key = min(c_, key=lambda k: need_at[k])
                now = sum(max(32, c) for c in totcost)
                if pipe - now <= opt.get("qmax", 60) or need_at[key] - sl < opt.get("urg", 10):
                    (kl if key[0] == "K" else vl).pop(0)
                    ld(key); bud -= COST["l"]; ldlog.append((sl, key, need_at[key] - sl))
                    pipe = max(pipe, now) + (opt.get("kdur", 74) if key[0] == "K" else opt.get("vdur", 74))
        if sl == chkB_slot:
            A(f"v_cmp_eq_u32 vcc, s61, v{V_TMP}")
            if not XSC1: A(f"v_readfirstlane_b32 s37, v{V_TMP+1}")
            A(f"s_cmp_eq_u64 vcc, -1\n s_cbranch_scc0 L_bspin0")
            A.label("L_bok")
            OOL.label("L_bspin0"); OOL("s_mov_b32 s53, 0"); OOL.label("L_bspin")
            OOL(f"""
            buffer_load_dword v{V_TMP}, v{vPB}, s[24:27], s60 offen sc1
            s_add_u32 s53, s53, 1
            s_waitcnt vmcnt(0)
            v_cmp_eq_u32 vcc, s61, v{V_TMP}
            s_cmp_eq_u64 vcc, -1
            s_cbranch_scc1 L_bok
            s_cmp_lt_u32 s53, 0x100000
            s_cbranch_scc1 L_bspin
            s_branch L_bok
            """)
            A("s_mov_b32 s19, 0x4e800000")
            for x_ in late2: A(x_)
            bud -= 20
        if sl == opt.get("wbslot", -1):
            A("s_or_b32 s38, s35, s32\n s_cbranch_scc0 L_dowb"); A.label("L_nowb"); bud -= 8
            OOL.label("L_dowb"); OOL("buffer_wbl2 sc1\n s_branch L_nowb")
        if inloop and XTAG:
            if sl == send_slot:
                assert not extra
                stamp("send"); extra += tag_pack()
            if sl == xld_slot:
                assert not kl and not vl and all(lv_last[t[0]] + 1 < sl for t in tb) and sl > send_slot + 8
                tag_recv(A); bud -= 24
            if sl == opt.get("idslot", nslots - 8):
                A.ds(f"ds_read_b128 v[{XR}:{XR+3}], v{vPW} offset:{NPB*16384}", "ID")
                A.ds(f"ds_read_b128 v[{XR+4}:{XR+7}], v{vPW} offset:{NPB*16384+1024}", "ID"); bud -= 8
            if sl == xuse2:
                assert sl > b[n-1] + 4 and all(lv_last[t[0]] < sl for t in tb)
                stamp("xr")
                while extra: emit_extra(extra.pop(0)); bud -= 4
                tag_check(); bud -= 28; extra += tag_fin()
        elif inloop:
            if sl == send_slot:
                assert not extra
                stamp("send"); two_way(send_payload); bud -= 60
                if not XSC1: self_touch(); bud -= 8
            if sl == flag_slot:
                stamp("xack"); two_way(send_flag); bud -= 16
            if sl == xpoll_slot:
                A.vmem(f"buffer_load_dword v{V_TMP}, v{vXF}, s[24:27], s55 offen sc1", "XP"); bud -= 8
            if sl == xchk_slot:
                assert not kl and not vl and all(lv_last[t[0]] < sl for t in tb)
                stamp("xp"); xcheck(); recv_loads(); bud -= 50
            if sl == xuse_slot:
                assert sl > b[n-1] + 4
                stamp("xr"); extra += fin_pre()
        def vexp_step():
            nonlocal vi, vpart, bud
            key = vexp[vi]; src = V_VR + (key[1] % NVR)*8 + key[2]
            A(f"v_cvt_scalef32_pk_bf16_fp4 v{vereg[key]+vpart}, v{src}, 1.0 op_sel:[{vpart&1},{vpart>>1},0]")
            bud -= 4; vpart += 1
            if vpart == 4: vedone[key] = sl; vi += 1; vpart = 0
        def vexp_ok():
            if vi >= len(vexp): return False
            key = vexp[vi]; tag = ("VR", key[1], key[2]//4)
            return vefree[key] <= sl and tag not in A.vm and tag in issued
        def sm_next():
            nonlocal cur, ci
            while cur < n and ci >= len(items[cur]): cur += 1; ci = 0
            if cur >= n: return None
            kind, e, txt, info = items[cur][ci]
            if sl < sready[(cur, 0)]: return None
            if kind == "e" and e == 16 and sl < sready[(cur, 1)]: return None
            if kind == "c" and XTAG and cur == nfull + 1: assert not extra and sl > send_slot + 4
            rate = min(opt.get("smrate", 0.7), (wend[cur] - sready[(cur, 0)]) / 33.0)
            return wend[cur] - (32 - e) * rate
        def sm_step():
            nonlocal ci, bud
            kind, e, txt, info = items[cur][ci]
            A(txt); bud -= COST[kind]; ci += 1
            if kind == "c" and e % 8 == 0: pendw.append((cur, e//8 - 1)); newm.append((cur, e//8 - 1))
        newm = []
        def fill():
          nonlocal bud
          while True:
            ds_ = sm_next(); dv = None
            if vi < len(vexp):
                dl = firstuse[vexp[vi]] - 2 - (3 - vpart) * 0.25
                if vexp_ok(): dv = dl
                elif firstuse[vexp[vi]] - sl <= 2:
                    A.need([("VR", vexp[vi][1], vexp[vi][2]//4)])
                    assert vexp_ok(), ("cannot expand in time", sl, vexp[vi])
                    dv = dl
            cands = [(d, k) for d, k in ((ds_, "s"), (dv, "v")) if d is not None]
            if extra:
                if inloop and sl < send_slot: dx = send_slot - 3
                elif inloop and XTAG and sl < send_slot + 8: dx = send_slot + (27 - len(extra)) * opt.get("packrate", 0.12)
                else: dx = sl + 3
                cands.append((dx, "x"))
            if late: cands.append((8, "t"))
            if late3 and nsolo and all(t_[1] >= nfull for t_ in lvq + rvq) and sl > chkB_slot: cands.append((b[nfull-1] + 8, "u"))
            if not cands: break
            d, k = min(cands)
            if d > sl:
                if bud <= 0: break
                if d > sl + opt.get("fitslack", 2) and k == "s" and COST[items[cur][ci][0]] > bud:
                    cands = [c for c in cands if c[1] != "s"]
                    if not cands: break
                    d, k = min(cands)
            if k == "s": sm_step()
            elif k == "v": vexp_step()
            elif k == "x": emit_extra(extra.pop(0)); bud -= 4
            elif k == "u": A(late3.pop(0)); bud -= 4
            else: A(late.pop(0)); bud -= 4
        fill()
        mcost = 0
        if pendm:
            r_, f_ = pendm[0]; blk_, qt_ = rounds[r_][f_//2]; tag = ("RV", blk_, f_ % 2)
            if tag in tdone and tag not in A.lg:
                pendm.pop(0)
                la = V_LA + 4*qt_; rv_ = rvreg[blk_] + 4*(f_ % 2); po_ = V_PO[r_ % 2] + 4*f_
                A(f"v_mfma_f32_16x16x32_bf16 v[{la}:{la+3}], v[{rv_}:{rv_+3}], v[{po_}:{po_+3}], {'v[%d:%d]' % (la, la+3) if qt_ in seenL else '0'}")
                seenL.add(qt_)
                if f_ >= 2 or rounds[r_][0][0] != rounds[r_][1][0]: rv_done[(blk_, f_ % 2)] = sl
                if f_ == 3:
                    for q_ in ([1] if r_ == nfull-1 else []) + ([0] if r_ == n-1 else []): pendl.append((sl + 1, q_))
                b0 = bud; bud = opt.get("mbud", 8); fill(); mcost = max(16, 16 - bud); bud = min(b0, 0) - mcost
        pendm += newm
        totcost.append(32 - bud)
    assert not kl and not vl
    if opt.get("verbose"):
        print("fb", fb_done, "pb", pb_done, "loads", " ".join(f"{s_}:{k_[0]}{k_[1]}.{k_[2]}(+{d_})" for s_, k_, d_ in ldlog), file=sys.stderr)
        print("slot costs:", totcost, "sum:", sum(totcost), "sum max(32,c):", sum(max(32, c) for c in totcost), file=sys.stderr)
    stamp("loopend")
    for x_ in late3: A(x_)
    for x_ in extra: emit_extra(x_)
    if XTAG:
        if not inloop:
            for x_ in tag_pack(): emit_extra(x_)
        if not inloop or xld_slot >= nslots: A.need(["XS"]); tag_recv(A)
        if not inloop or xuse2 >= nslots:
            A.need(["XR"]); stamp("xr"); tag_check()
            for x_ in tag_fin(): A(x_)
    else:
        if not inloop:
            A("s_nop 7"); two_way(send_payload)
            if not XSC1: self_touch()
        if not inloop or flag_slot >= nslots: A.need(["XS"]); two_way(send_flag)
        if not inloop or xpoll_slot >= nslots: A.vmem(f"buffer_load_dword v{V_TMP}, v{vXF}, s[24:27], s55 offen sc1", "XP")
        if not inloop or xchk_slot >= nslots: A.need(["XP"]); xcheck(); recv_loads()
        if not inloop or xuse_slot >= nslots:
            A.need(["XR"]); stamp("xr")
            for x_ in fin_pre(): A(x_)
    assert XTAG and OARCH and inloop
    A.need(ltags=["ID"])
    A(f"v_mfma_f32_32x32x16_bf16 {oreg(0)}, v[{XR}:{XR+3}], v[{XL}:{XL+3}], {oreg(0)}")
    A(f"v_rcp_f32 v{V_TMP}, v{V_L}\n v_cmp_lt_f32 vcc, 0x30800000, v{V_L}\n v_cmp_gt_f32 s[52:53], s19, v{V_L}")
    A(f"v_mfma_f32_32x32x16_bf16 {oreg(0)}, v[{XR+4}:{XR+7}], v[{XL+4}:{XL+7}], {oreg(0)}")
    if not opt.get("noslow"): A("s_and_b64 vcc, vcc, s[52:53]\n s_cmp_eq_u64 vcc, -1\n s_cbranch_scc0 L_slow")
    pk = V_PO[0]
    A("s_add_u32 s38, s56, 4096")
    A.label("L_pack")
    OT = opt.get("otr", 1)
    for bq in range(4):
        for a_ in range(4): A(f"v_mul_f32 v{XR+4*a_+bq}, v{V_O0+4*a_+bq}, v{V_TMP}")
        A(f"v_cvt_pk_bf16_f32 v{pk+2*bq}, v{XR+bq}, v{XR+4+bq}")
        A(f"v_cvt_pk_bf16_f32 v{pk+2*bq+1}, v{XR+8+bq}, v{XR+12+bq}")
        if bq == 1:
            if OT: A(f"ds_write_b128 v{vOW}, v[{pk}:{pk+3}] offset:{LDS_Q}")
            else: A(f"buffer_store_dwordx4 v[{pk}:{pk+3}], v{vOUT}, s[28:31], s56 offen {opt.get('ofl','')}")
    if OT:
        A(f"""
        ds_write_b128 v{vOW}, v[{pk+4}:{pk+7}] offset:{LDS_Q+16}
        ds_read_b128 v[{pk+8}:{pk+11}], v{vOR} offset:{LDS_Q}
        ds_read_b128 v[{pk+12}:{pk+15}], v{vOR} offset:{LDS_Q+1280}
        s_waitcnt lgkmcnt(1)
        buffer_store_dwordx4 v[{pk+8}:{pk+11}], v{vOUT}, s[28:31], s56 offen {opt.get('ofl','')}
        s_waitcnt lgkmcnt(0)
        buffer_store_dwordx4 v[{pk+12}:{pk+15}], v{vOUT}, s[28:31], s38 offen {opt.get('ofl','')}
        """)
    else:
        A(f"buffer_store_dwordx4 v[{pk+4}:{pk+7}], v{vOUT}, s[28:31], s56 offen offset:16 {opt.get('ofl','')}")
    A(f"""
    s_and_b32 s52, s57, 63
    s_cbranch_scc1 L_nobump
    s_add_u32 s52, s39, 1
    s_lshl_b32 s53, s33, 7
    v_mov_b32 v{V_TMP}, s52
    buffer_store_dword v{V_TMP}, v{vFB}, s[24:27], s53 offen
    """)
    A.label("L_nobump")
    if st:
        A("s_waitcnt vmcnt(0)")
        stamp("end")
        A(("" if rtdone else "s_memrealtime s[98:99]\n") + "s_waitcnt lgkmcnt(0)")
        A(f"s_lshl_b32 s50, s2, 2\n s_add_u32 s50, s50, s32\n s_lshl_b32 s51, s50, 7\n s_add_u32 s51, s51, {ST_OFF}")
        A("s_mov_b64 exec, 1")
        open("stampnames.txt", "w").write(" ".join(stl))
        for i in range(len(stl)):
            A(f"v_mov_b32 v10, s{64+2*i}\n v_mov_b32 v11, s{65+2*i}\n buffer_store_dwordx2 v[10:11], off, s[24:27], s51 offset:{8*i}\n s_nop 1")
        A(f"s_lshl_b32 s50, s50, 4\n s_add_u32 s50, s50, {RT_OFF}")
        A(f"v_mov_b32 v24, s96\n v_mov_b32 v25, s97\n v_mov_b32 v26, s98\n v_mov_b32 v27, s99\n buffer_store_dwordx4 v[24:27], off, s[24:27], s50")
    A.label("L_end")
    A("s_endpgm")
    S = OOL
    S.label("L_slow")
    S(f"""
    s_waitcnt vmcnt(0) lgkmcnt(0)
    s_mul_i32 s40, s33, {64*TILE}
    s_add_u32 s40, s40, {RB}
    v_add_u32 v{vK1}, 0x1000, v{vX}
    v_mov_b32 v40, 0xff800000
    s_mov_b32 s41, s40
    s_mov_b32 s42, 0
    """)
    def slow_qk():
        for s in range(8): S(f"buffer_load_dwordx4 a[{64+4*s}:{67+4*s}], v{vX if s < 4 else vK1}, s[24:27], s41 offen offset:{(s%4)*1024} sc1")
        S("s_waitcnt vmcnt(0)")
        for s in range(8): S(f"v_mfma_f32_32x32x16_bf16 v[24:39], a[{64+4*s}:{67+4*s}], a[{4*s}:{4*s+3}], {'0' if s == 0 else 'v[24:39]'}")
        S("s_nop 15")
    S.label("L_slow1")
    slow_qk()
    for i in range(8): S(f"v_max3_f32 v40, v{24+2*i}, v{25+2*i}, v40")
    S(f"""
    s_add_u32 s41, s41, {TILE}
    s_add_u32 s42, s42, 1
    s_cmp_lt_u32 s42, 64
    s_cbranch_scc1 L_slow1
    v_mov_b32 v41, v40
    s_nop 1
    v_permlane32_swap_b32 v40, v41
    v_max_f32 v40, v40, v41
    v_mov_b32 v42, 0
    v_and_b32 v43, 7, v{vLANE}
    v_bfe_u32 v44, v{vLANE}, 3, 2
    v_lshl_add_u32 v43, v43, 2, v44
    v_lshl_add_u32 v43, v{vW}, 5, v43
    v_lshlrev_b32 v43, 2, v43
    v_lshrrev_b32 v44, 5, v{vLANE}
    s_lshl_b32 s52, s33, 11
    v_lshl_add_u32 v44, v44, 2, s52
    v_lshl_add_u32 v43, v44, 9, v43
    v_lshlrev_b32 v44, 1, v44
    s_mov_b32 s41, s40
    s_mov_b32 s42, 0
    """)
    for i in range(16): S(f"v_mov_b32 v{V_O0+i}, 0")
    S.label("L_slow2")
    for g in range(4):
        S(f"global_load_dwordx2 v[{64+2*g}:{65+2*g}], v44, s[14:15] offset:{16*g}")
        S(f"global_load_dwordx2 v[{72+2*g}:{73+2*g}], v44, s[16:17] offset:{16*g}")
        for b_ in range(4): S(f"global_load_dword v{48+4*g+b_}, v43, s[12:13] offset:{512*b_}")
        S("v_add_u32 v43, 0x1000, v43")
    S("v_add_u32 v44, 64, v44")
    slow_qk()
    for i in range(16): S(f"v_sub_f32 v{24+i}, v{24+i}, v40")
    for i in range(16): S(f"v_exp_f32 v{24+i}, v{24+i}")
    for i in range(16): S(f"v_add_f32 v42, v42, v{24+i}")
    for i in range(8): S(f"v_cvt_pk_bf16_f32 v{80+i}, v{24+2*i}, v{25+2*i}")
    for i in range(8):
        S(f"""
        v_cvt_f32_i32 v{48+2*i}, v{48+2*i}
        v_cvt_f32_i32 v{49+2*i}, v{49+2*i}
        v_lshlrev_b32 v45, 16, v{72+i}
        v_and_b32 v46, 0xffff0000, v{72+i}
        v_sub_f32 v{48+2*i}, v{48+2*i}, v45
        v_sub_f32 v{49+2*i}, v{49+2*i}, v46
        v_lshlrev_b32 v45, 16, v{64+i}
        v_and_b32 v46, 0xffff0000, v{64+i}
        v_mul_f32 v{48+2*i}, v{48+2*i}, v45
        v_mul_f32 v{49+2*i}, v{49+2*i}, v46
        v_cvt_pk_bf16_f32 v{88+i}, v{48+2*i}, v{49+2*i}
        """)
    S(f"""
    s_nop 1
    v_mfma_f32_32x32x16_bf16 v[{V_O0}:{V_O0+15}], v[88:91], v[80:83], v[{V_O0}:{V_O0+15}]
    v_mfma_f32_32x32x16_bf16 v[{V_O0}:{V_O0+15}], v[92:95], v[84:87], v[{V_O0}:{V_O0+15}]
    s_add_u32 s41, s41, {TILE}
    s_add_u32 s42, s42, 1
    s_cmp_lt_u32 s42, 64
    s_cbranch_scc1 L_slow2
    v_mov_b32 v41, v42
    s_nop 15
    v_permlane32_swap_b32 v42, v41
    v_add_f32 v42, v42, v41
    v_rcp_f32 v{V_TMP}, v42
    s_add_u32 s38, s56, 4096
    s_branch L_pack
    """)
    o = [HEADER, f"; @launch grid=(256,1,1) block=(256,1,1) lds={LDS_BYTES}\n", TARGET, A.text() + OOL.text(),
         ".fill 2048, 4, 0xBF800000\n", kd(KN, 512, sgpr=102, accum=256)]
    if opt.get("rep"):
        import reporter
        o[1] = f"; @launch kernel={KN} grid=(256,1,1) block=(256,1,1) lds={LDS_BYTES}\n; @launch kernel=rep_kernel grid=(1,1,1) block=(64,1,1) lds=0\n"
        o[4] = o[4] + reporter.text(opt["rep"], RT_OFF, ST_OFF, opt.get("repi", 0), opt.get("repk", 20))
        o.append(kd("rep_kernel", 32))
    return "".join(o)

if __name__ == "__main__":
    opt = {}
    out = sys.argv[1]
    for a_ in sys.argv[2:]:
        k, v = a_.split("=")
        try: v = int(v)
        except:
            try: v = float(v)
            except: pass
        opt[k] = v
    opt.setdefault("pad", 1536); opt.setdefault("ihook", 3); opt.setdefault("chk", 76)
    import hazcheck, subprocess, re, os
    t, n = hazcheck.fix(gen(opt))
    if opt.get("ihook"):
        sys.path.insert(0, "cdna_kernels")
        import cdna_launch as cl
        lines = t.split("\n")
        go = lines.index("L_go:"); endl = lines.index("L_pack:")
        for h in range(opt["ihook"]):
            probe = list(lines)
            for i in range(go + 1, endl):
                if probe[i].strip() and not probe[i].endswith(":"): probe[i] = f"LP_{i}:\n" + probe[i]
            txt = "\n".join(probe)
            for k in range(h, opt["ihook"]): txt = txt.replace("L_end:", f"L_hook{k}:\nL_end:")
            open("_p.s", "w").write(cl.with_harness_metadata(txt, KN, 14, launch_lists=True))
            subprocess.run(["clang", "-x", "assembler", "-target", "amdgcn-amd-amdhsa", "-mcpu=gfx950", "-c", "_p.s", "-o", "_p.o"], check=True)
            assert opt.get("pad") is not None
            sy = subprocess.run(["llvm-objdump", "-t", "_p.o"], capture_output=True, text=True).stdout
            ad = sorted((int(m.group(1), 16) + opt.get("textva", 0), int(m.group(2))) for m in re.finditer(r"^([0-9a-f]+) .* LP_(\d+)$", sy, re.M))
            page = ad[0][0] // 4096 + 1 + h
            cand = [i for a_, i in ad if a_ >= page * 4096 + opt.get("hookoff", 0)]
            if not cand:
                lines.insert(lines.index("L_end:") + 2, f"L_hook{h}:\n  s_branch L_warmed"); continue
            lines.insert(cand[0], f"L_hook{h}:"); lines.insert(cand[0] + 1, "  s_cbranch_execz L_warmed"); endl += 2
        t = "\n".join(lines)
    print("nops inserted:", n)
    open(out, "w").write(t)
```

```python
import sys, math, struct
from asmlib import *
from gen1 import Asm, f2u

KN = NAME + "_kernel"
TILE = 10240
BLK = 4 * TILE
RA = 1 << 20
RB = 4 << 20
X_OFF = 8 << 20
FA_OFF = 4096
FB_OFF = 8192
ST_OFF = 16 << 20
RT_OFF = 17 << 20
SCALE = math.log2(math.e) / math.sqrt(128.0)

LDS_K = 0
LDS_L = 9216
LDS_Q = LDS_L + 2048
LDS_T = LDS_Q + 16896
LDS_R = LDS_T + 8192
LDS_P = 49152
NPB = 3
LDS_BYTES = LDS_P + (NPB + 1) * 16384
assert LDS_R + 12288 <= LDS_P

vT3, vW, vLANE, vK0, vK1, vV, vPW, vPR, vT, vLW, vLR, vOUT, vX, vT2 = 0, 1, 2, 3, 4, 5, 9, 10, 13, 14, 15, 16, 17, 18
vFB, V_L, V_TMP = 19, 20, 22
vOW, vOR = 7, 8
V_S = [24, 56]
V_PO = [88, 104]
COST = dict(l=8, r=6, w=24, e=8, a=4, c=4, bar=42)
A_Q = 0
A_K = [64, 96, 128]
A_P = 160
A_O = 208

HEADER = """; Fused attention over a 2-bit KV cache (dequant + RoPE + softmax(QK^T)V), gfx950, one launch.
"""
def bitop(fn): return fn(0xF0, 0xCC, 0xAA) & 0xFF

def gen(opt):
    for k_ in ("l", "r", "w", "bar"):
        if "c" + k_ in opt: COST[k_] = opt["c" + k_]
    A = Asm()
    OOL = Asm()
    st = opt.get("stamps")
    stl = []; rtdone = []
    stsel = set(opt.get("st", "start,karg,issued,pre,ks,kconv,stored,mid,ackA,bar1,flagsA,mfma0,slot96,slot192,loopend,end").split(","))
    def stamp(name):
        if st and opt.get("rtst") == name and not rtdone:
            rtdone.append(1); A("s_memrealtime s[98:99]")
        if st and opt.get("rtst0") == name: A("s_memrealtime s[96:97]")
        if st and name in stsel and name not in stl:
            i = len(stl); stl.append(name); assert i < 16
            A(f"s_memtime s[{64+2*i}:{65+2*i}]")
    NVR = opt.get("nvr", 4 if opt.get("xtag", 1) else 3); NVE = opt.get("nve", 7); OARCH = opt.get("oarch", 1)
    V_VR = 120; V_VE = V_VR + NVR*8
    V_LV = [V_VE + NVE*4, V_VE + NVE*4 + 16]; V_RV = [V_LV[1] + 16, V_LV[1] + 24]
    V_O1 = V_RV[0]; A_RV = [A_O, A_O + 8]
    V_LA = V_RV[1] + 8
    V_O0 = V_LA + 8
    vR, vR2, vR3 = V_L + 1, vPR + 3 + 100, 0
    V_END = V_O0 + (16 if OARCH else 0)
    vR2, vR3 = V_END, V_END + 1; V_END += 2
    if opt.get("xtag", 1):
        assert V_END <= 256 and OARCH
        vTAG, vPA, vPB = V_O0, V_O0+1, V_L
        vXF = vXL = vXT = vLS = None
    else:
        assert V_END + 8 <= 256, V_END
        vTAG, vPB, vXF, vXL, vXT, vPA, vLS = V_END, V_END+1, V_END+2, V_END+3, V_END+4, V_END+5, V_END+6
    assert opt.get("p32", 1)
    nfull = opt.get("nfull", 6); nsolo = 16 - 2*nfull; nblk = nfull + nsolo
    rounds = [[(r, 0), (r, 1)] for r in range(nfull)] + [[(nfull + 2*i, 0), (nfull + 2*i + 1, 0)] for i in range(nsolo//2)]
    n = len(rounds)
    nt = opt.get("ntfl", "")
    XTAG = opt.get("xtag", 1)
    XSC1 = opt.get("xsc1", 0) or XTAG
    if opt.get("pad") is not None:
        A.raw(f".text\n.p2align 12\n.fill {opt['pad']//4}, 4, 0xBF800000\n")
    A.raw(head(KN))
    A(f"""
    s_load_dwordx16 s[4:19], s[0:1], 0
    s_getpc_b64 s[60:61]
    v_lshlrev_b32 v64, {opt.get("cpfs", 5)}, v0
    """)
    A.vmem("global_load_dword v255, v64, s[60:61]", "cpf")
    A("s_cmpk_ge_u32 s2, 256\n s_cbranch_scc1 L_end")
    stamp("start")
    if st: A("s_memrealtime s[96:97]")
    def a_v():
        A(f"""
        s_and_b32 s3, s57, 1
        s_mul_i32 s3, s3, {256 - 16384}
        v_bfe_u32 v64, v0, 4, 2
        v_lshl_add_u32 v29, v64, 12, v29
        v_bfe_u32 v64, v0, 3, 1
        v_lshl_add_u32 v29, v64, 14, v29
        v_bfe_u32 v64, v0, 6, 1
        v_lshl_add_u32 v29, v64, 11, v29
        v_and_b32 v64, 128, v0
        v_add3_u32 v29, v29, v64, s3
        """)
    A(f"""
    s_and_b32 s52, s2, 7
    s_lshr_b32 s35, s2, 3
    s_lshl_b32 s57, s52, 5
    s_or_b32 s57, s57, s35
    s_lshl_b32 s53, s57, 14
    v_and_b32 v25, 7, v0
    v_lshrrev_b32 v26, 3, v0
    v_lshl_add_u32 v29, v25, 4, s53
    v_lshl_add_u32 v28, v26, 9, v29
    """)
    if opt.get("vpre"): a_v()
    A("s_waitcnt lgkmcnt(0)")
    stamp("karg")
    def l_ts0():
        A("s_and_b32 s3, s53, 0x3000\n v_lshl_add_u32 v70, v0, 4, s3")
        A.vmem(f"global_load_dwordx4 v[88:91], v70, s[14:15]", "TS")
        A.vmem(f"global_load_dwordx4 v[92:95], v70, s[16:17]", "TS")
    for i in range(4):
        A.vmem(f"global_load_dwordx4 v[{32+4*i}:{35+4*i}], v28, s[6:7] offset:{128*i} {nt}", "KR")
    A("s_load_dwordx2 s[22:23], s[0:1], 104\n s_load_dwordx2 s[20:21], s[0:1], 88\n s_lshl_b32 s53, s57, 6\n v_lshl_add_u32 v27, v26, 1, s53")
    A.vmem(f"global_load_ushort v30, v27, s[8:9] {nt}", "KR")
    A.vmem(f"global_load_ushort v31, v27, s[10:11] {nt}", "KR")
    if opt.get("tse", 1) == 1: l_ts0()
    def l_v():
        if not opt.get("vpre"): a_v()
        for m in range(4):
            A.vmem(f"global_load_dwordx4 v[{48+4*m}:{51+4*m}], v29, s[12:13] offset:{512*m} {nt}", "VRAW")
    if not opt.get("vlate"): l_v()
    if opt.get("tse", 1) == 2: l_ts0()
    A(f"""
    v_lshrrev_b32 v{vW}, 6, v0
    v_and_b32 v24, 7, v26
    v_readfirstlane_b32 s32, v{vW}
    v_and_b32 v{vLANE}, 63, v0
    s_lshr_b32 s33, s52, 1
    s_lshl_b32 s53, s33, 7
    s_waitcnt lgkmcnt(0)
    s_load_dword s39, s[22:23], s53
    s_and_b32 s34, s52, 1
    s_lshl_b32 s59, s52, 8
    s_add_u32 s59, s59, {FA_OFF}
    s_and_b32 s36, s35, 1
    s_mov_b32 s24, s22
    s_and_b32 s25, s23, 0xffff
    s_mov_b32 s26, 0x10000000
    s_mov_b32 s27, 0x20000
    s_mul_i32 s58, s57, {TILE}
    s_add_u32 s58, s58, {RA}
    s_lshl_b32 s54, s2, 2
    s_add_u32 s54, s54, s32
    s_lshl_b32 s54, s54, 13
    s_add_u32 s54, s54, {X_OFF}
    """)
    stamp("issued")
    KF = -math.log2(10000.0) / 64
    def trig(idx, mul, pos, nn, t, P1, P2):
        A(f"""
        v_cvt_f32_u32 v{t}, v{idx}
        v_mul_f32 v{t}, {hex(f2u(KF*mul))}, v{t}
        v_exp_f32 v{t}, v{t}
        v_cvt_f32_u32 v{t+1}, v{pos}
        v_mul_f32 v{t}, v{t}, v{t+1}
        """)
        cst = [10000.0 ** (-(j % (nn//2) + 32*(j // (nn//2))) / 64.0) / (2*math.pi) for j in range(nn)]
        A(f"v_mul_f32 v{P2}, {hex(f2u(cst[0]))}, v{t}")
        for j in range(nn):
            A(f"v_cos_f32 v{t+2+2*(j%2)}, v{P2+j}")
            if j + 1 < nn: A(f"v_mul_f32 v{P2+j+1}, {hex(f2u(cst[j+1]))}, v{t}")
            if j: A(f"v_cvt_pk_bf16_f32 v{P1+j-1}, v{t+2+2*((j-1)%2)}, v{t+3+2*((j-1)%2)}")
            A(f"v_sin_f32 v{t+3+2*(j%2)}, v{P2+j}")
            if j: A(f"v_cvt_pk_bf16_f32 v{P2+j-1}, v{t+3+2*((j-1)%2)}, v{t+2+2*((j-1)%2)}")
        j = nn - 1
        A(f"v_cvt_pk_bf16_f32 v{P1+j}, v{t+2+2*(j%2)}, v{t+3+2*(j%2)}")
        A(f"v_cvt_pk_bf16_f32 v{P2+j}, v{t+3+2*(j%2)}, v{t+2+2*(j%2)}")
    KP1, KP2, QP1, QP2 = 96, 104, 112, 128
    def w_trigK():
        A("v_bfe_u32 v150, v27, 1, 11")
        trig(25, 4, 150, 8, 144, KP1, KP2)
    def w_kaddr():
        A(f"""
        v_mul_u32_u24 v173, 144, v26
        v_lshl_add_u32 v173, v25, 4, v173
        v_lshl_add_u32 v174, v{vW}, 3, v25
        v_mul_u32_u24 v172, 144, v174
        v_lshl_add_u32 v172, v24, 4, v172
        v_lshlrev_b32 v174, 4, v174
        v_lshl_add_u32 v174, v24, 9, v174
        v_add_u32 v175, 0x1000, v174
        v_lshrrev_b32 v176, 4, v0
        v_xor_b32 v177, v176, v0
        v_lshl_add_u32 v176, v176, 3, v25
        v_bfe_u32 v177, v177, 3, 1
        v_lshlrev_b32 v176, 4, v176
        v_lshl_add_u32 v176, v177, 29, v176
        v_add_u32 v176, 0x2000, v176
        v_bfe_i32 v177, v0, 4, 1
        v_and_b32 v177, 0x02020202, v177
        v_or_b32 v177, 0x05040100, v177
        v_mov_b32 v178, 0x11111111
        s_add_u32 s37, s58, {RB - RA}
        """)
    def l_pt():
        A(f"""
        s_mul_i32 s52, s32, 2560
        s_add_u32 s52, s52, s58
        v_lshl_add_u32 v65, v{vLANE}, 7, s52
        v_mov_b32 v66, s59
        v_cmp_gt_u32 vcc, {opt.get("ptl", 0)}, v{vLANE}
        {"" if XTAG else "s_add_u32 s52, s54, 4352"}
        {"" if XTAG else "v_writelane_b32 v66, s52, 20"}
        {"s_add_u32 s52, s54, 6144" if opt.get("tlb", 0) & 1 else ""}
        {"v_writelane_b32 v66, s52, 21" if opt.get("tlb", 0) & 1 else ""}
        {"s_add_u32 s52, s58, %d" % (RB - RA) if opt.get("tlb", 0) & 2 else ""}
        {"v_writelane_b32 v66, s52, 22" if opt.get("tlb", 0) & 2 else ""}
        v_cndmask_b32 v65, v66, v65, vcc
        """)
        A.vmem(f"buffer_load_dword v254, v65, s[24:27], 0 offen {opt.get('ptfl', '')}", "PT")
    def l_cpf2():
        NCL = opt.get("ncl", 128)
        A(f"""
        v_min_u32 v64, {NCL//32 - 1}, v{vLANE}
        v_lshl_add_u32 v64, v64, 2, v{vW}
        s_and_b32 s53, s35, 7
        s_add_u32 s53, s53, {2 << opt.get('cpfs', 5)}
        v_lshl_add_u32 v64, v64, 3, s53
        v_lshlrev_b32 v64, 7, v64
        """)
        A.vmem(f"global_load_dword v255, v64, s[60:61]", "cpf")
    def w_qaddr():
        A(f"""
        s_lshr_b32 s52, s32, 1
        s_xor_b32 s53, s57, s52
        s_lshl_b32 s53, s53, 5
        v_bfe_u32 v66, v0, 2, 5
        v_and_b32 v71, 3, v0
        v_add_u32 v67, s53, v66
        v_lshlrev_b32 v68, 8, v67
        v_lshl_add_u32 v68, v71, 4, v68
        v_and_b32 v67, 2047, v67
        s_mul_i32 s52, s52, 8448
        v_mul_u32_u24 v180, 1056, v71
        v_lshl_add_u32 v180, v66, 4, v180
        v_add_u32 v180, s52, v180
        """)
    QS2 = opt.get("qs", 0)
    def l_q():
        if QS2: A("s_lshl_b32 s52, s36, 7\n v_add_u32 v68, s52, v68")
        for k in range(0 if opt.get("noq") else (2 if QS2 else 4)):
            A.vmem(f"global_load_dwordx4 v[{72+4*k}:{75+4*k}], v68, s[4:5] offset:{64*k} {opt.get('qfl', '')}", "QR")
    def l_q2():
        A("v_xor_b32 v68, 128, v68")
        for k in range(2):
            A.vmem(f"global_load_dwordx4 v[{80+4*k}:{83+4*k}], v68, s[4:5] offset:{64*k}", "QR")
    def l_ts():
        A("s_lshl_b32 s53, s33, 12\n v_lshl_add_u32 v70, v0, 4, s53")
        A.vmem(f"global_load_dwordx4 v[88:91], v70, s[14:15]", "TS")
        A.vmem(f"global_load_dwordx4 v[92:95], v70, s[16:17]", "TS")
    def w_trigQ():
        trig(71, 8, 67, 16, 144, QP1, QP2)
    def w_blk():
        A(f"""
        s_lshl_b32 s52, s34, 3
        s_lshl_b32 s53, s36, 2
        s_add_u32 s18, s52, s53
        s_xor_b32 s52, s52, 8
        s_mul_i32 s53, s36, {nfull-4}
        s_add_u32 s19, s52, s53
        s_add_u32 s3, s52, {2*(nfull-4)}
        v_lshlrev_b32 v179, 5, v0
        v_lshrrev_b32 v171, 1, v0
        v_mul_u32_u24 v171, 96, v171
        v_and_b32 v170, 1, v0
        v_lshl_add_u32 v171, v170, 3, v171
        v_add_u32 v171, {LDS_R}, v171
        v_bfe_u32 v157, v0, 4, 1
        v_bfe_u32 v158, v0, 1, 3
        v_cmp_eq_u32 vcc, v157, v158
        v_bfe_u32 v157, v0, 5, 3
        v_and_b32 v158, 1, v157
        v_cndmask_b32 v170, 2, v170, vcc
        v_mul_u32_u24 v158, 48, v158
        v_lshl_add_u32 v158, v170, 4, v158
        v_mul_u32_u24 v157, 192, v{vW}
        v_add_u32 v158, v158, v157
        s_mul_i32 s52, s18, 768
        v_add_u32 v{vR}, s52, v158
        s_mul_i32 s52, s19, 768
        v_add_u32 v{vR2}, s52, v158
        s_mul_i32 s52, s3, 768
        v_add_u32 v{vR3}, s52, v158
        v_lshrrev_b32 v151, 5, v{vLANE}
        v_lshlrev_b32 v152, 4, v151
        v_lshl_add_u32 v152, v{vW}, 7, v152
        s_lshl_b32 s52, s18, 9
        v_add_u32 v{vT}, s52, v152
        s_lshl_b32 s52, s19, 9
        v_add_u32 v{vT2}, s52, v152
        v_cmp_eq_u32 vcc, 0, v0
        s_lshl_b32 s52, s33, 4
        """)
        for src, reg, b0, b1 in (("s18", RB if opt.get("noa", 1) else RA, 0, 4), ("s19", RB, 4, nfull), ("s3", RB, nfull, nblk)):
            if b1 > b0:
                A(f"s_add_u32 s53, s52, {src}\n s_mul_i32 s53, s53, {BLK}")
                for b_ in range(b0, b1): A(f"s_add_u32 s{42+b_}, s53, {reg + (b_-b0)*BLK}")
        A(f"""
        v_bfrev_b32 v153, 4
        v_cndmask_b32 v{vFB}, v153, 0, vcc
        {"v_and_b32 v154, 31, v%d" % vLANE if opt.get("p32", 1) else "s_lshl_b32 s53, s36, 6"}
        {"v_lshlrev_b32 v%d, 2, v154" % vPA if opt.get("p32", 1) else "v_and_b32 v154, 15, v%d" % vLANE}
        {"" if opt.get("p32", 1) else "v_lshl_add_u32 v%d, v154, 2, s53" % vPA}
        v_lshlrev_b32 v{vX}, 4, v{vLANE}
        v_lshl_add_u32 v23, v151, 4, v{vX}
        s_mul_i32 s52, s32, {TILE}
        v_add_u32 v{vK0}, s52, v{vX}
        v_add_u32 v{vK1}, 0x1000, v{vK0}
        s_getreg_b32 s41, hwreg(HW_REG_XCC_ID, 0, 4)
        """)
    def w_vaddr():
        A(f"""
        s_lshr_b32 s52, s32, 1
        s_and_b32 s53, s32, 1
        s_lshl_b32 s53, s53, 10
        s_add_u32 s53, s53, 8192
        s_mul_i32 s38, s52, {3*TILE}
        s_add_u32 s38, s38, s53
        v_add_u32 v{vV}, s38, v{vX}
        s_mul_i32 s38, s52, {-TILE}
        s_add_u32 s38, s38, {2*TILE}
        s_add_u32 s38, s38, s53
        v_add_u32 v{vV+1}, s38, v{vX}
        v_lshl_add_u32 v{vPW}, v{vW}, 12, v{vX}
        v_add_u32 v{vPW}, {LDS_P}, v{vPW}
        v_xor_b32 v{vPW+1}, 0x1000, v{vPW}
        v_xor_b32 v{vPW+2}, 0x2000, v{vPW}
        v_xor_b32 v{vPW+3}, 0x3000, v{vPW}
        """)
    late = []
    late2 = []; late3 = []
    def w_late():
        L_ = f"""
        s_xor_b32 s38, s34, 1
        s_lshl_b32 s38, s38, 11
        v_and_b32 v{vPB}, {31 if opt.get("chk") else 7}, v{vLANE}
        {"" if opt.get("chk") else "v_lshl_add_u32 v%d, v%d, 3, v%d" % (vPB, vW, vPB)}
        v_lshl_add_u32 v{vPB}, v{vPB}, 6, s38
        v_and_b32 v{vLR}, 31, v{vLANE}
        v_lshlrev_b32 v{vLR}, 5, v{vLR}
        v_lshlrev_b32 v{vLW}, 5, v{vLANE}
        v_lshl_add_u32 v{vLW}, v{vW}, 3, v{vLW}
        v_cmp_gt_u32 vcc, 16, v{vLANE}
        v_add_u32 v{V_TMP}, {LDS_L}, v{vLW}
        s_nop 0
        v_cndmask_b32 v{vLW}, v{vLW}, v{V_TMP}, vcc
        s_sub_u32 s38, 2, s36
        s_mul_i32 s38, s38, {(nfull-4)*512}
        v_add_u32 v{vT3}, s38, v{vT2}
        s_xor_b32 s55, s54, 0x40000
        s_lshl_b32 s56, s57, 13
        s_lshl_b32 s38, s32, 6
        s_add_u32 s56, s56, s38
        s_mov_b32 s28, s20
        s_and_b32 s29, s21, 0xffff
        s_mov_b32 s30, 0x200000
        s_mov_b32 s31, 0x20000
        """
        if not XTAG: L_ += f"""
        s_xor_b32 s37, s35, 1
        s_lshl_b32 s37, s37, 2
        s_add_u32 s37, s37, s59
        v_lshrrev_b32 v{vXL}, 3, v{vLR}
        v_add_u32 v{vXL}, 4096, v{vXL}
        v_mov_b32 v{vXF}, 4352
        v_min_u32 v{vXT}, 32, v{vLANE}
        v_lshlrev_b32 v{vXT}, 7, v{vXT}
        """
        late.extend(x.strip() for x in L_.split("\n") if x.strip())
        late.extend([f"v_and_b32 v{vOW}, 31, v{vLANE}", f"v_lshl_add_u32 v{vOW}, v{vW}, 5, v{vOW}", f"v_mul_u32_u24 v{vOW}, 80, v{vOW}",
                     f"v_and_b32 v{V_TMP}, 32, v{vLANE}", f"v_add_u32 v{vOW}, v{vOW}, v{V_TMP}",
                     f"v_lshrrev_b32 v{vOUT}, 2, v{vLANE}", f"v_lshl_add_u32 v{vOR}, v{vW}, 5, v{vOUT}", f"v_mul_u32_u24 v{vOR}, 80, v{vOR}",
                     f"v_and_b32 v{V_TMP}, 48, v{vX}", f"v_add_u32 v{vOR}, v{vOR}, v{V_TMP}", f"v_lshl_add_u32 v{vOUT}, v{vOUT}, 8, v{V_TMP}"])
    def w_tables():
        A.need(["TS"])
        x = 184
        for k in range(4):
            A(f"v_lshlrev_b32 v{x+2*k}, 16, v{88+k}\n v_and_b32 v{x+2*k+1}, 0xffff0000, v{88+k}")
        A("s_mov_b32 s52, 0x3fc03fc0")
        ex = ["v_xor_b32 v92, s52, v92", "v_xor_b32 v93, s52, v93", "v_xor_b32 v94, s52, v94", "v_xor_b32 v95, s52, v95",
              "v_or3_b32 v92, v92, v93, v94", "v_or_b32 v92, v92, v95", "v_mov_b32 v95, 0x7fc00000", "v_cmp_eq_u32 s[52:53], 0, v92"]
        for k in range(8): A(f"v_log_f32 v{192+k}, v{x+k}\n {ex[k]}")
        ex = ["v_max3_f32 v93, |v192|, |v193|, |v194|", "v_max3_f32 v94, |v195|, |v196|, |v197|", "v_max3_f32 v93, |v198|, |v199|, v93", "v_max_f32 v93, v93, v94",
              "v_cmp_gt_f32 vcc, 0x41f00000, v93", "s_nop 0", "s_and_b64 vcc, vcc, s[52:53]", "s_nop 0"]
        A(f"v_rcp_f32 v200, v{x}")
        A.ds(f"ds_write_b128 v179, v[192:195] offset:{LDS_T}", "QW"); A.ds(f"ds_write_b128 v179, v[196:199] offset:{LDS_T+16}", "QW")
        for k in range(1, 8): A(f"{ex[k-1]}\n v_rcp_f32 v{200+k}, v{x+k}")
        A("v_cndmask_b32 v200, v95, v200, vcc")
        for k in range(4): A(f"v_cvt_pk_bf16_f32 v{184+k}, v{200+2*k}, v{201+2*k}")
        A("v_mov_b32 v92, 0\n v_mov_b32 v93, 0")
        for k in range(4):
            A(f"v_lshlrev_b32 v94, 16, v{184+k}\n v_and_b32 v95, 0xffff0000, v{184+k}\n v_sub_f32 v94, v{200+2*k}, v94\n v_sub_f32 v95, v{201+2*k}, v95\n v_cvt_pk_bf16_f32 v{188+k}, v94, v95")
        A.ds("ds_write2_b64 v171, v[184:185], v[188:189] offset0:0 offset1:2", "QW")
        A.ds("ds_write2_b64 v171, v[186:187], v[190:191] offset0:6 offset1:8", "QW")
        A.ds("ds_write2_b64 v171, v[92:93], v[92:93] offset0:4 offset1:10", "QW")
    def w_qrope():
        A.need(["QR"])
        if QS2: A("s_cmp_eq_u32 s36, 0\n s_mov_b32 s53, 0x01000504\n s_cselect_b32 s52, 0x05040100, s53\n s_add_u32 s53, s52, 0x02020202")
        else: A("s_mov_b32 s52, 0x05040100\n s_mov_b32 s53, 0x07060302")
        x = 32
        pend = []
        for half in range(2):
            for k in (2*half, 2*half+1, 4+2*half, 5+2*half):
                A(f"v_perm_b32 v{x+2*k}, v{80+k}, v{72+k}, s52\n v_perm_b32 v{x+2*k+1}, v{80+k}, v{72+k}, s53")
            js = [4*half + t for t in range(4)] + [8 + 4*half + t for t in range(4)]
            for o_, (P_, md) in enumerate(((QP1, " neg_hi:[0,1,0]"), (QP2, ""))):
                y = 192 + 8*o_; zz = 208 + 8*half + 4*o_
                for t, j in enumerate(js): A(f"v_dot2_f32_bf16 v{y+t}, v{x+j}, v{P_+j}, 0{md}")
                for p_ in pend: p_()
                for k in range(4): A(f"v_cvt_pk_bf16_f32 v{zz+k}, v{y+2*k}, v{y+2*k+1}")
                pend = [lambda zz=zz, off=LDS_Q + 528*half + 8*528*o_: A.ds(f"ds_write_b128 v180, v[{zz}:{zz+3}] offset:{off}", "QW")]
        for p_ in pend: p_()
    def w_staddr():
        A(f"""
        v_lshlrev_b32 v159, 7, v{vW}
        v_lshl_add_u32 v159, v{vLANE}, 9, v159
        v_and_b32 v64, 3, v{vLANE}
        v_lshl_add_u32 v64, v{vW}, 2, v64
        v_cmp_gt_u32 vcc, 16, v{vLANE}
        v_lshlrev_b32 v64, 7, v64
        v_add_u32 v64, 0x2000, v64
        v_cndmask_b32 v159, v64, v159, vcc
        """)
    def w_st2():
        A(f"""
        v_and_b32 v159, 15, v{vLANE}
        v_lshlrev_b32 v159, 9, v159
        v_lshl_add_u32 v159, v{vW}, 7, v159
        v_and_b32 v{V_O0+2}, 3, v{vLANE}
        v_lshl_add_u32 v{V_O0+2}, v{vW}, 2, v{V_O0+2}
        v_lshlrev_b32 v{V_O0+2}, 7, v{V_O0+2}
        v_add_u32 v{V_O0+2}, 0x2000, v{V_O0+2}
        """)
    def w_tk():
        A.need(["SK"]); stamp("ackK")
        A.vmem(f"buffer_load_dword v254, v159, s[24:27], s37 offen sc1", "ST")
    def w_ident():
        assert V_O0 >= 235
        A(f"""
        v_bfe_u32 v232, v{vLANE}, 3, 2
        v_bfe_u32 v233, v{vLANE}, 1, 1
        v_lshl_add_u32 v232, v232, 1, v233
        v_lshrrev_b32 v233, 3, v{vLANE}
        v_xor_b32 v233, v233, v{vLANE}
        v_and_b32 v233, 4, v233
        v_lshl_add_u32 v232, v233, 1, v232
        v_and_b32 v233, 1, v{vLANE}
        v_lshlrev_b32 v233, 4, v233
        v_mov_b32 v234, 0x3f80
        v_lshlrev_b32 v233, v233, v234
        """)
        msk = ["vcc", "s[52:53]", "s[100:101]"]
        for k in range(10):
            if k < 8: A(f"v_cmp_eq_u32 {msk[k%3]}, {k}, v232")
            if k >= 2: A(f"v_cndmask_b32 v{224+k-2}, 0, v233, {msk[(k-2)%3]}")
        A.ds(f"ds_write_b128 v{vPW}, v[224:227] offset:{NPB*16384}", "QW")
        A.ds(f"ds_write_b128 v{vPW}, v[228:231] offset:{NPB*16384+1024}", "QW")
    def w_rb():
        for r_ in (174, 175, 176): A.vmem(f"buffer_load_dword v254, v{r_}, s[24:27], s37 offen sc1", "ST")
    def w_wpt(): A.need(["PT"])
    def w_wcpf(): A.need(["cpf"])
    def w_wq(): A.need(["QR"])
    def w_otlb():
        A("s_lshl_b32 s52, s57, 13\n v_mov_b32 v64, s52\n s_waitcnt lgkmcnt(0)"); A.lg = []
        A.vmem("global_load_dword v255, v64, s[20:21]", "cpf")
    def w_flush():
        for l_ in late: A(l_)
        late.clear()
    def w_warm():
        if opt.get("ihook"):
            A("s_mov_b64 exec, 0")
            for i in range(opt["ihook"]): A(f"s_cmp_eq_u32 s32, {i}\n s_cbranch_scc1 L_hook{i}")
            A.label("L_warmed"); A("s_mov_b64 exec, -1")
    W = dict(trigK=w_trigK, kaddr=w_kaddr, pt=l_pt, cpf2=l_cpf2, q=l_q, q2=l_q2, qaddr=w_qaddr, ts=l_ts, trigQ=w_trigQ, blk=w_blk, vaddr=w_vaddr,
             tables=w_tables, qrope=w_qrope, flush=w_flush, otlb=w_otlb, staddr=w_staddr, rb=w_rb, ident=w_ident, wpt=w_wpt, wcpf=w_wcpf, wq=w_wq, st2=w_st2, tk=w_tk, v=l_v, warm=w_warm)
    def run(seq):
        for x_ in seq.split("."):
            if x_: W[x_](); stamp(x_)
    w_late()
    run(opt.get("o1", "pt.trigK.kaddr.cpf2.qaddr.trigQ.blk.q"))
    stamp("pre")
    A.need(["KR"])
    stamp("ks")
    A(f"v_lshlrev_b32 v30, 16, v30\n v_lshlrev_b32 v31, 16, v31\n v_mul_f32 v30, {hex(f2u(SCALE))}, v30\n v_mul_f32 v31, v31, v30")
    for j in range(16): A(f"v_cvt_f32_i32 v{32+j}, v{32+j}")
    for j in range(16): A(f"v_fma_f32 v{32+j}, v{32+j}, v30, -v31")
    for j in range(8): A(f"v_cvt_pk_bf16_f32 v{32+j}, v{32+j}, v{40+j}")
    for j in range(8): A(f"v_dot2_f32_bf16 v{KP1+j}, v{32+j}, v{KP1+j}, 0 neg_hi:[0,1,0]")
    for j in range(8): A(f"v_dot2_f32_bf16 v{KP2+j}, v{32+j}, v{KP2+j}, 0")
    for p in range(4): A(f"v_cvt_pk_bf16_f32 v{40+p}, v{KP1+2*p}, v{KP1+2*p+1}")
    A("s_waitcnt lgkmcnt(0)"); A.lg = []
    A.ds("ds_write_b128 v172, v[40:43]", "KT")
    for p in range(4): A(f"v_cvt_pk_bf16_f32 v{44+p}, v{KP2+2*p}, v{KP2+2*p+1}")
    A.ds("ds_write_b128 v172, v[44:47] offset:4608", "KT")
    A.ds("ds_read_b128 v[160:163], v173", "KT2")
    A.ds("ds_read_b128 v[164:167], v173 offset:4608", "KT2")
    stamp("kconv")
    NOA = opt.get("noa", 1)
    sa = "s37 offen sc1" if NOA else "s58 offen"
    if opt.get("kfirst"):
        A.need(ltags=["KT2"])
        A.vmem(f"buffer_store_dwordx4 v[160:163], v174, s[24:27], {sa}", "SK")
        A.vmem(f"buffer_store_dwordx4 v[164:167], v175, s[24:27], {sa}", "SK")
        run(opt.get("o1b", ""))
    def w_vconv():
        A.need(["VRAW"])
        for c in range(4): A(f"v_lshl_or_b32 v{48+c}, v{52+c}, 4, v{48+c}")
        for c in range(4): A(f"v_lshl_or_b32 v{56+c}, v{60+c}, 4, v{56+c}")
        for c in range(4): A(f"v_lshl_or_b32 v{48+c}, v{56+c}, 8, v{48+c}")
        A("v_lshl_or_b32 v48, v49, 16, v48\n v_lshl_or_b32 v49, v51, 16, v50")
        A("s_mov_b32 s52, 0x22222222\n s_mov_b32 s53, 0x88888888")
        A("v_permlane32_swap_b32 v48, v49")
        A("v_mov_b32 v50, v48\n v_mov_b32 v51, v49")
        A.need(ltags=["KT2"])
        if not opt.get("kfirst"):
            A.vmem(f"buffer_store_dwordx4 v[160:163], v174, s[24:27], {sa}", "SA")
            A.vmem(f"buffer_store_dwordx4 v[164:167], v175, s[24:27], {sa}", "SA")
        A("v_permlane16_swap_b32 v48, v50\n v_permlane16_swap_b32 v49, v51")
        A("v_perm_b32 v144, v50, v48, v177\n v_perm_b32 v145, v51, v49, v177")
        t1 = bitop(lambda a, b, c: ~(a ^ b) & c); t2 = bitop(lambda a, b, c: (~a & b) | c)
        for r in (144, 145):
            A(f"v_lshlrev_b32 v55, 1, v{r}\n v_lshlrev_b32 v56, 2, v{r}")
            A(f"v_bitop3_b32 v55, v{r}, v55, s52 bitop3:{hex(t1)}")
            A(f"v_bitop3_b32 v56, v56, s53, v178 bitop3:{hex(t2)}")
            A(f"v_or_b32 v{r}, v55, v56")
        A("v_mov_b32_dpp v146, v144 row_ror:8 row_mask:0xf bank_mask:0xf\n v_mov_b32_dpp v147, v145 row_ror:8 row_mask:0xf bank_mask:0xf")
        A.vmem(f"buffer_store_dwordx4 v[144:147], v176, s[24:27], {sa}", "SA")
    W["vconv"] = w_vconv
    if not opt.get("vdefer"): w_vconv()
    run(opt.get("o2", ""))
    def st_b():
        if NOA: return
        A.vmem("buffer_store_dwordx4 v[160:163], v174, s[24:27], s37 offen sc1", "SB")
        A.vmem("buffer_store_dwordx4 v[164:167], v175, s[24:27], s37 offen sc1", "SB")
        A.vmem("buffer_store_dwordx4 v[144:147], v176, s[24:27], s37 offen sc1", "SB")
    W["sb"] = st_b
    if not opt.get("sbl", 1): st_b()
    stamp("stored")
    run(opt.get("o3", "staddr.vaddr.tables.flush"))
    A(f"""
    s_mul_i32 s40, s39, 0x9E3779B1
    s_add_u32 s40, s40, 0x7F4A7C15
    s_and_b32 s40, s40, 0xfffffff0
    s_or_b32 s62, s40, s41
    s_lshl_b32 s63, s35, 2
    s_add_u32 s63, s63, s59
    v_mov_b32 v24, s62
    s_or_b32 s61, s40, 8
    s_lshl_b32 s18, s57, 6
    s_add_u32 s18, s18, {FB_OFF}
    v_mov_b32 v{vTAG}, s61
    """)
    FBE = 2
    stamp("mid")
    if opt.get("adapt"):
        A.vmem(f"buffer_load_dword v26, v{vPA}, s[24:27], s59 offen sc1", "SA")
    A.need(["SA"], ["QW"])
    stamp("ackA")
    if opt.get("adapt"):
        A(f"""
        v_cmp_eq_u32 vcc, s62, v26
        s_bcnt1_i32_b32 s52, vcc_lo
        s_cmp_ge_u32 s52, {opt["adapt"]}
        s_cselect_b32 s52, 0x20000000, s37
        s_cselect_b32 s37, s37, 0x20000000
        """)
        A.vmem(f"buffer_load_dword v254, v159, s[24:27], s52 offen sc1", "ST")
    elif opt.get("stch", 1) == 1: A.vmem(f"buffer_load_dword v254, v159, s[24:27], s37 offen sc1", "ST")
    A("s_barrier")
    A.vmem(f"buffer_store_dword v24, v{vFB}, s[24:27], s63 offen", "FA")
    if opt.get("fb0", 1): A.vmem(f"buffer_store_dword v{vTAG}, v{vFB}, s[24:27], s18 offen sc1", "FB")
    if opt.get("stch", 1) == 2: A.vmem(f"buffer_load_dword v254, v159, s[24:27], s37 offen sc1", "ST")
    stamp("bar0")
    run(opt.get("o3b", "qrope.ident"))
    A(f"""
    buffer_load_dword v26, v{vPA}, s[24:27], s59 offen sc1
    s_lshl_b32 s60, s33, 12
    s_add_u32 s60, s60, {FB_OFF}
    s_mov_b32 s3, 0
    s_mov_b32 s19, 0
    """)
    run(opt.get("o5", "warm"))
    A.label("L_pollA")
    A(f"""
    s_waitcnt vmcnt(0)
    v_cmp_eq_u32 vcc, s62, v26
    s_cmp_eq_u64 vcc, -1
    s_cbranch_scc0 L_pollA_more
    """)
    A.vm = []
    stamp("flagsA")
    OOL.label("L_pollA_more")
    OOL(f"""
    buffer_load_dword v26, v{vPA}, s[24:27], s59 offen sc1
    s_add_u32 s19, s19, 1
    s_cmp_lt_u32 s19, {opt.get("tmo", 64)}
    s_cbranch_scc1 L_pollA
    s_waitcnt vmcnt(0)
    {"" if opt.get("fb0", 1) else "s_waitcnt lgkmcnt(0)"}
    {"" if opt.get("fb0", 1) else "s_barrier"}
    {"" if opt.get("fb0", 1) else "buffer_store_dword v%d, v%d, s[24:27], s18 offen sc1" % (vTAG, vFB)}
    v_lshlrev_b32 v27, 4, v{vPA}
    s_lshl_b32 s52, s34, 11
    v_add_u32 v27, s52, v27
    s_mov_b32 s53, 0
    """)
    OOL.label("L_pollB0")
    OOL(f"""
    buffer_load_dword v26, v27, s[24:27], s60 offen sc1
    s_add_u32 s53, s53, 1
    s_waitcnt vmcnt(0)
    v_cmp_eq_u32 vcc, s61, v26
    s_cmp_eq_u64 vcc, -1
    s_cbranch_scc1 L_pollB0_ok
    s_sleep 4
    s_cmp_lt_u32 s53, 0x100000
    s_cbranch_scc1 L_pollB0
    """)
    OOL.label("L_pollB0_ok")
    for b_ in range(0 if opt.get("noa", 1) else 4): OOL(f"s_add_u32 s{42+b_}, s{42+b_}, {RB-RA}")
    OOL("s_mov_b32 s3, 1\n s_branch L_go")

    order = []
    for r in range(n):
        order.append(("QK", r))
        if r >= 1: order.append(("PV", r-1))
    order.append(("PV", n-1))
    mf = []; a = [0]*n; b = [0]*n
    for kind, r in order:
        if kind == "QK":
            a[r] = len(mf)
            if r < opt.get("smaj", 2):
                for s in range(8):
                    for u in range(2): mf.append(("QK", r, u, s))
            else:
                for u in range(2):
                    for s in range(8): mf.append(("QK", r, u, s))
        else:
            b[r] = len(mf)
            if r == nfull-1 and opt.get("early", 1):
                for kk in range(2):
                    for u in (1, 0): mf.append(("PV", r, u, kk))
                for u in (1, 0):
                    for kk in range(2, 8): mf.append(("PV", r, u, kk))
            else:
                for kk in range(8):
                    for u in range(2): mf.append(("PV", r, u, kk))
    nslots = len(mf)
    sready = {(m[1], m[2]): sl + 3 for sl, m in enumerate(mf) if m[0] == "QK"}
    q1last = {m[3]: sl for sl, m in enumerate(mf) if m[0] == "QK" and rounds[m[1]][m[2]][1] == 1}
    firstuse = {}; lastuse = {}
    for sl, m in enumerate(mf):
        blk = rounds[m[1]][m[2]][0]
        key = ("K" if m[0] == "QK" else "V", blk, m[3])
        firstuse.setdefault(key, sl); lastuse[key] = sl
    kbuf = {}; kfree = {}
    q1dead = a[nfull-1] + 15
    bases = list(A_K); hold = [None]*len(bases)
    if OARCH and opt.get("k4", 1): bases.append(224); hold.append(None)
    if nsolo: bases.append(A_Q + 32); hold.append("Q1")
    for blk in range(nblk):
        def rel(h): return -1 if h is None else (q1dead if h == "Q1" else lastuse[("K", h, 7)])
        i = min(range(len(bases)), key=lambda i: rel(hold[i]))
        for s in range(8):
            h = hold[i]
            kfree[(blk, s)] = -1 if h is None else (q1last[s] if h == "Q1" else lastuse[("K", h, s)])
        kbuf[blk] = bases[i]; hold[i] = blk
    def oreg(qt):
        if OARCH: return f"v[{V_O0}:{V_O0+15}]" if qt == 0 else f"v[{V_O1}:{V_O1+15}]"
        return f"a[{A_O+16*qt}:{A_O+16*qt+15}]"
    A_O1 = A_O if OARCH else A_O + 16
    vexp = sorted({k for k in firstuse if k[0] == "V"}, key=lambda k: firstuse[k])
    vereg = {k: V_VE + (i % NVE)*4 for i, k in enumerate(vexp)}
    vefree = {k: (-1 if i < NVE else lastuse[vexp[i-NVE]]) for i, k in enumerate(vexp)}
    vedone = {}
    barlead = opt.get("barlead", 3)
    gate = opt["chk"] + 1 if opt.get("chk") else b[opt.get("gater", 1)] - barlead
    kl = [("K", blk, s) for blk in range(nblk) for s in range(8)]
    vl = sorted([("VR", blk, i) for blk in range(nblk) for i in range(2)], key=lambda k: firstuse[("V", k[1], 4*k[2])])
    need_at = {k: firstuse[k] for k in kl}
    need_at.update({k: firstuse[("V", k[1], 4*k[2])] - opt.get("vneed", 26) for k in vl})
    for i in range(2): need_at[("VR", 0, i)] = opt.get("v0need", 26) + opt.get("v0d", 6)*i
    for i in range(2): need_at[("VR", 1, i)] = max(need_at[("VR", 1, i)], opt.get("v1need", 56) + 4*i)
    issued = set()
    def ld_free(key):
        f = -1
        if key[0] == "K": f = kfree[(key[1], key[2])]
        elif key[1] >= NVR: f = vedone.get(("V", key[1]-NVR, 4*key[2]+3), 10**6)
        if key[1] >= 4: f = max(f, gate)
        return f
    def ld(key):
        k, blk, f = key
        issued.add(key)
        if k == "K":
            rg = kbuf[blk] + 4*f
            A.vmem(f"buffer_load_dwordx4 a[{rg}:{rg+3}], v{vK0 + f//4}, s[24:27], s{42+blk} offen offset:{(f%4)*1024} {opt.get('kvfl', 'sc1')}", key)
        else:
            rg = V_VR + (blk % NVR)*8 + 4*f
            A.vmem(f"buffer_load_dwordx4 v[{rg}:{rg+3}], v{vV+f}, s[24:27], s{42+blk} offen {opt.get('kvfl', 'sc1')}", key)
    tb = []
    for r in range(n):
        for u in range(2):
            if not tb or tb[-1][0] != rounds[r][u][0]: tb.append((rounds[r][u][0], r, u))
    lvreg = {blk: V_LV[i % 2] for i, (blk, _, _) in enumerate(tb)}
    rvreg = {blk: A_RV[i % 2] for i, (blk, _, _) in enumerate(tb)}
    lv_use = {blk: firstuse[("K", blk, 0)] for blk, _, _ in tb}
    lv_last = {blk: lastuse[("K", blk, 0)] for blk, _, _ in tb}
    rv_done = {}
    lvq = [("LV", blk, q, i) for i, (blk, r, u) in enumerate(tb) for q in range(4)]
    rvq = [("RV", blk, q, i) for i, (blk, r, u) in enumerate(tb) for q in range(2)]
    tdone = {}
    A.label("L_go")
    def qread(i):
        A.ds(f"ds_read_b128 a[{A_Q+4*i}:{A_Q+4*i+3}], v23 offset:{LDS_Q + (i//8)*8448 + (i%8)*1056}", ("Q", i//8, i%8))
    qord = [x for s_ in range(8) for x in (s_, 8+s_)] if opt.get("smaj", 2) else list(range(16))
    for _ in range(opt.get("npre0", 2)): ld(kl.pop(0))
    if opt.get("stch", 1) == 3: A.vmem(f"buffer_load_dword v254, v159, s[24:27], s37 offen sc1", "ST")
    assert opt.get("fb0", 1) or not opt.get("o6")
    run(opt.get("o6", ""))
    if opt.get("fb0", 1):
        if A.lg: A("s_waitcnt lgkmcnt(0)\n s_barrier"); A.lg = []
    else:
        A("s_cmp_eq_u32 s3, 0\n s_waitcnt lgkmcnt(0)\n s_cbranch_scc0 L_skip2\n s_barrier"); A.lg = []
        A.label("L_skip2")
    stamp("bar1")
    rd = [lambda q_=q_: A.ds(f"ds_read_b128 v[{V_LV[0]+4*q_}:{V_LV[0]+4*q_+3}], v{vT} offset:{LDS_T + q_*32}", ("LV", 0, q_)) for q_ in range(4)]
    rd += [lambda i=i: qread(i) for i in qord[:10]]
    for _ in range(opt.get("npre", 6) - opt.get("npre0", 2)):
        for _ in range(opt.get("gap0", 3)):
            if rd: rd.pop(0)()
        ld(kl.pop(0))
    if opt.get("tv") == -1: A.vmem(f"buffer_load_dword v255, v{V_O0+2}, s[24:27], s37 offen sc1", "ST")
    while rd: rd.pop(0)()
    qrest = qord[10:]
    def tread(t, sl_):
        k, blk, q, i = t
        rg = (lvreg if k == "LV" else rvreg)[blk] + 4*q
        j_, rel_ = (0, blk) if blk < 4 else ((1, blk-4) if blk < nfull else (2, blk-nfull))
        if k == "LV": A.ds(f"ds_read_b128 v[{rg}:{rg+3}], v{(vT, vT2, vT3)[j_]} offset:{LDS_T + rel_*512 + q*32}", (k, blk, q))
        else: A.ds(f"ds_read_b128 a[{rg}:{rg+3}], v{(vR, vR2, vR3)[j_]} offset:{LDS_R + rel_*768 + q*96}", (k, blk, q))
        tdone[(k, blk, q)] = sl_
    for q_ in range(4): lvq.pop(0); tdone[("LV", 0, q_)] = -5
    bl = {r: (opt.get("bl0", barlead) if r == 0 else opt.get("bl7", 2) if r == n-1 else barlead) for r in range(n)}
    wend = {r: b[r] - (opt.get("smend", 6) - barlead + bl[r]) - (opt.get("lx", 2) if r in (nfull-1, n-1) else 0) for r in range(n)}
    items = {}
    for r in range(n):
        S = V_S[r % 2]; PO = V_PO[r % 2]; L = []
        for e in range(33):
            if e < 32: L.append(("e", e, f"v_exp_f32 v{S+e}, v{S+e}", None))
            if e >= 2 and e % 2 == 0:
                L.append(("c", e, f"v_cvt_pk_bf16_f32 v{PO + (e-2)//2}, v{S+e-2}, v{S+e-1}", None))
        items[r] = L
    cur = 0; ci = 0; pendw = []; nw = {r: 0 for r in range(n)}
    pendm = []; seenL = set(); pendl = []; lwr = set()
    bar_at = {b[r] - bl[r]: r for r in range(n)}
    pslot = {(m[1], m[3], m[2]): sl for sl, m in enumerate(mf) if m[0] == "PV"}
    prq = sorted([(r, kk, u, (kk-2)*2+u) for r in range(n) for kk in range(2, 8) for u in range(2)], key=lambda x: pslot[x[:3]])
    prdone = set(); lastw = -10
    send_slot = pslot[(nfull-1, 7, 1)] + 3
    inloop = send_slot + 6 < nslots
    flag_slot = send_slot + opt.get("flagdelay", 16)
    xpoll_slot = flag_slot + opt.get("xpolldelay", 10)
    xchk_slot = xpoll_slot + opt.get("xchkdelay", 8)
    xuse_slot = xchk_slot + opt.get("xusedelay", 8)
    pollB_slot = opt.get("pollslot", 56); chkB_slot = opt.get("chk") or gate - opt.get("chklead", 3)
    XR = V_LV[0]
    def operands(m):
        blk = rounds[m[1]][m[2]][0]
        if m[0] == "QK":
            lt = [("Q", rounds[m[1]][m[2]][1], m[3])]
            if m[3] == 0: lt += [("LV", blk, q) for q in range(4)]
            return [("K", blk, m[3])], lt
        return [], [("PR", m[1], m[3], m[2])]
    def lsum(t_, dst):
        return [f"v_add_f32 v{t_}, v{t_}, v{t_+1}", f"v_add_f32 v{t_+2}, v{t_+2}, v{t_+3}", f"v_add_f32 v{t_+4}, v{t_+4}, v{t_+5}", f"v_add_f32 v{t_+6}, v{t_+6}, v{t_+7}",
                f"v_add_f32 v{t_}, v{t_}, v{t_+2}", f"v_add_f32 v{t_+4}, v{t_+4}, v{t_+6}", f"v_add_f32 v{dst}, v{t_}, v{t_+4}"]
    LT = [0, 0]
    uid = [0]
    def two_way(fn):
        if XSC1: fn(A, "sc1"); return
        uid[0] += 1; u_ = uid[0]
        A(f"s_cmp_eq_u32 s37, s62\n s_cbranch_scc0 L_far{u_}")
        fn(A, ""); A.label(f"L_join{u_}")
        OOL.label(f"L_far{u_}"); fn(OOL, "sc1"); OOL.vm = []; OOL(f"s_branch L_join{u_}")
    def send_payload(B, fl):
        for i in range(4):
            o = A_O1 + 4*i
            B.vmem(f"buffer_store_dwordx4 a[{o}:{o+3}], v{vX}, s[24:27], s54 offen offset:{i*1024} {fl}", "XS")
        B.vmem(f"buffer_store_dword v{vLS}, v{vXL}, s[24:27], s54 offen {fl}", "XS")
    def send_flag(B, fl):
        B.vmem(f"buffer_store_dword v{vTAG}, v{vXF}, s[24:27], s54 offen {fl}", "XF")
    def self_touch():
        if opt.get("selft", 1): A.vmem(f"buffer_load_dword v{vPB}, v{vXT}, s[24:27], s54 offen sc1", "ST")
    def recv_loads():
        A.vmem(f"buffer_load_dword v{XR+16}, v{vXL}, s[24:27], s55 offen sc1", "XR")
        for i in range(4):
            A.vmem(f"buffer_load_dwordx4 v[{XR+4*i}:{XR+4*i+3}], v{vX}, s[24:27], s55 offen offset:{i*1024} sc1", "XR")
    def xcheck():
        A(f"v_cmp_eq_u32 vcc, s61, v{V_TMP}\n s_cbranch_vccz L_xspin0")
        A.label("L_xok")
        OOL.label("L_xspin0"); OOL("s_mov_b32 s53, 0"); OOL.label("L_xspin")
        OOL(f"""
        buffer_load_dword v{V_TMP}, v{vXF}, s[24:27], s55 offen sc1
        s_add_u32 s53, s53, 1
        s_waitcnt vmcnt(0)
        v_cmp_eq_u32 vcc, s61, v{V_TMP}
        s_cbranch_vccnz L_xok
        s_cmp_lt_u32 s53, 0x100000
        s_cbranch_scc1 L_xspin
        s_branch L_xok
        """)
    def fin_pre():
        L_ = [f"v_add_f32 v{V_L}, v{V_L}, v{XR+16}", f"v_rcp_f32 v{V_TMP}, v{V_L}",
              f"v_cmp_lt_f32 vcc, 0x30800000, v{V_L}", f"v_cmp_gt_f32 s[52:53], s19, v{V_L}"]
        L_ += [f"v_mul_f32 v{XR+i}, v{XR+i}, v{V_TMP}" for i in range(16)]
        return L_
    XB = V_PO[(nfull-1) % 2]
    XL = V_LV[1]
    def xpos(k): return {3: 8, 7: 9}.get(k, k)
    def tag_pack():
        L_ = []
        for k in range(8):
            L_ += [f"v_cvt_pk_bf16_f32 v{XB+xpos(k)}, v{V_O1+2*k}, v{V_O1+2*k+1}"]
            if k in (2, 6, 7): L_.append(("st", {2: 0, 6: 1, 7: 2}[k]))
        return L_
    def tag_recv(B):
        for i in range(3):
            B.vmem(f"buffer_load_dwordx4 v[{XL+4*i}:{XL+4*i+3}], v{vX}, s[24:27], s55 offen offset:{i*1024} sc1", "XR")
    def tag_cmp(B):
        B(f"v_cmp_eq_u32 vcc, s61, v{XL+3}\n v_cmp_eq_u32 s[52:53], s61, v{XL+7}\n v_cmp_eq_u32 s[20:21], s61, v{XL+11}")
        B("s_and_b64 vcc, vcc, s[52:53]\n s_and_b64 vcc, vcc, s[20:21]\n s_cmp_eq_u64 vcc, -1")
    def tag_check():
        tag_cmp(A); A("s_cbranch_scc0 L_xspin0"); A.label("L_xok")
        OOL.label("L_xspin0"); OOL("s_mov_b32 s38, 0"); OOL.label("L_xspin")
        tag_recv(OOL); OOL.vm = []
        OOL("s_add_u32 s38, s38, 1\n s_waitcnt vmcnt(0)"); tag_cmp(OOL)
        OOL("s_cbranch_scc1 L_xok\n s_cmp_lt_u32 s38, 0x100000\n s_cbranch_scc1 L_xspin\n s_branch L_xok")
    def tag_fin():
        return [f"v_mov_b32 v{XL+3}, v{XL+8}", f"v_mov_b32 v{XL+7}, v{XL+9}", f"v_add_f32 v{V_L}, v{V_L}, v{XL+10}"]
    def emit_extra(x_):
        if isinstance(x_, tuple):
            A.vmem(f"buffer_store_dwordx4 v[{XB+4*x_[1]}:{XB+4*x_[1]+3}], v{vX}, s[24:27], s54 offen offset:{x_[1]*1024} sc1", "XS")
        else: A(x_)
    xld_slot = opt.get("xld", nslots - 22); xuse2 = opt.get("xuse", nslots - 4)
    extra = []
    seenO = set(); vi = 0; vpart = 0
    vt, lt = operands(mf[0]); A.need(vt, lt)
    stamp("mfma0")
    pendst = []
    totcost = []; fb_done = []; pb_done = []; ldlog = []
    pipe = opt.get("pipe0", 200)
    for sl in range(nslots):
        m = mf[sl]
        blk, qt = rounds[m[1]][m[2]]
        if m[0] == "QK":
            _, r, u, s = m
            d = V_S[r % 2] + u*16
            c = f"v[{lvreg[blk]}:{lvreg[blk]+15}]" if s == 0 else f"v[{d}:{d+15}]"
            if s == 0: assert all(("LV", blk, q_) in tdone for q_ in range(4)), ("lv not read", sl)
            assert ("K", blk, s) in issued, ("K not loaded", sl)
            assert qt*8+s not in qrest
            k = kbuf[blk] + 4*s; q = A_Q + (qt*8+s)*4
            A(f"v_mfma_f32_32x32x16_bf16 v[{d}:{d+15}], a[{k}:{k+3}], a[{q}:{q+3}], {c}")
        else:
            _, r, u, kk = m
            c = "0" if qt not in seenO else oreg(qt)
            seenO.add(qt)
            assert ("V", blk, kk) in vedone, ("V frag not expanded", sl, m)
            assert kk < 2 or (r, kk, u) in prdone, ("P not read", sl)
            assert kk >= 2 or cur > r or (cur == r and (ci >= len(items[r]) or items[r][ci][1] > 8*(2*u+kk+1))), ("own P not packed", sl)
            v = vereg[("V", blk, kk)]
            ps = f"v[{V_PO[r%2] + (u*2+kk)*4}:{V_PO[r%2] + (u*2+kk)*4+3}]" if kk < 2 else f"a[{A_P + ((kk-2)*2+u)*4}:{A_P + ((kk-2)*2+u)*4+3}]"
            A(f"v_mfma_f32_32x32x16_bf16 {oreg(qt)}, v[{v}:{v+3}], {ps}, {c}")
        stamp(f"slot{sl}")
        bud = 24
        vt, lt = operands(mf[sl+1]) if sl + 1 < nslots else ([], [])
        vt = list(vt); lt = list(lt)
        if vi < len(vexp) and sl >= need_at[("VR", vexp[vi][1], vexp[vi][2]//4)]: vt.append(("VR", vexp[vi][1], vexp[vi][2]//4))
        if pendm and tdone.get(("RV", rounds[pendm[0][0]][pendm[0][1]//2][0], pendm[0][1] % 2), 10**6) <= sl - 2:
            lt.append(("RV", rounds[pendm[0][0]][pendm[0][1]//2][0], pendm[0][1] % 2))
        if sl == chkB_slot: vt.append("PB")
        if inloop and not XTAG:
            if sl == flag_slot: vt.append("XS")
            if sl == xchk_slot: vt.append("XP")
            if sl == xuse_slot: vt.append("XR")
        if inloop and XTAG and sl == xuse2: vt.append("XR")
        if sl == b[nfull-1] + 4: lt.append(("LR", 1))
        if sl == b[n-1] + 4: lt.append(("LR", 0))
        if sl in bar_at:
            r = bar_at[sl]
            assert nw[r] == 4, ("P not written before barrier", r, sl)
            for q_ in ([1] if r == nfull-1 else []) + ([0] if r == n-1 else []): assert q_ in lwr, ("l not written", sl)
            A.need(vt, lt + [("PW", r), "LW"])
            A("s_barrier")
            bud -= COST['bar']
            for q_ in ([1] if r == nfull-1 else []) + ([0] if r == n-1 else []):
                LT[q_] = V_S[r % 2] + 8*q_
                for hf in range(2):
                    A.ds(f"ds_read_b128 v[{LT[q_]+hf*4}:{LT[q_]+hf*4+3}], v{vLR} offset:{LDS_L + q_*1024 + hf*16}", ("LR", q_)); bud -= 4
        else:
            A.need(vt, lt)
        if sl == b[nfull-1] + 4:
            extra += lsum(LT[1], XB+10 if XTAG else vLS)
            if XTAG: extra += [f"v_mov_b32 v{XB+j}, s61" for j in (3, 7, 11)]
        if sl == b[n-1] + 4: extra += lsum(LT[0], V_L)
        hasw = bool(pendw) and sl not in bar_at and not (sl + 1 in bar_at)
        nr = 0
        while nr < opt.get("maxr", 2) and len(A.lg) < 13:
            c_ = []
            if prq:
                r, kk, u, idx = prq[0]
                if sl >= b[r] - bl[r] and (r == 0 or sl >= pslot[(r-1, kk, u)]): c_.append((pslot[(r, kk, u)] - 5, "p"))
            if qrest: c_.append((qord.index(qrest[0]) - 6, "q"))
            if lvq:
                _, tblk, q, i = lvq[0]
                if (i < 2 or lv_last[tb[i-2][0]] + 1 < sl): c_.append((lv_use[tblk] - 8 + q, "lv"))
            if rvq:
                _, tblk, q, i = rvq[0]
                if (i < 2 or (tb[i-2][0], q) in rv_done): c_.append((lv_use[tblk] + 8 + 4*q, "rv"))
            if not c_: break
            d_, k_ = min(c_)
            if sl == lastw + 1 and d_ > sl - 2: break
            if nr >= 1 and d_ > sl + 1: break
            if hasw and d_ > sl + 1: break
            if d_ > sl + opt.get("rlead", 24): break
            if k_ == "p":
                r, kk, u, idx = prq.pop(0); rg = A_P + idx*4
                A.ds(f"ds_read_b128 a[{rg}:{rg+3}], v{vPR+kk//2-1} offset:{(r%NPB)*16384 + (u*2+kk%2)*1024}", ("PR", r, kk, u)); prdone.add((r, kk, u))
            elif k_ == "q": qread(qrest.pop(0))
            elif k_ == "lv": tread(lvq.pop(0), sl)
            else: tread(rvq.pop(0), sl)
            bud -= COST["r"]; nr += 1
        if hasw:
            r, f = pendw.pop(0); PO = V_PO[r % 2]
            A.ds(f"ds_write_b128 v{vPW}, v[{PO+4*f}:{PO+4*f+3}] offset:{(r%NPB)*16384 + f*1024}", ("PW", r)); bud -= COST["w"]; nw[r] += 1
            lastw = sl
        if pendl and pendl[0][0] <= sl:
            _, q_ = pendl.pop(0); lwr.add(q_)
            A.ds(f"ds_write_b64 v{vLW}, v[{V_LA+4*q_}:{V_LA+4*q_+1}] offset:{q_*1024}", "LW")
            A.ds(f"ds_write_b64 v{vLW}, v[{V_LA+4*q_+2}:{V_LA+4*q_+3}] offset:{q_*1024+512}", "LW"); bud -= 24
        if pendst and not hasw: emit_extra(pendst.pop(0)); bud -= opt.get("cst", 16)
        nxt_ = min([need_at[q_[0]] for q_ in (kl, vl) if q_ and (q_[0][1] < 4 or sl >= gate)] + [10**6]) - sl
        if not fb_done and not opt.get("fb0", 1) and sl >= opt.get("fbslot", 13) and (nxt_ >= opt.get("fbgap", 20) or sl >= opt.get("fbmax", 29)):
            fb_done.append(sl); assert sl < b[0]
            if not FBE:
                A("s_cmp_eq_u32 s3, 0\n s_cbranch_scc0 L_skip2\n s_barrier"); bud -= 42
                A.label("L_skip2")
            A.vmem(f"buffer_store_dword v{vTAG}, v{vFB}, s[24:27], s18 offen sc1", "FB"); bud -= 8
        elif sl == opt.get("tv", -5):
            A.vmem(f"buffer_load_dword v255, v{V_O0+2}, s[24:27], s37 offen sc1", "ST"); bud -= 8
        elif not pb_done and sl >= pollB_slot and (nxt_ >= opt.get("pollgap", 24) or sl >= chkB_slot - opt.get("pollmin", 18)):
            pb_done.append(sl)
            assert not late
            A.vmem(f"buffer_load_dword v{V_TMP}, v{vPB}, s[24:27], s60 offen sc1", "PB"); bud -= 8
            if not XSC1: A.vmem(f"buffer_load_dword v{V_TMP+1}, off, s[24:27], s37 sc1", "PB"); bud -= 8
        elif (kl or vl) and not hasw and sl not in bar_at:
            c_ = [q_[0] for q_ in (kl, vl) if q_ and ld_free(q_[0]) <= sl and need_at[q_[0]] - sl <= opt.get("maxlead", 60)]
            if c_:
                key = min(c_, key=lambda k: need_at[k])
                now = sum(max(32, c) for c in totcost)
                if pipe - now <= opt.get("qmax", 60) or need_at[key] - sl < opt.get("urg", 10):
                    (kl if key[0] == "K" else vl).pop(0)
                    ld(key); bud -= COST["l"]; ldlog.append((sl, key, need_at[key] - sl))
                    pipe = max(pipe, now) + (opt.get("kdur", 74) if key[0] == "K" else opt.get("vdur", 74))
        if sl == chkB_slot:
            A(f"v_cmp_eq_u32 vcc, s61, v{V_TMP}")
            if not XSC1: A(f"v_readfirstlane_b32 s37, v{V_TMP+1}")
            A(f"s_cmp_eq_u64 vcc, -1\n s_cbranch_scc0 L_bspin0")
            A.label("L_bok")
            OOL.label("L_bspin0"); OOL("s_mov_b32 s53, 0"); OOL.label("L_bspin")
            OOL(f"""
            buffer_load_dword v{V_TMP}, v{vPB}, s[24:27], s60 offen sc1
            s_add_u32 s53, s53, 1
            s_waitcnt vmcnt(0)
            v_cmp_eq_u32 vcc, s61, v{V_TMP}
            s_cmp_eq_u64 vcc, -1
            s_cbranch_scc1 L_bok
            s_cmp_lt_u32 s53, 0x100000
            s_cbranch_scc1 L_bspin
            s_branch L_bok
            """)
            A("s_mov_b32 s19, 0x4e800000")
            for x_ in late2: A(x_)
            bud -= 20
        if sl == opt.get("wbslot", -1):
            A("s_or_b32 s38, s35, s32\n s_cbranch_scc0 L_dowb"); A.label("L_nowb"); bud -= 8
            OOL.label("L_dowb"); OOL("buffer_wbl2 sc1\n s_branch L_nowb")
        if inloop and XTAG:
            if sl == send_slot:
                assert not extra
                stamp("send"); extra += tag_pack()
            if sl == xld_slot:
                assert not kl and not vl and all(lv_last[t[0]] + 1 < sl for t in tb) and sl > send_slot + 8
                tag_recv(A); bud -= 24
            if sl == opt.get("idslot", nslots - 8):
                A.ds(f"ds_read_b128 v[{XR}:{XR+3}], v{vPW} offset:{NPB*16384}", "ID")
                A.ds(f"ds_read_b128 v[{XR+4}:{XR+7}], v{vPW} offset:{NPB*16384+1024}", "ID"); bud -= 8
            if sl == xuse2:
                assert sl > b[n-1] + 4 and all(lv_last[t[0]] < sl for t in tb)
                stamp("xr")
                while extra: emit_extra(extra.pop(0)); bud -= 4
                tag_check(); bud -= 28; extra += tag_fin()
        elif inloop:
            if sl == send_slot:
                assert not extra
                stamp("send"); two_way(send_payload); bud -= 60
                if not XSC1: self_touch(); bud -= 8
            if sl == flag_slot:
                stamp("xack"); two_way(send_flag); bud -= 16
            if sl == xpoll_slot:
                A.vmem(f"buffer_load_dword v{V_TMP}, v{vXF}, s[24:27], s55 offen sc1", "XP"); bud -= 8
            if sl == xchk_slot:
                assert not kl and not vl and all(lv_last[t[0]] < sl for t in tb)
                stamp("xp"); xcheck(); recv_loads(); bud -= 50
            if sl == xuse_slot:
                assert sl > b[n-1] + 4
                stamp("xr"); extra += fin_pre()
        def vexp_step():
            nonlocal vi, vpart, bud
            key = vexp[vi]; src = V_VR + (key[1] % NVR)*8 + key[2]
            A(f"v_cvt_scalef32_pk_bf16_fp4 v{vereg[key]+vpart}, v{src}, 1.0 op_sel:[{vpart&1},{vpart>>1},0]")
            bud -= 4; vpart += 1
            if vpart == 4: vedone[key] = sl; vi += 1; vpart = 0
        def vexp_ok():
            if vi >= len(vexp): return False
            key = vexp[vi]; tag = ("VR", key[1], key[2]//4)
            return vefree[key] <= sl and tag not in A.vm and tag in issued
        def sm_next():
            nonlocal cur, ci
            while cur < n and ci >= len(items[cur]): cur += 1; ci = 0
            if cur >= n: return None
            kind, e, txt, info = items[cur][ci]
            if sl < sready[(cur, 0)]: return None
            if kind == "e" and e == 16 and sl < sready[(cur, 1)]: return None
            if kind == "c" and XTAG and cur == nfull + 1: assert not extra and not pendst and sl > send_slot + 4
            rate = min(opt.get("smrate", 0.7), (wend[cur] - sready[(cur, 0)]) / 33.0)
            return wend[cur] - (32 - e) * rate
        def sm_step():
            nonlocal ci, bud
            kind, e, txt, info = items[cur][ci]
            A(txt); bud -= COST[kind]; ci += 1
            if kind == "c" and e % 8 == 0: pendw.append((cur, e//8 - 1)); newm.append((cur, e//8 - 1))
        newm = []
        def fill():
          nonlocal bud
          while True:
            ds_ = sm_next(); dv = None
            if vi < len(vexp):
                dl = firstuse[vexp[vi]] - 2 - (3 - vpart) * 0.25
                if vexp_ok(): dv = dl
                elif firstuse[vexp[vi]] - sl <= 2:
                    A.need([("VR", vexp[vi][1], vexp[vi][2]//4)])
                    assert vexp_ok(), ("cannot expand in time", sl, vexp[vi])
                    dv = dl
            cands = [(d, k) for d, k in ((ds_, "s"), (dv, "v")) if d is not None]
            if extra:
                if inloop and sl < send_slot: dx = send_slot - 3
                elif inloop and XTAG and sl < send_slot + 8: dx = send_slot + (11 - len(extra)) * opt.get("packrate", 0.2)
                else: dx = sl + 3
                cands.append((dx, "x"))
            if late: cands.append((8, "t"))
            if late3 and nsolo and all(t_[1] >= nfull for t_ in lvq + rvq) and sl > chkB_slot: cands.append((b[nfull-1] + 8, "u"))
            if not cands: break
            d, k = min(cands)
            if d > sl:
                if bud <= 0: break
                if d > sl + opt.get("fitslack", 2) and k == "s" and COST[items[cur][ci][0]] > bud:
                    cands = [c for c in cands if c[1] != "s"]
                    if not cands: break
                    d, k = min(cands)
            if k == "s": sm_step()
            elif k == "v": vexp_step()
            elif k == "x":
                if isinstance(extra[0], tuple): pendst.append(extra.pop(0))
                else: emit_extra(extra.pop(0)); bud -= 4
            elif k == "u": A(late3.pop(0)); bud -= 4
            else: A(late.pop(0)); bud -= 4
        fill()
        mcost = 0
        if pendm:
            r_, f_ = pendm[0]; blk_, qt_ = rounds[r_][f_//2]; tag = ("RV", blk_, f_ % 2)
            if tag in tdone and tag not in A.lg:
                pendm.pop(0)
                la = V_LA + 4*qt_; rv_ = rvreg[blk_] + 4*(f_ % 2); po_ = V_PO[r_ % 2] + 4*f_
                A(f"v_mfma_f32_16x16x32_bf16 v[{la}:{la+3}], a[{rv_}:{rv_+3}], v[{po_}:{po_+3}], {'v[%d:%d]' % (la, la+3) if qt_ in seenL else '0'}")
                seenL.add(qt_)
                if f_ >= 2 or rounds[r_][0][0] != rounds[r_][1][0]: rv_done[(blk_, f_ % 2)] = sl
                if f_ == 3:
                    for q_ in ([1] if r_ == nfull-1 else []) + ([0] if r_ == n-1 else []): pendl.append((sl + 1, q_))
                b0 = bud; bud = opt.get("mbud", 8); fill(); mcost = max(16, 16 - bud); bud = min(b0, 0) - mcost
        pendm += newm
        totcost.append(32 - bud)
    assert not kl and not vl
    if opt.get("verbose"):
        print("fb", fb_done, "pb", pb_done, "loads", " ".join(f"{s_}:{k_[0]}{k_[1]}.{k_[2]}(+{d_})" for s_, k_, d_ in ldlog), file=sys.stderr)
        print("slot costs:", totcost, "sum:", sum(totcost), "sum max(32,c):", sum(max(32, c) for c in totcost), file=sys.stderr)
    stamp("loopend")
    for x_ in late3: A(x_)
    for x_ in extra: emit_extra(x_)
    if XTAG:
        if not inloop:
            for x_ in tag_pack(): emit_extra(x_)
        if not inloop or xld_slot >= nslots: A.need(["XS"]); tag_recv(A)
        if not inloop or xuse2 >= nslots:
            A.need(["XR"]); stamp("xr"); tag_check()
            for x_ in tag_fin(): A(x_)
    else:
        if not inloop:
            A("s_nop 7"); two_way(send_payload)
            if not XSC1: self_touch()
        if not inloop or flag_slot >= nslots: A.need(["XS"]); two_way(send_flag)
        if not inloop or xpoll_slot >= nslots: A.vmem(f"buffer_load_dword v{V_TMP}, v{vXF}, s[24:27], s55 offen sc1", "XP")
        if not inloop or xchk_slot >= nslots: A.need(["XP"]); xcheck(); recv_loads()
        if not inloop or xuse_slot >= nslots:
            A.need(["XR"]); stamp("xr")
            for x_ in fin_pre(): A(x_)
    assert XTAG and OARCH and inloop
    A.need(ltags=["ID"])
    A(f"v_mfma_f32_32x32x16_bf16 {oreg(0)}, v[{XR}:{XR+3}], v[{XL}:{XL+3}], {oreg(0)}")
    A(f"v_rcp_f32 v{V_TMP}, v{V_L}\n v_cmp_lt_f32 vcc, 0x30800000, v{V_L}\n v_cmp_gt_f32 s[52:53], s19, v{V_L}")
    A(f"v_mfma_f32_32x32x16_bf16 {oreg(0)}, v[{XR+4}:{XR+7}], v[{XL+4}:{XL+7}], {oreg(0)}")
    if not opt.get("noslow"): A("s_and_b64 vcc, vcc, s[52:53]\n s_cmp_eq_u64 vcc, -1\n s_cbranch_scc0 L_slow")
    pk = V_PO[0]
    A("s_add_u32 s38, s56, 4096")
    A.label("L_pack")
    OT = opt.get("otr", 1)
    for bq in range(4):
        for a_ in range(4): A(f"v_mul_f32 v{XR+4*a_+bq}, v{V_O0+4*a_+bq}, v{V_TMP}")
        A(f"v_cvt_pk_bf16_f32 v{pk+2*bq}, v{XR+bq}, v{XR+4+bq}")
        A(f"v_cvt_pk_bf16_f32 v{pk+2*bq+1}, v{XR+8+bq}, v{XR+12+bq}")
        if bq == 1:
            if OT: A(f"ds_write_b128 v{vOW}, v[{pk}:{pk+3}] offset:{LDS_Q}")
            else: A(f"buffer_store_dwordx4 v[{pk}:{pk+3}], v{vOUT}, s[28:31], s56 offen {opt.get('ofl','')}")
    if OT:
        A(f"""
        ds_write_b128 v{vOW}, v[{pk+4}:{pk+7}] offset:{LDS_Q+16}
        ds_read_b128 v[{pk+8}:{pk+11}], v{vOR} offset:{LDS_Q}
        ds_read_b128 v[{pk+12}:{pk+15}], v{vOR} offset:{LDS_Q+1280}
        s_waitcnt lgkmcnt(1)
        buffer_store_dwordx4 v[{pk+8}:{pk+11}], v{vOUT}, s[28:31], s56 offen {opt.get('ofl','')}
        s_waitcnt lgkmcnt(0)
        buffer_store_dwordx4 v[{pk+12}:{pk+15}], v{vOUT}, s[28:31], s38 offen {opt.get('ofl','')}
        """)
    else:
        A(f"buffer_store_dwordx4 v[{pk+4}:{pk+7}], v{vOUT}, s[28:31], s56 offen offset:16 {opt.get('ofl','')}")
    A(f"""
    s_and_b32 s52, s57, 63
    s_cbranch_scc1 L_nobump
    s_add_u32 s52, s39, 1
    s_lshl_b32 s53, s33, 7
    v_mov_b32 v{V_TMP}, s52
    buffer_store_dword v{V_TMP}, v{vFB}, s[24:27], s53 offen
    """)
    A.label("L_nobump")
    if st:
        A("s_waitcnt vmcnt(0)")
        stamp("end")
        A(("" if rtdone else "s_memrealtime s[98:99]\n") + "s_waitcnt lgkmcnt(0)")
        A(f"s_lshl_b32 s50, s2, 2\n s_add_u32 s50, s50, s32\n s_lshl_b32 s51, s50, 7\n s_add_u32 s51, s51, {ST_OFF}")
        A("s_mov_b64 exec, 1")
        open("stampnames.txt", "w").write(" ".join(stl))
        for i in range(len(stl)):
            A(f"v_mov_b32 v10, s{64+2*i}\n v_mov_b32 v11, s{65+2*i}\n buffer_store_dwordx2 v[10:11], off, s[24:27], s51 offset:{8*i}\n s_nop 1")
        A(f"s_lshl_b32 s50, s50, 4\n s_add_u32 s50, s50, {RT_OFF}")
        A(f"v_mov_b32 v24, s96\n v_mov_b32 v25, s97\n v_mov_b32 v26, s98\n v_mov_b32 v27, s99\n buffer_store_dwordx4 v[24:27], off, s[24:27], s50")
    A.label("L_end")
    A("s_endpgm")
    S = OOL
    S.label("L_slow")
    S(f"""
    s_waitcnt vmcnt(0) lgkmcnt(0)
    s_mul_i32 s40, s33, {64*TILE}
    s_add_u32 s40, s40, {RB}
    v_add_u32 v{vK1}, 0x1000, v{vX}
    v_mov_b32 v40, 0xff800000
    s_mov_b32 s41, s40
    s_mov_b32 s42, 0
    """)
    def slow_qk():
        for s in range(8): S(f"buffer_load_dwordx4 a[{64+4*s}:{67+4*s}], v{vX if s < 4 else vK1}, s[24:27], s41 offen offset:{(s%4)*1024} sc1")
        S("s_waitcnt vmcnt(0)")
        for s in range(8): S(f"v_mfma_f32_32x32x16_bf16 v[24:39], a[{64+4*s}:{67+4*s}], a[{4*s}:{4*s+3}], {'0' if s == 0 else 'v[24:39]'}")
        S("s_nop 15")
    S.label("L_slow1")
    slow_qk()
    for i in range(8): S(f"v_max3_f32 v40, v{24+2*i}, v{25+2*i}, v40")
    S(f"""
    s_add_u32 s41, s41, {TILE}
    s_add_u32 s42, s42, 1
    s_cmp_lt_u32 s42, 64
    s_cbranch_scc1 L_slow1
    v_mov_b32 v41, v40
    s_nop 1
    v_permlane32_swap_b32 v40, v41
    v_max_f32 v40, v40, v41
    v_mov_b32 v42, 0
    v_and_b32 v43, 7, v{vLANE}
    v_bfe_u32 v44, v{vLANE}, 3, 2
    v_lshl_add_u32 v43, v43, 2, v44
    v_lshl_add_u32 v43, v{vW}, 5, v43
    v_lshlrev_b32 v43, 2, v43
    v_lshrrev_b32 v44, 5, v{vLANE}
    s_lshl_b32 s52, s33, 11
    v_lshl_add_u32 v44, v44, 2, s52
    v_lshl_add_u32 v43, v44, 9, v43
    v_lshlrev_b32 v44, 1, v44
    s_mov_b32 s41, s40
    s_mov_b32 s42, 0
    """)
    for i in range(16): S(f"v_mov_b32 v{V_O0+i}, 0")
    S.label("L_slow2")
    for g in range(4):
        S(f"global_load_dwordx2 v[{64+2*g}:{65+2*g}], v44, s[14:15] offset:{16*g}")
        S(f"global_load_dwordx2 v[{72+2*g}:{73+2*g}], v44, s[16:17] offset:{16*g}")
        for b_ in range(4): S(f"global_load_dword v{48+4*g+b_}, v43, s[12:13] offset:{512*b_}")
        S("v_add_u32 v43, 0x1000, v43")
    S("v_add_u32 v44, 64, v44")
    slow_qk()
    for i in range(16): S(f"v_sub_f32 v{24+i}, v{24+i}, v40")
    for i in range(16): S(f"v_exp_f32 v{24+i}, v{24+i}")
    for i in range(16): S(f"v_add_f32 v42, v42, v{24+i}")
    for i in range(8): S(f"v_cvt_pk_bf16_f32 v{80+i}, v{24+2*i}, v{25+2*i}")
    for i in range(8):
        S(f"""
        v_cvt_f32_i32 v{48+2*i}, v{48+2*i}
        v_cvt_f32_i32 v{49+2*i}, v{49+2*i}
        v_lshlrev_b32 v45, 16, v{72+i}
        v_and_b32 v46, 0xffff0000, v{72+i}
        v_sub_f32 v{48+2*i}, v{48+2*i}, v45
        v_sub_f32 v{49+2*i}, v{49+2*i}, v46
        v_lshlrev_b32 v45, 16, v{64+i}
        v_and_b32 v46, 0xffff0000, v{64+i}
        v_mul_f32 v{48+2*i}, v{48+2*i}, v45
        v_mul_f32 v{49+2*i}, v{49+2*i}, v46
        v_cvt_pk_bf16_f32 v{88+i}, v{48+2*i}, v{49+2*i}
        """)
    S(f"""
    s_nop 1
    v_mfma_f32_32x32x16_bf16 v[{V_O0}:{V_O0+15}], v[88:91], v[80:83], v[{V_O0}:{V_O0+15}]
    v_mfma_f32_32x32x16_bf16 v[{V_O0}:{V_O0+15}], v[92:95], v[84:87], v[{V_O0}:{V_O0+15}]
    s_add_u32 s41, s41, {TILE}
    s_add_u32 s42, s42, 1
    s_cmp_lt_u32 s42, 64
    s_cbranch_scc1 L_slow2
    v_mov_b32 v41, v42
    s_nop 15
    v_permlane32_swap_b32 v42, v41
    v_add_f32 v42, v42, v41
    v_rcp_f32 v{V_TMP}, v42
    s_add_u32 s38, s56, 4096
    s_branch L_pack
    """)
    o = [HEADER, f"; @launch grid=(256,1,1) block=(256,1,1) lds={opt.get('lds', LDS_BYTES)}\n", TARGET, A.text() + OOL.text(),
         ".fill 2048, 4, 0xBF800000\n", kd(KN, 512, sgpr=102, accum=256)]
    if opt.get("rep"):
        import reporter
        o[1] = f"; @launch kernel={KN} grid=(256,1,1) block=(256,1,1) lds={LDS_BYTES}\n; @launch kernel=rep_kernel grid=(1,1,1) block=(64,1,1) lds=0\n"
        o[4] = o[4] + reporter.text(opt["rep"], RT_OFF, ST_OFF, opt.get("repi", 0), opt.get("repk", 20))
        o.append(kd("rep_kernel", 32))
    return "".join(o)

if __name__ == "__main__":
    opt = {}
    out = sys.argv[1]
    for a_ in sys.argv[2:]:
        k, v = a_.split("=")
        try: v = int(v)
        except:
            try: v = float(v)
            except: pass
        opt[k] = v
    opt.setdefault("pad", 1536); opt.setdefault("ihook", 3); opt.setdefault("chk", 76)
    import hazcheck, subprocess, re, os
    t, n = hazcheck.fix(gen(opt))
    if opt.get("abl"):
        L_ = t.split("\n"); o_ = []; nm = -1
        for ln in L_:
            if "v_mfma_f32_32" in ln: nm += 1
            if 64 <= nm < 192 and any(re.search(rx, ln) for rx in opt["abl"].split("+")): continue
            o_.append(ln)
        t = "\n".join(o_)
    if opt.get("ihook"):
        sys.path.insert(0, "cdna_kernels")
        import cdna_launch as cl
        lines = t.split("\n")
        go = lines.index("L_go:"); endl = lines.index("L_pack:")
        for h in range(opt["ihook"]):
            probe = list(lines)
            for i in range(go + 1, endl):
                if probe[i].strip() and not probe[i].endswith(":"): probe[i] = f"LP_{i}:\n" + probe[i]
            txt = "\n".join(probe)
            for k in range(h, opt["ihook"]): txt = txt.replace("L_end:", f"L_hook{k}:\nL_end:")
            open("_p.s", "w").write(cl.with_harness_metadata(txt, KN, 14, launch_lists=True))
            subprocess.run(["clang", "-x", "assembler", "-target", "amdgcn-amd-amdhsa", "-mcpu=gfx950", "-c", "_p.s", "-o", "_p.o"], check=True)
            assert opt.get("pad") is not None
            sy = subprocess.run(["llvm-objdump", "-t", "_p.o"], capture_output=True, text=True).stdout
            ad = sorted((int(m.group(1), 16) + opt.get("textva", 0), int(m.group(2))) for m in re.finditer(r"^([0-9a-f]+) .* LP_(\d+)$", sy, re.M))
            page = ad[0][0] // 4096 + 1 + h
            cand = [i for a_, i in ad if a_ >= page * 4096 + opt.get("hookoff", 0)]
            if not cand:
                lines.insert(lines.index("L_end:") + 2, f"L_hook{h}:\n  s_branch L_warmed"); continue
            lines.insert(cand[0], f"L_hook{h}:"); lines.insert(cand[0] + 1, "  s_cbranch_execz L_warmed"); endl += 2
        t = "\n".join(lines)
    print("nops inserted:", n)
    open(out, "w").write(t)
```

```python
import sys, math, struct
from asmlib import *
from gen1 import Asm, f2u

KN = NAME + "_kernel"
TILE = 10240
BLK = 4 * TILE
RA = 1 << 20
RB = 4 << 20
X_OFF = 8 << 20
FA_OFF = 4096
FB_OFF = 8192
ST_OFF = 16 << 20
RT_OFF = 17 << 20
SCALE = math.log2(math.e) / math.sqrt(128.0)

LDS_K = 0
LDS_L = 9216
LDS_Q = LDS_L + 2048
LDS_T = LDS_Q + 16896
LDS_R = LDS_T + 8192
LDS_P = 49152
NPB = 3
LDS_BYTES = LDS_P + (NPB + 1) * 16384
assert LDS_R + 12288 <= LDS_P

vT3, vW, vLANE, vK0, vK1, vV, vPW, vPR, vT, vLW, vLR, vOUT, vX, vT2 = 0, 1, 2, 3, 4, 5, 9, 10, 13, 14, 15, 16, 17, 18
vFB, V_L, V_TMP = 19, 20, 22
vOW, vOR = 7, 8
V_S = [24, 56]
V_PO = [88, 104]
COST = dict(l=8, r=6, w=24, e=8, a=4, c=4, bar=42)
A_Q = 0
A_K = [64, 96, 128]
A_P = 160
A_O = 208

HEADER = """; Fused attention over a 2-bit KV cache (dequant + RoPE + softmax(QK^T)V), gfx950, one launch.
"""
def bitop(fn): return fn(0xF0, 0xCC, 0xAA) & 0xFF

def gen(opt):
    for k_ in ("l", "r", "w", "bar"):
        if "c" + k_ in opt: COST[k_] = opt["c" + k_]
    A = Asm()
    OOL = Asm()
    st = opt.get("stamps")
    stl = []; rtdone = []
    stsel = set(opt.get("st", "start,karg,issued,pre,ks,kconv,stored,mid,ackA,bar1,flagsA,mfma0,slot96,slot192,loopend,end").split(","))
    def stamp(name):
        if st and opt.get("rtst") == name and not rtdone:
            rtdone.append(1); A("s_memrealtime s[98:99]")
        if st and opt.get("rtst0") == name: A("s_memrealtime s[96:97]")
        if st and name in stsel and name not in stl:
            i = len(stl); stl.append(name); assert i < 16
            A(f"s_memtime s[{64+2*i}:{65+2*i}]")
    NVR = opt.get("nvr", 4 if opt.get("xtag", 1) else 3); NVE = opt.get("nve", 7); OARCH = opt.get("oarch", 1)
    V_VR = 120; V_VE = V_VR + NVR*8
    V_LV = [V_VE + NVE*4, V_VE + NVE*4 + 16]; V_RV = [V_LV[1] + 16, V_LV[1] + 24]
    V_O1 = V_RV[0]; A_RV = [A_O, A_O + 8]
    V_LA = V_RV[1] + 8
    V_O0 = V_LA + 8
    vR, vR2, vR3 = V_L + 1, vPR + 3 + 100, 0
    V_END = V_O0 + (16 if OARCH else 0)
    vR2, vR3 = V_END, V_END + 1; V_END += 2
    if opt.get("xtag", 1):
        assert V_END <= 256 and OARCH
        vTAG, vPA, vPB = V_O0, V_O0+1, V_L
        vXF = vXL = vXT = vLS = None
    else:
        assert V_END + 8 <= 256, V_END
        vTAG, vPB, vXF, vXL, vXT, vPA, vLS = V_END, V_END+1, V_END+2, V_END+3, V_END+4, V_END+5, V_END+6
    assert opt.get("p32", 1)
    nfull = opt.get("nfull", 6); nsolo = 16 - 2*nfull; nblk = nfull + nsolo
    rounds = [[(r, 0), (r, 1)] for r in range(nfull)] + [[(nfull + 2*i, 0), (nfull + 2*i + 1, 0)] for i in range(nsolo//2)]
    n = len(rounds)
    nt = opt.get("ntfl", "")
    XTAG = opt.get("xtag", 1)
    XSC1 = opt.get("xsc1", 0) or XTAG
    if opt.get("pad") is not None:
        A.raw(f".text\n.p2align 12\n.fill {opt['pad']//4}, 4, 0xBF800000\n")
    A.raw(head(KN))
    A(f"""
    s_load_dwordx16 s[4:19], s[0:1], 0
    s_getpc_b64 s[60:61]
    v_lshlrev_b32 v64, {opt.get("cpfs", 5)}, v0
    """)
    A.vmem("global_load_dword v255, v64, s[60:61]", "cpf")
    A("s_cmpk_ge_u32 s2, 256\n s_cbranch_scc1 L_end")
    stamp("start")
    if st: A("s_memrealtime s[96:97]")
    def a_v():
        A(f"""
        s_and_b32 s3, s57, 1
        s_mul_i32 s3, s3, {256 - 16384}
        v_bfe_u32 v64, v0, 4, 2
        v_lshl_add_u32 v29, v64, 12, v29
        v_bfe_u32 v64, v0, 3, 1
        v_lshl_add_u32 v29, v64, 14, v29
        v_bfe_u32 v64, v0, 6, 1
        v_lshl_add_u32 v29, v64, 11, v29
        v_and_b32 v64, 128, v0
        v_add3_u32 v29, v29, v64, s3
        """)
    A(f"""
    s_and_b32 s52, s2, 7
    s_lshr_b32 s35, s2, 3
    s_lshl_b32 s57, s52, 5
    s_or_b32 s57, s57, s35
    s_lshl_b32 s53, s57, 14
    v_and_b32 v25, 7, v0
    v_lshrrev_b32 v26, 3, v0
    v_lshl_add_u32 v29, v25, 4, s53
    v_lshl_add_u32 v28, v26, 9, v29
    """)
    if opt.get("vpre"): a_v()
    A("s_waitcnt lgkmcnt(0)")
    stamp("karg")
    def l_ts0():
        A("s_and_b32 s3, s53, 0x3000\n v_lshl_add_u32 v70, v0, 4, s3")
        A.vmem(f"global_load_dwordx4 v[88:91], v70, s[14:15]", "TS")
        A.vmem(f"global_load_dwordx4 v[92:95], v70, s[16:17]", "TS")
    for i in range(4):
        A.vmem(f"global_load_dwordx4 v[{32+4*i}:{35+4*i}], v28, s[6:7] offset:{128*i} {nt}", "KR")
    A("s_load_dwordx2 s[22:23], s[0:1], 104\n s_load_dwordx2 s[20:21], s[0:1], 88\n s_lshl_b32 s53, s57, 6\n v_lshl_add_u32 v27, v26, 1, s53")
    A.vmem(f"global_load_ushort v30, v27, s[8:9] {nt}", "KR")
    A.vmem(f"global_load_ushort v31, v27, s[10:11] {nt}", "KR")
    if opt.get("tse", 1) == 1: l_ts0()
    def l_v():
        if not opt.get("vpre"): a_v()
        for m in range(4):
            A.vmem(f"global_load_dwordx4 v[{48+4*m}:{51+4*m}], v29, s[12:13] offset:{512*m} {nt}", "VRAW")
    if not opt.get("vlate"): l_v()
    if opt.get("tse", 1) == 2: l_ts0()
    A(f"""
    v_lshrrev_b32 v{vW}, 6, v0
    v_and_b32 v24, 7, v26
    v_readfirstlane_b32 s32, v{vW}
    v_and_b32 v{vLANE}, 63, v0
    s_lshr_b32 s33, s52, 1
    s_lshl_b32 s53, s33, 7
    s_waitcnt lgkmcnt(0)
    s_load_dword s39, s[22:23], s53
    s_and_b32 s34, s52, 1
    s_lshl_b32 s59, s52, 8
    s_add_u32 s59, s59, {FA_OFF}
    s_and_b32 s36, s35, 1
    s_mov_b32 s24, s22
    s_and_b32 s25, s23, 0xffff
    s_mov_b32 s26, 0x10000000
    s_mov_b32 s27, 0x20000
    s_mul_i32 s37, s57, {TILE}
    s_add_u32 s37, s37, {RB}
    s_lshl_b32 s54, s2, 2
    s_add_u32 s54, s54, s32
    s_lshl_b32 s54, s54, 13
    s_add_u32 s54, s54, {X_OFF}
    """)
    stamp("issued")
    KF = -math.log2(10000.0) / 64
    def trig(idx, mul, pos, nn, t, P1, P2):
        A(f"""
        v_cvt_f32_u32 v{t}, v{idx}
        v_mul_f32 v{t}, {hex(f2u(KF*mul))}, v{t}
        v_exp_f32 v{t}, v{t}
        v_cvt_f32_u32 v{t+1}, v{pos}
        v_mul_f32 v{t}, v{t}, v{t+1}
        """)
        cst = [10000.0 ** (-(j % (nn//2) + 32*(j // (nn//2))) / 64.0) / (2*math.pi) for j in range(nn)]
        A(f"v_mul_f32 v{P2}, {hex(f2u(cst[0]))}, v{t}")
        for j in range(nn):
            A(f"v_cos_f32 v{t+2+2*(j%2)}, v{P2+j}")
            if j + 1 < nn: A(f"v_mul_f32 v{P2+j+1}, {hex(f2u(cst[j+1]))}, v{t}")
            if j: A(f"v_cvt_pk_bf16_f32 v{P1+j-1}, v{t+2+2*((j-1)%2)}, v{t+3+2*((j-1)%2)}")
            A(f"v_sin_f32 v{t+3+2*(j%2)}, v{P2+j}")
            if j: A(f"v_cvt_pk_bf16_f32 v{P2+j-1}, v{t+3+2*((j-1)%2)}, v{t+2+2*((j-1)%2)}")
        j = nn - 1
        A(f"v_cvt_pk_bf16_f32 v{P1+j}, v{t+2+2*(j%2)}, v{t+3+2*(j%2)}")
        A(f"v_cvt_pk_bf16_f32 v{P2+j}, v{t+3+2*(j%2)}, v{t+2+2*(j%2)}")
    KP1, KP2, QP1, QP2 = 96, 104, 112, 128
    def w_trigK():
        A("v_bfe_u32 v150, v27, 1, 11")
        trig(25, 4, 150, 8, 144, KP1, KP2)
    def w_kaddr():
        A(f"""
        v_mul_u32_u24 v173, 144, v26
        v_lshl_add_u32 v173, v25, 4, v173
        v_lshl_add_u32 v174, v{vW}, 3, v25
        v_mul_u32_u24 v172, 144, v174
        v_lshl_add_u32 v172, v24, 4, v172
        v_lshlrev_b32 v174, 4, v174
        v_lshl_add_u32 v174, v24, 9, v174
        v_add_u32 v175, 0x1000, v174
        v_lshrrev_b32 v176, 4, v0
        v_xor_b32 v177, v176, v0
        v_lshl_add_u32 v176, v176, 3, v25
        v_bfe_u32 v177, v177, 3, 1
        v_lshlrev_b32 v176, 4, v176
        v_lshl_add_u32 v176, v177, 29, v176
        v_add_u32 v176, 0x2000, v176
        v_bfe_i32 v177, v0, 4, 1
        v_and_b32 v177, 0x02020202, v177
        v_or_b32 v177, 0x05040100, v177
        v_mov_b32 v178, 0x11111111
        """)
    def l_pt():
        A.vmem("buffer_load_dword v254, off, s[24:27], s59", "PT")
    def l_cpf2():
        NCL = opt.get("ncl", 128)
        A(f"""
        v_min_u32 v64, {NCL//32 - 1}, v{vLANE}
        v_lshl_add_u32 v64, v64, 2, v{vW}
        s_and_b32 s53, s35, 7
        s_add_u32 s53, s53, {2 << opt.get('cpfs', 5)}
        v_lshl_add_u32 v64, v64, 3, s53
        v_lshlrev_b32 v64, 7, v64
        """)
        A.vmem(f"global_load_dword v255, v64, s[60:61]", "cpf")
    def w_qaddr():
        A(f"""
        s_lshr_b32 s52, s32, 1
        s_xor_b32 s53, s57, s52
        s_lshl_b32 s53, s53, 5
        v_bfe_u32 v66, v0, 2, 5
        v_and_b32 v71, 3, v0
        v_add_u32 v67, s53, v66
        v_lshlrev_b32 v68, 8, v67
        v_lshl_add_u32 v68, v71, 4, v68
        v_and_b32 v67, 2047, v67
        s_mul_i32 s52, s52, 8448
        v_mul_u32_u24 v180, 1056, v71
        v_lshl_add_u32 v180, v66, 4, v180
        v_add_u32 v180, s52, v180
        """)
    QS2 = opt.get("qs", 0)
    def l_q():
        if QS2: A("s_lshl_b32 s52, s36, 7\n v_add_u32 v68, s52, v68")
        for k in range(0 if opt.get("noq") else (2 if QS2 else 4)):
            A.vmem(f"global_load_dwordx4 v[{72+4*k}:{75+4*k}], v68, s[4:5] offset:{64*k} {opt.get('qfl', '')}", "QR")
    def l_q2():
        A("v_xor_b32 v68, 128, v68")
        for k in range(2):
            A.vmem(f"global_load_dwordx4 v[{80+4*k}:{83+4*k}], v68, s[4:5] offset:{64*k}", "QR")
    def l_ts():
        A("s_lshl_b32 s53, s33, 12\n v_lshl_add_u32 v70, v0, 4, s53")
        A.vmem(f"global_load_dwordx4 v[88:91], v70, s[14:15]", "TS")
        A.vmem(f"global_load_dwordx4 v[92:95], v70, s[16:17]", "TS")
    def w_trigQ():
        trig(71, 8, 67, 16, 144, QP1, QP2)
    def w_blk():
        A(f"""
        s_lshl_b32 s52, s34, 3
        s_lshl_b32 s53, s36, 2
        s_add_u32 s18, s52, s53
        s_xor_b32 s52, s52, 8
        s_mul_i32 s53, s36, {nfull-4}
        s_add_u32 s19, s52, s53
        s_add_u32 s3, s52, {2*(nfull-4)}
        v_lshlrev_b32 v179, 5, v0
        v_lshrrev_b32 v171, 1, v0
        v_mul_u32_u24 v171, 96, v171
        v_and_b32 v170, 1, v0
        v_lshl_add_u32 v171, v170, 3, v171
        v_add_u32 v171, {LDS_R}, v171
        v_bfe_u32 v157, v0, 4, 1
        v_bfe_u32 v158, v0, 1, 3
        v_cmp_eq_u32 vcc, v157, v158
        v_bfe_u32 v157, v0, 5, 3
        v_and_b32 v158, 1, v157
        v_cndmask_b32 v170, 2, v170, vcc
        v_mul_u32_u24 v158, 48, v158
        v_lshl_add_u32 v158, v170, 4, v158
        v_mul_u32_u24 v157, 192, v{vW}
        v_add_u32 v158, v158, v157
        s_mul_i32 s52, s18, 768
        v_add_u32 v{vR}, s52, v158
        s_mul_i32 s52, s19, 768
        v_add_u32 v{vR2}, s52, v158
        s_mul_i32 s52, s3, 768
        v_add_u32 v{vR3}, s52, v158
        v_lshrrev_b32 v151, 5, v{vLANE}
        v_lshlrev_b32 v152, 4, v151
        v_lshl_add_u32 v152, v{vW}, 7, v152
        s_lshl_b32 s52, s18, 9
        v_add_u32 v{vT}, s52, v152
        s_lshl_b32 s52, s19, 9
        v_add_u32 v{vT2}, s52, v152
        v_cmp_eq_u32 vcc, 0, v0
        s_lshl_b32 s52, s33, 4
        """)
        for src, reg, b0, b1 in (("s18", RB if opt.get("noa", 1) else RA, 0, 4), ("s19", RB, 4, nfull), ("s3", RB, nfull, nblk)):
            if b1 > b0:
                A(f"s_add_u32 s53, s52, {src}\n s_mul_i32 s53, s53, {BLK}")
                for b_ in range(b0, b1): A(f"s_add_u32 s{42+b_}, s53, {reg + (b_-b0)*BLK}")
        A(f"""
        v_bfrev_b32 v153, 4
        v_cndmask_b32 v{vFB}, v153, 0, vcc
        {"v_and_b32 v154, 31, v%d" % vLANE if opt.get("p32", 1) else "s_lshl_b32 s53, s36, 6"}
        {"v_lshlrev_b32 v%d, 2, v154" % vPA if opt.get("p32", 1) else "v_and_b32 v154, 15, v%d" % vLANE}
        {"" if opt.get("p32", 1) else "v_lshl_add_u32 v%d, v154, 2, s53" % vPA}
        v_lshlrev_b32 v{vX}, 4, v{vLANE}
        v_lshl_add_u32 v23, v151, 4, v{vX}
        s_mul_i32 s52, s32, {TILE}
        v_add_u32 v{vK0}, s52, v{vX}
        v_add_u32 v{vK1}, 0x1000, v{vK0}
        s_getreg_b32 s41, hwreg(HW_REG_XCC_ID, 0, 4)
        """)
    def w_vaddr():
        A(f"""
        s_lshr_b32 s52, s32, 1
        s_and_b32 s53, s32, 1
        s_lshl_b32 s53, s53, 10
        s_add_u32 s53, s53, 8192
        s_mul_i32 s38, s52, {3*TILE}
        s_add_u32 s38, s38, s53
        v_add_u32 v{vV}, s38, v{vX}
        s_mul_i32 s38, s52, {-TILE}
        s_add_u32 s38, s38, {2*TILE}
        s_add_u32 s38, s38, s53
        v_add_u32 v{vV+1}, s38, v{vX}
        v_lshl_add_u32 v{vPW}, v{vW}, 12, v{vX}
        v_add_u32 v{vPW}, {LDS_P}, v{vPW}
        v_xor_b32 v{vPW+1}, 0x1000, v{vPW}
        v_xor_b32 v{vPW+2}, 0x2000, v{vPW}
        v_xor_b32 v{vPW+3}, 0x3000, v{vPW}
        """)
    late = []
    late2 = []; late3 = []
    def w_late():
        L_ = f"""
        s_xor_b32 s38, s34, 1
        s_lshl_b32 s38, s38, 11
        v_and_b32 v{vPB}, {31 if opt.get("chk") else 7}, v{vLANE}
        {"" if opt.get("chk") else "v_lshl_add_u32 v%d, v%d, 3, v%d" % (vPB, vW, vPB)}
        v_lshl_add_u32 v{vPB}, v{vPB}, 6, s38
        v_and_b32 v{vLR}, 31, v{vLANE}
        v_lshlrev_b32 v{vLR}, 5, v{vLR}
        v_lshlrev_b32 v{vLW}, 5, v{vLANE}
        v_lshl_add_u32 v{vLW}, v{vW}, 3, v{vLW}
        v_cmp_gt_u32 vcc, 16, v{vLANE}
        v_add_u32 v{V_TMP}, {LDS_L}, v{vLW}
        s_nop 0
        v_cndmask_b32 v{vLW}, v{vLW}, v{V_TMP}, vcc
        s_sub_u32 s38, 2, s36
        s_mul_i32 s38, s38, {(nfull-4)*512}
        v_add_u32 v{vT3}, s38, v{vT2}
        s_xor_b32 s55, s54, 0x40000
        s_lshl_b32 s56, s57, 13
        s_lshl_b32 s38, s32, 6
        s_add_u32 s56, s56, s38
        s_mov_b32 s28, s20
        s_and_b32 s29, s21, 0xffff
        s_mov_b32 s30, 0x200000
        s_mov_b32 s31, 0x20000
        """
        if not XTAG: L_ += f"""
        s_xor_b32 s37, s35, 1
        s_lshl_b32 s37, s37, 2
        s_add_u32 s37, s37, s59
        v_lshrrev_b32 v{vXL}, 3, v{vLR}
        v_add_u32 v{vXL}, 4096, v{vXL}
        v_mov_b32 v{vXF}, 4352
        v_min_u32 v{vXT}, 32, v{vLANE}
        v_lshlrev_b32 v{vXT}, 7, v{vXT}
        """
        late.extend(x.strip() for x in L_.split("\n") if x.strip())
        late.extend([f"v_and_b32 v{vOW}, 31, v{vLANE}", f"v_lshl_add_u32 v{vOW}, v{vW}, 5, v{vOW}", f"v_mul_u32_u24 v{vOW}, 80, v{vOW}",
                     f"v_and_b32 v{V_TMP}, 32, v{vLANE}", f"v_add_u32 v{vOW}, v{vOW}, v{V_TMP}",
                     f"v_lshrrev_b32 v{vOUT}, 2, v{vLANE}", f"v_lshl_add_u32 v{vOR}, v{vW}, 5, v{vOUT}", f"v_mul_u32_u24 v{vOR}, 80, v{vOR}",
                     f"v_and_b32 v{V_TMP}, 48, v{vX}", f"v_add_u32 v{vOR}, v{vOR}, v{V_TMP}", f"v_lshl_add_u32 v{vOUT}, v{vOUT}, 8, v{V_TMP}"])
    def w_tables():
        A.need(["TS"])
        x = 184
        for k in range(4):
            A(f"v_lshlrev_b32 v{x+2*k}, 16, v{88+k}\n v_and_b32 v{x+2*k+1}, 0xffff0000, v{88+k}")
        A("s_mov_b32 s52, 0x3fc03fc0")
        ex = ["v_xor_b32 v92, s52, v92", "v_xor_b32 v93, s52, v93", "v_xor_b32 v94, s52, v94", "v_xor_b32 v95, s52, v95",
              "v_or3_b32 v92, v92, v93, v94", "v_or_b32 v92, v92, v95", "v_mov_b32 v95, 0x7fc00000", "v_cmp_eq_u32 s[52:53], 0, v92"]
        for k in range(8): A(f"v_log_f32 v{192+k}, v{x+k}\n {ex[k]}")
        ex = ["v_max3_f32 v93, |v192|, |v193|, |v194|", "v_max3_f32 v94, |v195|, |v196|, |v197|", "v_max3_f32 v93, |v198|, |v199|, v93", "v_max_f32 v93, v93, v94",
              "v_cmp_gt_f32 vcc, 0x41f00000, v93", "s_nop 0", "s_and_b64 vcc, vcc, s[52:53]", "s_nop 0"]
        A(f"v_rcp_f32 v200, v{x}")
        A.ds(f"ds_write_b128 v179, v[192:195] offset:{LDS_T}", "QW"); A.ds(f"ds_write_b128 v179, v[196:199] offset:{LDS_T+16}", "QW")
        for k in range(1, 8): A(f"{ex[k-1]}\n v_rcp_f32 v{200+k}, v{x+k}")
        A("v_cndmask_b32 v200, v95, v200, vcc")
        for k in range(4): A(f"v_cvt_pk_bf16_f32 v{184+k}, v{200+2*k}, v{201+2*k}")
        A("v_mov_b32 v92, 0\n v_mov_b32 v93, 0")
        for k in range(4):
            A(f"v_lshlrev_b32 v94, 16, v{184+k}\n v_and_b32 v95, 0xffff0000, v{184+k}\n v_sub_f32 v94, v{200+2*k}, v94\n v_sub_f32 v95, v{201+2*k}, v95\n v_cvt_pk_bf16_f32 v{188+k}, v94, v95")
        A.ds("ds_write2_b64 v171, v[184:185], v[188:189] offset0:0 offset1:2", "QW")
        A.ds("ds_write2_b64 v171, v[186:187], v[190:191] offset0:6 offset1:8", "QW")
        A.ds("ds_write2_b64 v171, v[92:93], v[92:93] offset0:4 offset1:10", "QW")
    def w_qrope():
        A.need(["QR"])
        if QS2: A("s_cmp_eq_u32 s36, 0\n s_mov_b32 s53, 0x01000504\n s_cselect_b32 s52, 0x05040100, s53\n s_add_u32 s53, s52, 0x02020202")
        else: A("s_mov_b32 s52, 0x05040100\n s_mov_b32 s53, 0x07060302")
        x = 32
        pend = []
        for half in range(2):
            for k in (2*half, 2*half+1, 4+2*half, 5+2*half):
                A(f"v_perm_b32 v{x+2*k}, v{80+k}, v{72+k}, s52\n v_perm_b32 v{x+2*k+1}, v{80+k}, v{72+k}, s53")
            js = [4*half + t for t in range(4)] + [8 + 4*half + t for t in range(4)]
            for o_, (P_, md) in enumerate(((QP1, " neg_hi:[0,1,0]"), (QP2, ""))):
                y = 192 + 8*o_; zz = 208 + 8*half + 4*o_
                for t, j in enumerate(js): A(f"v_dot2_f32_bf16 v{y+t}, v{x+j}, v{P_+j}, 0{md}")
                for p_ in pend: p_()
                for k in range(4): A(f"v_cvt_pk_bf16_f32 v{zz+k}, v{y+2*k}, v{y+2*k+1}")
                pend = [lambda zz=zz, off=LDS_Q + 528*half + 8*528*o_: A.ds(f"ds_write_b128 v180, v[{zz}:{zz+3}] offset:{off}", "QW")]
        for p_ in pend: p_()
    def w_staddr():
        A(f"""
        v_lshlrev_b32 v159, 7, v{vW}
        v_lshl_add_u32 v159, v{vLANE}, 9, v159
        v_and_b32 v64, 3, v{vLANE}
        v_lshl_add_u32 v64, v{vW}, 2, v64
        v_cmp_gt_u32 vcc, 16, v{vLANE}
        v_lshlrev_b32 v64, 7, v64
        v_add_u32 v64, 0x2000, v64
        v_cndmask_b32 v159, v64, v159, vcc
        """)
    def w_st2():
        A(f"""
        v_and_b32 v159, 15, v{vLANE}
        v_lshlrev_b32 v159, 9, v159
        v_lshl_add_u32 v159, v{vW}, 7, v159
        v_and_b32 v{V_O0+2}, 3, v{vLANE}
        v_lshl_add_u32 v{V_O0+2}, v{vW}, 2, v{V_O0+2}
        v_lshlrev_b32 v{V_O0+2}, 7, v{V_O0+2}
        v_add_u32 v{V_O0+2}, 0x2000, v{V_O0+2}
        """)
    def w_tk():
        A.need(["SK"]); stamp("ackK")
        A.vmem(f"buffer_load_dword v254, v159, s[24:27], s37 offen sc1", "ST")
    def w_ident():
        assert V_O0 >= 235
        A(f"""
        v_bfe_u32 v232, v{vLANE}, 3, 2
        v_bfe_u32 v233, v{vLANE}, 1, 1
        v_lshl_add_u32 v232, v232, 1, v233
        v_lshrrev_b32 v233, 3, v{vLANE}
        v_xor_b32 v233, v233, v{vLANE}
        v_and_b32 v233, 4, v233
        v_lshl_add_u32 v232, v233, 1, v232
        v_and_b32 v233, 1, v{vLANE}
        v_lshlrev_b32 v233, 4, v233
        v_mov_b32 v234, 0x3f80
        v_lshlrev_b32 v233, v233, v234
        """)
        msk = ["vcc", "s[52:53]", "s[100:101]"]
        for k in range(10):
            if k < 8: A(f"v_cmp_eq_u32 {msk[k%3]}, {k}, v232")
            if k >= 2: A(f"v_cndmask_b32 v{224+k-2}, 0, v233, {msk[(k-2)%3]}")
        A.ds(f"ds_write_b128 v{vPW}, v[224:227] offset:{NPB*16384}", "QW")
        A.ds(f"ds_write_b128 v{vPW}, v[228:231] offset:{NPB*16384+1024}", "QW")
    def w_rb():
        for r_ in (174, 175, 176): A.vmem(f"buffer_load_dword v254, v{r_}, s[24:27], s37 offen sc1", "ST")
    def w_wpt(): A.need(["PT"])
    def w_wcpf(): A.need(["cpf"])
    def w_wq(): A.need(["QR"])
    def w_otlb():
        A("s_lshl_b32 s52, s57, 13\n v_mov_b32 v64, s52\n s_waitcnt lgkmcnt(0)"); A.lg = []
        A.vmem("global_load_dword v255, v64, s[20:21]", "cpf")
    def w_flush():
        for l_ in late: A(l_)
        late.clear()
    def w_warm():
        if opt.get("ihook"):
            A("s_mov_b64 exec, 0")
            for i in range(opt["ihook"]): A(f"s_cmp_eq_u32 s32, {i}\n s_cbranch_scc1 L_hook{i}")
            A.label("L_warmed"); A("s_mov_b64 exec, -1")
    W = dict(trigK=w_trigK, kaddr=w_kaddr, pt=l_pt, cpf2=l_cpf2, q=l_q, q2=l_q2, qaddr=w_qaddr, ts=l_ts, trigQ=w_trigQ, blk=w_blk, vaddr=w_vaddr,
             tables=w_tables, qrope=w_qrope, flush=w_flush, otlb=w_otlb, staddr=w_staddr, rb=w_rb, ident=w_ident, wpt=w_wpt, wcpf=w_wcpf, wq=w_wq, st2=w_st2, tk=w_tk, v=l_v, warm=w_warm)
    def run(seq):
        for x_ in seq.split("."):
            if x_: W[x_](); stamp(x_)
    w_late()
    run(opt.get("o1", "pt.trigK.kaddr.cpf2.qaddr.trigQ.blk.q"))
    stamp("pre")
    A.need(["KR"])
    stamp("ks")
    A(f"v_lshlrev_b32 v30, 16, v30\n v_lshlrev_b32 v31, 16, v31\n v_mul_f32 v30, {hex(f2u(SCALE))}, v30\n v_mul_f32 v31, v31, v30")
    for j in range(16): A(f"v_cvt_f32_i32 v{32+j}, v{32+j}")
    for j in range(16): A(f"v_fma_f32 v{32+j}, v{32+j}, v30, -v31")
    for j in range(8): A(f"v_cvt_pk_bf16_f32 v{32+j}, v{32+j}, v{40+j}")
    for j in range(8): A(f"v_dot2_f32_bf16 v{KP1+j}, v{32+j}, v{KP1+j}, 0 neg_hi:[0,1,0]")
    for j in range(8): A(f"v_dot2_f32_bf16 v{KP2+j}, v{32+j}, v{KP2+j}, 0")
    for p in range(4): A(f"v_cvt_pk_bf16_f32 v{40+p}, v{KP1+2*p}, v{KP1+2*p+1}")
    A("s_waitcnt lgkmcnt(0)"); A.lg = []
    A.ds("ds_write_b128 v172, v[40:43]", "KT")
    for p in range(4): A(f"v_cvt_pk_bf16_f32 v{44+p}, v{KP2+2*p}, v{KP2+2*p+1}")
    A.ds("ds_write_b128 v172, v[44:47] offset:4608", "KT")
    A.ds("ds_read_b128 v[160:163], v173", "KT2")
    A.ds("ds_read_b128 v[164:167], v173 offset:4608", "KT2")
    stamp("kconv")
    NOA = 1
    sa = "s37 offen sc1" if NOA else "s58 offen"
    if opt.get("kfirst"):
        A.need(ltags=["KT2"])
        A.vmem(f"buffer_store_dwordx4 v[160:163], v174, s[24:27], {sa}", "SK")
        A.vmem(f"buffer_store_dwordx4 v[164:167], v175, s[24:27], {sa}", "SK")
        run(opt.get("o1b", ""))
    def w_vconv():
        A.need(["VRAW"])
        for c in range(4): A(f"v_lshl_or_b32 v{48+c}, v{52+c}, 4, v{48+c}")
        for c in range(4): A(f"v_lshl_or_b32 v{56+c}, v{60+c}, 4, v{56+c}")
        for c in range(4): A(f"v_lshl_or_b32 v{48+c}, v{56+c}, 8, v{48+c}")
        A("v_lshl_or_b32 v48, v49, 16, v48\n v_lshl_or_b32 v49, v51, 16, v50")
        A("s_mov_b32 s52, 0x22222222\n s_mov_b32 s53, 0x88888888")
        A("v_permlane32_swap_b32 v48, v49")
        A("v_mov_b32 v50, v48\n v_mov_b32 v51, v49")
        A.need(ltags=["KT2"])
        if not opt.get("kfirst"):
            A.vmem(f"buffer_store_dwordx4 v[160:163], v174, s[24:27], {sa}", "SA")
            A.vmem(f"buffer_store_dwordx4 v[164:167], v175, s[24:27], {sa}", "SA")
        A("v_permlane16_swap_b32 v48, v50\n v_permlane16_swap_b32 v49, v51")
        A("v_perm_b32 v144, v50, v48, v177\n v_perm_b32 v145, v51, v49, v177")
        t1 = bitop(lambda a, b, c: ~(a ^ b) & c); t2 = bitop(lambda a, b, c: (~a & b) | c)
        for r in (144, 145):
            A(f"v_lshlrev_b32 v55, 1, v{r}\n v_lshlrev_b32 v56, 2, v{r}")
            A(f"v_bitop3_b32 v55, v{r}, v55, s52 bitop3:{hex(t1)}")
            A(f"v_bitop3_b32 v56, v56, s53, v178 bitop3:{hex(t2)}")
            A(f"v_or_b32 v{r}, v55, v56")
        A("v_mov_b32_dpp v146, v144 row_ror:8 row_mask:0xf bank_mask:0xf\n v_mov_b32_dpp v147, v145 row_ror:8 row_mask:0xf bank_mask:0xf")
        A.vmem(f"buffer_store_dwordx4 v[144:147], v176, s[24:27], {sa}", "SA")
    W["vconv"] = w_vconv
    if not opt.get("vdefer"): w_vconv()
    run(opt.get("o2", ""))
    def st_b():
        if NOA: return
        A.vmem("buffer_store_dwordx4 v[160:163], v174, s[24:27], s37 offen sc1", "SB")
        A.vmem("buffer_store_dwordx4 v[164:167], v175, s[24:27], s37 offen sc1", "SB")
        A.vmem("buffer_store_dwordx4 v[144:147], v176, s[24:27], s37 offen sc1", "SB")
    W["sb"] = st_b
    if not opt.get("sbl", 1): st_b()
    stamp("stored")
    run(opt.get("o3", "staddr.vaddr.tables.flush"))
    A(f"""
    s_mul_i32 s40, s39, 0x9E3779B1
    s_add_u32 s40, s40, 0x7F4A7C15
    s_and_b32 s40, s40, 0xfffffff0
    s_or_b32 s62, s40, s41
    s_lshl_b32 s63, s35, 2
    s_add_u32 s63, s63, s59
    v_mov_b32 v24, s62
    s_or_b32 s61, s40, 8
    s_lshl_b32 s18, s57, 6
    s_add_u32 s18, s18, {FB_OFF}
    v_mov_b32 v{vTAG}, s61
    """)
    FBE = 2
    stamp("mid")
    if opt.get("adapt"):
        A.vmem(f"buffer_load_dword v26, v{vPA}, s[24:27], s59 offen sc1", "SA")
    A.need(["SA"], ["QW"])
    stamp("ackA")
    if opt.get("adapt"):
        A(f"""
        v_cmp_eq_u32 vcc, s62, v26
        s_bcnt1_i32_b32 s52, vcc_lo
        s_cmp_ge_u32 s52, {opt["adapt"]}
        s_cselect_b32 s52, 0x20000000, s37
        s_cselect_b32 s37, s37, 0x20000000
        """)
        A.vmem(f"buffer_load_dword v254, v159, s[24:27], s52 offen sc1", "ST")
    elif opt.get("stch", 1) == 1: A.vmem(f"buffer_load_dword v254, v159, s[24:27], s37 offen sc1", "ST")
    A("s_barrier")
    A.vmem(f"buffer_store_dword v24, v{vFB}, s[24:27], s63 offen", "FA")
    if opt.get("fb0", 1): A.vmem(f"buffer_store_dword v{vTAG}, v{vFB}, s[24:27], s18 offen sc1", "FB")
    if opt.get("stch", 1) == 2: A.vmem(f"buffer_load_dword v254, v159, s[24:27], s37 offen sc1", "ST")
    stamp("bar0")
    run(opt.get("o3b", "qrope.ident"))
    A(f"""
    buffer_load_dword v26, v{vPA}, s[24:27], s59 offen sc1
    s_lshl_b32 s60, s33, 12
    s_add_u32 s60, s60, {FB_OFF}
    {"" if opt.get("fb0", 1) else "s_mov_b32 s3, 0"}
    s_mov_b32 s19, 0
    """)
    run(opt.get("o5", "warm"))
    A.label("L_pollA")
    A(f"""
    s_waitcnt vmcnt(0)
    v_cmp_eq_u32 vcc, s62, v26
    s_cmp_eq_u64 vcc, -1
    s_cbranch_scc0 L_pollA_more
    """)
    A.vm = []
    stamp("flagsA")
    OOL.label("L_pollA_more")
    OOL(f"""
    buffer_load_dword v26, v{vPA}, s[24:27], s59 offen sc1
    s_add_u32 s19, s19, 1
    s_cmp_lt_u32 s19, {opt.get("tmo", 64)}
    s_cbranch_scc1 L_pollA
    s_waitcnt vmcnt(0)
    {"" if opt.get("fb0", 1) else "s_waitcnt lgkmcnt(0)"}
    {"" if opt.get("fb0", 1) else "s_barrier"}
    {"" if opt.get("fb0", 1) else "buffer_store_dword v%d, v%d, s[24:27], s18 offen sc1" % (vTAG, vFB)}
    v_lshlrev_b32 v27, 4, v{vPA}
    s_lshl_b32 s52, s34, 11
    v_add_u32 v27, s52, v27
    s_mov_b32 s53, 0
    """)
    OOL.label("L_pollB0")
    OOL(f"""
    buffer_load_dword v26, v27, s[24:27], s60 offen sc1
    s_add_u32 s53, s53, 1
    s_waitcnt vmcnt(0)
    v_cmp_eq_u32 vcc, s61, v26
    s_cmp_eq_u64 vcc, -1
    s_cbranch_scc1 L_pollB0_ok
    s_sleep 4
    s_cmp_lt_u32 s53, 0x100000
    s_cbranch_scc1 L_pollB0
    """)
    OOL.label("L_pollB0_ok")
    for b_ in range(0 if opt.get("noa", 1) else 4): OOL(f"s_add_u32 s{42+b_}, s{42+b_}, {RB-RA}")
    OOL(("" if opt.get("fb0", 1) else "s_mov_b32 s3, 1\n") + "s_branch L_go")

    order = []
    for r in range(n):
        order.append(("QK", r))
        if r >= 1: order.append(("PV", r-1))
    order.append(("PV", n-1))
    mf = []; a = [0]*n; b = [0]*n
    for kind, r in order:
        if kind == "QK":
            a[r] = len(mf)
            if r < opt.get("smaj", 2):
                for s in range(8):
                    for u in range(2): mf.append(("QK", r, u, s))
            else:
                for u in range(2):
                    for s in range(8): mf.append(("QK", r, u, s))
        else:
            b[r] = len(mf)
            if r == nfull-1 and opt.get("early", 1):
                for kk in range(2):
                    for u in (1, 0): mf.append(("PV", r, u, kk))
                for u in (1, 0):
                    for kk in range(2, 8): mf.append(("PV", r, u, kk))
            else:
                for kk in range(8):
                    for u in range(2): mf.append(("PV", r, u, kk))
    nslots = len(mf)
    sready = {(m[1], m[2]): sl + 3 for sl, m in enumerate(mf) if m[0] == "QK"}
    q1last = {m[3]: sl for sl, m in enumerate(mf) if m[0] == "QK" and rounds[m[1]][m[2]][1] == 1}
    firstuse = {}; lastuse = {}
    for sl, m in enumerate(mf):
        blk = rounds[m[1]][m[2]][0]
        key = ("K" if m[0] == "QK" else "V", blk, m[3])
        firstuse.setdefault(key, sl); lastuse[key] = sl
    kbuf = {}; kfree = {}
    q1dead = a[nfull-1] + 15
    bases = list(A_K); hold = [None]*len(bases)
    if OARCH and opt.get("k4", 1): bases.append(224); hold.append(None)
    if nsolo: bases.append(A_Q + 32); hold.append("Q1")
    for blk in range(nblk):
        def rel(h): return -1 if h is None else (q1dead if h == "Q1" else lastuse[("K", h, 7)])
        i = min(range(len(bases)), key=lambda i: rel(hold[i]))
        for s in range(8):
            h = hold[i]
            kfree[(blk, s)] = -1 if h is None else (q1last[s] if h == "Q1" else lastuse[("K", h, s)])
        kbuf[blk] = bases[i]; hold[i] = blk
    def oreg(qt):
        if OARCH: return f"v[{V_O0}:{V_O0+15}]" if qt == 0 else f"v[{V_O1}:{V_O1+15}]"
        return f"a[{A_O+16*qt}:{A_O+16*qt+15}]"
    A_O1 = A_O if OARCH else A_O + 16
    vexp = sorted({k for k in firstuse if k[0] == "V"}, key=lambda k: firstuse[k])
    vereg = {k: V_VE + (i % NVE)*4 for i, k in enumerate(vexp)}
    vefree = {k: (-1 if i < NVE else lastuse[vexp[i-NVE]]) for i, k in enumerate(vexp)}
    vedone = {}
    barlead = opt.get("barlead", 3)
    gate = opt["chk"] + 1 if opt.get("chk") else b[opt.get("gater", 1)] - barlead
    kl = [("K", blk, s) for blk in range(nblk) for s in range(8)]
    vl = sorted([("VR", blk, i) for blk in range(nblk) for i in range(2)], key=lambda k: firstuse[("V", k[1], 4*k[2])])
    need_at = {k: firstuse[k] for k in kl}
    need_at.update({k: firstuse[("V", k[1], 4*k[2])] - opt.get("vneed", 26) for k in vl})
    for i in range(2): need_at[("VR", 0, i)] = opt.get("v0need", 26) + opt.get("v0d", 6)*i
    for i in range(2): need_at[("VR", 1, i)] = max(need_at[("VR", 1, i)], opt.get("v1need", 56) + 4*i)
    issued = set()
    def ld_free(key):
        f = -1
        if key[0] == "K": f = kfree[(key[1], key[2])]
        elif key[1] >= NVR: f = vedone.get(("V", key[1]-NVR, 4*key[2]+3), 10**6)
        if key[1] >= 4: f = max(f, gate)
        return f
    def ld(key):
        k, blk, f = key
        issued.add(key)
        if k == "K":
            rg = kbuf[blk] + 4*f
            A.vmem(f"buffer_load_dwordx4 a[{rg}:{rg+3}], v{vK0 + f//4}, s[24:27], s{42+blk} offen offset:{(f%4)*1024} {opt.get('kvfl', 'sc1')}", key)
        else:
            rg = V_VR + (blk % NVR)*8 + 4*f
            A.vmem(f"buffer_load_dwordx4 v[{rg}:{rg+3}], v{vV+f}, s[24:27], s{42+blk} offen {opt.get('kvfl', 'sc1')}", key)
    tb = []
    for r in range(n):
        for u in range(2):
            if not tb or tb[-1][0] != rounds[r][u][0]: tb.append((rounds[r][u][0], r, u))
    lvreg = {blk: V_LV[i % 2] for i, (blk, _, _) in enumerate(tb)}
    rvreg = {blk: A_RV[i % 2] for i, (blk, _, _) in enumerate(tb)}
    lv_use = {blk: firstuse[("K", blk, 0)] for blk, _, _ in tb}
    lv_last = {blk: lastuse[("K", blk, 0)] for blk, _, _ in tb}
    rv_done = {}
    lvq = [("LV", blk, q, i) for i, (blk, r, u) in enumerate(tb) for q in range(4)]
    rvq = [("RV", blk, q, i) for i, (blk, r, u) in enumerate(tb) for q in range(2)]
    tdone = {}
    A.label("L_go")
    def qread(i):
        A.ds(f"ds_read_b128 a[{A_Q+4*i}:{A_Q+4*i+3}], v23 offset:{LDS_Q + (i//8)*8448 + (i%8)*1056}", ("Q", i//8, i%8))
    qord = [x for s_ in range(8) for x in (s_, 8+s_)] if opt.get("smaj", 2) else list(range(16))
    for _ in range(opt.get("npre0", 2)): ld(kl.pop(0))
    if opt.get("stch", 1) == 3: A.vmem(f"buffer_load_dword v254, v159, s[24:27], s37 offen sc1", "ST")
    assert opt.get("fb0", 1) or not opt.get("o6")
    run(opt.get("o6", ""))
    if opt.get("fb0", 1):
        if A.lg: A("s_waitcnt lgkmcnt(0)\n s_barrier"); A.lg = []
    else:
        A("s_cmp_eq_u32 s3, 0\n s_waitcnt lgkmcnt(0)\n s_cbranch_scc0 L_skip2\n s_barrier"); A.lg = []
        A.label("L_skip2")
    stamp("bar1")
    rd = [lambda q_=q_: A.ds(f"ds_read_b128 v[{V_LV[0]+4*q_}:{V_LV[0]+4*q_+3}], v{vT} offset:{LDS_T + q_*32}", ("LV", 0, q_)) for q_ in range(4)]
    rd += [lambda i=i: qread(i) for i in qord[:10]]
    for _ in range(opt.get("npre", 6) - opt.get("npre0", 2)):
        for _ in range(opt.get("gap0", 3)):
            if rd: rd.pop(0)()
        ld(kl.pop(0))
    if opt.get("tv") == -1: A.vmem(f"buffer_load_dword v255, v{V_O0+2}, s[24:27], s37 offen sc1", "ST")
    while rd: rd.pop(0)()
    qrest = qord[10:]
    def tread(t, sl_):
        k, blk, q, i = t
        rg = (lvreg if k == "LV" else rvreg)[blk] + 4*q
        j_, rel_ = (0, blk) if blk < 4 else ((1, blk-4) if blk < nfull else (2, blk-nfull))
        if k == "LV": A.ds(f"ds_read_b128 v[{rg}:{rg+3}], v{(vT, vT2, vT3)[j_]} offset:{LDS_T + rel_*512 + q*32}", (k, blk, q))
        else: A.ds(f"ds_read_b128 a[{rg}:{rg+3}], v{(vR, vR2, vR3)[j_]} offset:{LDS_R + rel_*768 + q*96}", (k, blk, q))
        tdone[(k, blk, q)] = sl_
    for q_ in range(4): lvq.pop(0); tdone[("LV", 0, q_)] = -5
    bl = {r: (opt.get("bl0", barlead) if r == 0 else opt.get("bl7", 2) if r == n-1 else barlead) for r in range(n)}
    wend = {r: b[r] - (opt.get("smend", 6) - barlead + bl[r]) - (opt.get("lx", 2) if r in (nfull-1, n-1) else 0) for r in range(n)}
    items = {}
    for r in range(n):
        S = V_S[r % 2]; PO = V_PO[r % 2]; L = []
        for e in range(33):
            if e < 32: L.append(("e", e, f"v_exp_f32 v{S+e}, v{S+e}", None))
            if e >= 2 and e % 2 == 0:
                L.append(("c", e, f"v_cvt_pk_bf16_f32 v{PO + (e-2)//2}, v{S+e-2}, v{S+e-1}", None))
        items[r] = L
    cur = 0; ci = 0; pendw = []; nw = {r: 0 for r in range(n)}
    pendm = []; seenL = set(); pendl = []; lwr = set()
    bar_at = {b[r] - bl[r]: r for r in range(n)}
    pslot = {(m[1], m[3], m[2]): sl for sl, m in enumerate(mf) if m[0] == "PV"}
    prq = sorted([(r, kk, u, (kk-2)*2+u) for r in range(n) for kk in range(2, 8) for u in range(2)], key=lambda x: pslot[x[:3]])
    prdone = set(); lastw = -10
    send_slot = pslot[(nfull-1, 7, 1)] + 3
    inloop = send_slot + 6 < nslots
    flag_slot = send_slot + opt.get("flagdelay", 16)
    xpoll_slot = flag_slot + opt.get("xpolldelay", 10)
    xchk_slot = xpoll_slot + opt.get("xchkdelay", 8)
    xuse_slot = xchk_slot + opt.get("xusedelay", 8)
    pollB_slot = opt.get("pollslot", 56); chkB_slot = opt.get("chk") or gate - opt.get("chklead", 3)
    XR = V_LV[0]
    def operands(m):
        blk = rounds[m[1]][m[2]][0]
        if m[0] == "QK":
            lt = [("Q", rounds[m[1]][m[2]][1], m[3])]
            if m[3] == 0: lt += [("LV", blk, q) for q in range(4)]
            return [("K", blk, m[3])], lt
        return [], [("PR", m[1], m[3], m[2])]
    def lsum(t_, dst):
        return [f"v_add_f32 v{t_}, v{t_}, v{t_+1}", f"v_add_f32 v{t_+2}, v{t_+2}, v{t_+3}", f"v_add_f32 v{t_+4}, v{t_+4}, v{t_+5}", f"v_add_f32 v{t_+6}, v{t_+6}, v{t_+7}",
                f"v_add_f32 v{t_}, v{t_}, v{t_+2}", f"v_add_f32 v{t_+4}, v{t_+4}, v{t_+6}", f"v_add_f32 v{dst}, v{t_}, v{t_+4}"]
    LT = [0, 0]
    uid = [0]
    def two_way(fn):
        if XSC1: fn(A, "sc1"); return
        uid[0] += 1; u_ = uid[0]
        A(f"s_cmp_eq_u32 s37, s62\n s_cbranch_scc0 L_far{u_}")
        fn(A, ""); A.label(f"L_join{u_}")
        OOL.label(f"L_far{u_}"); fn(OOL, "sc1"); OOL.vm = []; OOL(f"s_branch L_join{u_}")
    def send_payload(B, fl):
        for i in range(4):
            o = A_O1 + 4*i
            B.vmem(f"buffer_store_dwordx4 a[{o}:{o+3}], v{vX}, s[24:27], s54 offen offset:{i*1024} {fl}", "XS")
        B.vmem(f"buffer_store_dword v{vLS}, v{vXL}, s[24:27], s54 offen {fl}", "XS")
    def send_flag(B, fl):
        B.vmem(f"buffer_store_dword v{vTAG}, v{vXF}, s[24:27], s54 offen {fl}", "XF")
    def self_touch():
        if opt.get("selft", 1): A.vmem(f"buffer_load_dword v{vPB}, v{vXT}, s[24:27], s54 offen sc1", "ST")
    def recv_loads():
        A.vmem(f"buffer_load_dword v{XR+16}, v{vXL}, s[24:27], s55 offen sc1", "XR")
        for i in range(4):
            A.vmem(f"buffer_load_dwordx4 v[{XR+4*i}:{XR+4*i+3}], v{vX}, s[24:27], s55 offen offset:{i*1024} sc1", "XR")
    def xcheck():
        A(f"v_cmp_eq_u32 vcc, s61, v{V_TMP}\n s_cbranch_vccz L_xspin0")
        A.label("L_xok")
        OOL.label("L_xspin0"); OOL("s_mov_b32 s53, 0"); OOL.label("L_xspin")
        OOL(f"""
        buffer_load_dword v{V_TMP}, v{vXF}, s[24:27], s55 offen sc1
        s_add_u32 s53, s53, 1
        s_waitcnt vmcnt(0)
        v_cmp_eq_u32 vcc, s61, v{V_TMP}
        s_cbranch_vccnz L_xok
        s_cmp_lt_u32 s53, 0x100000
        s_cbranch_scc1 L_xspin
        s_branch L_xok
        """)
    def fin_pre():
        L_ = [f"v_add_f32 v{V_L}, v{V_L}, v{XR+16}", f"v_rcp_f32 v{V_TMP}, v{V_L}",
              f"v_cmp_lt_f32 vcc, 0x30800000, v{V_L}", f"v_cmp_gt_f32 s[52:53], s19, v{V_L}"]
        L_ += [f"v_mul_f32 v{XR+i}, v{XR+i}, v{V_TMP}" for i in range(16)]
        return L_
    XB = V_PO[(nfull-1) % 2]
    XL = V_LV[1]
    def xpos(k): return {3: 8, 7: 9}.get(k, k)
    def tag_pack():
        L_ = []
        for k in range(8):
            L_ += [f"v_cvt_pk_bf16_f32 v{XB+xpos(k)}, v{V_O1+2*k}, v{V_O1+2*k+1}"]
            if k in (2, 6, 7): L_.append(("st", {2: 0, 6: 1, 7: 2}[k]))
        return L_
    def tag_recv(B):
        for i in range(3):
            B.vmem(f"buffer_load_dwordx4 v[{XL+4*i}:{XL+4*i+3}], v{vX}, s[24:27], s55 offen offset:{i*1024} sc1", "XR")
    def tag_cmp(B):
        B(f"v_cmp_eq_u32 vcc, s61, v{XL+3}\n v_cmp_eq_u32 s[52:53], s61, v{XL+7}\n v_cmp_eq_u32 s[20:21], s61, v{XL+11}")
        B("s_and_b64 vcc, vcc, s[52:53]\n s_and_b64 vcc, vcc, s[20:21]\n s_cmp_eq_u64 vcc, -1")
    def tag_check():
        tag_cmp(A); A("s_cbranch_scc0 L_xspin0"); A.label("L_xok")
        OOL.label("L_xspin0"); OOL("s_mov_b32 s38, 0"); OOL.label("L_xspin")
        tag_recv(OOL); OOL.vm = []
        OOL("s_add_u32 s38, s38, 1\n s_waitcnt vmcnt(0)"); tag_cmp(OOL)
        OOL("s_cbranch_scc1 L_xok\n s_cmp_lt_u32 s38, 0x100000\n s_cbranch_scc1 L_xspin\n s_branch L_xok")
    def tag_fin():
        return [f"v_mov_b32 v{XL+3}, v{XL+8}", f"v_mov_b32 v{XL+7}, v{XL+9}", f"v_add_f32 v{V_L}, v{V_L}, v{XL+10}"]
    def emit_extra(x_):
        if isinstance(x_, tuple):
            A.vmem(f"buffer_store_dwordx4 v[{XB+4*x_[1]}:{XB+4*x_[1]+3}], v{vX}, s[24:27], s54 offen offset:{x_[1]*1024} sc1", "XS")
        else: A(x_)
    xld_slot = opt.get("xld", nslots - 22); xuse2 = opt.get("xuse", nslots - 4)
    extra = []
    seenO = set(); vi = 0; vpart = 0
    vt, lt = operands(mf[0]); A.need(vt, lt)
    stamp("mfma0")
    pendst = []
    totcost = []; fb_done = []; pb_done = []; ldlog = []
    pipe = opt.get("pipe0", 200)
    for sl in range(nslots):
        m = mf[sl]
        blk, qt = rounds[m[1]][m[2]]
        if m[0] == "QK":
            _, r, u, s = m
            d = V_S[r % 2] + u*16
            c = f"v[{lvreg[blk]}:{lvreg[blk]+15}]" if s == 0 else f"v[{d}:{d+15}]"
            if s == 0: assert all(("LV", blk, q_) in tdone for q_ in range(4)), ("lv not read", sl)
            assert ("K", blk, s) in issued, ("K not loaded", sl)
            assert qt*8+s not in qrest
            k = kbuf[blk] + 4*s; q = A_Q + (qt*8+s)*4
            A(f"v_mfma_f32_32x32x16_bf16 v[{d}:{d+15}], a[{k}:{k+3}], a[{q}:{q+3}], {c}")
        else:
            _, r, u, kk = m
            c = "0" if qt not in seenO else oreg(qt)
            seenO.add(qt)
            assert ("V", blk, kk) in vedone, ("V frag not expanded", sl, m)
            assert kk < 2 or (r, kk, u) in prdone, ("P not read", sl)
            assert kk >= 2 or cur > r or (cur == r and (ci >= len(items[r]) or items[r][ci][1] > 8*(2*u+kk+1))), ("own P not packed", sl)
            v = vereg[("V", blk, kk)]
            ps = f"v[{V_PO[r%2] + (u*2+kk)*4}:{V_PO[r%2] + (u*2+kk)*4+3}]" if kk < 2 else f"a[{A_P + ((kk-2)*2+u)*4}:{A_P + ((kk-2)*2+u)*4+3}]"
            A(f"v_mfma_f32_32x32x16_bf16 {oreg(qt)}, v[{v}:{v+3}], {ps}, {c}")
        stamp(f"slot{sl}")
        bud = 24
        vt, lt = operands(mf[sl+1]) if sl + 1 < nslots else ([], [])
        vt = list(vt); lt = list(lt)
        if vi < len(vexp) and sl >= need_at[("VR", vexp[vi][1], vexp[vi][2]//4)]: vt.append(("VR", vexp[vi][1], vexp[vi][2]//4))
        if pendm and tdone.get(("RV", rounds[pendm[0][0]][pendm[0][1]//2][0], pendm[0][1] % 2), 10**6) <= sl - 2:
            lt.append(("RV", rounds[pendm[0][0]][pendm[0][1]//2][0], pendm[0][1] % 2))
        if sl == chkB_slot: vt.append("PB")
        if inloop and not XTAG:
            if sl == flag_slot: vt.append("XS")
            if sl == xchk_slot: vt.append("XP")
            if sl == xuse_slot: vt.append("XR")
        if inloop and XTAG and sl == xuse2: vt.append("XR")
        if sl == b[nfull-1] + 4: lt.append(("LR", 1))
        if sl == b[n-1] + 4: lt.append(("LR", 0))
        if sl in bar_at:
            r = bar_at[sl]
            assert nw[r] == 4, ("P not written before barrier", r, sl)
            for q_ in ([1] if r == nfull-1 else []) + ([0] if r == n-1 else []): assert q_ in lwr, ("l not written", sl)
            A.need(vt, lt + [("PW", r), "LW"])
            A("s_barrier")
            bud -= COST['bar']
            for q_ in ([1] if r == nfull-1 else []) + ([0] if r == n-1 else []):
                LT[q_] = V_S[r % 2] + 8*q_
                for hf in range(2):
                    A.ds(f"ds_read_b128 v[{LT[q_]+hf*4}:{LT[q_]+hf*4+3}], v{vLR} offset:{LDS_L + q_*1024 + hf*16}", ("LR", q_)); bud -= 4
        else:
            A.need(vt, lt)
        if sl == b[nfull-1] + 4:
            extra += lsum(LT[1], XB+10 if XTAG else vLS)
            if XTAG: extra += [f"v_mov_b32 v{XB+j}, s61" for j in (3, 7, 11)]
        if sl == b[n-1] + 4: extra += lsum(LT[0], V_L)
        hasw = bool(pendw) and sl not in bar_at and not (sl + 1 in bar_at)
        nr = 0
        while nr < opt.get("maxr", 2) and len(A.lg) < 13:
            c_ = []
            if prq:
                r, kk, u, idx = prq[0]
                if sl >= b[r] - bl[r] and (r == 0 or sl >= pslot[(r-1, kk, u)]): c_.append((pslot[(r, kk, u)] - 5, "p"))
            if qrest: c_.append((qord.index(qrest[0]) - 6, "q"))
            if lvq:
                _, tblk, q, i = lvq[0]
                if (i < 2 or lv_last[tb[i-2][0]] + 1 < sl): c_.append((lv_use[tblk] - 8 + q, "lv"))
            if rvq:
                _, tblk, q, i = rvq[0]
                if (i < 2 or (tb[i-2][0], q) in rv_done): c_.append((lv_use[tblk] + 8 + 4*q, "rv"))
            if not c_: break
            d_, k_ = min(c_)
            if sl == lastw + 1 and d_ > sl - 2: break
            if nr >= 1 and d_ > sl + 1: break
            if hasw and d_ > sl + 1: break
            if d_ > sl + opt.get("rlead", 24): break
            if k_ == "p":
                r, kk, u, idx = prq.pop(0); rg = A_P + idx*4
                A.ds(f"ds_read_b128 a[{rg}:{rg+3}], v{vPR+kk//2-1} offset:{(r%NPB)*16384 + (u*2+kk%2)*1024}", ("PR", r, kk, u)); prdone.add((r, kk, u))
            elif k_ == "q": qread(qrest.pop(0))
            elif k_ == "lv": tread(lvq.pop(0), sl)
            else: tread(rvq.pop(0), sl)
            bud -= COST["r"]; nr += 1
        if hasw:
            r, f = pendw.pop(0); PO = V_PO[r % 2]
            A.ds(f"ds_write_b128 v{vPW}, v[{PO+4*f}:{PO+4*f+3}] offset:{(r%NPB)*16384 + f*1024}", ("PW", r)); bud -= COST["w"]; nw[r] += 1
            lastw = sl
        if pendl and pendl[0][0] <= sl:
            _, q_ = pendl.pop(0); lwr.add(q_)
            A.ds(f"ds_write_b64 v{vLW}, v[{V_LA+4*q_}:{V_LA+4*q_+1}] offset:{q_*1024}", "LW")
            A.ds(f"ds_write_b64 v{vLW}, v[{V_LA+4*q_+2}:{V_LA+4*q_+3}] offset:{q_*1024+512}", "LW"); bud -= 24
        if pendst and not hasw: emit_extra(pendst.pop(0)); bud -= opt.get("cst", 16)
        nxt_ = min([need_at[q_[0]] for q_ in (kl, vl) if q_ and (q_[0][1] < 4 or sl >= gate)] + [10**6]) - sl
        if not fb_done and not opt.get("fb0", 1) and sl >= opt.get("fbslot", 13) and (nxt_ >= opt.get("fbgap", 20) or sl >= opt.get("fbmax", 29)):
            fb_done.append(sl); assert sl < b[0]
            if not FBE:
                A("s_cmp_eq_u32 s3, 0\n s_cbranch_scc0 L_skip2\n s_barrier"); bud -= 42
                A.label("L_skip2")
            A.vmem(f"buffer_store_dword v{vTAG}, v{vFB}, s[24:27], s18 offen sc1", "FB"); bud -= 8
        elif sl == opt.get("tv", -5):
            A.vmem(f"buffer_load_dword v255, v{V_O0+2}, s[24:27], s37 offen sc1", "ST"); bud -= 8
        elif not pb_done and sl >= pollB_slot and (nxt_ >= opt.get("pollgap", 24) or sl >= chkB_slot - opt.get("pollmin", 18)):
            pb_done.append(sl)
            assert not late
            A.vmem(f"buffer_load_dword v{V_TMP}, v{vPB}, s[24:27], s60 offen sc1", "PB"); bud -= 8
            if not XSC1: A.vmem(f"buffer_load_dword v{V_TMP+1}, off, s[24:27], s37 sc1", "PB"); bud -= 8
        elif (kl or vl) and not hasw and sl not in bar_at:
            c_ = [q_[0] for q_ in (kl, vl) if q_ and ld_free(q_[0]) <= sl and need_at[q_[0]] - sl <= opt.get("maxlead", 60)]
            if c_:
                key = min(c_, key=lambda k: need_at[k])
                now = sum(max(32, c) for c in totcost)
                if pipe - now <= opt.get("qmax", 60) or need_at[key] - sl < opt.get("urg", 10):
                    (kl if key[0] == "K" else vl).pop(0)
                    ld(key); bud -= COST["l"]; ldlog.append((sl, key, need_at[key] - sl))
                    pipe = max(pipe, now) + (opt.get("kdur", 74) if key[0] == "K" else opt.get("vdur", 74))
        if sl == chkB_slot:
            A(f"v_cmp_eq_u32 vcc, s61, v{V_TMP}")
            if not XSC1: A(f"v_readfirstlane_b32 s37, v{V_TMP+1}")
            A(f"s_cmp_eq_u64 vcc, -1\n s_cbranch_scc0 L_bspin0")
            A.label("L_bok")
            OOL.label("L_bspin0"); OOL("s_mov_b32 s53, 0"); OOL.label("L_bspin")
            OOL(f"""
            buffer_load_dword v{V_TMP}, v{vPB}, s[24:27], s60 offen sc1
            s_add_u32 s53, s53, 1
            s_waitcnt vmcnt(0)
            v_cmp_eq_u32 vcc, s61, v{V_TMP}
            s_cmp_eq_u64 vcc, -1
            s_cbranch_scc1 L_bok
            s_cmp_lt_u32 s53, 0x100000
            s_cbranch_scc1 L_bspin
            s_branch L_bok
            """)
            A("s_mov_b32 s19, 0x4e800000")
            for x_ in late2: A(x_)
            bud -= 20
        if sl == opt.get("wbslot", -1):
            A("s_or_b32 s38, s35, s32\n s_cbranch_scc0 L_dowb"); A.label("L_nowb"); bud -= 8
            OOL.label("L_dowb"); OOL("buffer_wbl2 sc1\n s_branch L_nowb")
        if inloop and XTAG:
            if sl == send_slot:
                assert not extra
                stamp("send"); extra += tag_pack()
            if sl == xld_slot:
                assert not kl and not vl and all(lv_last[t[0]] + 1 < sl for t in tb) and sl > send_slot + 8
                tag_recv(A); bud -= 24
            if sl == opt.get("idslot", nslots - 8):
                A.ds(f"ds_read_b128 v[{XR}:{XR+3}], v{vPW} offset:{NPB*16384}", "ID")
                A.ds(f"ds_read_b128 v[{XR+4}:{XR+7}], v{vPW} offset:{NPB*16384+1024}", "ID"); bud -= 8
            if sl == xuse2:
                assert sl > b[n-1] + 4 and all(lv_last[t[0]] < sl for t in tb)
                stamp("xr")
                while extra: emit_extra(extra.pop(0)); bud -= 4
                tag_check(); bud -= 28; extra += tag_fin()
        elif inloop:
            if sl == send_slot:
                assert not extra
                stamp("send"); two_way(send_payload); bud -= 60
                if not XSC1: self_touch(); bud -= 8
            if sl == flag_slot:
                stamp("xack"); two_way(send_flag); bud -= 16
            if sl == xpoll_slot:
                A.vmem(f"buffer_load_dword v{V_TMP}, v{vXF}, s[24:27], s55 offen sc1", "XP"); bud -= 8
            if sl == xchk_slot:
                assert not kl and not vl and all(lv_last[t[0]] < sl for t in tb)
                stamp("xp"); xcheck(); recv_loads(); bud -= 50
            if sl == xuse_slot:
                assert sl > b[n-1] + 4
                stamp("xr"); extra += fin_pre()
        def vexp_step():
            nonlocal vi, vpart, bud
            key = vexp[vi]; src = V_VR + (key[1] % NVR)*8 + key[2]
            A(f"v_cvt_scalef32_pk_bf16_fp4 v{vereg[key]+vpart}, v{src}, 1.0 op_sel:[{vpart&1},{vpart>>1},0]")
            bud -= 4; vpart += 1
            if vpart == 4: vedone[key] = sl; vi += 1; vpart = 0
        def vexp_ok():
            if vi >= len(vexp): return False
            key = vexp[vi]; tag = ("VR", key[1], key[2]//4)
            return vefree[key] <= sl and tag not in A.vm and tag in issued
        def sm_next():
            nonlocal cur, ci
            while cur < n and ci >= len(items[cur]): cur += 1; ci = 0
            if cur >= n: return None
            kind, e, txt, info = items[cur][ci]
            if sl < sready[(cur, 0)]: return None
            if kind == "e" and e == 16 and sl < sready[(cur, 1)]: return None
            if kind == "c" and XTAG and cur == nfull + 1: assert not extra and not pendst and sl > send_slot + 4
            rate = min(opt.get("smrate", 0.7), (wend[cur] - sready[(cur, 0)]) / 33.0)
            return wend[cur] - (32 - e) * rate
        def sm_step():
            nonlocal ci, bud
            kind, e, txt, info = items[cur][ci]
            A(txt); bud -= COST[kind]; ci += 1
            if kind == "c" and e % 8 == 0: pendw.append((cur, e//8 - 1)); newm.append((cur, e//8 - 1))
        newm = []
        def fill():
          nonlocal bud
          while True:
            ds_ = sm_next(); dv = None
            if vi < len(vexp):
                dl = firstuse[vexp[vi]] - 2 - (3 - vpart) * 0.25
                if vexp_ok(): dv = dl
                elif firstuse[vexp[vi]] - sl <= 2:
                    A.need([("VR", vexp[vi][1], vexp[vi][2]//4)])
                    assert vexp_ok(), ("cannot expand in time", sl, vexp[vi])
                    dv = dl
            cands = [(d, k) for d, k in ((ds_, "s"), (dv, "v")) if d is not None]
            if extra:
                if inloop and sl < send_slot: dx = send_slot - 3
                elif inloop and XTAG and sl < send_slot + 8: dx = send_slot + (11 - len(extra)) * opt.get("packrate", 0.2)
                else: dx = sl + 3
                cands.append((dx, "x"))
            if late: cands.append((8, "t"))
            if late3 and nsolo and all(t_[1] >= nfull for t_ in lvq + rvq) and sl > chkB_slot: cands.append((b[nfull-1] + 8, "u"))
            if not cands: break
            d, k = min(cands)
            if d > sl:
                if bud <= 0: break
                if d > sl + opt.get("fitslack", 2) and k == "s" and COST[items[cur][ci][0]] > bud:
                    cands = [c for c in cands if c[1] != "s"]
                    if not cands: break
                    d, k = min(cands)
            if k == "s": sm_step()
            elif k == "v": vexp_step()
            elif k == "x":
                if isinstance(extra[0], tuple): pendst.append(extra.pop(0))
                else: emit_extra(extra.pop(0)); bud -= 4
            elif k == "u": A(late3.pop(0)); bud -= 4
            else: A(late.pop(0)); bud -= 4
        fill()
        mcost = 0
        if pendm:
            r_, f_ = pendm[0]; blk_, qt_ = rounds[r_][f_//2]; tag = ("RV", blk_, f_ % 2)
            if tag in tdone and tag not in A.lg:
                pendm.pop(0)
                la = V_LA + 4*qt_; rv_ = rvreg[blk_] + 4*(f_ % 2); po_ = V_PO[r_ % 2] + 4*f_
                A(f"v_mfma_f32_16x16x32_bf16 v[{la}:{la+3}], a[{rv_}:{rv_+3}], v[{po_}:{po_+3}], {'v[%d:%d]' % (la, la+3) if qt_ in seenL else '0'}")
                seenL.add(qt_)
                if f_ >= 2 or rounds[r_][0][0] != rounds[r_][1][0]: rv_done[(blk_, f_ % 2)] = sl
                if f_ == 3:
                    for q_ in ([1] if r_ == nfull-1 else []) + ([0] if r_ == n-1 else []): pendl.append((sl + 1, q_))
                b0 = bud; bud = opt.get("mbud", 8); fill(); mcost = max(16, 16 - bud); bud = min(b0, 0) - mcost
        pendm += newm
        totcost.append(32 - bud)
    assert not kl and not vl
    if opt.get("verbose"):
        print("fb", fb_done, "pb", pb_done, "loads", " ".join(f"{s_}:{k_[0]}{k_[1]}.{k_[2]}(+{d_})" for s_, k_, d_ in ldlog), file=sys.stderr)
        print("slot costs:", totcost, "sum:", sum(totcost), "sum max(32,c):", sum(max(32, c) for c in totcost), file=sys.stderr)
    stamp("loopend")
    for x_ in late3: A(x_)
    for x_ in extra: emit_extra(x_)
    if XTAG:
        if not inloop:
            for x_ in tag_pack(): emit_extra(x_)
        if not inloop or xld_slot >= nslots: A.need(["XS"]); tag_recv(A)
        if not inloop or xuse2 >= nslots:
            A.need(["XR"]); stamp("xr"); tag_check()
            for x_ in tag_fin(): A(x_)
    else:
        if not inloop:
            A("s_nop 7"); two_way(send_payload)
            if not XSC1: self_touch()
        if not inloop or flag_slot >= nslots: A.need(["XS"]); two_way(send_flag)
        if not inloop or xpoll_slot >= nslots: A.vmem(f"buffer_load_dword v{V_TMP}, v{vXF}, s[24:27], s55 offen sc1", "XP")
        if not inloop or xchk_slot >= nslots: A.need(["XP"]); xcheck(); recv_loads()
        if not inloop or xuse_slot >= nslots:
            A.need(["XR"]); stamp("xr")
            for x_ in fin_pre(): A(x_)
    assert XTAG and OARCH and inloop
    A.need(ltags=["ID"])
    A(f"v_mfma_f32_32x32x16_bf16 {oreg(0)}, v[{XR}:{XR+3}], v[{XL}:{XL+3}], {oreg(0)}")
    A(f"v_rcp_f32 v{V_TMP}, v{V_L}\n v_cmp_lt_f32 vcc, 0x30800000, v{V_L}\n v_cmp_gt_f32 s[52:53], s19, v{V_L}")
    A(f"v_mfma_f32_32x32x16_bf16 {oreg(0)}, v[{XR+4}:{XR+7}], v[{XL+4}:{XL+7}], {oreg(0)}")
    if not opt.get("noslow"): A("s_and_b64 vcc, vcc, s[52:53]\n s_cmp_eq_u64 vcc, -1\n s_cbranch_scc0 L_slow")
    pk = V_PO[0]
    A("s_add_u32 s38, s56, 4096")
    A.label("L_pack")
    OT = opt.get("otr", 1)
    for bq in range(4):
        for a_ in range(4): A(f"v_mul_f32 v{XR+4*a_+bq}, v{V_O0+4*a_+bq}, v{V_TMP}")
        A(f"v_cvt_pk_bf16_f32 v{pk+2*bq}, v{XR+bq}, v{XR+4+bq}")
        A(f"v_cvt_pk_bf16_f32 v{pk+2*bq+1}, v{XR+8+bq}, v{XR+12+bq}")
        if bq == 1:
            if OT: A(f"ds_write_b128 v{vOW}, v[{pk}:{pk+3}] offset:{LDS_Q}")
            else: A(f"buffer_store_dwordx4 v[{pk}:{pk+3}], v{vOUT}, s[28:31], s56 offen {opt.get('ofl','')}")
    if OT:
        A(f"""
        ds_write_b128 v{vOW}, v[{pk+4}:{pk+7}] offset:{LDS_Q+16}
        ds_read_b128 v[{pk+8}:{pk+11}], v{vOR} offset:{LDS_Q}
        ds_read_b128 v[{pk+12}:{pk+15}], v{vOR} offset:{LDS_Q+1280}
        s_waitcnt lgkmcnt(1)
        buffer_store_dwordx4 v[{pk+8}:{pk+11}], v{vOUT}, s[28:31], s56 offen {opt.get('ofl','')}
        s_waitcnt lgkmcnt(0)
        buffer_store_dwordx4 v[{pk+12}:{pk+15}], v{vOUT}, s[28:31], s38 offen {opt.get('ofl','')}
        """)
    else:
        A(f"buffer_store_dwordx4 v[{pk+4}:{pk+7}], v{vOUT}, s[28:31], s56 offen offset:16 {opt.get('ofl','')}")
    A(f"""
    s_and_b32 s52, s57, 63
    s_cbranch_scc1 L_nobump
    s_add_u32 s52, s39, 1
    s_lshl_b32 s53, s33, 7
    v_mov_b32 v{V_TMP}, s52
    buffer_store_dword v{V_TMP}, v{vFB}, s[24:27], s53 offen
    """)
    A.label("L_nobump")
    if st:
        A("s_waitcnt vmcnt(0)")
        stamp("end")
        A(("" if rtdone else "s_memrealtime s[98:99]\n") + "s_waitcnt lgkmcnt(0)")
        A(f"s_lshl_b32 s50, s2, 2\n s_add_u32 s50, s50, s32\n s_lshl_b32 s51, s50, 7\n s_add_u32 s51, s51, {ST_OFF}")
        A("s_mov_b64 exec, 1")
        open("stampnames.txt", "w").write(" ".join(stl))
        for i in range(len(stl)):
            A(f"v_mov_b32 v10, s{64+2*i}\n v_mov_b32 v11, s{65+2*i}\n buffer_store_dwordx2 v[10:11], off, s[24:27], s51 offset:{8*i}\n s_nop 1")
        A(f"s_lshl_b32 s50, s50, 4\n s_add_u32 s50, s50, {RT_OFF}")
        A(f"v_mov_b32 v24, s96\n v_mov_b32 v25, s97\n v_mov_b32 v26, s98\n v_mov_b32 v27, s99\n buffer_store_dwordx4 v[24:27], off, s[24:27], s50")
    A.label("L_end")
    A("s_endpgm")
    S = OOL
    S.label("L_slow")
    S(f"""
    s_waitcnt vmcnt(0) lgkmcnt(0)
    s_mul_i32 s40, s33, {64*TILE}
    s_add_u32 s40, s40, {RB}
    v_add_u32 v{vK1}, 0x1000, v{vX}
    v_mov_b32 v40, 0xff800000
    s_mov_b32 s41, s40
    s_mov_b32 s42, 0
    """)
    def slow_qk():
        for s in range(8): S(f"buffer_load_dwordx4 a[{64+4*s}:{67+4*s}], v{vX if s < 4 else vK1}, s[24:27], s41 offen offset:{(s%4)*1024} sc1")
        S("s_waitcnt vmcnt(0)")
        for s in range(8): S(f"v_mfma_f32_32x32x16_bf16 v[24:39], a[{64+4*s}:{67+4*s}], a[{4*s}:{4*s+3}], {'0' if s == 0 else 'v[24:39]'}")
        S("s_nop 15")
    S.label("L_slow1")
    slow_qk()
    for i in range(8): S(f"v_max3_f32 v40, v{24+2*i}, v{25+2*i}, v40")
    S(f"""
    s_add_u32 s41, s41, {TILE}
    s_add_u32 s42, s42, 1
    s_cmp_lt_u32 s42, 64
    s_cbranch_scc1 L_slow1
    v_mov_b32 v41, v40
    s_nop 1
    v_permlane32_swap_b32 v40, v41
    v_max_f32 v40, v40, v41
    v_mov_b32 v42, 0
    v_and_b32 v43, 7, v{vLANE}
    v_bfe_u32 v44, v{vLANE}, 3, 2
    v_lshl_add_u32 v43, v43, 2, v44
    v_lshl_add_u32 v43, v{vW}, 5, v43
    v_lshlrev_b32 v43, 2, v43
    v_lshrrev_b32 v44, 5, v{vLANE}
    s_lshl_b32 s52, s33, 11
    v_lshl_add_u32 v44, v44, 2, s52
    v_lshl_add_u32 v43, v44, 9, v43
    v_lshlrev_b32 v44, 1, v44
    s_mov_b32 s41, s40
    s_mov_b32 s42, 0
    """)
    for i in range(16): S(f"v_mov_b32 v{V_O0+i}, 0")
    S.label("L_slow2")
    for g in range(4):
        S(f"global_load_dwordx2 v[{64+2*g}:{65+2*g}], v44, s[14:15] offset:{16*g}")
        S(f"global_load_dwordx2 v[{72+2*g}:{73+2*g}], v44, s[16:17] offset:{16*g}")
        for b_ in range(4): S(f"global_load_dword v{48+4*g+b_}, v43, s[12:13] offset:{512*b_}")
        S("v_add_u32 v43, 0x1000, v43")
    S("v_add_u32 v44, 64, v44")
    slow_qk()
    for i in range(16): S(f"v_sub_f32 v{24+i}, v{24+i}, v40")
    for i in range(16): S(f"v_exp_f32 v{24+i}, v{24+i}")
    for i in range(16): S(f"v_add_f32 v42, v42, v{24+i}")
    for i in range(8): S(f"v_cvt_pk_bf16_f32 v{80+i}, v{24+2*i}, v{25+2*i}")
    for i in range(8):
        S(f"""
        v_cvt_f32_i32 v{48+2*i}, v{48+2*i}
        v_cvt_f32_i32 v{49+2*i}, v{49+2*i}
        v_lshlrev_b32 v45, 16, v{72+i}
        v_and_b32 v46, 0xffff0000, v{72+i}
        v_sub_f32 v{48+2*i}, v{48+2*i}, v45
        v_sub_f32 v{49+2*i}, v{49+2*i}, v46
        v_lshlrev_b32 v45, 16, v{64+i}
        v_and_b32 v46, 0xffff0000, v{64+i}
        v_mul_f32 v{48+2*i}, v{48+2*i}, v45
        v_mul_f32 v{49+2*i}, v{49+2*i}, v46
        v_cvt_pk_bf16_f32 v{88+i}, v{48+2*i}, v{49+2*i}
        """)
    S(f"""
    s_nop 1
    v_mfma_f32_32x32x16_bf16 v[{V_O0}:{V_O0+15}], v[88:91], v[80:83], v[{V_O0}:{V_O0+15}]
    v_mfma_f32_32x32x16_bf16 v[{V_O0}:{V_O0+15}], v[92:95], v[84:87], v[{V_O0}:{V_O0+15}]
    s_add_u32 s41, s41, {TILE}
    s_add_u32 s42, s42, 1
    s_cmp_lt_u32 s42, 64
    s_cbranch_scc1 L_slow2
    v_mov_b32 v41, v42
    s_nop 15
    v_permlane32_swap_b32 v42, v41
    v_add_f32 v42, v42, v41
    v_rcp_f32 v{V_TMP}, v42
    s_add_u32 s38, s56, 4096
    s_branch L_pack
    """)
    o = [HEADER, f"; @launch grid=(256,1,1) block=(256,1,1) lds={opt.get('lds', LDS_BYTES)}\n", TARGET, A.text() + OOL.text(),
         f".fill 2048, 4, 0xBF800000\nL_textend:\n.if (L_textend - {KN}) < 24704\n.error \"code prefetch would run past the end of the section\"\n.endif\n", kd(KN, 512, sgpr=102, accum=256)]
    if opt.get("rep"):
        import reporter
        o[1] = f"; @launch kernel={KN} grid=(256,1,1) block=(256,1,1) lds={LDS_BYTES}\n; @launch kernel=rep_kernel grid=(1,1,1) block=(64,1,1) lds=0\n"
        o[4] = o[4] + reporter.text(opt["rep"], RT_OFF, ST_OFF, opt.get("repi", 0), opt.get("repk", 20))
        o.append(kd("rep_kernel", 32))
    return "".join(o)

if __name__ == "__main__":
    opt = {}
    out = sys.argv[1]
    for a_ in sys.argv[2:]:
        k, v = a_.split("=")
        try: v = int(v)
        except:
            try: v = float(v)
            except: pass
        opt[k] = v
    opt.setdefault("pad", 1536); opt.setdefault("ihook", 3); opt.setdefault("chk", 76)
    import hazcheck, subprocess, re, os
    t, n = hazcheck.fix(gen(opt))
    if opt.get("abl"):
        L_ = t.split("\n"); o_ = []; nm = -1
        for ln in L_:
            if "v_mfma_f32_32" in ln: nm += 1
            if 64 <= nm < 192 and any(re.search(rx, ln) for rx in opt["abl"].split("+")): continue
            o_.append(ln)
        t = "\n".join(o_)
    if opt.get("ihook"):
        sys.path.insert(0, "cdna_kernels")
        import cdna_launch as cl
        lines = t.split("\n")
        go = lines.index("L_go:"); endl = lines.index("L_pack:")
        for h in range(opt["ihook"]):
            probe = list(lines)
            for i in range(go + 1, endl):
                if probe[i].strip() and not probe[i].endswith(":"): probe[i] = f"LP_{i}:\n" + probe[i]
            txt = "\n".join(probe)
            for k in range(h, opt["ihook"]): txt = txt.replace("L_end:", f"L_hook{k}:\nL_end:")
            open("_p.s", "w").write(cl.with_harness_metadata(txt, KN, 14, launch_lists=True))
            subprocess.run(["clang", "-x", "assembler", "-target", "amdgcn-amd-amdhsa", "-mcpu=gfx950", "-c", "_p.s", "-o", "_p.o"], check=True)
            assert opt.get("pad") is not None
            sy = subprocess.run(["llvm-objdump", "-t", "_p.o"], capture_output=True, text=True).stdout
            ad = sorted((int(m.group(1), 16) + opt.get("textva", 0), int(m.group(2))) for m in re.finditer(r"^([0-9a-f]+) .* LP_(\d+)$", sy, re.M))
            page = ad[0][0] // 4096 + 1 + h
            cand = [i for a_, i in ad if a_ >= page * 4096 + opt.get("hookoff", 0)]
            if not cand:
                lines.insert(lines.index("L_end:") + 2, f"L_hook{h}:\n  s_branch L_warmed"); continue
            lines.insert(cand[0], f"L_hook{h}:"); lines.insert(cand[0] + 1, "  s_cbranch_execz L_warmed"); endl += 2
        t = "\n".join(lines)
    print("nops inserted:", n)
    open(out, "w").write(t)
```

```python
import sys, math, struct
from asmlib import *
from gen1 import Asm, f2u

KN = NAME + "_kernel"
TILE = 10240
BLK = 4 * TILE
RA = 1 << 20
RB = 4 << 20
X_OFF = 8 << 20
FA_OFF = 4096
FB_OFF = 8192
ST_OFF = 16 << 20
RT_OFF = 17 << 20
SCALE = math.log2(math.e) / math.sqrt(128.0)

LDS_K = 0
LDS_L = 9216
LDS_Q = LDS_L + 2048
LDS_T = LDS_Q + 16896
LDS_R = LDS_T + 8192
LDS_P = 49152
NPB = 3
LDS_BYTES = LDS_P + (NPB + 1) * 16384
assert LDS_R + 12288 <= LDS_P

vT3, vW, vLANE, vK0, vK1, vV, vPW, vPR, vT, vLW, vLR, vOUT, vX, vT2 = 0, 1, 2, 3, 4, 5, 9, 10, 13, 14, 15, 16, 17, 18
vFB, V_L, V_TMP = 19, 20, 22
vOW, vOR = 7, 8
V_S = [24, 56]
V_PO = [88, 104]
COST = dict(l=8, r=6, w=24, e=8, a=4, c=4, bar=42)
A_Q = 0
A_K = [64, 96, 128]
A_P = 160
A_O = 208

HEADER = """; Fused attention over a 2-bit KV cache (dequant + RoPE + softmax(QK^T)V), gfx950, one launch.
"""
def bitop(fn): return fn(0xF0, 0xCC, 0xAA) & 0xFF

def gen(opt):
    for k_ in ("l", "r", "w", "bar"):
        if "c" + k_ in opt: COST[k_] = opt["c" + k_]
    A = Asm()
    OOL = Asm()
    st = opt.get("stamps")
    stl = []; rtdone = []
    stsel = set(opt.get("st", "start,karg,issued,pre,ks,kconv,stored,mid,ackA,bar1,flagsA,mfma0,slot96,slot192,loopend,end").split(","))
    def stamp(name):
        if st and opt.get("rtst") == name and not rtdone:
            rtdone.append(1); A("s_memrealtime s[98:99]")
        if st and opt.get("rtst0") == name: A("s_memrealtime s[96:97]")
        if st and name in stsel and name not in stl:
            i = len(stl); stl.append(name); assert i < 16
            A(f"s_memtime s[{64+2*i}:{65+2*i}]")
    NVR = opt.get("nvr", 4 if opt.get("xtag", 1) else 3); NVE = opt.get("nve", 7); OARCH = opt.get("oarch", 1)
    V_VR = 120; V_VE = V_VR + NVR*8
    V_LV = [V_VE + NVE*4, V_VE + NVE*4 + 16]; V_RV = [V_LV[1] + 16, V_LV[1] + 24]
    V_O1 = V_RV[0]; A_RV = [A_O, A_O + 8]
    V_LA = V_RV[1] + 8
    V_O0 = V_LA + 8
    vR, vR2, vR3 = V_L + 1, vPR + 3 + 100, 0
    V_END = V_O0 + (16 if OARCH else 0)
    vR2, vR3 = V_END, V_END + 1; V_END += 2
    if opt.get("xtag", 1):
        assert V_END <= 256 and OARCH
        vTAG, vPA, vPB = V_O0, V_O0+1, V_L
        vXF = vXL = vXT = vLS = None
    else:
        assert V_END + 8 <= 256, V_END
        vTAG, vPB, vXF, vXL, vXT, vPA, vLS = V_END, V_END+1, V_END+2, V_END+3, V_END+4, V_END+5, V_END+6
    assert opt.get("p32", 1)
    nfull = opt.get("nfull", 6); nsolo = 16 - 2*nfull; nblk = nfull + nsolo
    rounds = [[(r, 0), (r, 1)] for r in range(nfull)] + [[(nfull + 2*i, 0), (nfull + 2*i + 1, 0)] for i in range(nsolo//2)]
    n = len(rounds)
    nt = opt.get("ntfl", "")
    XTAG = opt.get("xtag", 1)
    XSC1 = opt.get("xsc1", 0) or XTAG
    if opt.get("pad") is not None:
        A.raw(f".text\n.p2align 12\n.fill {opt['pad']//4}, 4, 0xBF800000\n")
    A.raw(head(KN))
    A(f"""
    s_load_dwordx16 s[4:19], s[0:1], 0
    s_getpc_b64 s[60:61]
    v_lshlrev_b32 v64, {opt.get("cpfs", 5)}, v0
    """)
    A.vmem("global_load_dword v255, v64, s[60:61]", "cpf")
    A("s_cmpk_ge_u32 s2, 256\n s_cbranch_scc1 L_end")
    stamp("start")
    if st: A("s_memrealtime s[96:97]")
    def a_v():
        A(f"""
        s_and_b32 s3, s57, 1
        s_mul_i32 s3, s3, {256 - 16384}
        v_bfe_u32 v64, v0, 4, 2
        v_lshl_add_u32 v29, v64, 12, v29
        v_bfe_u32 v64, v0, 3, 1
        v_lshl_add_u32 v29, v64, 14, v29
        v_bfe_u32 v64, v0, 6, 1
        v_lshl_add_u32 v29, v64, 11, v29
        v_and_b32 v64, 128, v0
        v_add3_u32 v29, v29, v64, s3
        """)
    A(f"""
    s_and_b32 s52, s2, 7
    s_lshr_b32 s35, s2, 3
    s_lshl_b32 s57, s52, 5
    s_or_b32 s57, s57, s35
    s_lshl_b32 s53, s57, 14
    v_and_b32 v25, 7, v0
    v_lshrrev_b32 v26, 3, v0
    v_lshl_add_u32 v29, v25, 4, s53
    v_lshl_add_u32 v28, v26, 9, v29
    """)
    if opt.get("vpre"): a_v()
    A("s_waitcnt lgkmcnt(0)")
    stamp("karg")
    def l_ts0():
        A("s_and_b32 s3, s53, 0x3000\n v_lshl_add_u32 v70, v0, 4, s3")
        A.vmem(f"global_load_dwordx4 v[88:91], v70, s[14:15]", "TS")
        A.vmem(f"global_load_dwordx4 v[92:95], v70, s[16:17]", "TS")
    for i in range(4):
        A.vmem(f"global_load_dwordx4 v[{32+4*i}:{35+4*i}], v28, s[6:7] offset:{128*i} {nt}", "KR")
    A("s_load_dwordx2 s[22:23], s[0:1], 104\n s_load_dwordx2 s[20:21], s[0:1], 88\n s_lshl_b32 s53, s57, 6\n v_lshl_add_u32 v27, v26, 1, s53")
    A.vmem(f"global_load_ushort v30, v27, s[8:9] {nt}", "KR")
    A.vmem(f"global_load_ushort v31, v27, s[10:11] {nt}", "KR")
    if opt.get("tse", 1) == 1: l_ts0()
    def l_v():
        if not opt.get("vpre"): a_v()
        for m in range(4):
            A.vmem(f"global_load_dwordx4 v[{48+4*m}:{51+4*m}], v29, s[12:13] offset:{512*m} {nt}", "VRAW")
    if not opt.get("vlate"): l_v()
    if opt.get("tse", 1) == 2: l_ts0()
    A(f"""
    v_lshrrev_b32 v{vW}, 6, v0
    v_and_b32 v24, 7, v26
    v_readfirstlane_b32 s32, v{vW}
    v_and_b32 v{vLANE}, 63, v0
    s_lshr_b32 s33, s52, 1
    s_lshl_b32 s53, s33, 7
    s_waitcnt lgkmcnt(0)
    s_load_dword s39, s[22:23], s53
    s_and_b32 s34, s52, 1
    s_lshl_b32 s59, s52, 8
    s_add_u32 s59, s59, {FA_OFF}
    s_and_b32 s36, s35, 1
    s_mov_b32 s24, s22
    s_and_b32 s25, s23, 0xffff
    s_mov_b32 s26, 0x10000000
    s_mov_b32 s27, 0x20000
    s_mul_i32 s37, s57, {TILE}
    s_add_u32 s37, s37, {RB}
    s_lshl_b32 s54, s2, 2
    s_add_u32 s54, s54, s32
    s_lshl_b32 s54, s54, 13
    s_add_u32 s54, s54, {X_OFF}
    """)
    stamp("issued")
    KF = -math.log2(10000.0) / 64
    def trig(idx, mul, pos, nn, t, P1, P2):
        A(f"""
        v_cvt_f32_u32 v{t}, v{idx}
        v_mul_f32 v{t}, {hex(f2u(KF*mul))}, v{t}
        v_exp_f32 v{t}, v{t}
        v_cvt_f32_u32 v{t+1}, v{pos}
        v_mul_f32 v{t}, v{t}, v{t+1}
        """)
        cst = [10000.0 ** (-(j % (nn//2) + 32*(j // (nn//2))) / 64.0) / (2*math.pi) for j in range(nn)]
        A(f"v_mul_f32 v{P2}, {hex(f2u(cst[0]))}, v{t}")
        for j in range(nn):
            A(f"v_cos_f32 v{t+2+2*(j%2)}, v{P2+j}")
            if j + 1 < nn: A(f"v_mul_f32 v{P2+j+1}, {hex(f2u(cst[j+1]))}, v{t}")
            if j: A(f"v_cvt_pk_bf16_f32 v{P1+j-1}, v{t+2+2*((j-1)%2)}, v{t+3+2*((j-1)%2)}")
            A(f"v_sin_f32 v{t+3+2*(j%2)}, v{P2+j}")
            if j: A(f"v_cvt_pk_bf16_f32 v{P2+j-1}, v{t+3+2*((j-1)%2)}, v{t+2+2*((j-1)%2)}")
        j = nn - 1
        A(f"v_cvt_pk_bf16_f32 v{P1+j}, v{t+2+2*(j%2)}, v{t+3+2*(j%2)}")
        A(f"v_cvt_pk_bf16_f32 v{P2+j}, v{t+3+2*(j%2)}, v{t+2+2*(j%2)}")
    KP1, KP2, QP1, QP2 = 96, 104, 112, 128
    def w_trigK():
        A("v_bfe_u32 v150, v27, 1, 11")
        trig(25, 4, 150, 8, 144, KP1, KP2)
    def w_kaddr():
        A(f"""
        v_mul_u32_u24 v173, 144, v26
        v_lshl_add_u32 v173, v25, 4, v173
        v_lshl_add_u32 v174, v{vW}, 3, v25
        v_mul_u32_u24 v172, 144, v174
        v_lshl_add_u32 v172, v24, 4, v172
        v_lshlrev_b32 v174, 4, v174
        v_lshl_add_u32 v174, v24, 9, v174
        v_add_u32 v175, 0x1000, v174
        v_lshrrev_b32 v176, 4, v0
        v_xor_b32 v177, v176, v0
        v_lshl_add_u32 v176, v176, 3, v25
        v_bfe_u32 v177, v177, 3, 1
        v_lshlrev_b32 v176, 4, v176
        v_lshl_add_u32 v176, v177, 29, v176
        v_add_u32 v176, 0x2000, v176
        v_bfe_i32 v177, v0, 4, 1
        v_and_b32 v177, 0x02020202, v177
        v_or_b32 v177, 0x05040100, v177
        v_mov_b32 v178, 0x11111111
        """)
    def l_pt():
        A.vmem("buffer_load_dword v254, off, s[24:27], s59", "PT")
    def l_cpf2():
        NCL = opt.get("ncl", 128)
        A(f"""
        v_min_u32 v64, {NCL//32 - 1}, v{vLANE}
        v_lshl_add_u32 v64, v64, 2, v{vW}
        s_and_b32 s53, s35, 7
        s_add_u32 s53, s53, {2 << opt.get('cpfs', 5)}
        v_lshl_add_u32 v64, v64, 3, s53
        v_lshlrev_b32 v64, 7, v64
        """)
        A.vmem(f"global_load_dword v255, v64, s[60:61]", "cpf")
    def w_qaddr():
        A(f"""
        s_lshr_b32 s52, s32, 1
        s_xor_b32 s53, s57, s52
        s_lshl_b32 s53, s53, 5
        v_bfe_u32 v66, v0, 2, 5
        v_and_b32 v71, 3, v0
        v_add_u32 v67, s53, v66
        v_lshlrev_b32 v68, 8, v67
        v_lshl_add_u32 v68, v71, 4, v68
        v_and_b32 v67, 2047, v67
        s_mul_i32 s52, s52, 8448
        v_mul_u32_u24 v180, 1056, v71
        v_lshl_add_u32 v180, v66, 4, v180
        v_add_u32 v180, s52, v180
        """)
    QS2 = opt.get("qs", 0)
    def l_q():
        if QS2: A("s_lshl_b32 s52, s36, 7\n v_add_u32 v68, s52, v68")
        for k in range(0 if opt.get("noq") else (2 if QS2 else 4)):
            A.vmem(f"global_load_dwordx4 v[{72+4*k}:{75+4*k}], v68, s[4:5] offset:{64*k} {opt.get('qfl', '')}", "QR")
    def l_q2():
        A("v_xor_b32 v68, 128, v68")
        for k in range(2):
            A.vmem(f"global_load_dwordx4 v[{80+4*k}:{83+4*k}], v68, s[4:5] offset:{64*k}", "QR")
    def l_ts():
        A("s_lshl_b32 s53, s33, 12\n v_lshl_add_u32 v70, v0, 4, s53")
        A.vmem(f"global_load_dwordx4 v[88:91], v70, s[14:15]", "TS")
        A.vmem(f"global_load_dwordx4 v[92:95], v70, s[16:17]", "TS")
    def w_trigQ():
        trig(71, 8, 67, 16, 144, QP1, QP2)
    def w_blk():
        A(f"""
        s_lshl_b32 s52, s34, 3
        s_lshl_b32 s53, s36, 2
        s_add_u32 s18, s52, s53
        s_xor_b32 s52, s52, 8
        s_mul_i32 s53, s36, {nfull-4}
        s_add_u32 s19, s52, s53
        s_add_u32 s3, s52, {2*(nfull-4)}
        v_lshlrev_b32 v179, 5, v0
        v_lshrrev_b32 v171, 1, v0
        v_mul_u32_u24 v171, 96, v171
        v_and_b32 v170, 1, v0
        v_lshl_add_u32 v171, v170, 3, v171
        v_add_u32 v171, {LDS_R}, v171
        v_bfe_u32 v157, v0, 4, 1
        v_bfe_u32 v158, v0, 1, 3
        v_cmp_eq_u32 vcc, v157, v158
        v_bfe_u32 v157, v0, 5, 3
        v_and_b32 v158, 1, v157
        v_cndmask_b32 v170, 2, v170, vcc
        v_mul_u32_u24 v158, 48, v158
        v_lshl_add_u32 v158, v170, 4, v158
        v_mul_u32_u24 v157, 192, v{vW}
        v_add_u32 v158, v158, v157
        s_mul_i32 s52, s18, 768
        v_add_u32 v{vR}, s52, v158
        s_mul_i32 s52, s19, 768
        v_add_u32 v{vR2}, s52, v158
        s_mul_i32 s52, s3, 768
        v_add_u32 v{vR3}, s52, v158
        v_lshrrev_b32 v151, 5, v{vLANE}
        v_lshlrev_b32 v152, 4, v151
        v_lshl_add_u32 v152, v{vW}, 7, v152
        s_lshl_b32 s52, s18, 9
        v_add_u32 v{vT}, s52, v152
        s_lshl_b32 s52, s19, 9
        v_add_u32 v{vT2}, s52, v152
        v_cmp_eq_u32 vcc, 0, v0
        s_lshl_b32 s52, s33, 4
        """)
        for src, reg, b0, b1 in (("s18", RB if opt.get("noa", 1) else RA, 0, 4), ("s19", RB, 4, nfull), ("s3", RB, nfull, nblk)):
            if b1 > b0:
                A(f"s_add_u32 s53, s52, {src}\n s_mul_i32 s53, s53, {BLK}")
                for b_ in range(b0, b1): A(f"s_add_u32 s{42+b_}, s53, {reg + (b_-b0)*BLK}")
        A(f"""
        v_bfrev_b32 v153, 4
        v_cndmask_b32 v{vFB}, v153, 0, vcc
        {"v_and_b32 v154, 31, v%d" % vLANE if opt.get("p32", 1) else "s_lshl_b32 s53, s36, 6"}
        {"v_lshlrev_b32 v%d, 2, v154" % vPA if opt.get("p32", 1) else "v_and_b32 v154, 15, v%d" % vLANE}
        {"" if opt.get("p32", 1) else "v_lshl_add_u32 v%d, v154, 2, s53" % vPA}
        v_lshlrev_b32 v{vX}, 4, v{vLANE}
        v_lshl_add_u32 v23, v151, 4, v{vX}
        s_mul_i32 s52, s32, {TILE}
        v_add_u32 v{vK0}, s52, v{vX}
        v_add_u32 v{vK1}, 0x1000, v{vK0}
        s_getreg_b32 s41, hwreg(HW_REG_XCC_ID, 0, 4)
        """)
    def w_vaddr():
        A(f"""
        s_lshr_b32 s52, s32, 1
        s_and_b32 s53, s32, 1
        s_lshl_b32 s53, s53, 10
        s_add_u32 s53, s53, 8192
        s_mul_i32 s38, s52, {3*TILE}
        s_add_u32 s38, s38, s53
        v_add_u32 v{vV}, s38, v{vX}
        s_mul_i32 s38, s52, {-TILE}
        s_add_u32 s38, s38, {2*TILE}
        s_add_u32 s38, s38, s53
        v_add_u32 v{vV+1}, s38, v{vX}
        v_lshl_add_u32 v{vPW}, v{vW}, 12, v{vX}
        v_add_u32 v{vPW}, {LDS_P}, v{vPW}
        v_xor_b32 v{vPW+1}, 0x1000, v{vPW}
        v_xor_b32 v{vPW+2}, 0x2000, v{vPW}
        v_xor_b32 v{vPW+3}, 0x3000, v{vPW}
        """)
    late = []
    late2 = []; late3 = []
    def w_late():
        L_ = f"""
        s_xor_b32 s38, s34, 1
        s_lshl_b32 s38, s38, 11
        v_and_b32 v{vPB}, {31 if opt.get("chk") else 7}, v{vLANE}
        {"" if opt.get("chk") else "v_lshl_add_u32 v%d, v%d, 3, v%d" % (vPB, vW, vPB)}
        v_lshl_add_u32 v{vPB}, v{vPB}, 6, s38
        v_and_b32 v{vLR}, 31, v{vLANE}
        v_lshlrev_b32 v{vLR}, 5, v{vLR}
        v_lshlrev_b32 v{vLW}, 5, v{vLANE}
        v_lshl_add_u32 v{vLW}, v{vW}, 3, v{vLW}
        v_cmp_gt_u32 vcc, 16, v{vLANE}
        v_add_u32 v{V_TMP}, {LDS_L}, v{vLW}
        s_nop 0
        v_cndmask_b32 v{vLW}, v{vLW}, v{V_TMP}, vcc
        s_sub_u32 s38, 2, s36
        s_mul_i32 s38, s38, {(nfull-4)*512}
        v_add_u32 v{vT3}, s38, v{vT2}
        s_xor_b32 s55, s54, 0x40000
        s_lshl_b32 s56, s57, 13
        s_lshl_b32 s38, s32, 6
        s_add_u32 s56, s56, s38
        s_mov_b32 s28, s20
        s_and_b32 s29, s21, 0xffff
        s_mov_b32 s30, 0x200000
        s_mov_b32 s31, 0x20000
        """
        if not XTAG: L_ += f"""
        s_xor_b32 s37, s35, 1
        s_lshl_b32 s37, s37, 2
        s_add_u32 s37, s37, s59
        v_lshrrev_b32 v{vXL}, 3, v{vLR}
        v_add_u32 v{vXL}, 4096, v{vXL}
        v_mov_b32 v{vXF}, 4352
        v_min_u32 v{vXT}, 32, v{vLANE}
        v_lshlrev_b32 v{vXT}, 7, v{vXT}
        """
        late.extend(x.strip() for x in L_.split("\n") if x.strip())
        late.extend([f"v_and_b32 v{vOW}, 31, v{vLANE}", f"v_lshl_add_u32 v{vOW}, v{vW}, 5, v{vOW}", f"v_mul_u32_u24 v{vOW}, 80, v{vOW}",
                     f"v_and_b32 v{V_TMP}, 32, v{vLANE}", f"v_add_u32 v{vOW}, v{vOW}, v{V_TMP}",
                     f"v_lshrrev_b32 v{vOUT}, 2, v{vLANE}", f"v_lshl_add_u32 v{vOR}, v{vW}, 5, v{vOUT}", f"v_mul_u32_u24 v{vOR}, 80, v{vOR}",
                     f"v_and_b32 v{V_TMP}, 48, v{vX}", f"v_add_u32 v{vOR}, v{vOR}, v{V_TMP}", f"v_lshl_add_u32 v{vOUT}, v{vOUT}, 8, v{V_TMP}"])
    def w_tables():
        A.need(["TS"])
        x = 184
        for k in range(4):
            A(f"v_lshlrev_b32 v{x+2*k}, 16, v{88+k}\n v_and_b32 v{x+2*k+1}, 0xffff0000, v{88+k}")
        A("s_mov_b32 s52, 0x3fc03fc0")
        ex = ["v_xor_b32 v92, s52, v92", "v_xor_b32 v93, s52, v93", "v_xor_b32 v94, s52, v94", "v_xor_b32 v95, s52, v95",
              "v_or3_b32 v92, v92, v93, v94", "v_or_b32 v92, v92, v95", "v_mov_b32 v95, 0x7fc00000", "v_cmp_eq_u32 s[52:53], 0, v92"]
        for k in range(8): A(f"v_log_f32 v{192+k}, v{x+k}\n {ex[k]}")
        ex = ["v_max3_f32 v93, |v192|, |v193|, |v194|", "v_max3_f32 v94, |v195|, |v196|, |v197|", "v_max3_f32 v93, |v198|, |v199|, v93", "v_max_f32 v93, v93, v94",
              "v_cmp_gt_f32 vcc, 0x41f00000, v93", "s_nop 0", "s_and_b64 vcc, vcc, s[52:53]", "s_nop 0"]
        A(f"v_rcp_f32 v200, v{x}")
        A.ds(f"ds_write_b128 v179, v[192:195] offset:{LDS_T}", "QW"); A.ds(f"ds_write_b128 v179, v[196:199] offset:{LDS_T+16}", "QW")
        for k in range(1, 8): A(f"{ex[k-1]}\n v_rcp_f32 v{200+k}, v{x+k}")
        A("v_cndmask_b32 v200, v95, v200, vcc")
        for k in range(4): A(f"v_cvt_pk_bf16_f32 v{184+k}, v{200+2*k}, v{201+2*k}")
        A("v_mov_b32 v92, 0\n v_mov_b32 v93, 0")
        for k in range(4):
            A(f"v_lshlrev_b32 v94, 16, v{184+k}\n v_and_b32 v95, 0xffff0000, v{184+k}\n v_sub_f32 v94, v{200+2*k}, v94\n v_sub_f32 v95, v{201+2*k}, v95\n v_cvt_pk_bf16_f32 v{188+k}, v94, v95")
        A.ds("ds_write2_b64 v171, v[184:185], v[188:189] offset0:0 offset1:2", "QW")
        A.ds("ds_write2_b64 v171, v[186:187], v[190:191] offset0:6 offset1:8", "QW")
        A.ds("ds_write2_b64 v171, v[92:93], v[92:93] offset0:4 offset1:10", "QW")
    def w_qrope():
        A.need(["QR"])
        if QS2: A("s_cmp_eq_u32 s36, 0\n s_mov_b32 s53, 0x01000504\n s_cselect_b32 s52, 0x05040100, s53\n s_add_u32 s53, s52, 0x02020202")
        else: A("s_mov_b32 s52, 0x05040100\n s_mov_b32 s53, 0x07060302")
        x = 32
        pend = []
        for half in range(2):
            for k in (2*half, 2*half+1, 4+2*half, 5+2*half):
                A(f"v_perm_b32 v{x+2*k}, v{80+k}, v{72+k}, s52\n v_perm_b32 v{x+2*k+1}, v{80+k}, v{72+k}, s53")
            js = [4*half + t for t in range(4)] + [8 + 4*half + t for t in range(4)]
            for o_, (P_, md) in enumerate(((QP1, " neg_hi:[0,1,0]"), (QP2, ""))):
                y = 192 + 8*o_; zz = 208 + 8*half + 4*o_
                for t, j in enumerate(js): A(f"v_dot2_f32_bf16 v{y+t}, v{x+j}, v{P_+j}, 0{md}")
                for p_ in pend: p_()
                for k in range(4): A(f"v_cvt_pk_bf16_f32 v{zz+k}, v{y+2*k}, v{y+2*k+1}")
                pend = [lambda zz=zz, off=LDS_Q + 528*half + 8*528*o_: A.ds(f"ds_write_b128 v180, v[{zz}:{zz+3}] offset:{off}", "QW")]
        for p_ in pend: p_()
    def w_staddr():
        A(f"""
        v_lshlrev_b32 v159, 7, v{vW}
        v_lshl_add_u32 v159, v{vLANE}, 9, v159
        v_and_b32 v64, 3, v{vLANE}
        v_lshl_add_u32 v64, v{vW}, 2, v64
        v_cmp_gt_u32 vcc, 16, v{vLANE}
        v_lshlrev_b32 v64, 7, v64
        v_add_u32 v64, 0x2000, v64
        v_cndmask_b32 v159, v64, v159, vcc
        """)
    def w_st2():
        A(f"""
        v_and_b32 v159, 15, v{vLANE}
        v_lshlrev_b32 v159, 9, v159
        v_lshl_add_u32 v159, v{vW}, 7, v159
        v_and_b32 v{V_O0+2}, 3, v{vLANE}
        v_lshl_add_u32 v{V_O0+2}, v{vW}, 2, v{V_O0+2}
        v_lshlrev_b32 v{V_O0+2}, 7, v{V_O0+2}
        v_add_u32 v{V_O0+2}, 0x2000, v{V_O0+2}
        """)
    def w_tk():
        A.need(["SK"]); stamp("ackK")
        A.vmem(f"buffer_load_dword v254, v159, s[24:27], s37 offen sc1", "ST")
    def w_ident():
        assert V_O0 >= 235
        A(f"""
        v_bfe_u32 v232, v{vLANE}, 3, 2
        v_bfe_u32 v233, v{vLANE}, 1, 1
        v_lshl_add_u32 v232, v232, 1, v233
        v_lshrrev_b32 v233, 3, v{vLANE}
        v_xor_b32 v233, v233, v{vLANE}
        v_and_b32 v233, 4, v233
        v_lshl_add_u32 v232, v233, 1, v232
        v_and_b32 v233, 1, v{vLANE}
        v_lshlrev_b32 v233, 4, v233
        v_mov_b32 v234, 0x3f80
        v_lshlrev_b32 v233, v233, v234
        """)
        msk = ["vcc", "s[52:53]", "s[100:101]"]
        for k in range(10):
            if k < 8: A(f"v_cmp_eq_u32 {msk[k%3]}, {k}, v232")
            if k >= 2: A(f"v_cndmask_b32 v{224+k-2}, 0, v233, {msk[(k-2)%3]}")
        A.ds(f"ds_write_b128 v{vPW}, v[224:227] offset:{NPB*16384}", "QW")
        A.ds(f"ds_write_b128 v{vPW}, v[228:231] offset:{NPB*16384+1024}", "QW")
    def w_rb():
        for r_ in (174, 175, 176): A.vmem(f"buffer_load_dword v254, v{r_}, s[24:27], s37 offen sc1", "ST")
    def w_ptb(): A.vmem(f"buffer_load_dword v254, v159, s[24:27], s37 offen {opt.get('ptbfl', '')}", "PT")
    def w_wpt(): A.need(["PT"])
    def w_wcpf(): A.need(["cpf"])
    def w_wq(): A.need(["QR"])
    def w_otlb():
        A("s_lshl_b32 s52, s57, 13\n v_mov_b32 v64, s52\n s_waitcnt lgkmcnt(0)"); A.lg = []
        A.vmem("global_load_dword v255, v64, s[20:21]", "cpf")
    def w_flush():
        for l_ in late: A(l_)
        late.clear()
    def w_warm():
        if opt.get("ihook"):
            A("s_mov_b64 exec, 0")
            for i in range(opt["ihook"]): A(f"s_cmp_eq_u32 s32, {i}\n s_cbranch_scc1 L_hook{i}")
            A.label("L_warmed"); A("s_mov_b64 exec, -1")
    W = dict(trigK=w_trigK, kaddr=w_kaddr, pt=l_pt, cpf2=l_cpf2, q=l_q, q2=l_q2, qaddr=w_qaddr, ts=l_ts, trigQ=w_trigQ, blk=w_blk, vaddr=w_vaddr,
             tables=w_tables, qrope=w_qrope, flush=w_flush, otlb=w_otlb, staddr=w_staddr, ptb=w_ptb, rb=w_rb, ident=w_ident, wpt=w_wpt, wcpf=w_wcpf, wq=w_wq, st2=w_st2, tk=w_tk, v=l_v, warm=w_warm)
    def run(seq):
        for x_ in seq.split("."):
            if x_: W[x_](); stamp(x_)
    w_late()
    run(opt.get("o1", "pt.trigK.kaddr.cpf2.qaddr.trigQ.blk.q"))
    stamp("pre")
    A.need(["KR"])
    stamp("ks")
    A(f"v_lshlrev_b32 v30, 16, v30\n v_lshlrev_b32 v31, 16, v31\n v_mul_f32 v30, {hex(f2u(SCALE))}, v30\n v_mul_f32 v31, v31, v30")
    for j in range(16): A(f"v_cvt_f32_i32 v{32+j}, v{32+j}")
    for j in range(16): A(f"v_fma_f32 v{32+j}, v{32+j}, v30, -v31")
    for j in range(8): A(f"v_cvt_pk_bf16_f32 v{32+j}, v{32+j}, v{40+j}")
    for j in range(8): A(f"v_dot2_f32_bf16 v{KP1+j}, v{32+j}, v{KP1+j}, 0 neg_hi:[0,1,0]")
    for j in range(8): A(f"v_dot2_f32_bf16 v{KP2+j}, v{32+j}, v{KP2+j}, 0")
    for p in range(4): A(f"v_cvt_pk_bf16_f32 v{40+p}, v{KP1+2*p}, v{KP1+2*p+1}")
    A("s_waitcnt lgkmcnt(0)"); A.lg = []
    A.ds("ds_write_b128 v172, v[40:43]", "KT")
    for p in range(4): A(f"v_cvt_pk_bf16_f32 v{44+p}, v{KP2+2*p}, v{KP2+2*p+1}")
    A.ds("ds_write_b128 v172, v[44:47] offset:4608", "KT")
    A.ds("ds_read_b128 v[160:163], v173", "KT2")
    A.ds("ds_read_b128 v[164:167], v173 offset:4608", "KT2")
    stamp("kconv")
    NOA = 1
    sa = "s37 offen sc1" if NOA else "s58 offen"
    if opt.get("kfirst"):
        A.need(ltags=["KT2"])
        A.vmem(f"buffer_store_dwordx4 v[160:163], v174, s[24:27], {sa}", "SK")
        A.vmem(f"buffer_store_dwordx4 v[164:167], v175, s[24:27], {sa}", "SK")
        run(opt.get("o1b", ""))
    def w_vconv():
        A.need(["VRAW"])
        for c in range(4): A(f"v_lshl_or_b32 v{48+c}, v{52+c}, 4, v{48+c}")
        for c in range(4): A(f"v_lshl_or_b32 v{56+c}, v{60+c}, 4, v{56+c}")
        for c in range(4): A(f"v_lshl_or_b32 v{48+c}, v{56+c}, 8, v{48+c}")
        A("v_lshl_or_b32 v48, v49, 16, v48\n v_lshl_or_b32 v49, v51, 16, v50")
        A("s_mov_b32 s52, 0x22222222\n s_mov_b32 s53, 0x88888888")
        A("v_permlane32_swap_b32 v48, v49")
        A("v_mov_b32 v50, v48\n v_mov_b32 v51, v49")
        A.need(ltags=["KT2"])
        if not opt.get("kfirst"):
            A.vmem(f"buffer_store_dwordx4 v[160:163], v174, s[24:27], {sa}", "SA")
            A.vmem(f"buffer_store_dwordx4 v[164:167], v175, s[24:27], {sa}", "SA")
        A("v_permlane16_swap_b32 v48, v50\n v_permlane16_swap_b32 v49, v51")
        A("v_perm_b32 v144, v50, v48, v177\n v_perm_b32 v145, v51, v49, v177")
        t1 = bitop(lambda a, b, c: ~(a ^ b) & c); t2 = bitop(lambda a, b, c: (~a & b) | c)
        for r in (144, 145):
            A(f"v_lshlrev_b32 v55, 1, v{r}\n v_lshlrev_b32 v56, 2, v{r}")
            A(f"v_bitop3_b32 v55, v{r}, v55, s52 bitop3:{hex(t1)}")
            A(f"v_bitop3_b32 v56, v56, s53, v178 bitop3:{hex(t2)}")
            A(f"v_or_b32 v{r}, v55, v56")
        A("v_mov_b32_dpp v146, v144 row_ror:8 row_mask:0xf bank_mask:0xf\n v_mov_b32_dpp v147, v145 row_ror:8 row_mask:0xf bank_mask:0xf")
        A.vmem(f"buffer_store_dwordx4 v[144:147], v176, s[24:27], {sa}", "SA")
    W["vconv"] = w_vconv
    if not opt.get("vdefer"): w_vconv()
    run(opt.get("o2", ""))
    def st_b():
        if NOA: return
        A.vmem("buffer_store_dwordx4 v[160:163], v174, s[24:27], s37 offen sc1", "SB")
        A.vmem("buffer_store_dwordx4 v[164:167], v175, s[24:27], s37 offen sc1", "SB")
        A.vmem("buffer_store_dwordx4 v[144:147], v176, s[24:27], s37 offen sc1", "SB")
    W["sb"] = st_b
    if not opt.get("sbl", 1): st_b()
    stamp("stored")
    run(opt.get("o3", "staddr.vaddr.tables.flush"))
    A(f"""
    s_mul_i32 s40, s39, 0x9E3779B1
    s_add_u32 s40, s40, 0x7F4A7C15
    s_and_b32 s40, s40, 0xfffffff0
    s_or_b32 s62, s40, s41
    s_lshl_b32 s63, s35, 2
    s_add_u32 s63, s63, s59
    v_mov_b32 v24, s62
    s_or_b32 s61, s40, 8
    s_lshl_b32 s18, s57, 6
    s_add_u32 s18, s18, {FB_OFF}
    v_mov_b32 v{vTAG}, s61
    """)
    FBE = 2
    stamp("mid")
    if opt.get("half"):
        A(f"s_bfe_u32 s38, s35, 0x20002\n s_cmp_ge_u32 s38, {opt['half']}\n s_cselect_b32 s38, 0x20000000, s37\n s_cselect_b32 s37, s37, 0x20000000")
    if opt.get("adapt"):
        A.vmem(f"buffer_load_dword v26, v{vPA}, s[24:27], s59 offen sc1", "SA")
    A.need(["SA"], ["QW"])
    stamp("ackA")
    if opt.get("adapt"):
        A(f"""
        v_cmp_eq_u32 vcc, s62, v26
        s_bcnt1_i32_b32 s52, vcc_lo
        s_cmp_ge_u32 s52, {opt["adapt"]}
        s_cselect_b32 s52, 0x20000000, s37
        s_cselect_b32 s37, s37, 0x20000000
        """)
        A.vmem(f"buffer_load_dword v254, v159, s[24:27], s52 offen sc1", "ST")
    elif opt.get("half"):
        A.vmem(f"buffer_load_dword v254, v159, s[24:27], s38 offen sc1", "ST")
    elif opt.get("stch", 1) == 1: A.vmem(f"buffer_load_dword v254, v159, s[24:27], s37 offen sc1", "ST")
    A("s_barrier")
    A.vmem(f"buffer_store_dword v24, v{vFB}, s[24:27], s63 offen", "FA")
    if opt.get("fb0", 1): A.vmem(f"buffer_store_dword v{vTAG}, v{vFB}, s[24:27], s18 offen sc1", "FB")
    if opt.get("stch", 1) == 2: A.vmem(f"buffer_load_dword v254, v159, s[24:27], s37 offen sc1", "ST")
    stamp("bar0")
    run(opt.get("o3b", "qrope.ident"))
    A(f"""
    buffer_load_dword v26, v{vPA}, s[24:27], s59 offen sc1
    s_lshl_b32 s60, s33, 12
    s_add_u32 s60, s60, {FB_OFF}
    {"" if opt.get("fb0", 1) else "s_mov_b32 s3, 0"}
    s_mov_b32 s19, 0
    """)
    run(opt.get("o5", "warm"))
    A.label("L_pollA")
    A(f"""
    s_waitcnt vmcnt(0)
    v_cmp_eq_u32 vcc, s62, v26
    s_cmp_eq_u64 vcc, -1
    """)
    if opt.get("inl", 0):
        A(f"""
        s_cbranch_scc1 L_seen
        buffer_load_dword v26, v{vPA}, s[24:27], s59 offen sc1
        s_add_u32 s19, s19, 1
        s_cmp_lt_u32 s19, {opt.get("tmo", 64)}
        s_cbranch_scc1 L_pollA
        s_branch L_pollA_more
        """)
        A.label("L_seen")
    else: A("s_cbranch_scc0 L_pollA_more")
    A.vm = []
    stamp("flagsA")
    OOL.label("L_pollA_more")
    OOL(f"""
    buffer_load_dword v26, v{vPA}, s[24:27], s59 offen sc1
    s_add_u32 s19, s19, 1
    s_cmp_lt_u32 s19, {opt.get("tmo", 64)}
    s_cbranch_scc1 L_pollA
    s_waitcnt vmcnt(0)
    {"" if opt.get("fb0", 1) else "s_waitcnt lgkmcnt(0)"}
    {"" if opt.get("fb0", 1) else "s_barrier"}
    {"" if opt.get("fb0", 1) else "buffer_store_dword v%d, v%d, s[24:27], s18 offen sc1" % (vTAG, vFB)}
    v_lshlrev_b32 v27, 4, v{vPA}
    s_lshl_b32 s52, s34, 11
    v_add_u32 v27, s52, v27
    s_mov_b32 s53, 0
    """)
    OOL.label("L_pollB0")
    OOL(f"""
    buffer_load_dword v26, v27, s[24:27], s60 offen sc1
    s_add_u32 s53, s53, 1
    s_waitcnt vmcnt(0)
    v_cmp_eq_u32 vcc, s61, v26
    s_cmp_eq_u64 vcc, -1
    s_cbranch_scc1 L_pollB0_ok
    s_sleep 4
    s_cmp_lt_u32 s53, 0x100000
    s_cbranch_scc1 L_pollB0
    """)
    OOL.label("L_pollB0_ok")
    for b_ in range(0 if opt.get("noa", 1) else 4): OOL(f"s_add_u32 s{42+b_}, s{42+b_}, {RB-RA}")
    OOL(("" if opt.get("fb0", 1) else "s_mov_b32 s3, 1\n") + "s_branch L_go")

    order = []
    for r in range(n):
        order.append(("QK", r))
        if r >= 1: order.append(("PV", r-1))
    order.append(("PV", n-1))
    mf = []; a = [0]*n; b = [0]*n
    for kind, r in order:
        if kind == "QK":
            a[r] = len(mf)
            if r < opt.get("smaj", 2):
                for s in range(8):
                    for u in range(2): mf.append(("QK", r, u, s))
            else:
                for u in range(2):
                    for s in range(8): mf.append(("QK", r, u, s))
        else:
            b[r] = len(mf)
            if r == nfull-1 and opt.get("early", 1):
                for kk in range(2):
                    for u in (1, 0): mf.append(("PV", r, u, kk))
                for u in (1, 0):
                    for kk in range(2, 8): mf.append(("PV", r, u, kk))
            else:
                for kk in range(8):
                    for u in range(2): mf.append(("PV", r, u, kk))
    nslots = len(mf)
    sready = {(m[1], m[2]): sl + 3 for sl, m in enumerate(mf) if m[0] == "QK"}
    q1last = {m[3]: sl for sl, m in enumerate(mf) if m[0] == "QK" and rounds[m[1]][m[2]][1] == 1}
    firstuse = {}; lastuse = {}
    for sl, m in enumerate(mf):
        blk = rounds[m[1]][m[2]][0]
        key = ("K" if m[0] == "QK" else "V", blk, m[3])
        firstuse.setdefault(key, sl); lastuse[key] = sl
    kbuf = {}; kfree = {}
    q1dead = a[nfull-1] + 15
    bases = list(A_K); hold = [None]*len(bases)
    if OARCH and opt.get("k4", 1): bases.append(224); hold.append(None)
    if nsolo: bases.append(A_Q + 32); hold.append("Q1")
    for blk in range(nblk):
        def rel(h): return -1 if h is None else (q1dead if h == "Q1" else lastuse[("K", h, 7)])
        i = min(range(len(bases)), key=lambda i: rel(hold[i]))
        for s in range(8):
            h = hold[i]
            kfree[(blk, s)] = -1 if h is None else (q1last[s] if h == "Q1" else lastuse[("K", h, s)])
        kbuf[blk] = bases[i]; hold[i] = blk
    def oreg(qt):
        if OARCH: return f"v[{V_O0}:{V_O0+15}]" if qt == 0 else f"v[{V_O1}:{V_O1+15}]"
        return f"a[{A_O+16*qt}:{A_O+16*qt+15}]"
    A_O1 = A_O if OARCH else A_O + 16
    vexp = sorted({k for k in firstuse if k[0] == "V"}, key=lambda k: firstuse[k])
    vereg = {k: V_VE + (i % NVE)*4 for i, k in enumerate(vexp)}
    vefree = {k: (-1 if i < NVE else lastuse[vexp[i-NVE]]) for i, k in enumerate(vexp)}
    vedone = {}
    barlead = opt.get("barlead", 3)
    gate = opt["chk"] + 1 if opt.get("chk") else b[opt.get("gater", 1)] - barlead
    kl = [("K", blk, s) for blk in range(nblk) for s in range(8)]
    vl = sorted([("VR", blk, i) for blk in range(nblk) for i in range(2)], key=lambda k: firstuse[("V", k[1], 4*k[2])])
    need_at = {k: firstuse[k] for k in kl}
    need_at.update({k: firstuse[("V", k[1], 4*k[2])] - opt.get("vneed", 26) for k in vl})
    for i in range(2): need_at[("VR", 0, i)] = opt.get("v0need", 26) + opt.get("v0d", 6)*i
    for i in range(2): need_at[("VR", 1, i)] = max(need_at[("VR", 1, i)], opt.get("v1need", 56) + 4*i)
    issued = set()
    def ld_free(key):
        f = -1
        if key[0] == "K": f = kfree[(key[1], key[2])]
        elif key[1] >= NVR: f = vedone.get(("V", key[1]-NVR, 4*key[2]+3), 10**6)
        if key[1] >= 4: f = max(f, gate)
        return f
    def ld(key):
        k, blk, f = key
        issued.add(key)
        if k == "K":
            rg = kbuf[blk] + 4*f
            A.vmem(f"buffer_load_dwordx4 a[{rg}:{rg+3}], v{vK0 + f//4}, s[24:27], s{42+blk} offen offset:{(f%4)*1024} {opt.get('kvfl', 'sc1')}", key)
        else:
            rg = V_VR + (blk % NVR)*8 + 4*f
            A.vmem(f"buffer_load_dwordx4 v[{rg}:{rg+3}], v{vV+f}, s[24:27], s{42+blk} offen {opt.get('kvfl', 'sc1')}", key)
    tb = []
    for r in range(n):
        for u in range(2):
            if not tb or tb[-1][0] != rounds[r][u][0]: tb.append((rounds[r][u][0], r, u))
    lvreg = {blk: V_LV[i % 2] for i, (blk, _, _) in enumerate(tb)}
    rvreg = {blk: A_RV[i % 2] for i, (blk, _, _) in enumerate(tb)}
    lv_use = {blk: firstuse[("K", blk, 0)] for blk, _, _ in tb}
    lv_last = {blk: lastuse[("K", blk, 0)] for blk, _, _ in tb}
    rv_done = {}
    lvq = [("LV", blk, q, i) for i, (blk, r, u) in enumerate(tb) for q in range(4)]
    rvq = [("RV", blk, q, i) for i, (blk, r, u) in enumerate(tb) for q in range(2)]
    tdone = {}
    A.label("L_go")
    if opt.get("diag"): A("s_mov_b32 s3, 0")
    def qread(i):
        A.ds(f"ds_read_b128 a[{A_Q+4*i}:{A_Q+4*i+3}], v23 offset:{LDS_Q + (i//8)*8448 + (i%8)*1056}", ("Q", i//8, i%8))
    qord = [x for s_ in range(8) for x in (s_, 8+s_)] if opt.get("smaj", 2) else list(range(16))
    for _ in range(opt.get("npre0", 2)): ld(kl.pop(0))
    if opt.get("stch", 1) == 3: A.vmem(f"buffer_load_dword v254, v159, s[24:27], s37 offen sc1", "ST")
    assert opt.get("fb0", 1) or not opt.get("o6")
    run(opt.get("o6", ""))
    if opt.get("fb0", 1):
        if A.lg: A("s_waitcnt lgkmcnt(0)\n s_barrier"); A.lg = []
    else:
        A("s_cmp_eq_u32 s3, 0\n s_waitcnt lgkmcnt(0)\n s_cbranch_scc0 L_skip2\n s_barrier"); A.lg = []
        A.label("L_skip2")
    stamp("bar1")
    rd = [lambda q_=q_: A.ds(f"ds_read_b128 v[{V_LV[0]+4*q_}:{V_LV[0]+4*q_+3}], v{vT} offset:{LDS_T + q_*32}", ("LV", 0, q_)) for q_ in range(4)]
    rd += [lambda i=i: qread(i) for i in qord[:10]]
    for _ in range(opt.get("npre", 6) - opt.get("npre0", 2)):
        for _ in range(opt.get("gap0", 3)):
            if rd: rd.pop(0)()
        ld(kl.pop(0))
    if opt.get("tv") == -1: A.vmem(f"buffer_load_dword v255, v{V_O0+2}, s[24:27], s37 offen sc1", "ST")
    while rd: rd.pop(0)()
    qrest = qord[10:]
    def tread(t, sl_):
        k, blk, q, i = t
        rg = (lvreg if k == "LV" else rvreg)[blk] + 4*q
        j_, rel_ = (0, blk) if blk < 4 else ((1, blk-4) if blk < nfull else (2, blk-nfull))
        if k == "LV": A.ds(f"ds_read_b128 v[{rg}:{rg+3}], v{(vT, vT2, vT3)[j_]} offset:{LDS_T + rel_*512 + q*32}", (k, blk, q))
        else: A.ds(f"ds_read_b128 a[{rg}:{rg+3}], v{(vR, vR2, vR3)[j_]} offset:{LDS_R + rel_*768 + q*96}", (k, blk, q))
        tdone[(k, blk, q)] = sl_
    for q_ in range(4): lvq.pop(0); tdone[("LV", 0, q_)] = -5
    bl = {r: (opt.get("bl0", barlead) if r == 0 else opt.get("bl7", 2) if r == n-1 else barlead) for r in range(n)}
    wend = {r: b[r] - (opt.get("smend", 6) - barlead + bl[r]) - (opt.get("lx", 2) if r in (nfull-1, n-1) else 0) for r in range(n)}
    items = {}
    for r in range(n):
        S = V_S[r % 2]; PO = V_PO[r % 2]; L = []
        for e in range(33):
            if e < 32: L.append(("e", e, f"v_exp_f32 v{S+e}, v{S+e}", None))
            if e >= 2 and e % 2 == 0:
                L.append(("c", e, f"v_cvt_pk_bf16_f32 v{PO + (e-2)//2}, v{S+e-2}, v{S+e-1}", None))
        items[r] = L
    cur = 0; ci = 0; pendw = []; nw = {r: 0 for r in range(n)}
    pendm = []; seenL = set(); pendl = []; lwr = set()
    bar_at = {b[r] - bl[r]: r for r in range(n)}
    pslot = {(m[1], m[3], m[2]): sl for sl, m in enumerate(mf) if m[0] == "PV"}
    prq = sorted([(r, kk, u, (kk-2)*2+u) for r in range(n) for kk in range(2, 8) for u in range(2)], key=lambda x: pslot[x[:3]])
    prdone = set(); lastw = -10
    send_slot = pslot[(nfull-1, 7, 1)] + 3
    inloop = send_slot + 6 < nslots
    flag_slot = send_slot + opt.get("flagdelay", 16)
    xpoll_slot = flag_slot + opt.get("xpolldelay", 10)
    xchk_slot = xpoll_slot + opt.get("xchkdelay", 8)
    xuse_slot = xchk_slot + opt.get("xusedelay", 8)
    pollB_slot = opt.get("pollslot", 56); chkB_slot = opt.get("chk") or gate - opt.get("chklead", 3)
    XR = V_LV[0]
    def operands(m):
        blk = rounds[m[1]][m[2]][0]
        if m[0] == "QK":
            lt = [("Q", rounds[m[1]][m[2]][1], m[3])]
            if m[3] == 0: lt += [("LV", blk, q) for q in range(4)]
            return [("K", blk, m[3])], lt
        return [], [("PR", m[1], m[3], m[2])]
    def lsum(t_, dst):
        return [f"v_add_f32 v{t_}, v{t_}, v{t_+1}", f"v_add_f32 v{t_+2}, v{t_+2}, v{t_+3}", f"v_add_f32 v{t_+4}, v{t_+4}, v{t_+5}", f"v_add_f32 v{t_+6}, v{t_+6}, v{t_+7}",
                f"v_add_f32 v{t_}, v{t_}, v{t_+2}", f"v_add_f32 v{t_+4}, v{t_+4}, v{t_+6}", f"v_add_f32 v{dst}, v{t_}, v{t_+4}"]
    LT = [0, 0]
    uid = [0]
    def two_way(fn):
        if XSC1: fn(A, "sc1"); return
        uid[0] += 1; u_ = uid[0]
        A(f"s_cmp_eq_u32 s37, s62\n s_cbranch_scc0 L_far{u_}")
        fn(A, ""); A.label(f"L_join{u_}")
        OOL.label(f"L_far{u_}"); fn(OOL, "sc1"); OOL.vm = []; OOL(f"s_branch L_join{u_}")
    def send_payload(B, fl):
        for i in range(4):
            o = A_O1 + 4*i
            B.vmem(f"buffer_store_dwordx4 a[{o}:{o+3}], v{vX}, s[24:27], s54 offen offset:{i*1024} {fl}", "XS")
        B.vmem(f"buffer_store_dword v{vLS}, v{vXL}, s[24:27], s54 offen {fl}", "XS")
    def send_flag(B, fl):
        B.vmem(f"buffer_store_dword v{vTAG}, v{vXF}, s[24:27], s54 offen {fl}", "XF")
    def self_touch():
        if opt.get("selft", 1): A.vmem(f"buffer_load_dword v{vPB}, v{vXT}, s[24:27], s54 offen sc1", "ST")
    def recv_loads():
        A.vmem(f"buffer_load_dword v{XR+16}, v{vXL}, s[24:27], s55 offen sc1", "XR")
        for i in range(4):
            A.vmem(f"buffer_load_dwordx4 v[{XR+4*i}:{XR+4*i+3}], v{vX}, s[24:27], s55 offen offset:{i*1024} sc1", "XR")
    def xcheck():
        A(f"v_cmp_eq_u32 vcc, s61, v{V_TMP}\n s_cbranch_vccz L_xspin0")
        A.label("L_xok")
        OOL.label("L_xspin0"); OOL("s_mov_b32 s53, 0"); OOL.label("L_xspin")
        OOL(f"""
        buffer_load_dword v{V_TMP}, v{vXF}, s[24:27], s55 offen sc1
        s_add_u32 s53, s53, 1
        s_waitcnt vmcnt(0)
        v_cmp_eq_u32 vcc, s61, v{V_TMP}
        s_cbranch_vccnz L_xok
        s_cmp_lt_u32 s53, 0x100000
        s_cbranch_scc1 L_xspin
        s_branch L_xok
        """)
    def fin_pre():
        L_ = [f"v_add_f32 v{V_L}, v{V_L}, v{XR+16}", f"v_rcp_f32 v{V_TMP}, v{V_L}",
              f"v_cmp_lt_f32 vcc, 0x26800000, v{V_L}", f"v_cmp_gt_f32 s[52:53], s19, v{V_L}"]
        L_ += [f"v_mul_f32 v{XR+i}, v{XR+i}, v{V_TMP}" for i in range(16)]
        return L_
    XB = V_PO[(nfull-1) % 2]
    XL = V_LV[1]
    def xpos(k): return {3: 8, 7: 9}.get(k, k)
    def tag_pack():
        L_ = []
        for k in range(8):
            L_ += [f"v_cvt_pk_bf16_f32 v{XB+xpos(k)}, v{V_O1+2*k}, v{V_O1+2*k+1}"]
            if k in (2, 6, 7): L_.append(("st", {2: 0, 6: 1, 7: 2}[k]))
        return L_
    def tag_recv(B):
        for i in range(3):
            B.vmem(f"buffer_load_dwordx4 v[{XL+4*i}:{XL+4*i+3}], v{vX}, s[24:27], s55 offen offset:{i*1024} sc1", "XR")
    def tag_cmp(B):
        B(f"v_cmp_eq_u32 vcc, s61, v{XL+3}\n v_cmp_eq_u32 s[52:53], s61, v{XL+7}\n v_cmp_eq_u32 s[20:21], s61, v{XL+11}")
        B("s_and_b64 vcc, vcc, s[52:53]\n s_and_b64 vcc, vcc, s[20:21]\n s_cmp_eq_u64 vcc, -1")
    def tag_check():
        tag_cmp(A); A("s_cbranch_scc0 L_xspin0"); A.label("L_xok")
        OOL.label("L_xspin0"); OOL("s_mov_b32 s38, 0" + ("\n s_mov_b32 s3, 1" if opt.get("diag") == "x" else "")); OOL.label("L_xspin")
        tag_recv(OOL); OOL.vm = []
        OOL("s_add_u32 s38, s38, 1\n s_waitcnt vmcnt(0)"); tag_cmp(OOL)
        OOL("s_cbranch_scc1 L_xok\n s_cmp_lt_u32 s38, 0x100000\n s_cbranch_scc1 L_xspin\n s_branch L_xok")
    def tag_fin():
        return [f"v_mov_b32 v{XL+3}, v{XL+8}", f"v_mov_b32 v{XL+7}, v{XL+9}", f"v_add_f32 v{V_L}, v{V_L}, v{XL+10}"]
    def emit_extra(x_):
        if isinstance(x_, tuple):
            A.vmem(f"buffer_store_dwordx4 v[{XB+4*x_[1]}:{XB+4*x_[1]+3}], v{vX}, s[24:27], s54 offen offset:{x_[1]*1024} sc1", "XS")
        else: A(x_)
    xld_slot = opt.get("xld", nslots - 20); xuse2 = opt.get("xuse", nslots - 2)
    extra = []
    seenO = set(); vi = 0; vpart = 0
    vt, lt = operands(mf[0]); A.need(vt, lt)
    stamp("mfma0")
    pendst = []
    totcost = []; fb_done = []; pb_done = []; ldlog = []
    pipe = opt.get("pipe0", 200)
    for sl in range(nslots):
        m = mf[sl]
        blk, qt = rounds[m[1]][m[2]]
        if m[0] == "QK":
            _, r, u, s = m
            d = V_S[r % 2] + u*16
            c = f"v[{lvreg[blk]}:{lvreg[blk]+15}]" if s == 0 else f"v[{d}:{d+15}]"
            if s == 0: assert all(("LV", blk, q_) in tdone for q_ in range(4)), ("lv not read", sl)
            assert ("K", blk, s) in issued, ("K not loaded", sl)
            assert qt*8+s not in qrest
            k = kbuf[blk] + 4*s; q = A_Q + (qt*8+s)*4
            A(f"v_mfma_f32_32x32x16_bf16 v[{d}:{d+15}], a[{k}:{k+3}], a[{q}:{q+3}], {c}")
        else:
            _, r, u, kk = m
            c = "0" if qt not in seenO else oreg(qt)
            seenO.add(qt)
            assert ("V", blk, kk) in vedone, ("V frag not expanded", sl, m)
            assert kk < 2 or (r, kk, u) in prdone, ("P not read", sl)
            assert kk >= 2 or cur > r or (cur == r and (ci >= len(items[r]) or items[r][ci][1] > 8*(2*u+kk+1))), ("own P not packed", sl)
            v = vereg[("V", blk, kk)]
            ps = f"v[{V_PO[r%2] + (u*2+kk)*4}:{V_PO[r%2] + (u*2+kk)*4+3}]" if kk < 2 else f"a[{A_P + ((kk-2)*2+u)*4}:{A_P + ((kk-2)*2+u)*4+3}]"
            A(f"v_mfma_f32_32x32x16_bf16 {oreg(qt)}, v[{v}:{v+3}], {ps}, {c}")
        stamp(f"slot{sl}")
        bud = 24
        vt, lt = operands(mf[sl+1]) if sl + 1 < nslots else ([], [])
        vt = list(vt); lt = list(lt)
        if vi < len(vexp) and sl >= need_at[("VR", vexp[vi][1], vexp[vi][2]//4)]: vt.append(("VR", vexp[vi][1], vexp[vi][2]//4))
        if pendm and tdone.get(("RV", rounds[pendm[0][0]][pendm[0][1]//2][0], pendm[0][1] % 2), 10**6) <= sl - 2:
            lt.append(("RV", rounds[pendm[0][0]][pendm[0][1]//2][0], pendm[0][1] % 2))
        if sl == chkB_slot: vt.append("PB")
        if inloop and not XTAG:
            if sl == flag_slot: vt.append("XS")
            if sl == xchk_slot: vt.append("XP")
            if sl == xuse_slot: vt.append("XR")
        if inloop and XTAG and sl == xuse2: vt.append("XR")
        if sl == b[nfull-1] + 4: lt.append(("LR", 1))
        if sl == b[n-1] + 4: lt.append(("LR", 0))
        if sl in bar_at:
            r = bar_at[sl]
            assert nw[r] == 4, ("P not written before barrier", r, sl)
            for q_ in ([1] if r == nfull-1 else []) + ([0] if r == n-1 else []): assert q_ in lwr, ("l not written", sl)
            A.need(vt, lt + [("PW", r), "LW"])
            A("s_barrier")
            bud -= COST['bar']
            for q_ in ([1] if r == nfull-1 else []) + ([0] if r == n-1 else []):
                LT[q_] = V_S[r % 2] + 8*q_
                for hf in range(2):
                    A.ds(f"ds_read_b128 v[{LT[q_]+hf*4}:{LT[q_]+hf*4+3}], v{vLR} offset:{LDS_L + q_*1024 + hf*16}", ("LR", q_)); bud -= 4
        else:
            A.need(vt, lt)
        if sl == b[nfull-1] + 4:
            extra += lsum(LT[1], XB+10 if XTAG else vLS)
            if XTAG: extra += [f"v_mov_b32 v{XB+j}, s61" for j in (3, 7, 11)]
        if sl == b[n-1] + 4: extra += lsum(LT[0], V_L)
        hasw = bool(pendw) and sl not in bar_at and not (sl + 1 in bar_at)
        nr = 0
        while nr < opt.get("maxr", 2) and len(A.lg) < 13:
            c_ = []
            if prq:
                r, kk, u, idx = prq[0]
                if sl >= b[r] - bl[r] and (r == 0 or sl >= pslot[(r-1, kk, u)]): c_.append((pslot[(r, kk, u)] - 5, "p"))
            if qrest: c_.append((qord.index(qrest[0]) - 6, "q"))
            if lvq:
                _, tblk, q, i = lvq[0]
                if (i < 2 or lv_last[tb[i-2][0]] + 1 < sl): c_.append((lv_use[tblk] - 8 + q, "lv"))
            if rvq:
                _, tblk, q, i = rvq[0]
                if (i < 2 or (tb[i-2][0], q) in rv_done): c_.append((lv_use[tblk] + 8 + 4*q, "rv"))
            if not c_: break
            d_, k_ = min(c_)
            if sl == lastw + 1 and d_ > sl - 2: break
            if nr >= 1 and d_ > sl + 1: break
            if hasw and d_ > sl + 1: break
            if d_ > sl + opt.get("rlead", 24): break
            if k_ == "p":
                r, kk, u, idx = prq.pop(0); rg = A_P + idx*4
                A.ds(f"ds_read_b128 a[{rg}:{rg+3}], v{vPR+kk//2-1} offset:{(r%NPB)*16384 + (u*2+kk%2)*1024}", ("PR", r, kk, u)); prdone.add((r, kk, u))
            elif k_ == "q": qread(qrest.pop(0))
            elif k_ == "lv": tread(lvq.pop(0), sl)
            else: tread(rvq.pop(0), sl)
            bud -= COST["r"]; nr += 1
        if hasw:
            r, f = pendw.pop(0); PO = V_PO[r % 2]
            A.ds(f"ds_write_b128 v{vPW}, v[{PO+4*f}:{PO+4*f+3}] offset:{(r%NPB)*16384 + f*1024}", ("PW", r)); bud -= COST["w"]; nw[r] += 1
            lastw = sl
        if pendl and pendl[0][0] <= sl:
            _, q_ = pendl.pop(0); lwr.add(q_)
            A.ds(f"ds_write_b64 v{vLW}, v[{V_LA+4*q_}:{V_LA+4*q_+1}] offset:{q_*1024}", "LW")
            A.ds(f"ds_write_b64 v{vLW}, v[{V_LA+4*q_+2}:{V_LA+4*q_+3}] offset:{q_*1024+512}", "LW"); bud -= 24
        if pendst and not hasw: emit_extra(pendst.pop(0)); bud -= opt.get("cst", 16)
        nxt_ = min([need_at[q_[0]] for q_ in (kl, vl) if q_ and (q_[0][1] < 4 or sl >= gate)] + [10**6]) - sl
        if not fb_done and not opt.get("fb0", 1) and sl >= opt.get("fbslot", 13) and (nxt_ >= opt.get("fbgap", 20) or sl >= opt.get("fbmax", 29)):
            fb_done.append(sl); assert sl < b[0]
            if not FBE:
                A("s_cmp_eq_u32 s3, 0\n s_cbranch_scc0 L_skip2\n s_barrier"); bud -= 42
                A.label("L_skip2")
            A.vmem(f"buffer_store_dword v{vTAG}, v{vFB}, s[24:27], s18 offen sc1", "FB"); bud -= 8
        elif sl == opt.get("tv", -5):
            A.vmem(f"buffer_load_dword v255, v{V_O0+2}, s[24:27], s37 offen sc1", "ST"); bud -= 8
        elif sl == opt.get("t2", -5):
            A.vmem(f"buffer_load_dword v255, v159, s[24:27], s37 offen sc1", "ST"); bud -= 8
        elif not pb_done and sl >= pollB_slot and (nxt_ >= opt.get("pollgap", 24) or sl >= chkB_slot - opt.get("pollmin", 18)):
            pb_done.append(sl)
            assert not late
            A.vmem(f"buffer_load_dword v{V_TMP}, v{vPB}, s[24:27], s60 offen sc1", "PB"); bud -= 8
            if not XSC1: A.vmem(f"buffer_load_dword v{V_TMP+1}, off, s[24:27], s37 sc1", "PB"); bud -= 8
        elif (kl or vl) and not hasw and sl not in bar_at:
            c_ = [q_[0] for q_ in (kl, vl) if q_ and ld_free(q_[0]) <= sl and need_at[q_[0]] - sl <= opt.get("maxlead", 60)]
            if c_:
                key = min(c_, key=lambda k: need_at[k])
                now = sum(max(32, c) for c in totcost)
                if pipe - now <= opt.get("qmax", 60) or need_at[key] - sl < opt.get("urg", 10):
                    (kl if key[0] == "K" else vl).pop(0)
                    ld(key); bud -= COST["l"]; ldlog.append((sl, key, need_at[key] - sl))
                    pipe = max(pipe, now) + (opt.get("kdur", 74) if key[0] == "K" else opt.get("vdur", 74))
        if sl == chkB_slot:
            A(f"v_cmp_eq_u32 vcc, s61, v{V_TMP}")
            if not XSC1: A(f"v_readfirstlane_b32 s37, v{V_TMP+1}")
            A(f"s_cmp_eq_u64 vcc, -1\n s_cbranch_scc0 L_bspin0")
            A.label("L_bok")
            OOL.label("L_bspin0"); OOL("s_mov_b32 s53, 0" + ("\n s_mov_b32 s3, 1" if opt.get("diag") == "b" else "")); OOL.label("L_bspin")
            OOL(f"""
            buffer_load_dword v{V_TMP}, v{vPB}, s[24:27], s60 offen sc1
            s_add_u32 s53, s53, 1
            s_waitcnt vmcnt(0)
            v_cmp_eq_u32 vcc, s61, v{V_TMP}
            s_cmp_eq_u64 vcc, -1
            s_cbranch_scc1 L_bok
            s_cmp_lt_u32 s53, 0x100000
            s_cbranch_scc1 L_bspin
            s_branch L_bok
            """)
            A("s_mov_b32 s19, 0x58800000")
            for x_ in late2: A(x_)
            bud -= 20
        if sl == opt.get("wbslot", -1):
            A("s_or_b32 s38, s35, s32\n s_cbranch_scc0 L_dowb"); A.label("L_nowb"); bud -= 8
            OOL.label("L_dowb"); OOL("buffer_wbl2 sc1\n s_branch L_nowb")
        if inloop and XTAG:
            if sl == send_slot:
                assert not extra
                stamp("send"); extra += tag_pack()
            if sl == xld_slot:
                assert not kl and not vl and all(lv_last[t[0]] + 1 < sl for t in tb) and sl > send_slot + 8
                tag_recv(A); bud -= 24
            if sl == opt.get("idslot", nslots - 8):
                A.ds(f"ds_read_b128 v[{XR}:{XR+3}], v{vPW} offset:{NPB*16384}", "ID")
                A.ds(f"ds_read_b128 v[{XR+4}:{XR+7}], v{vPW} offset:{NPB*16384+1024}", "ID"); bud -= 8
            if sl == xuse2:
                assert sl > b[n-1] + 4 and all(lv_last[t[0]] < sl for t in tb)
                stamp("xr")
                while extra: emit_extra(extra.pop(0)); bud -= 4
                tag_check(); bud -= 28; extra += tag_fin()
        elif inloop:
            if sl == send_slot:
                assert not extra
                stamp("send"); two_way(send_payload); bud -= 60
                if not XSC1: self_touch(); bud -= 8
            if sl == flag_slot:
                stamp("xack"); two_way(send_flag); bud -= 16
            if sl == xpoll_slot:
                A.vmem(f"buffer_load_dword v{V_TMP}, v{vXF}, s[24:27], s55 offen sc1", "XP"); bud -= 8
            if sl == xchk_slot:
                assert not kl and not vl and all(lv_last[t[0]] < sl for t in tb)
                stamp("xp"); xcheck(); recv_loads(); bud -= 50
            if sl == xuse_slot:
                assert sl > b[n-1] + 4
                stamp("xr"); extra += fin_pre()
        def vexp_step():
            nonlocal vi, vpart, bud
            key = vexp[vi]; src = V_VR + (key[1] % NVR)*8 + key[2]
            A(f"v_cvt_scalef32_pk_bf16_fp4 v{vereg[key]+vpart}, v{src}, 1.0 op_sel:[{vpart&1},{vpart>>1},0]")
            bud -= 4; vpart += 1
            if vpart == 4: vedone[key] = sl; vi += 1; vpart = 0
        def vexp_ok():
            if vi >= len(vexp): return False
            key = vexp[vi]; tag = ("VR", key[1], key[2]//4)
            return vefree[key] <= sl and tag not in A.vm and tag in issued
        def sm_next():
            nonlocal cur, ci
            while cur < n and ci >= len(items[cur]): cur += 1; ci = 0
            if cur >= n: return None
            kind, e, txt, info = items[cur][ci]
            if sl < sready[(cur, 0)]: return None
            if kind == "e" and e == 16 and sl < sready[(cur, 1)]: return None
            if kind == "c" and XTAG and cur == nfull + 1: assert not extra and not pendst and sl > send_slot + 4
            rate = min(opt.get("smrate", 0.7), (wend[cur] - sready[(cur, 0)]) / 33.0)
            return wend[cur] - (32 - e) * rate
        def sm_step():
            nonlocal ci, bud
            kind, e, txt, info = items[cur][ci]
            A(txt); bud -= COST[kind]; ci += 1
            if kind == "c" and e % 8 == 0: pendw.append((cur, e//8 - 1)); newm.append((cur, e//8 - 1))
        newm = []
        def fill():
          nonlocal bud
          while True:
            ds_ = sm_next(); dv = None
            if vi < len(vexp):
                dl = firstuse[vexp[vi]] - 2 - (3 - vpart) * 0.25
                if vexp_ok(): dv = dl
                elif firstuse[vexp[vi]] - sl <= 2:
                    A.need([("VR", vexp[vi][1], vexp[vi][2]//4)])
                    assert vexp_ok(), ("cannot expand in time", sl, vexp[vi])
                    dv = dl
            cands = [(d, k) for d, k in ((ds_, "s"), (dv, "v")) if d is not None]
            if extra:
                if inloop and sl < send_slot: dx = send_slot - 3
                elif inloop and XTAG and sl < send_slot + 8: dx = send_slot + (11 - len(extra)) * opt.get("packrate", 0.2)
                else: dx = sl + 3
                cands.append((dx, "x"))
            if late: cands.append((8, "t"))
            if late3 and nsolo and all(t_[1] >= nfull for t_ in lvq + rvq) and sl > chkB_slot: cands.append((b[nfull-1] + 8, "u"))
            if not cands: break
            d, k = min(cands)
            if d > sl:
                if bud <= 0: break
                if d > sl + opt.get("fitslack", 2) and k == "s" and COST[items[cur][ci][0]] > bud:
                    cands = [c for c in cands if c[1] != "s"]
                    if not cands: break
                    d, k = min(cands)
            if k == "s": sm_step()
            elif k == "v": vexp_step()
            elif k == "x":
                if isinstance(extra[0], tuple): pendst.append(extra.pop(0))
                else: emit_extra(extra.pop(0)); bud -= 4
            elif k == "u": A(late3.pop(0)); bud -= 4
            else: A(late.pop(0)); bud -= 4
        fill()
        mcost = 0
        if pendm:
            r_, f_ = pendm[0]; blk_, qt_ = rounds[r_][f_//2]; tag = ("RV", blk_, f_ % 2)
            if tag in tdone and tag not in A.lg:
                pendm.pop(0)
                la = V_LA + 4*qt_; rv_ = rvreg[blk_] + 4*(f_ % 2); po_ = V_PO[r_ % 2] + 4*f_
                A(f"v_mfma_f32_16x16x32_bf16 v[{la}:{la+3}], a[{rv_}:{rv_+3}], v[{po_}:{po_+3}], {'v[%d:%d]' % (la, la+3) if qt_ in seenL else '0'}")
                seenL.add(qt_)
                if f_ >= 2 or rounds[r_][0][0] != rounds[r_][1][0]: rv_done[(blk_, f_ % 2)] = sl
                if f_ == 3:
                    for q_ in ([1] if r_ == nfull-1 else []) + ([0] if r_ == n-1 else []): pendl.append((sl + 1, q_))
                b0 = bud; bud = opt.get("mbud", 8); fill(); mcost = max(16, 16 - bud); bud = min(b0, 0) - mcost
        pendm += newm
        totcost.append(32 - bud)
    assert not kl and not vl
    if opt.get("verbose"):
        print("fb", fb_done, "pb", pb_done, "loads", " ".join(f"{s_}:{k_[0]}{k_[1]}.{k_[2]}(+{d_})" for s_, k_, d_ in ldlog), file=sys.stderr)
        print("slot costs:", totcost, "sum:", sum(totcost), "sum max(32,c):", sum(max(32, c) for c in totcost), file=sys.stderr)
    stamp("loopend")
    for x_ in late3: A(x_)
    for x_ in extra: emit_extra(x_)
    if XTAG:
        if not inloop:
            for x_ in tag_pack(): emit_extra(x_)
        if not inloop or xld_slot >= nslots: A.need(["XS"]); tag_recv(A)
        if not inloop or xuse2 >= nslots:
            A.need(["XR"]); stamp("xr"); tag_check()
            for x_ in tag_fin(): A(x_)
    else:
        if not inloop:
            A("s_nop 7"); two_way(send_payload)
            if not XSC1: self_touch()
        if not inloop or flag_slot >= nslots: A.need(["XS"]); two_way(send_flag)
        if not inloop or xpoll_slot >= nslots: A.vmem(f"buffer_load_dword v{V_TMP}, v{vXF}, s[24:27], s55 offen sc1", "XP")
        if not inloop or xchk_slot >= nslots: A.need(["XP"]); xcheck(); recv_loads()
        if not inloop or xuse_slot >= nslots:
            A.need(["XR"]); stamp("xr")
            for x_ in fin_pre(): A(x_)
    assert XTAG and OARCH and inloop
    A.need(ltags=["ID"])
    A(f"v_mfma_f32_32x32x16_bf16 {oreg(0)}, v[{XR}:{XR+3}], v[{XL}:{XL+3}], {oreg(0)}")
    A(f"v_rcp_f32 v{V_TMP}, v{V_L}\n v_cmp_lt_f32 vcc, 0x26800000, v{V_L}\n v_cmp_gt_f32 s[52:53], s19, v{V_L}")
    A(f"v_mfma_f32_32x32x16_bf16 {oreg(0)}, v[{XR+4}:{XR+7}], v[{XL+4}:{XL+7}], {oreg(0)}")
    if not opt.get("noslow"): A("s_and_b64 vcc, vcc, s[52:53]\n s_cmp_eq_u64 vcc, -1\n s_cbranch_scc0 L_slow")
    pk = V_PO[0]
    A("s_add_u32 s38, s56, 4096")
    A.label("L_pack")
    OT = opt.get("otr", 1)
    for bq in range(4):
        for a_ in range(4): A(f"v_mul_f32 v{XR+4*a_+bq}, v{V_O0+4*a_+bq}, v{V_TMP}")
        A(f"v_cvt_pk_bf16_f32 v{pk+2*bq}, v{XR+bq}, v{XR+4+bq}")
        A(f"v_cvt_pk_bf16_f32 v{pk+2*bq+1}, v{XR+8+bq}, v{XR+12+bq}")
        if bq == 1:
            if OT: A(f"ds_write_b128 v{vOW}, v[{pk}:{pk+3}] offset:{LDS_Q}")
            else: A(f"buffer_store_dwordx4 v[{pk}:{pk+3}], v{vOUT}, s[28:31], s56 offen {opt.get('ofl','')}")
    if OT:
        A(f"""
        ds_write_b128 v{vOW}, v[{pk+4}:{pk+7}] offset:{LDS_Q+16}
        ds_read_b128 v[{pk+8}:{pk+11}], v{vOR} offset:{LDS_Q}
        ds_read_b128 v[{pk+12}:{pk+15}], v{vOR} offset:{LDS_Q+1280}
        s_waitcnt lgkmcnt(1)
        buffer_store_dwordx4 v[{pk+8}:{pk+11}], v{vOUT}, s[28:31], s56 offen {opt.get('ofl','')}
        s_waitcnt lgkmcnt(0)
        buffer_store_dwordx4 v[{pk+12}:{pk+15}], v{vOUT}, s[28:31], s38 offen {opt.get('ofl','')}
        """)
    else:
        A(f"buffer_store_dwordx4 v[{pk+4}:{pk+7}], v{vOUT}, s[28:31], s56 offen offset:16 {opt.get('ofl','')}")
    A(f"""
    s_and_b32 s52, s57, 63
    s_cbranch_scc1 L_nobump
    s_add_u32 s52, s39, 1
    s_lshl_b32 s53, s33, 7
    v_mov_b32 v{V_TMP}, s52
    buffer_store_dword v{V_TMP}, v{vFB}, s[24:27], s53 offen
    """)
    A.label("L_nobump")
    if st:
        A("s_waitcnt vmcnt(0)")
        stamp("end")
        A(("" if rtdone else "s_memrealtime s[98:99]\n") + "s_waitcnt lgkmcnt(0)")
        A(f"s_lshl_b32 s50, s2, 2\n s_add_u32 s50, s50, s32\n s_lshl_b32 s51, s50, 7\n s_add_u32 s51, s51, {ST_OFF}")
        A("s_mov_b64 exec, 1")
        open("stampnames.txt", "w").write(" ".join(stl))
        for i in range(len(stl)):
            A(f"v_mov_b32 v10, s{64+2*i}\n v_mov_b32 v11, s{65+2*i}\n buffer_store_dwordx2 v[10:11], off, s[24:27], s51 offset:{8*i}\n s_nop 1")
        if opt.get("diag"): A("s_mov_b32 s96, 0\n s_mul_i32 s98, s3, 4096")
        A(f"s_lshl_b32 s50, s50, 4\n s_add_u32 s50, s50, {RT_OFF}")
        A(f"v_mov_b32 v24, s96\n v_mov_b32 v25, s97\n v_mov_b32 v26, s98\n v_mov_b32 v27, s99\n buffer_store_dwordx4 v[24:27], off, s[24:27], s50")
    A.label("L_end")
    A("s_endpgm")
    S = OOL
    S.label("L_slow")
    S(f"""
    s_waitcnt vmcnt(0) lgkmcnt(0)
    s_mul_i32 s40, s33, {64*TILE}
    s_add_u32 s40, s40, {RB}
    v_add_u32 v{vK1}, 0x1000, v{vX}
    v_mov_b32 v40, 0xff800000
    s_mov_b32 s41, s40
    s_mov_b32 s42, 0
    """)
    def slow_qk():
        for s in range(8): S(f"buffer_load_dwordx4 a[{64+4*s}:{67+4*s}], v{vX if s < 4 else vK1}, s[24:27], s41 offen offset:{(s%4)*1024} sc1")
        S("s_waitcnt vmcnt(0)")
        for s in range(8): S(f"v_mfma_f32_32x32x16_bf16 v[24:39], a[{64+4*s}:{67+4*s}], a[{4*s}:{4*s+3}], {'0' if s == 0 else 'v[24:39]'}")
        S("s_nop 15")
    S.label("L_slow1")
    slow_qk()
    for i in range(8): S(f"v_max3_f32 v40, v{24+2*i}, v{25+2*i}, v40")
    S(f"""
    s_add_u32 s41, s41, {TILE}
    s_add_u32 s42, s42, 1
    s_cmp_lt_u32 s42, 64
    s_cbranch_scc1 L_slow1
    v_mov_b32 v41, v40
    s_nop 1
    v_permlane32_swap_b32 v40, v41
    v_max_f32 v40, v40, v41
    v_mov_b32 v42, 0
    v_and_b32 v43, 7, v{vLANE}
    v_bfe_u32 v44, v{vLANE}, 3, 2
    v_lshl_add_u32 v43, v43, 2, v44
    v_lshl_add_u32 v43, v{vW}, 5, v43
    v_lshlrev_b32 v43, 2, v43
    v_lshrrev_b32 v44, 5, v{vLANE}
    s_lshl_b32 s52, s33, 11
    v_lshl_add_u32 v44, v44, 2, s52
    v_lshl_add_u32 v43, v44, 9, v43
    v_lshlrev_b32 v44, 1, v44
    s_mov_b32 s41, s40
    s_mov_b32 s42, 0
    """)
    for i in range(16): S(f"v_mov_b32 v{V_O0+i}, 0")
    S.label("L_slow2")
    for g in range(4):
        S(f"global_load_dwordx2 v[{64+2*g}:{65+2*g}], v44, s[14:15] offset:{16*g}")
        S(f"global_load_dwordx2 v[{72+2*g}:{73+2*g}], v44, s[16:17] offset:{16*g}")
        for b_ in range(4): S(f"global_load_dword v{48+4*g+b_}, v43, s[12:13] offset:{512*b_}")
        S("v_add_u32 v43, 0x1000, v43")
    S("v_add_u32 v44, 64, v44")
    slow_qk()
    for i in range(16): S(f"v_sub_f32 v{24+i}, v{24+i}, v40")
    for i in range(16): S(f"v_exp_f32 v{24+i}, v{24+i}")
    for i in range(16): S(f"v_add_f32 v42, v42, v{24+i}")
    for i in range(8): S(f"v_cvt_pk_bf16_f32 v{80+i}, v{24+2*i}, v{25+2*i}")
    for i in range(8):
        S(f"""
        v_cvt_f32_i32 v{48+2*i}, v{48+2*i}
        v_cvt_f32_i32 v{49+2*i}, v{49+2*i}
        v_lshlrev_b32 v45, 16, v{72+i}
        v_and_b32 v46, 0xffff0000, v{72+i}
        v_sub_f32 v{48+2*i}, v{48+2*i}, v45
        v_sub_f32 v{49+2*i}, v{49+2*i}, v46
        v_lshlrev_b32 v45, 16, v{64+i}
        v_and_b32 v46, 0xffff0000, v{64+i}
        v_mul_f32 v{48+2*i}, v{48+2*i}, v45
        v_mul_f32 v{49+2*i}, v{49+2*i}, v46
        v_cvt_pk_bf16_f32 v{88+i}, v{48+2*i}, v{49+2*i}
        """)
    S(f"""
    s_nop 1
    v_mfma_f32_32x32x16_bf16 v[{V_O0}:{V_O0+15}], v[88:91], v[80:83], v[{V_O0}:{V_O0+15}]
    v_mfma_f32_32x32x16_bf16 v[{V_O0}:{V_O0+15}], v[92:95], v[84:87], v[{V_O0}:{V_O0+15}]
    s_add_u32 s41, s41, {TILE}
    s_add_u32 s42, s42, 1
    s_cmp_lt_u32 s42, 64
    s_cbranch_scc1 L_slow2
    v_mov_b32 v41, v42
    s_nop 15
    v_permlane32_swap_b32 v42, v41
    v_add_f32 v42, v42, v41
    v_rcp_f32 v{V_TMP}, v42
    s_add_u32 s38, s56, 4096
    s_branch L_pack
    """)
    o = [HEADER, f"; @launch grid=(256,1,1) block=(256,1,1) lds={opt.get('lds', LDS_BYTES)}\n", TARGET, A.text() + OOL.text(),
         f".fill 2048, 4, 0xBF800000\nL_textend:\n.if (L_textend - {KN}) < 24704\n.error \"code prefetch would run past the end of the section\"\n.endif\n", kd(KN, 512, sgpr=102, accum=256)]
    if opt.get("rep"):
        import reporter
        o[1] = f"; @launch kernel={KN} grid=(256,1,1) block=(256,1,1) lds={LDS_BYTES}\n; @launch kernel=rep_kernel grid=(1,1,1) block=(64,1,1) lds=0\n"
        o[4] = o[4] + reporter.text(opt["rep"], RT_OFF, ST_OFF, opt.get("repi", 0), opt.get("repk", 20))
        o.append(kd("rep_kernel", 32))
    return "".join(o)

if __name__ == "__main__":
    opt = {}
    out = sys.argv[1]
    for a_ in sys.argv[2:]:
        k, v = a_.split("=")
        try: v = int(v)
        except:
            try: v = float(v)
            except: pass
        opt[k] = v
    opt.setdefault("pad", 1536); opt.setdefault("ihook", 3); opt.setdefault("chk", 76)
    import hazcheck, subprocess, re, os
    t, n = hazcheck.fix(gen(opt))
    if opt.get("abl"):
        L_ = t.split("\n"); o_ = []; nm = -1
        for ln in L_:
            if "v_mfma_f32_32" in ln: nm += 1
            if 64 <= nm < 192 and any(re.search(rx, ln) for rx in opt["abl"].split("+")): continue
            o_.append(ln)
        t = "\n".join(o_)
    if opt.get("ihook"):
        sys.path.insert(0, "cdna_kernels")
        import cdna_launch as cl
        lines = t.split("\n")
        go = lines.index("L_go:"); endl = lines.index("L_pack:")
        for h in range(opt["ihook"]):
            probe = list(lines)
            for i in range(go + 1, endl):
                if probe[i].strip() and not probe[i].endswith(":"): probe[i] = f"LP_{i}:\n" + probe[i]
            txt = "\n".join(probe)
            for k in range(h, opt["ihook"]): txt = txt.replace("L_end:", f"L_hook{k}:\nL_end:")
            open("_p.s", "w").write(cl.with_harness_metadata(txt, KN, 14, launch_lists=True))
            subprocess.run(["clang", "-x", "assembler", "-target", "amdgcn-amd-amdhsa", "-mcpu=gfx950", "-c", "_p.s", "-o", "_p.o"], check=True)
            assert opt.get("pad") is not None
            sy = subprocess.run(["llvm-objdump", "-t", "_p.o"], capture_output=True, text=True).stdout
            ad = sorted((int(m.group(1), 16) + opt.get("textva", 0), int(m.group(2))) for m in re.finditer(r"^([0-9a-f]+) .* LP_(\d+)$", sy, re.M))
            page = ad[0][0] // 4096 + 1 + h
            cand = [i for a_, i in ad if a_ >= page * 4096 + opt.get("hookoff", 0)]
            if not cand:
                lines.insert(lines.index("L_end:") + 2, f"L_hook{h}:\n  s_branch L_warmed"); continue
            lines.insert(cand[0], f"L_hook{h}:"); lines.insert(cand[0] + 1, "  s_cbranch_execz L_warmed"); endl += 2
        t = "\n".join(lines)
    print("nops inserted:", n)
    open(out, "w").write(t)
```

```python
import sys, math, struct
from asmlib import *
from gen1 import Asm, f2u

KN = NAME + "_kernel"
TILE = 10240
BLK = 4 * TILE
RA = 1 << 20
RB = 4 << 20
X_OFF = 8 << 20
FA_OFF = 4096
FB_OFF = 8192
ST_OFF = 16 << 20
RT_OFF = 17 << 20
SCALE = math.log2(math.e) / math.sqrt(128.0)

LDS_K = 0
LDS_L = 9216
LDS_Q = LDS_L + 2048
LDS_T = LDS_Q + 16896
LDS_R = LDS_T + 8192
LDS_P = 49152
NPB = 3
LDS_BYTES = LDS_P + (NPB + 1) * 16384
assert LDS_R + 12288 <= LDS_P

vT3, vW, vLANE, vK0, vK1, vV, vPW, vPR, vT, vLW, vLR, vOUT, vX, vT2 = 0, 1, 2, 3, 4, 5, 9, 10, 13, 14, 15, 16, 17, 18
vFB, V_L, V_TMP = 19, 20, 22
vOW, vOR = 7, 8
V_S = [24, 56]
V_PO = [88, 104]
COST = dict(l=8, r=6, w=24, e=8, a=4, c=4, bar=42)
A_Q = 0
A_K = [64, 96, 128]
A_P = 160
A_O = 208

HEADER = """; Fused attention over a 2-bit KV cache (dequant + RoPE + softmax(QK^T)V), gfx950, one launch.
"""
def bitop(fn): return fn(0xF0, 0xCC, 0xAA) & 0xFF

def gen(opt):
    for k_ in ("l", "r", "w", "bar"):
        if "c" + k_ in opt: COST[k_] = opt["c" + k_]
    A = Asm()
    OOL = Asm()
    st = opt.get("stamps")
    stl = []; rtdone = []
    stsel = set(opt.get("st", "start,karg,issued,pre,ks,kconv,stored,mid,ackA,bar1,flagsA,mfma0,slot96,slot192,loopend,end").split(","))
    def stamp(name):
        if st and opt.get("rtst") == name and not rtdone:
            rtdone.append(1); A("s_memrealtime s[98:99]")
        if st and opt.get("rtst0") == name: A("s_memrealtime s[96:97]")
        if st and name in stsel and name not in stl:
            i = len(stl); stl.append(name); assert i < 16
            A(f"s_memtime s[{64+2*i}:{65+2*i}]")
    NVR = opt.get("nvr", 4 if opt.get("xtag", 1) else 3); NVE = opt.get("nve", 7); OARCH = opt.get("oarch", 1)
    V_VR = 120; V_VE = V_VR + NVR*8
    V_LV = [V_VE + NVE*4, V_VE + NVE*4 + 16]; V_RV = [V_LV[1] + 16, V_LV[1] + 24]
    V_O1 = V_RV[0]; A_RV = [A_O, A_O + 8]
    V_LA = V_RV[1] + 8
    V_O0 = V_LA + 8
    vR, vR2, vR3 = V_L + 1, vPR + 3 + 100, 0
    V_END = V_O0 + (16 if OARCH else 0)
    vR2, vR3 = V_END, V_END + 1; V_END += 2
    if opt.get("xtag", 1):
        assert V_END <= 256 and OARCH
        vTAG, vPA, vPB = V_O0, V_O0+1, V_L
        vXF = vXL = vXT = vLS = None
    else:
        assert V_END + 8 <= 256, V_END
        vTAG, vPB, vXF, vXL, vXT, vPA, vLS = V_END, V_END+1, V_END+2, V_END+3, V_END+4, V_END+5, V_END+6
    assert opt.get("p32", 1)
    nfull = opt.get("nfull", 6); nsolo = 16 - 2*nfull; nblk = nfull + nsolo
    rounds = [[(r, 0), (r, 1)] for r in range(nfull)] + [[(nfull + 2*i, 0), (nfull + 2*i + 1, 0)] for i in range(nsolo//2)]
    n = len(rounds)
    nt = opt.get("ntfl", "")
    XTAG = opt.get("xtag", 1)
    XSC1 = opt.get("xsc1", 0) or XTAG
    if opt.get("pad") is not None:
        A.raw(f".text\n.p2align 12\n.fill {opt['pad']//4}, 4, 0xBF800000\n")
    A.raw(head(KN))
    A(f"""
    s_load_dwordx16 s[4:19], s[0:1], 0
    s_getpc_b64 s[60:61]
    v_lshlrev_b32 v64, {opt.get("cpfs", 5)}, v0
    """)
    A.vmem("global_load_dword v255, v64, s[60:61]", "cpf")
    A("s_cmpk_ge_u32 s2, 256\n s_cbranch_scc1 L_end")
    stamp("start")
    if st: A("s_memrealtime s[96:97]")
    def a_v():
        A(f"""
        s_and_b32 s3, s57, 1
        s_mul_i32 s3, s3, {256 - 16384}
        v_bfe_u32 v64, v0, 4, 2
        v_lshl_add_u32 v29, v64, 12, v29
        v_bfe_u32 v64, v0, 3, 1
        v_lshl_add_u32 v29, v64, 14, v29
        v_bfe_u32 v64, v0, 6, 1
        v_lshl_add_u32 v29, v64, 11, v29
        v_and_b32 v64, 128, v0
        v_add3_u32 v29, v29, v64, s3
        """)
    A(f"""
    s_and_b32 s52, s2, 7
    s_lshr_b32 s35, s2, 3
    s_lshl_b32 s57, s52, 5
    s_or_b32 s57, s57, s35
    s_lshl_b32 s53, s57, 14
    v_and_b32 v25, 7, v0
    v_lshrrev_b32 v26, 3, v0
    v_lshl_add_u32 v29, v25, 4, s53
    v_lshl_add_u32 v28, v26, 9, v29
    """)
    if opt.get("vpre"): a_v()
    A("s_waitcnt lgkmcnt(0)")
    stamp("karg")
    def l_ts0():
        A("s_and_b32 s3, s53, 0x3000\n v_lshl_add_u32 v70, v0, 4, s3")
        A.vmem(f"global_load_dwordx4 v[88:91], v70, s[14:15]", "TS")
        A.vmem(f"global_load_dwordx4 v[92:95], v70, s[16:17]", "TS")
    for i in range(4):
        A.vmem(f"global_load_dwordx4 v[{32+4*i}:{35+4*i}], v28, s[6:7] offset:{128*i} {nt}", "KR")
    A("s_load_dwordx2 s[22:23], s[0:1], 104\n s_load_dwordx2 s[20:21], s[0:1], 88\n s_lshl_b32 s53, s57, 6\n v_lshl_add_u32 v27, v26, 1, s53")
    A.vmem(f"global_load_ushort v30, v27, s[8:9] {nt}", "KR")
    A.vmem(f"global_load_ushort v31, v27, s[10:11] {nt}", "KR")
    if opt.get("tse", 1) == 1: l_ts0()
    def l_v():
        if not opt.get("vpre"): a_v()
        for m in range(4):
            A.vmem(f"global_load_dwordx4 v[{48+4*m}:{51+4*m}], v29, s[12:13] offset:{512*m} {nt}", "VRAW")
    if not opt.get("vlate"): l_v()
    if opt.get("tse", 1) == 2: l_ts0()
    A(f"""
    v_lshrrev_b32 v{vW}, 6, v0
    v_and_b32 v24, 7, v26
    v_readfirstlane_b32 s32, v{vW}
    v_and_b32 v{vLANE}, 63, v0
    s_lshr_b32 s33, s52, 1
    s_lshl_b32 s53, s33, 7
    s_waitcnt lgkmcnt(0)
    s_load_dword s39, s[22:23], s53
    s_and_b32 s34, s52, 1
    s_lshl_b32 s59, s52, 8
    s_add_u32 s59, s59, {FA_OFF}
    s_and_b32 s36, s35, 1
    s_mov_b32 s24, s22
    s_and_b32 s25, s23, 0xffff
    s_mov_b32 s26, 0x10000000
    s_mov_b32 s27, 0x20000
    s_mul_i32 s37, s57, {TILE}
    s_add_u32 s37, s37, {RB}
    s_lshl_b32 s54, s2, 2
    s_add_u32 s54, s54, s32
    s_lshl_b32 s54, s54, 13
    s_add_u32 s54, s54, {X_OFF}
    """)
    stamp("issued")
    KF = -math.log2(10000.0) / 64
    def trig(idx, mul, pos, nn, t, P1, P2):
        A(f"""
        v_cvt_f32_u32 v{t}, v{idx}
        v_mul_f32 v{t}, {hex(f2u(KF*mul))}, v{t}
        v_exp_f32 v{t}, v{t}
        v_cvt_f32_u32 v{t+1}, v{pos}
        v_mul_f32 v{t}, v{t}, v{t+1}
        """)
        cst = [10000.0 ** (-(j % (nn//2) + 32*(j // (nn//2))) / 64.0) / (2*math.pi) for j in range(nn)]
        A(f"v_mul_f32 v{P2}, {hex(f2u(cst[0]))}, v{t}")
        for j in range(nn):
            A(f"v_cos_f32 v{t+2+2*(j%2)}, v{P2+j}")
            if j + 1 < nn: A(f"v_mul_f32 v{P2+j+1}, {hex(f2u(cst[j+1]))}, v{t}")
            if j: A(f"v_cvt_pk_bf16_f32 v{P1+j-1}, v{t+2+2*((j-1)%2)}, v{t+3+2*((j-1)%2)}")
            A(f"v_sin_f32 v{t+3+2*(j%2)}, v{P2+j}")
            if j: A(f"v_cvt_pk_bf16_f32 v{P2+j-1}, v{t+3+2*((j-1)%2)}, v{t+2+2*((j-1)%2)}")
        j = nn - 1
        A(f"v_cvt_pk_bf16_f32 v{P1+j}, v{t+2+2*(j%2)}, v{t+3+2*(j%2)}")
        A(f"v_cvt_pk_bf16_f32 v{P2+j}, v{t+3+2*(j%2)}, v{t+2+2*(j%2)}")
    KP1, KP2, QP1, QP2 = 96, 104, 112, 128
    def w_trigK():
        A("v_bfe_u32 v150, v27, 1, 11")
        trig(25, 4, 150, 8, 144, KP1, KP2)
    def w_kaddr():
        A(f"""
        v_mul_u32_u24 v173, 144, v26
        v_lshl_add_u32 v173, v25, 4, v173
        v_lshl_add_u32 v174, v{vW}, 3, v25
        v_mul_u32_u24 v172, 144, v174
        v_lshl_add_u32 v172, v24, 4, v172
        v_lshlrev_b32 v174, 4, v174
        v_lshl_add_u32 v174, v24, 9, v174
        v_add_u32 v175, 0x1000, v174
        v_lshrrev_b32 v176, 4, v0
        v_xor_b32 v177, v176, v0
        v_lshl_add_u32 v176, v176, 3, v25
        v_bfe_u32 v177, v177, 3, 1
        v_lshlrev_b32 v176, 4, v176
        v_lshl_add_u32 v176, v177, 29, v176
        v_add_u32 v176, 0x2000, v176
        v_bfe_i32 v177, v0, 4, 1
        v_and_b32 v177, 0x02020202, v177
        v_or_b32 v177, 0x05040100, v177
        v_mov_b32 v178, 0x11111111
        """)
    def l_pt():
        A.vmem("buffer_load_dword v254, off, s[24:27], s59", "PT")
    def l_cpf2():
        NCL = opt.get("ncl", 128)
        A(f"""
        v_min_u32 v64, {NCL//32 - 1}, v{vLANE}
        v_lshl_add_u32 v64, v64, 2, v{vW}
        s_and_b32 s53, s35, 7
        s_add_u32 s53, s53, {2 << opt.get('cpfs', 5)}
        v_lshl_add_u32 v64, v64, 3, s53
        v_lshlrev_b32 v64, 7, v64
        """)
        A.vmem(f"global_load_dword v255, v64, s[60:61]", "cpf")
    def w_qaddr():
        A(f"""
        s_lshr_b32 s52, s32, 1
        s_xor_b32 s53, s57, s52
        s_lshl_b32 s53, s53, 5
        v_bfe_u32 v66, v0, 2, 5
        v_and_b32 v71, 3, v0
        v_add_u32 v67, s53, v66
        v_lshlrev_b32 v68, 8, v67
        v_lshl_add_u32 v68, v71, 4, v68
        v_and_b32 v67, 2047, v67
        s_mul_i32 s52, s52, 8448
        v_mul_u32_u24 v180, 1056, v71
        v_lshl_add_u32 v180, v66, 4, v180
        v_add_u32 v180, s52, v180
        """)
    QS2 = opt.get("qs", 0)
    def l_q():
        if QS2: A("s_lshl_b32 s52, s36, 7\n v_add_u32 v68, s52, v68")
        for k in range(0 if opt.get("noq") else (2 if QS2 else 4)):
            A.vmem(f"global_load_dwordx4 v[{72+4*k}:{75+4*k}], v68, s[4:5] offset:{64*k} {opt.get('qfl', '')}", "QR")
    def l_q2():
        A("v_xor_b32 v68, 128, v68")
        for k in range(2):
            A.vmem(f"global_load_dwordx4 v[{80+4*k}:{83+4*k}], v68, s[4:5] offset:{64*k}", "QR")
    def l_ts():
        A("s_lshl_b32 s53, s33, 12\n v_lshl_add_u32 v70, v0, 4, s53")
        A.vmem(f"global_load_dwordx4 v[88:91], v70, s[14:15]", "TS")
        A.vmem(f"global_load_dwordx4 v[92:95], v70, s[16:17]", "TS")
    def w_trigQ():
        trig(71, 8, 67, 16, 144, QP1, QP2)
    def w_blk():
        A(f"""
        s_lshl_b32 s52, s34, 3
        s_lshl_b32 s53, s36, 2
        s_add_u32 s18, s52, s53
        s_xor_b32 s52, s52, 8
        s_mul_i32 s53, s36, {nfull-4}
        s_add_u32 s19, s52, s53
        s_add_u32 s3, s52, {2*(nfull-4)}
        v_lshlrev_b32 v179, 5, v0
        v_lshrrev_b32 v171, 1, v0
        v_mul_u32_u24 v171, 96, v171
        v_and_b32 v170, 1, v0
        v_lshl_add_u32 v171, v170, 3, v171
        v_add_u32 v171, {LDS_R}, v171
        v_bfe_u32 v157, v0, 4, 1
        v_bfe_u32 v158, v0, 1, 3
        v_cmp_eq_u32 vcc, v157, v158
        v_bfe_u32 v157, v0, 5, 3
        v_and_b32 v158, 1, v157
        v_cndmask_b32 v170, 2, v170, vcc
        v_mul_u32_u24 v158, 48, v158
        v_lshl_add_u32 v158, v170, 4, v158
        v_mul_u32_u24 v157, 192, v{vW}
        v_add_u32 v158, v158, v157
        s_mul_i32 s52, s18, 768
        v_add_u32 v{vR}, s52, v158
        s_mul_i32 s52, s19, 768
        v_add_u32 v{vR2}, s52, v158
        s_mul_i32 s52, s3, 768
        v_add_u32 v{vR3}, s52, v158
        v_lshrrev_b32 v151, 5, v{vLANE}
        v_lshlrev_b32 v152, 4, v151
        v_lshl_add_u32 v152, v{vW}, 7, v152
        s_lshl_b32 s52, s18, 9
        v_add_u32 v{vT}, s52, v152
        s_lshl_b32 s52, s19, 9
        v_add_u32 v{vT2}, s52, v152
        v_cmp_eq_u32 vcc, 0, v0
        s_lshl_b32 s52, s33, 4
        """)
        for src, reg, b0, b1 in (("s18", RB if opt.get("noa", 1) else RA, 0, 4), ("s19", RB, 4, nfull), ("s3", RB, nfull, nblk)):
            if b1 > b0:
                A(f"s_add_u32 s53, s52, {src}\n s_mul_i32 s53, s53, {BLK}")
                for b_ in range(b0, b1): A(f"s_add_u32 s{42+b_}, s53, {reg + (b_-b0)*BLK}")
        A(f"""
        v_bfrev_b32 v153, 4
        v_cndmask_b32 v{vFB}, v153, 0, vcc
        {"v_and_b32 v154, 31, v%d" % vLANE if opt.get("p32", 1) else "s_lshl_b32 s53, s36, 6"}
        {"v_lshlrev_b32 v%d, 2, v154" % vPA if opt.get("p32", 1) else "v_and_b32 v154, 15, v%d" % vLANE}
        {"" if opt.get("p32", 1) else "v_lshl_add_u32 v%d, v154, 2, s53" % vPA}
        v_lshlrev_b32 v{vX}, 4, v{vLANE}
        v_lshl_add_u32 v23, v151, 4, v{vX}
        s_mul_i32 s52, s32, {TILE}
        v_add_u32 v{vK0}, s52, v{vX}
        v_add_u32 v{vK1}, 0x1000, v{vK0}
        s_getreg_b32 s41, hwreg(HW_REG_XCC_ID, 0, 4)
        """)
    def w_vaddr():
        A(f"""
        s_lshr_b32 s52, s32, 1
        s_and_b32 s53, s32, 1
        s_lshl_b32 s53, s53, 10
        s_add_u32 s53, s53, 8192
        s_mul_i32 s38, s52, {3*TILE}
        s_add_u32 s38, s38, s53
        v_add_u32 v{vV}, s38, v{vX}
        s_mul_i32 s38, s52, {-TILE}
        s_add_u32 s38, s38, {2*TILE}
        s_add_u32 s38, s38, s53
        v_add_u32 v{vV+1}, s38, v{vX}
        v_lshl_add_u32 v{vPW}, v{vW}, 12, v{vX}
        v_add_u32 v{vPW}, {LDS_P}, v{vPW}
        v_xor_b32 v{vPW+1}, 0x1000, v{vPW}
        v_xor_b32 v{vPW+2}, 0x2000, v{vPW}
        v_xor_b32 v{vPW+3}, 0x3000, v{vPW}
        """)
    late = []
    late2 = []; late3 = []
    def w_late():
        L_ = f"""
        s_xor_b32 s38, s34, 1
        s_lshl_b32 s38, s38, 11
        v_and_b32 v{vPB}, {31 if opt.get("chk") else 7}, v{vLANE}
        {"" if opt.get("chk") else "v_lshl_add_u32 v%d, v%d, 3, v%d" % (vPB, vW, vPB)}
        v_lshl_add_u32 v{vPB}, v{vPB}, 6, s38
        v_and_b32 v{vLR}, 31, v{vLANE}
        v_lshlrev_b32 v{vLR}, 5, v{vLR}
        v_lshlrev_b32 v{vLW}, 5, v{vLANE}
        v_lshl_add_u32 v{vLW}, v{vW}, 3, v{vLW}
        v_cmp_gt_u32 vcc, 16, v{vLANE}
        v_add_u32 v{V_TMP}, {LDS_L}, v{vLW}
        s_nop 0
        v_cndmask_b32 v{vLW}, v{vLW}, v{V_TMP}, vcc
        s_sub_u32 s38, 2, s36
        s_mul_i32 s38, s38, {(nfull-4)*512}
        v_add_u32 v{vT3}, s38, v{vT2}
        s_xor_b32 s55, s54, 0x40000
        s_lshl_b32 s56, s57, 13
        s_lshl_b32 s38, s32, 6
        s_add_u32 s56, s56, s38
        s_mov_b32 s28, s20
        s_and_b32 s29, s21, 0xffff
        s_mov_b32 s30, 0x200000
        s_mov_b32 s31, 0x20000
        """
        if not XTAG: L_ += f"""
        s_xor_b32 s37, s35, 1
        s_lshl_b32 s37, s37, 2
        s_add_u32 s37, s37, s59
        v_lshrrev_b32 v{vXL}, 3, v{vLR}
        v_add_u32 v{vXL}, 4096, v{vXL}
        v_mov_b32 v{vXF}, 4352
        v_min_u32 v{vXT}, 32, v{vLANE}
        v_lshlrev_b32 v{vXT}, 7, v{vXT}
        """
        late.extend(x.strip() for x in L_.split("\n") if x.strip())
        late.extend([f"v_and_b32 v{vOW}, 31, v{vLANE}", f"v_lshl_add_u32 v{vOW}, v{vW}, 5, v{vOW}", f"v_mul_u32_u24 v{vOW}, 80, v{vOW}",
                     f"v_and_b32 v{V_TMP}, 32, v{vLANE}", f"v_add_u32 v{vOW}, v{vOW}, v{V_TMP}",
                     f"v_lshrrev_b32 v{vOUT}, 2, v{vLANE}", f"v_lshl_add_u32 v{vOR}, v{vW}, 5, v{vOUT}", f"v_mul_u32_u24 v{vOR}, 80, v{vOR}",
                     f"v_and_b32 v{V_TMP}, 48, v{vX}", f"v_add_u32 v{vOR}, v{vOR}, v{V_TMP}", f"v_lshl_add_u32 v{vOUT}, v{vOUT}, 8, v{V_TMP}"])
    def w_tables():
        A.need(["TS"])
        x = 184
        for k in range(4):
            A(f"v_lshlrev_b32 v{x+2*k}, 16, v{88+k}\n v_and_b32 v{x+2*k+1}, 0xffff0000, v{88+k}")
        A("s_mov_b32 s52, 0x3fc03fc0")
        ex = ["v_xor_b32 v92, s52, v92", "v_xor_b32 v93, s52, v93", "v_xor_b32 v94, s52, v94", "v_xor_b32 v95, s52, v95",
              "v_or3_b32 v92, v92, v93, v94", "v_or_b32 v92, v92, v95", "v_mov_b32 v95, 0x7fc00000", "v_cmp_eq_u32 s[52:53], 0, v92"]
        for k in range(8): A(f"v_log_f32 v{192+k}, v{x+k}\n {ex[k]}")
        ex = ["v_max3_f32 v93, |v192|, |v193|, |v194|", "v_max3_f32 v94, |v195|, |v196|, |v197|", "v_max3_f32 v93, |v198|, |v199|, v93", "v_max_f32 v93, v93, v94",
              "v_cmp_gt_f32 vcc, 0x41f00000, v93", "s_nop 0", "s_and_b64 vcc, vcc, s[52:53]", "s_nop 0"]
        A(f"v_rcp_f32 v200, v{x}")
        A.ds(f"ds_write_b128 v179, v[192:195] offset:{LDS_T}", "QW"); A.ds(f"ds_write_b128 v179, v[196:199] offset:{LDS_T+16}", "QW")
        for k in range(1, 8): A(f"{ex[k-1]}\n v_rcp_f32 v{200+k}, v{x+k}")
        A("v_cndmask_b32 v200, v95, v200, vcc")
        for k in range(4): A(f"v_cvt_pk_bf16_f32 v{184+k}, v{200+2*k}, v{201+2*k}")
        A("v_mov_b32 v92, 0\n v_mov_b32 v93, 0")
        for k in range(4):
            A(f"v_lshlrev_b32 v94, 16, v{184+k}\n v_and_b32 v95, 0xffff0000, v{184+k}\n v_sub_f32 v94, v{200+2*k}, v94\n v_sub_f32 v95, v{201+2*k}, v95\n v_cvt_pk_bf16_f32 v{188+k}, v94, v95")
        A.ds("ds_write2_b64 v171, v[184:185], v[188:189] offset0:0 offset1:2", "QW")
        A.ds("ds_write2_b64 v171, v[186:187], v[190:191] offset0:6 offset1:8", "QW")
        A.ds("ds_write2_b64 v171, v[92:93], v[92:93] offset0:4 offset1:10", "QW")
    def w_qrope():
        A.need(["QR"])
        if QS2: A("s_cmp_eq_u32 s36, 0\n s_mov_b32 s53, 0x01000504\n s_cselect_b32 s52, 0x05040100, s53\n s_add_u32 s53, s52, 0x02020202")
        else: A("s_mov_b32 s52, 0x05040100\n s_mov_b32 s53, 0x07060302")
        x = 32
        pend = []
        for half in range(2):
            for k in (2*half, 2*half+1, 4+2*half, 5+2*half):
                A(f"v_perm_b32 v{x+2*k}, v{80+k}, v{72+k}, s52\n v_perm_b32 v{x+2*k+1}, v{80+k}, v{72+k}, s53")
            js = [4*half + t for t in range(4)] + [8 + 4*half + t for t in range(4)]
            for o_, (P_, md) in enumerate(((QP1, " neg_hi:[0,1,0]"), (QP2, ""))):
                y = 192 + 8*o_; zz = 208 + 8*half + 4*o_
                for t, j in enumerate(js): A(f"v_dot2_f32_bf16 v{y+t}, v{x+j}, v{P_+j}, 0{md}")
                for p_ in pend: p_()
                for k in range(4): A(f"v_cvt_pk_bf16_f32 v{zz+k}, v{y+2*k}, v{y+2*k+1}")
                pend = [lambda zz=zz, off=LDS_Q + 528*half + 8*528*o_: A.ds(f"ds_write_b128 v180, v[{zz}:{zz+3}] offset:{off}", "QW")]
        for p_ in pend: p_()
    def w_staddr():
        A(f"""
        v_lshlrev_b32 v159, 7, v{vW}
        v_lshl_add_u32 v159, v{vLANE}, 9, v159
        v_and_b32 v64, 3, v{vLANE}
        v_lshl_add_u32 v64, v{vW}, 2, v64
        v_cmp_gt_u32 vcc, 16, v{vLANE}
        v_lshlrev_b32 v64, 7, v64
        v_add_u32 v64, 0x2000, v64
        v_cndmask_b32 v159, v64, v159, vcc
        """)
    def w_st2():
        A(f"""
        v_and_b32 v159, 15, v{vLANE}
        v_lshlrev_b32 v159, 9, v159
        v_lshl_add_u32 v159, v{vW}, 7, v159
        v_and_b32 v{V_O0+2}, 3, v{vLANE}
        v_lshl_add_u32 v{V_O0+2}, v{vW}, 2, v{V_O0+2}
        v_lshlrev_b32 v{V_O0+2}, 7, v{V_O0+2}
        v_add_u32 v{V_O0+2}, 0x2000, v{V_O0+2}
        """)
    def w_tk():
        A.need(["SK"]); stamp("ackK")
        A.vmem(f"buffer_load_dword v254, v159, s[24:27], s37 offen sc1", "ST")
    def w_ident():
        assert V_O0 >= 235
        A(f"""
        v_bfe_u32 v232, v{vLANE}, 3, 2
        v_bfe_u32 v233, v{vLANE}, 1, 1
        v_lshl_add_u32 v232, v232, 1, v233
        v_lshrrev_b32 v233, 3, v{vLANE}
        v_xor_b32 v233, v233, v{vLANE}
        v_and_b32 v233, 4, v233
        v_lshl_add_u32 v232, v233, 1, v232
        v_and_b32 v233, 1, v{vLANE}
        v_lshlrev_b32 v233, 4, v233
        v_mov_b32 v234, 0x3f80
        v_lshlrev_b32 v233, v233, v234
        """)
        msk = ["vcc", "s[52:53]", "s[100:101]"]
        for k in range(10):
            if k < 8: A(f"v_cmp_eq_u32 {msk[k%3]}, {k}, v232")
            if k >= 2: A(f"v_cndmask_b32 v{224+k-2}, 0, v233, {msk[(k-2)%3]}")
        A.ds(f"ds_write_b128 v{vPW}, v[224:227] offset:{NPB*16384}", "QW")
        A.ds(f"ds_write_b128 v{vPW}, v[228:231] offset:{NPB*16384+1024}", "QW")
    def w_rb():
        for r_ in (174, 175, 176): A.vmem(f"buffer_load_dword v254, v{r_}, s[24:27], s37 offen sc1", "ST")
    def w_ptb(): A.vmem(f"buffer_load_dword v254, v159, s[24:27], s37 offen {opt.get('ptbfl', '')}", "PT")
    def w_wpt(): A.need(["PT"])
    def w_wcpf(): A.need(["cpf"])
    def w_wq(): A.need(["QR"])
    def w_otlb():
        A("s_lshl_b32 s52, s57, 13\n v_mov_b32 v64, s52\n s_waitcnt lgkmcnt(0)"); A.lg = []
        A.vmem("global_load_dword v255, v64, s[20:21]", "cpf")
    def w_flush():
        for l_ in late: A(l_)
        late.clear()
    def w_warm():
        if opt.get("ihook"):
            A("s_mov_b64 exec, 0")
            for i in range(opt["ihook"]): A(f"s_cmp_eq_u32 s32, {i}\n s_cbranch_scc1 L_hook{i}")
            A.label("L_warmed"); A("s_mov_b64 exec, -1")
    W = dict(trigK=w_trigK, kaddr=w_kaddr, pt=l_pt, cpf2=l_cpf2, q=l_q, q2=l_q2, qaddr=w_qaddr, ts=l_ts, trigQ=w_trigQ, blk=w_blk, vaddr=w_vaddr,
             tables=w_tables, qrope=w_qrope, flush=w_flush, otlb=w_otlb, staddr=w_staddr, ptb=w_ptb, rb=w_rb, ident=w_ident, wpt=w_wpt, wcpf=w_wcpf, wq=w_wq, st2=w_st2, tk=w_tk, v=l_v, warm=w_warm)
    jn = [0]
    def run(seq):
        for x_ in seq.split("."):
            if x_: W[x_](); stamp(x_)
            if x_ and opt.get("jit") is not None:
                jn[0] += 1
                if (jn[0] + opt["jit"]) % 3 == 0:
                    A(f"s_cmp_lg_u32 s32, {(jn[0] + opt['jit']) % 4}" if jn[0] % 2 else f"s_bitcmp0_b32 s2, {(jn[0] + opt['jit']) % 8}")
                    A(f"s_cbranch_scc1 L_jp{jn[0]}\n s_sleep {20 + 10 * (jn[0] % 4)}"); A.label(f"L_jp{jn[0]}")
    w_late()
    run(opt.get("o1", "pt.trigK.kaddr.cpf2.qaddr.trigQ.blk.q"))
    stamp("pre")
    A.need(["KR"])
    stamp("ks")
    A(f"v_lshlrev_b32 v30, 16, v30\n v_lshlrev_b32 v31, 16, v31\n v_mul_f32 v30, {hex(f2u(SCALE))}, v30\n v_mul_f32 v31, v31, v30")
    for j in range(16): A(f"v_cvt_f32_i32 v{32+j}, v{32+j}")
    for j in range(16): A(f"v_fma_f32 v{32+j}, v{32+j}, v30, -v31")
    for j in range(8): A(f"v_cvt_pk_bf16_f32 v{32+j}, v{32+j}, v{40+j}")
    for j in range(8): A(f"v_dot2_f32_bf16 v{KP1+j}, v{32+j}, v{KP1+j}, 0 neg_hi:[0,1,0]")
    for j in range(8): A(f"v_dot2_f32_bf16 v{KP2+j}, v{32+j}, v{KP2+j}, 0")
    for p in range(4): A(f"v_cvt_pk_bf16_f32 v{40+p}, v{KP1+2*p}, v{KP1+2*p+1}")
    A("s_waitcnt lgkmcnt(0)"); A.lg = []
    A.ds("ds_write_b128 v172, v[40:43]", "KT")
    for p in range(4): A(f"v_cvt_pk_bf16_f32 v{44+p}, v{KP2+2*p}, v{KP2+2*p+1}")
    A.ds("ds_write_b128 v172, v[44:47] offset:4608", "KT")
    A.ds("ds_read_b128 v[160:163], v173", "KT2")
    A.ds("ds_read_b128 v[164:167], v173 offset:4608", "KT2")
    stamp("kconv")
    NOA = 1
    sa = "s37 offen sc1" if NOA else "s58 offen"
    if opt.get("kfirst"):
        A.need(ltags=["KT2"])
        A.vmem(f"buffer_store_dwordx4 v[160:163], v174, s[24:27], {sa}", "SK")
        A.vmem(f"buffer_store_dwordx4 v[164:167], v175, s[24:27], {sa}", "SK")
        run(opt.get("o1b", ""))
    def w_vconv():
        A.need(["VRAW"])
        for c in range(4): A(f"v_lshl_or_b32 v{48+c}, v{52+c}, 4, v{48+c}")
        for c in range(4): A(f"v_lshl_or_b32 v{56+c}, v{60+c}, 4, v{56+c}")
        for c in range(4): A(f"v_lshl_or_b32 v{48+c}, v{56+c}, 8, v{48+c}")
        A("v_lshl_or_b32 v48, v49, 16, v48\n v_lshl_or_b32 v49, v51, 16, v50")
        A("s_mov_b32 s52, 0x22222222\n s_mov_b32 s53, 0x88888888")
        A("v_permlane32_swap_b32 v48, v49")
        A("v_mov_b32 v50, v48\n v_mov_b32 v51, v49")
        A.need(ltags=["KT2"])
        if not opt.get("kfirst"):
            A.vmem(f"buffer_store_dwordx4 v[160:163], v174, s[24:27], {sa}", "SA")
            A.vmem(f"buffer_store_dwordx4 v[164:167], v175, s[24:27], {sa}", "SA")
        A("v_permlane16_swap_b32 v48, v50\n v_permlane16_swap_b32 v49, v51")
        A("v_perm_b32 v144, v50, v48, v177\n v_perm_b32 v145, v51, v49, v177")
        t1 = bitop(lambda a, b, c: ~(a ^ b) & c); t2 = bitop(lambda a, b, c: (~a & b) | c)
        for r in (144, 145):
            A(f"v_lshlrev_b32 v55, 1, v{r}\n v_lshlrev_b32 v56, 2, v{r}")
            A(f"v_bitop3_b32 v55, v{r}, v55, s52 bitop3:{hex(t1)}")
            A(f"v_bitop3_b32 v56, v56, s53, v178 bitop3:{hex(t2)}")
            A(f"v_or_b32 v{r}, v55, v56")
        A("v_mov_b32_dpp v146, v144 row_ror:8 row_mask:0xf bank_mask:0xf\n v_mov_b32_dpp v147, v145 row_ror:8 row_mask:0xf bank_mask:0xf")
        A.vmem(f"buffer_store_dwordx4 v[144:147], v176, s[24:27], {sa}", "SA")
    W["vconv"] = w_vconv
    if not opt.get("vdefer"): w_vconv()
    run(opt.get("o2", ""))
    def st_b():
        if NOA: return
        A.vmem("buffer_store_dwordx4 v[160:163], v174, s[24:27], s37 offen sc1", "SB")
        A.vmem("buffer_store_dwordx4 v[164:167], v175, s[24:27], s37 offen sc1", "SB")
        A.vmem("buffer_store_dwordx4 v[144:147], v176, s[24:27], s37 offen sc1", "SB")
    W["sb"] = st_b
    if not opt.get("sbl", 1): st_b()
    stamp("stored")
    run(opt.get("o3", "staddr.vaddr.tables.flush"))
    A(f"""
    s_mul_i32 s40, s39, 0x9E3779B1
    s_add_u32 s40, s40, 0x7F4A7C15
    s_and_b32 s40, s40, 0xfffffff0
    s_or_b32 s62, s40, s41
    s_lshl_b32 s63, s35, 2
    s_add_u32 s63, s63, s59
    v_mov_b32 v24, s62
    s_or_b32 s61, s40, 8
    s_lshl_b32 s18, s57, 6
    s_add_u32 s18, s18, {FB_OFF}
    v_mov_b32 v{vTAG}, s61
    """)
    FBE = 2
    stamp("mid")
    if opt.get("half"):
        A(f"s_bfe_u32 s38, s35, 0x20002\n s_cmp_ge_u32 s38, {opt['half']}\n s_cselect_b32 s38, 0x20000000, s37\n s_cselect_b32 s37, s37, 0x20000000")
    if opt.get("adapt"):
        A.vmem(f"buffer_load_dword v26, v{vPA}, s[24:27], s59 offen sc1", "SA")
    A.need(["SA"], ["QW"])
    stamp("ackA")
    if opt.get("adapt"):
        A(f"""
        v_cmp_eq_u32 vcc, s62, v26
        s_bcnt1_i32_b32 s52, vcc_lo
        s_cmp_ge_u32 s52, {opt["adapt"]}
        s_cselect_b32 s52, 0x20000000, s37
        s_cselect_b32 s37, s37, 0x20000000
        """)
        A.vmem(f"buffer_load_dword v254, v159, s[24:27], s52 offen sc1", "ST")
    elif opt.get("half"):
        A.vmem(f"buffer_load_dword v254, v159, s[24:27], s38 offen sc1", "ST")
    elif opt.get("stch", 1) == 1: A.vmem(f"buffer_load_dword v254, v159, s[24:27], s37 offen sc1", "ST")
    A("s_barrier")
    A.vmem(f"buffer_store_dword v24, v{vFB}, s[24:27], s63 offen", "FA")
    if opt.get("fb0", 1): A.vmem(f"buffer_store_dword v{vTAG}, v{vFB}, s[24:27], s18 offen sc1", "FB")
    if opt.get("stch", 1) == 2: A.vmem(f"buffer_load_dword v254, v159, s[24:27], s37 offen sc1", "ST")
    stamp("bar0")
    run(opt.get("o3b", "qrope.ident"))
    A(f"""
    buffer_load_dword v26, v{vPA}, s[24:27], s59 offen sc1
    s_lshl_b32 s60, s33, 12
    s_add_u32 s60, s60, {FB_OFF}
    {"" if opt.get("fb0", 1) else "s_mov_b32 s3, 0"}
    s_mov_b32 s19, 0
    """)
    run(opt.get("o5", "warm"))
    A.label("L_pollA")
    A(f"""
    s_waitcnt vmcnt(0)
    v_cmp_eq_u32 vcc, s62, v26
    s_cmp_eq_u64 vcc, -1
    """)
    if opt.get("inl", 0):
        A(f"""
        s_cbranch_scc1 L_seen
        buffer_load_dword v26, v{vPA}, s[24:27], s59 offen sc1
        s_add_u32 s19, s19, 1
        s_cmp_lt_u32 s19, {opt.get("tmo", 64)}
        s_cbranch_scc1 L_pollA
        s_branch L_pollA_more
        """)
        A.label("L_seen")
    else: A("s_cbranch_scc0 L_pollA_more")
    A.vm = []
    stamp("flagsA")
    OOL.label("L_pollA_more")
    OOL(f"""
    buffer_load_dword v26, v{vPA}, s[24:27], s59 offen sc1
    s_add_u32 s19, s19, 1
    s_cmp_lt_u32 s19, {opt.get("tmo", 64)}
    s_cbranch_scc1 L_pollA
    s_waitcnt vmcnt(0)
    {"" if opt.get("fb0", 1) else "s_waitcnt lgkmcnt(0)"}
    {"" if opt.get("fb0", 1) else "s_barrier"}
    {"" if opt.get("fb0", 1) else "buffer_store_dword v%d, v%d, s[24:27], s18 offen sc1" % (vTAG, vFB)}
    v_lshlrev_b32 v27, 4, v{vPA}
    s_lshl_b32 s52, s34, 11
    v_add_u32 v27, s52, v27
    s_mov_b32 s53, 0
    """)
    OOL.label("L_pollB0")
    OOL(f"""
    buffer_load_dword v26, v27, s[24:27], s60 offen sc1
    s_add_u32 s53, s53, 1
    s_waitcnt vmcnt(0)
    v_cmp_eq_u32 vcc, s61, v26
    s_cmp_eq_u64 vcc, -1
    s_cbranch_scc1 L_pollB0_ok
    s_sleep 4
    s_cmp_lt_u32 s53, 0x100000
    s_cbranch_scc1 L_pollB0
    """)
    OOL.label("L_pollB0_ok")
    for b_ in range(0 if opt.get("noa", 1) else 4): OOL(f"s_add_u32 s{42+b_}, s{42+b_}, {RB-RA}")
    OOL(("" if opt.get("fb0", 1) else "s_mov_b32 s3, 1\n") + "s_branch L_go")

    order = []
    for r in range(n):
        order.append(("QK", r))
        if r >= 1: order.append(("PV", r-1))
    order.append(("PV", n-1))
    mf = []; a = [0]*n; b = [0]*n
    for kind, r in order:
        if kind == "QK":
            a[r] = len(mf)
            if r < opt.get("smaj", 2):
                for s in range(8):
                    for u in range(2): mf.append(("QK", r, u, s))
            else:
                for u in range(2):
                    for s in range(8): mf.append(("QK", r, u, s))
        else:
            b[r] = len(mf)
            if r == nfull-1 and opt.get("early", 1):
                for kk in range(2):
                    for u in (1, 0): mf.append(("PV", r, u, kk))
                for u in (1, 0):
                    for kk in range(2, 8): mf.append(("PV", r, u, kk))
            else:
                for kk in range(8):
                    for u in range(2): mf.append(("PV", r, u, kk))
    nslots = len(mf)
    sready = {(m[1], m[2]): sl + 3 for sl, m in enumerate(mf) if m[0] == "QK"}
    q1last = {m[3]: sl for sl, m in enumerate(mf) if m[0] == "QK" and rounds[m[1]][m[2]][1] == 1}
    firstuse = {}; lastuse = {}
    for sl, m in enumerate(mf):
        blk = rounds[m[1]][m[2]][0]
        key = ("K" if m[0] == "QK" else "V", blk, m[3])
        firstuse.setdefault(key, sl); lastuse[key] = sl
    kbuf = {}; kfree = {}
    q1dead = a[nfull-1] + 15
    bases = list(A_K); hold = [None]*len(bases)
    if OARCH and opt.get("k4", 1): bases.append(224); hold.append(None)
    if nsolo: bases.append(A_Q + 32); hold.append("Q1")
    for blk in range(nblk):
        def rel(h): return -1 if h is None else (q1dead if h == "Q1" else lastuse[("K", h, 7)])
        i = min(range(len(bases)), key=lambda i: rel(hold[i]))
        for s in range(8):
            h = hold[i]
            kfree[(blk, s)] = -1 if h is None else (q1last[s] if h == "Q1" else lastuse[("K", h, s)])
        kbuf[blk] = bases[i]; hold[i] = blk
    def oreg(qt):
        if OARCH: return f"v[{V_O0}:{V_O0+15}]" if qt == 0 else f"v[{V_O1}:{V_O1+15}]"
        return f"a[{A_O+16*qt}:{A_O+16*qt+15}]"
    A_O1 = A_O if OARCH else A_O + 16
    vexp = sorted({k for k in firstuse if k[0] == "V"}, key=lambda k: firstuse[k])
    vereg = {k: V_VE + (i % NVE)*4 for i, k in enumerate(vexp)}
    vefree = {k: (-1 if i < NVE else lastuse[vexp[i-NVE]]) for i, k in enumerate(vexp)}
    vedone = {}
    barlead = opt.get("barlead", 3)
    gate = opt["chk"] + 1 if opt.get("chk") else b[opt.get("gater", 1)] - barlead
    kl = [("K", blk, s) for blk in range(nblk) for s in range(8)]
    vl = sorted([("VR", blk, i) for blk in range(nblk) for i in range(2)], key=lambda k: firstuse[("V", k[1], 4*k[2])])
    need_at = {k: firstuse[k] for k in kl}
    need_at.update({k: firstuse[("V", k[1], 4*k[2])] - opt.get("vneed", 26) for k in vl})
    for i in range(2): need_at[("VR", 0, i)] = opt.get("v0need", 26) + opt.get("v0d", 6)*i
    for i in range(2): need_at[("VR", 1, i)] = max(need_at[("VR", 1, i)], opt.get("v1need", 56) + 4*i)
    issued = set()
    def ld_free(key):
        f = -1
        if key[0] == "K": f = kfree[(key[1], key[2])]
        elif key[1] >= NVR: f = vedone.get(("V", key[1]-NVR, 4*key[2]+3), 10**6)
        if key[1] >= 4: f = max(f, gate)
        return f
    def ld(key):
        k, blk, f = key
        issued.add(key)
        if k == "K":
            rg = kbuf[blk] + 4*f
            A.vmem(f"buffer_load_dwordx4 a[{rg}:{rg+3}], v{vK0 + f//4}, s[24:27], s{42+blk} offen offset:{(f%4)*1024} {opt.get('kvfl', 'sc1')}", key)
        else:
            rg = V_VR + (blk % NVR)*8 + 4*f
            A.vmem(f"buffer_load_dwordx4 v[{rg}:{rg+3}], v{vV+f}, s[24:27], s{42+blk} offen {opt.get('kvfl', 'sc1')}", key)
    tb = []
    for r in range(n):
        for u in range(2):
            if not tb or tb[-1][0] != rounds[r][u][0]: tb.append((rounds[r][u][0], r, u))
    lvreg = {blk: V_LV[i % 2] for i, (blk, _, _) in enumerate(tb)}
    rvreg = {blk: A_RV[i % 2] for i, (blk, _, _) in enumerate(tb)}
    lv_use = {blk: firstuse[("K", blk, 0)] for blk, _, _ in tb}
    lv_last = {blk: lastuse[("K", blk, 0)] for blk, _, _ in tb}
    rv_done = {}
    lvq = [("LV", blk, q, i) for i, (blk, r, u) in enumerate(tb) for q in range(4)]
    rvq = [("RV", blk, q, i) for i, (blk, r, u) in enumerate(tb) for q in range(2)]
    tdone = {}
    A.label("L_go")
    if opt.get("diag"): A("s_mov_b32 s3, 0")
    def qread(i):
        A.ds(f"ds_read_b128 a[{A_Q+4*i}:{A_Q+4*i+3}], v23 offset:{LDS_Q + (i//8)*8448 + (i%8)*1056}", ("Q", i//8, i%8))
    qord = [x for s_ in range(8) for x in (s_, 8+s_)] if opt.get("smaj", 2) else list(range(16))
    for _ in range(opt.get("npre0", 2)): ld(kl.pop(0))
    if opt.get("stch", 1) == 3: A.vmem(f"buffer_load_dword v254, v159, s[24:27], s37 offen sc1", "ST")
    assert opt.get("fb0", 1) or not opt.get("o6")
    run(opt.get("o6", ""))
    if opt.get("fb0", 1):
        if A.lg: A("s_waitcnt lgkmcnt(0)\n s_barrier"); A.lg = []
    else:
        A("s_cmp_eq_u32 s3, 0\n s_waitcnt lgkmcnt(0)\n s_cbranch_scc0 L_skip2\n s_barrier"); A.lg = []
        A.label("L_skip2")
    stamp("bar1")
    rd = [lambda q_=q_: A.ds(f"ds_read_b128 v[{V_LV[0]+4*q_}:{V_LV[0]+4*q_+3}], v{vT} offset:{LDS_T + q_*32}", ("LV", 0, q_)) for q_ in range(4)]
    rd += [lambda i=i: qread(i) for i in qord[:10]]
    for _ in range(opt.get("npre", 6) - opt.get("npre0", 2)):
        for _ in range(opt.get("gap0", 3)):
            if rd: rd.pop(0)()
        ld(kl.pop(0))
    if opt.get("tv") == -1: A.vmem(f"buffer_load_dword v255, v{V_O0+2}, s[24:27], s37 offen sc1", "ST")
    while rd: rd.pop(0)()
    qrest = qord[10:]
    def tread(t, sl_):
        k, blk, q, i = t
        rg = (lvreg if k == "LV" else rvreg)[blk] + 4*q
        j_, rel_ = (0, blk) if blk < 4 else ((1, blk-4) if blk < nfull else (2, blk-nfull))
        if k == "LV": A.ds(f"ds_read_b128 v[{rg}:{rg+3}], v{(vT, vT2, vT3)[j_]} offset:{LDS_T + rel_*512 + q*32}", (k, blk, q))
        else: A.ds(f"ds_read_b128 a[{rg}:{rg+3}], v{(vR, vR2, vR3)[j_]} offset:{LDS_R + rel_*768 + q*96}", (k, blk, q))
        tdone[(k, blk, q)] = sl_
    for q_ in range(4): lvq.pop(0); tdone[("LV", 0, q_)] = -5
    bl = {r: (opt.get("bl0", barlead) if r == 0 else opt.get("bl7", 2) if r == n-1 else barlead) for r in range(n)}
    wend = {r: b[r] - (opt.get("smend", 6) - barlead + bl[r]) - (opt.get("lx", 2) if r in (nfull-1, n-1) else 0) for r in range(n)}
    items = {}
    for r in range(n):
        S = V_S[r % 2]; PO = V_PO[r % 2]; L = []
        for e in range(33):
            if e < 32: L.append(("e", e, f"v_exp_f32 v{S+e}, v{S+e}", None))
            if e >= 2 and e % 2 == 0:
                L.append(("c", e, f"v_cvt_pk_bf16_f32 v{PO + (e-2)//2}, v{S+e-2}, v{S+e-1}", None))
        items[r] = L
    cur = 0; ci = 0; pendw = []; nw = {r: 0 for r in range(n)}
    pendm = []; seenL = set(); pendl = []; lwr = set()
    bar_at = {b[r] - bl[r]: r for r in range(n)}
    pslot = {(m[1], m[3], m[2]): sl for sl, m in enumerate(mf) if m[0] == "PV"}
    prq = sorted([(r, kk, u, (kk-2)*2+u) for r in range(n) for kk in range(2, 8) for u in range(2)], key=lambda x: pslot[x[:3]])
    prdone = set(); lastw = -10
    send_slot = pslot[(nfull-1, 7, 1)] + 3
    inloop = send_slot + 6 < nslots
    flag_slot = send_slot + opt.get("flagdelay", 16)
    xpoll_slot = flag_slot + opt.get("xpolldelay", 10)
    xchk_slot = xpoll_slot + opt.get("xchkdelay", 8)
    xuse_slot = xchk_slot + opt.get("xusedelay", 8)
    pollB_slot = opt.get("pollslot", 56); chkB_slot = opt.get("chk") or gate - opt.get("chklead", 3)
    XR = V_LV[0]
    def operands(m):
        blk = rounds[m[1]][m[2]][0]
        if m[0] == "QK":
            lt = [("Q", rounds[m[1]][m[2]][1], m[3])]
            if m[3] == 0: lt += [("LV", blk, q) for q in range(4)]
            return [("K", blk, m[3])], lt
        return [], [("PR", m[1], m[3], m[2])]
    def lsum(t_, dst):
        return [f"v_add_f32 v{t_}, v{t_}, v{t_+1}", f"v_add_f32 v{t_+2}, v{t_+2}, v{t_+3}", f"v_add_f32 v{t_+4}, v{t_+4}, v{t_+5}", f"v_add_f32 v{t_+6}, v{t_+6}, v{t_+7}",
                f"v_add_f32 v{t_}, v{t_}, v{t_+2}", f"v_add_f32 v{t_+4}, v{t_+4}, v{t_+6}", f"v_add_f32 v{dst}, v{t_}, v{t_+4}"]
    LT = [0, 0]
    uid = [0]
    def two_way(fn):
        if XSC1: fn(A, "sc1"); return
        uid[0] += 1; u_ = uid[0]
        A(f"s_cmp_eq_u32 s37, s62\n s_cbranch_scc0 L_far{u_}")
        fn(A, ""); A.label(f"L_join{u_}")
        OOL.label(f"L_far{u_}"); fn(OOL, "sc1"); OOL.vm = []; OOL(f"s_branch L_join{u_}")
    def send_payload(B, fl):
        for i in range(4):
            o = A_O1 + 4*i
            B.vmem(f"buffer_store_dwordx4 a[{o}:{o+3}], v{vX}, s[24:27], s54 offen offset:{i*1024} {fl}", "XS")
        B.vmem(f"buffer_store_dword v{vLS}, v{vXL}, s[24:27], s54 offen {fl}", "XS")
    def send_flag(B, fl):
        B.vmem(f"buffer_store_dword v{vTAG}, v{vXF}, s[24:27], s54 offen {fl}", "XF")
    def self_touch():
        if opt.get("selft", 1): A.vmem(f"buffer_load_dword v{vPB}, v{vXT}, s[24:27], s54 offen sc1", "ST")
    def recv_loads():
        A.vmem(f"buffer_load_dword v{XR+16}, v{vXL}, s[24:27], s55 offen sc1", "XR")
        for i in range(4):
            A.vmem(f"buffer_load_dwordx4 v[{XR+4*i}:{XR+4*i+3}], v{vX}, s[24:27], s55 offen offset:{i*1024} sc1", "XR")
    def xcheck():
        A(f"v_cmp_eq_u32 vcc, s61, v{V_TMP}\n s_cbranch_vccz L_xspin0")
        A.label("L_xok")
        OOL.label("L_xspin0"); OOL("s_mov_b32 s53, 0"); OOL.label("L_xspin")
        OOL(f"""
        buffer_load_dword v{V_TMP}, v{vXF}, s[24:27], s55 offen sc1
        s_add_u32 s53, s53, 1
        s_waitcnt vmcnt(0)
        v_cmp_eq_u32 vcc, s61, v{V_TMP}
        s_cbranch_vccnz L_xok
        s_cmp_lt_u32 s53, 0x100000
        s_cbranch_scc1 L_xspin
        s_branch L_xok
        """)
    def fin_pre():
        L_ = [f"v_add_f32 v{V_L}, v{V_L}, v{XR+16}", f"v_rcp_f32 v{V_TMP}, v{V_L}",
              f"v_cmp_lt_f32 vcc, 0x26800000, v{V_L}", f"v_cmp_gt_f32 s[52:53], s19, v{V_L}"]
        L_ += [f"v_mul_f32 v{XR+i}, v{XR+i}, v{V_TMP}" for i in range(16)]
        return L_
    XB = V_PO[(nfull-1) % 2]
    XL = V_LV[1]
    def xpos(k): return {3: 8, 7: 9}.get(k, k)
    def tag_pack():
        L_ = []
        for k in range(8):
            L_ += [f"v_cvt_pk_bf16_f32 v{XB+xpos(k)}, v{V_O1+2*k}, v{V_O1+2*k+1}"]
            if k in (2, 6, 7): L_.append(("st", {2: 0, 6: 1, 7: 2}[k]))
        return L_
    def tag_recv(B):
        for i in range(3):
            B.vmem(f"buffer_load_dwordx4 v[{XL+4*i}:{XL+4*i+3}], v{vX}, s[24:27], s55 offen offset:{i*1024} sc1", "XR")
    def tag_cmp(B):
        B(f"v_cmp_eq_u32 vcc, s61, v{XL+3}\n v_cmp_eq_u32 s[52:53], s61, v{XL+7}\n v_cmp_eq_u32 s[20:21], s61, v{XL+11}")
        B("s_and_b64 vcc, vcc, s[52:53]\n s_and_b64 vcc, vcc, s[20:21]\n s_cmp_eq_u64 vcc, -1")
    def tag_check():
        tag_cmp(A); A("s_cbranch_scc0 L_xspin0"); A.label("L_xok")
        OOL.label("L_xspin0"); OOL("s_mov_b32 s38, 0" + ("\n s_mov_b32 s3, 1" if opt.get("diag") == "x" else "")); OOL.label("L_xspin")
        tag_recv(OOL); OOL.vm = []
        OOL("s_add_u32 s38, s38, 1\n s_waitcnt vmcnt(0)"); tag_cmp(OOL)
        OOL("s_cbranch_scc1 L_xok\n s_cmp_lt_u32 s38, 0x100000\n s_cbranch_scc1 L_xspin\n s_branch L_xok")
    def tag_fin():
        return [f"v_mov_b32 v{XL+3}, v{XL+8}", f"v_mov_b32 v{XL+7}, v{XL+9}", f"v_add_f32 v{V_L}, v{V_L}, v{XL+10}"]
    def emit_extra(x_):
        if isinstance(x_, tuple):
            A.vmem(f"buffer_store_dwordx4 v[{XB+4*x_[1]}:{XB+4*x_[1]+3}], v{vX}, s[24:27], s54 offen offset:{x_[1]*1024} sc1", "XS")
        else: A(x_)
    xld_slot = opt.get("xld", nslots - 20); xuse2 = opt.get("xuse", nslots - 2)
    extra = []
    seenO = set(); vi = 0; vpart = 0
    vt, lt = operands(mf[0]); A.need(vt, lt)
    stamp("mfma0")
    pendst = []
    totcost = []; fb_done = []; pb_done = []; ldlog = []
    pipe = opt.get("pipe0", 200)
    for sl in range(nslots):
        m = mf[sl]
        blk, qt = rounds[m[1]][m[2]]
        if m[0] == "QK":
            _, r, u, s = m
            d = V_S[r % 2] + u*16
            c = f"v[{lvreg[blk]}:{lvreg[blk]+15}]" if s == 0 else f"v[{d}:{d+15}]"
            if s == 0: assert all(("LV", blk, q_) in tdone for q_ in range(4)), ("lv not read", sl)
            assert ("K", blk, s) in issued, ("K not loaded", sl)
            assert qt*8+s not in qrest
            k = kbuf[blk] + 4*s; q = A_Q + (qt*8+s)*4
            A(f"v_mfma_f32_32x32x16_bf16 v[{d}:{d+15}], a[{k}:{k+3}], a[{q}:{q+3}], {c}")
        else:
            _, r, u, kk = m
            c = "0" if qt not in seenO else oreg(qt)
            seenO.add(qt)
            assert ("V", blk, kk) in vedone, ("V frag not expanded", sl, m)
            assert kk < 2 or (r, kk, u) in prdone, ("P not read", sl)
            assert kk >= 2 or cur > r or (cur == r and (ci >= len(items[r]) or items[r][ci][1] > 8*(2*u+kk+1))), ("own P not packed", sl)
            v = vereg[("V", blk, kk)]
            ps = f"v[{V_PO[r%2] + (u*2+kk)*4}:{V_PO[r%2] + (u*2+kk)*4+3}]" if kk < 2 else f"a[{A_P + ((kk-2)*2+u)*4}:{A_P + ((kk-2)*2+u)*4+3}]"
            A(f"v_mfma_f32_32x32x16_bf16 {oreg(qt)}, v[{v}:{v+3}], {ps}, {c}")
        if opt.get("jit") is not None and (sl * 7 + opt["jit"]) % 11 == 0:
            k_ = (sl * 5 + opt["jit"]) % 6
            if k_ < 4: A(f"s_cmp_lg_u32 s32, {k_}")
            else: A(f"s_bitcmp0_b32 s2, {3 + (sl % 4)}")
            A(f"s_cbranch_scc1 L_j{sl}\n s_sleep {3 + (sl % 5) * 6}"); A.label(f"L_j{sl}")
        stamp(f"slot{sl}")
        bud = 24
        vt, lt = operands(mf[sl+1]) if sl + 1 < nslots else ([], [])
        vt = list(vt); lt = list(lt)
        if vi < len(vexp) and sl >= need_at[("VR", vexp[vi][1], vexp[vi][2]//4)]: vt.append(("VR", vexp[vi][1], vexp[vi][2]//4))
        if pendm and tdone.get(("RV", rounds[pendm[0][0]][pendm[0][1]//2][0], pendm[0][1] % 2), 10**6) <= sl - 2:
            lt.append(("RV", rounds[pendm[0][0]][pendm[0][1]//2][0], pendm[0][1] % 2))
        if sl == chkB_slot: vt.append("PB")
        if inloop and not XTAG:
            if sl == flag_slot: vt.append("XS")
            if sl == xchk_slot: vt.append("XP")
            if sl == xuse_slot: vt.append("XR")
        if inloop and XTAG and sl == xuse2: vt.append("XR")
        if sl == b[nfull-1] + 4: lt.append(("LR", 1))
        if sl == b[n-1] + 4: lt.append(("LR", 0))
        if sl in bar_at:
            r = bar_at[sl]
            assert nw[r] == 4, ("P not written before barrier", r, sl)
            for q_ in ([1] if r == nfull-1 else []) + ([0] if r == n-1 else []): assert q_ in lwr, ("l not written", sl)
            A.need(vt, lt + [("PW", r), "LW"])
            A("s_barrier")
            bud -= COST['bar']
            for q_ in ([1] if r == nfull-1 else []) + ([0] if r == n-1 else []):
                LT[q_] = V_S[r % 2] + 8*q_
                for hf in range(2):
                    A.ds(f"ds_read_b128 v[{LT[q_]+hf*4}:{LT[q_]+hf*4+3}], v{vLR} offset:{LDS_L + q_*1024 + hf*16}", ("LR", q_)); bud -= 4
        else:
            A.need(vt, lt)
        if sl == b[nfull-1] + 4:
            extra += lsum(LT[1], XB+10 if XTAG else vLS)
            if XTAG: extra += [f"v_mov_b32 v{XB+j}, s61" for j in (3, 7, 11)]
        if sl == b[n-1] + 4: extra += lsum(LT[0], V_L)
        hasw = bool(pendw) and sl not in bar_at and not (sl + 1 in bar_at)
        nr = 0
        while nr < opt.get("maxr", 2) and len(A.lg) < 13:
            c_ = []
            if prq:
                r, kk, u, idx = prq[0]
                if sl >= b[r] - bl[r] and (r == 0 or sl >= pslot[(r-1, kk, u)]): c_.append((pslot[(r, kk, u)] - 5, "p"))
            if qrest: c_.append((qord.index(qrest[0]) - 6, "q"))
            if lvq:
                _, tblk, q, i = lvq[0]
                if (i < 2 or lv_last[tb[i-2][0]] + 1 < sl): c_.append((lv_use[tblk] - 8 + q, "lv"))
            if rvq:
                _, tblk, q, i = rvq[0]
                if (i < 2 or (tb[i-2][0], q) in rv_done): c_.append((lv_use[tblk] + 8 + 4*q, "rv"))
            if not c_: break
            d_, k_ = min(c_)
            if sl == lastw + 1 and d_ > sl - 2: break
            if nr >= 1 and d_ > sl + 1: break
            if hasw and d_ > sl + 1: break
            if d_ > sl + opt.get("rlead", 24): break
            if k_ == "p":
                r, kk, u, idx = prq.pop(0); rg = A_P + idx*4
                A.ds(f"ds_read_b128 a[{rg}:{rg+3}], v{vPR+kk//2-1} offset:{(r%NPB)*16384 + (u*2+kk%2)*1024}", ("PR", r, kk, u)); prdone.add((r, kk, u))
            elif k_ == "q": qread(qrest.pop(0))
            elif k_ == "lv": tread(lvq.pop(0), sl)
            else: tread(rvq.pop(0), sl)
            bud -= COST["r"]; nr += 1
        if hasw:
            r, f = pendw.pop(0); PO = V_PO[r % 2]
            A.ds(f"ds_write_b128 v{vPW}, v[{PO+4*f}:{PO+4*f+3}] offset:{(r%NPB)*16384 + f*1024}", ("PW", r)); bud -= COST["w"]; nw[r] += 1
            lastw = sl
        if pendl and pendl[0][0] <= sl:
            _, q_ = pendl.pop(0); lwr.add(q_)
            A.ds(f"ds_write_b64 v{vLW}, v[{V_LA+4*q_}:{V_LA+4*q_+1}] offset:{q_*1024}", "LW")
            A.ds(f"ds_write_b64 v{vLW}, v[{V_LA+4*q_+2}:{V_LA+4*q_+3}] offset:{q_*1024+512}", "LW"); bud -= 24
        if pendst and not hasw: emit_extra(pendst.pop(0)); bud -= opt.get("cst", 16)
        nxt_ = min([need_at[q_[0]] for q_ in (kl, vl) if q_ and (q_[0][1] < 4 or sl >= gate)] + [10**6]) - sl
        if not fb_done and not opt.get("fb0", 1) and sl >= opt.get("fbslot", 13) and (nxt_ >= opt.get("fbgap", 20) or sl >= opt.get("fbmax", 29)):
            fb_done.append(sl); assert sl < b[0]
            if not FBE:
                A("s_cmp_eq_u32 s3, 0\n s_cbranch_scc0 L_skip2\n s_barrier"); bud -= 42
                A.label("L_skip2")
            A.vmem(f"buffer_store_dword v{vTAG}, v{vFB}, s[24:27], s18 offen sc1", "FB"); bud -= 8
        elif sl == opt.get("tv", -5):
            A.vmem(f"buffer_load_dword v255, v{V_O0+2}, s[24:27], s37 offen sc1", "ST"); bud -= 8
        elif sl == opt.get("t2", -5):
            A.vmem(f"buffer_load_dword v255, v159, s[24:27], s37 offen sc1", "ST"); bud -= 8
        elif not pb_done and sl >= pollB_slot and (nxt_ >= opt.get("pollgap", 24) or sl >= chkB_slot - opt.get("pollmin", 18)):
            pb_done.append(sl)
            assert not late
            A.vmem(f"buffer_load_dword v{V_TMP}, v{vPB}, s[24:27], s60 offen sc1", "PB"); bud -= 8
            if not XSC1: A.vmem(f"buffer_load_dword v{V_TMP+1}, off, s[24:27], s37 sc1", "PB"); bud -= 8
        elif (kl or vl) and not hasw and sl not in bar_at:
            c_ = [q_[0] for q_ in (kl, vl) if q_ and ld_free(q_[0]) <= sl and need_at[q_[0]] - sl <= opt.get("maxlead", 60)]
            if c_:
                key = min(c_, key=lambda k: need_at[k])
                now = sum(max(32, c) for c in totcost)
                if pipe - now <= opt.get("qmax", 60) or need_at[key] - sl < opt.get("urg", 10):
                    (kl if key[0] == "K" else vl).pop(0)
                    ld(key); bud -= COST["l"]; ldlog.append((sl, key, need_at[key] - sl))
                    pipe = max(pipe, now) + (opt.get("kdur", 74) if key[0] == "K" else opt.get("vdur", 74))
        if sl == chkB_slot:
            A(f"v_cmp_eq_u32 vcc, s61, v{V_TMP}")
            if not XSC1: A(f"v_readfirstlane_b32 s37, v{V_TMP+1}")
            A(f"s_cmp_eq_u64 vcc, -1\n s_cbranch_scc0 L_bspin0")
            A.label("L_bok")
            OOL.label("L_bspin0"); OOL("s_mov_b32 s53, 0" + ("\n s_mov_b32 s3, 1" if opt.get("diag") == "b" else "")); OOL.label("L_bspin")
            OOL(f"""
            buffer_load_dword v{V_TMP}, v{vPB}, s[24:27], s60 offen sc1
            s_add_u32 s53, s53, 1
            s_waitcnt vmcnt(0)
            v_cmp_eq_u32 vcc, s61, v{V_TMP}
            s_cmp_eq_u64 vcc, -1
            s_cbranch_scc1 L_bok
            s_cmp_lt_u32 s53, 0x100000
            s_cbranch_scc1 L_bspin
            s_branch L_bok
            """)
            A("s_mov_b32 s19, 0x58800000")
            for x_ in late2: A(x_)
            bud -= 20
        if sl == opt.get("wbslot", -1):
            A("s_or_b32 s38, s35, s32\n s_cbranch_scc0 L_dowb"); A.label("L_nowb"); bud -= 8
            OOL.label("L_dowb"); OOL("buffer_wbl2 sc1\n s_branch L_nowb")
        if inloop and XTAG:
            if sl == send_slot:
                assert not extra
                stamp("send"); extra += tag_pack()
            if sl == xld_slot:
                assert not kl and not vl and all(lv_last[t[0]] + 1 < sl for t in tb) and sl > send_slot + 8
                tag_recv(A); bud -= 24
            if sl == opt.get("idslot", nslots - 8):
                A.ds(f"ds_read_b128 v[{XR}:{XR+3}], v{vPW} offset:{NPB*16384}", "ID")
                A.ds(f"ds_read_b128 v[{XR+4}:{XR+7}], v{vPW} offset:{NPB*16384+1024}", "ID"); bud -= 8
            if sl == xuse2:
                assert sl > b[n-1] + 4 and all(lv_last[t[0]] < sl for t in tb)
                stamp("xr")
                while extra: emit_extra(extra.pop(0)); bud -= 4
                tag_check(); bud -= 28; extra += tag_fin()
        elif inloop:
            if sl == send_slot:
                assert not extra
                stamp("send"); two_way(send_payload); bud -= 60
                if not XSC1: self_touch(); bud -= 8
            if sl == flag_slot:
                stamp("xack"); two_way(send_flag); bud -= 16
            if sl == xpoll_slot:
                A.vmem(f"buffer_load_dword v{V_TMP}, v{vXF}, s[24:27], s55 offen sc1", "XP"); bud -= 8
            if sl == xchk_slot:
                assert not kl and not vl and all(lv_last[t[0]] < sl for t in tb)
                stamp("xp"); xcheck(); recv_loads(); bud -= 50
            if sl == xuse_slot:
                assert sl > b[n-1] + 4
                stamp("xr"); extra += fin_pre()
        def vexp_step():
            nonlocal vi, vpart, bud
            key = vexp[vi]; src = V_VR + (key[1] % NVR)*8 + key[2]
            A(f"v_cvt_scalef32_pk_bf16_fp4 v{vereg[key]+vpart}, v{src}, 1.0 op_sel:[{vpart&1},{vpart>>1},0]")
            bud -= 4; vpart += 1
            if vpart == 4: vedone[key] = sl; vi += 1; vpart = 0
        def vexp_ok():
            if vi >= len(vexp): return False
            key = vexp[vi]; tag = ("VR", key[1], key[2]//4)
            return vefree[key] <= sl and tag not in A.vm and tag in issued
        def sm_next():
            nonlocal cur, ci
            while cur < n and ci >= len(items[cur]): cur += 1; ci = 0
            if cur >= n: return None
            kind, e, txt, info = items[cur][ci]
            if sl < sready[(cur, 0)]: return None
            if kind == "e" and e == 16 and sl < sready[(cur, 1)]: return None
            if kind == "c" and XTAG and cur == nfull + 1: assert not extra and not pendst and sl > send_slot + 4
            rate = min(opt.get("smrate", 0.7), (wend[cur] - sready[(cur, 0)]) / 33.0)
            return wend[cur] - (32 - e) * rate
        def sm_step():
            nonlocal ci, bud
            kind, e, txt, info = items[cur][ci]
            A(txt); bud -= COST[kind]; ci += 1
            if kind == "c" and e % 8 == 0: pendw.append((cur, e//8 - 1)); newm.append((cur, e//8 - 1))
        newm = []
        def fill():
          nonlocal bud
          while True:
            ds_ = sm_next(); dv = None
            if vi < len(vexp):
                dl = firstuse[vexp[vi]] - 2 - (3 - vpart) * 0.25
                if vexp_ok(): dv = dl
                elif firstuse[vexp[vi]] - sl <= 2:
                    A.need([("VR", vexp[vi][1], vexp[vi][2]//4)])
                    assert vexp_ok(), ("cannot expand in time", sl, vexp[vi])
                    dv = dl
            cands = [(d, k) for d, k in ((ds_, "s"), (dv, "v")) if d is not None]
            if extra:
                if inloop and sl < send_slot: dx = send_slot - 3
                elif inloop and XTAG and sl < send_slot + 8: dx = send_slot + (11 - len(extra)) * opt.get("packrate", 0.2)
                else: dx = sl + 3
                cands.append((dx, "x"))
            if late: cands.append((8, "t"))
            if late3 and nsolo and all(t_[1] >= nfull for t_ in lvq + rvq) and sl > chkB_slot: cands.append((b[nfull-1] + 8, "u"))
            if not cands: break
            d, k = min(cands)
            if d > sl:
                if bud <= 0: break
                if d > sl + opt.get("fitslack", 2) and k == "s" and COST[items[cur][ci][0]] > bud:
                    cands = [c for c in cands if c[1] != "s"]
                    if not cands: break
                    d, k = min(cands)
            if k == "s": sm_step()
            elif k == "v": vexp_step()
            elif k == "x":
                if isinstance(extra[0], tuple): pendst.append(extra.pop(0))
                else: emit_extra(extra.pop(0)); bud -= 4
            elif k == "u": A(late3.pop(0)); bud -= 4
            else: A(late.pop(0)); bud -= 4
        fill()
        mcost = 0
        if pendm:
            r_, f_ = pendm[0]; blk_, qt_ = rounds[r_][f_//2]; tag = ("RV", blk_, f_ % 2)
            if tag in tdone and tag not in A.lg:
                pendm.pop(0)
                la = V_LA + 4*qt_; rv_ = rvreg[blk_] + 4*(f_ % 2); po_ = V_PO[r_ % 2] + 4*f_
                A(f"v_mfma_f32_16x16x32_bf16 v[{la}:{la+3}], a[{rv_}:{rv_+3}], v[{po_}:{po_+3}], {'v[%d:%d]' % (la, la+3) if qt_ in seenL else '0'}")
                seenL.add(qt_)
                if f_ >= 2 or rounds[r_][0][0] != rounds[r_][1][0]: rv_done[(blk_, f_ % 2)] = sl
                if f_ == 3:
                    for q_ in ([1] if r_ == nfull-1 else []) + ([0] if r_ == n-1 else []): pendl.append((sl + 1, q_))
                b0 = bud; bud = opt.get("mbud", 8); fill(); mcost = max(16, 16 - bud); bud = min(b0, 0) - mcost
        pendm += newm
        totcost.append(32 - bud)
    assert not kl and not vl
    if opt.get("verbose"):
        print("fb", fb_done, "pb", pb_done, "loads", " ".join(f"{s_}:{k_[0]}{k_[1]}.{k_[2]}(+{d_})" for s_, k_, d_ in ldlog), file=sys.stderr)
        print("slot costs:", totcost, "sum:", sum(totcost), "sum max(32,c):", sum(max(32, c) for c in totcost), file=sys.stderr)
    stamp("loopend")
    for x_ in late3: A(x_)
    for x_ in extra: emit_extra(x_)
    if XTAG:
        if not inloop:
            for x_ in tag_pack(): emit_extra(x_)
        if not inloop or xld_slot >= nslots: A.need(["XS"]); tag_recv(A)
        if not inloop or xuse2 >= nslots:
            A.need(["XR"]); stamp("xr"); tag_check()
            for x_ in tag_fin(): A(x_)
    else:
        if not inloop:
            A("s_nop 7"); two_way(send_payload)
            if not XSC1: self_touch()
        if not inloop or flag_slot >= nslots: A.need(["XS"]); two_way(send_flag)
        if not inloop or xpoll_slot >= nslots: A.vmem(f"buffer_load_dword v{V_TMP}, v{vXF}, s[24:27], s55 offen sc1", "XP")
        if not inloop or xchk_slot >= nslots: A.need(["XP"]); xcheck(); recv_loads()
        if not inloop or xuse_slot >= nslots:
            A.need(["XR"]); stamp("xr")
            for x_ in fin_pre(): A(x_)
    assert XTAG and OARCH and inloop
    A.need(ltags=["ID"])
    A(f"v_mfma_f32_32x32x16_bf16 {oreg(0)}, v[{XR}:{XR+3}], v[{XL}:{XL+3}], {oreg(0)}")
    A(f"v_rcp_f32 v{V_TMP}, v{V_L}\n v_cmp_lt_f32 vcc, 0x26800000, v{V_L}\n v_cmp_gt_f32 s[52:53], s19, v{V_L}")
    A(f"v_mfma_f32_32x32x16_bf16 {oreg(0)}, v[{XR+4}:{XR+7}], v[{XL+4}:{XL+7}], {oreg(0)}")
    if not opt.get("noslow"): A("s_and_b64 vcc, vcc, s[52:53]\n s_cmp_eq_u64 vcc, -1\n s_cbranch_scc0 L_slow")
    pk = V_PO[0]
    A("s_add_u32 s38, s56, 4096")
    A.label("L_pack")
    OT = opt.get("otr", 1)
    for bq in range(4):
        for a_ in range(4): A(f"v_mul_f32 v{XR+4*a_+bq}, v{V_O0+4*a_+bq}, v{V_TMP}")
        A(f"v_cvt_pk_bf16_f32 v{pk+2*bq}, v{XR+bq}, v{XR+4+bq}")
        A(f"v_cvt_pk_bf16_f32 v{pk+2*bq+1}, v{XR+8+bq}, v{XR+12+bq}")
        if bq == 1:
            if OT: A(f"ds_write_b128 v{vOW}, v[{pk}:{pk+3}] offset:{LDS_Q}")
            else: A(f"buffer_store_dwordx4 v[{pk}:{pk+3}], v{vOUT}, s[28:31], s56 offen {opt.get('ofl','')}")
    if OT:
        A(f"""
        ds_write_b128 v{vOW}, v[{pk+4}:{pk+7}] offset:{LDS_Q+16}
        ds_read_b128 v[{pk+8}:{pk+11}], v{vOR} offset:{LDS_Q}
        ds_read_b128 v[{pk+12}:{pk+15}], v{vOR} offset:{LDS_Q+1280}
        s_waitcnt lgkmcnt(1)
        buffer_store_dwordx4 v[{pk+8}:{pk+11}], v{vOUT}, s[28:31], s56 offen {opt.get('ofl','')}
        s_waitcnt lgkmcnt(0)
        buffer_store_dwordx4 v[{pk+12}:{pk+15}], v{vOUT}, s[28:31], s38 offen {opt.get('ofl','')}
        """)
    else:
        A(f"buffer_store_dwordx4 v[{pk+4}:{pk+7}], v{vOUT}, s[28:31], s56 offen offset:16 {opt.get('ofl','')}")
    A(f"""
    s_and_b32 s52, s57, 63
    s_cbranch_scc1 L_nobump
    s_add_u32 s52, s39, 1
    s_lshl_b32 s53, s33, 7
    v_mov_b32 v{V_TMP}, s52
    buffer_store_dword v{V_TMP}, v{vFB}, s[24:27], s53 offen
    """)
    A.label("L_nobump")
    if st:
        A("s_waitcnt vmcnt(0)")
        stamp("end")
        A(("" if rtdone else "s_memrealtime s[98:99]\n") + "s_waitcnt lgkmcnt(0)")
        A(f"s_lshl_b32 s50, s2, 2\n s_add_u32 s50, s50, s32\n s_lshl_b32 s51, s50, 7\n s_add_u32 s51, s51, {ST_OFF}")
        A("s_mov_b64 exec, 1")
        open("stampnames.txt", "w").write(" ".join(stl))
        for i in range(len(stl)):
            A(f"v_mov_b32 v10, s{64+2*i}\n v_mov_b32 v11, s{65+2*i}\n buffer_store_dwordx2 v[10:11], off, s[24:27], s51 offset:{8*i}\n s_nop 1")
        if opt.get("diag"): A("s_mov_b32 s96, 0\n s_mul_i32 s98, s3, 4096")
        A(f"s_lshl_b32 s50, s50, 4\n s_add_u32 s50, s50, {RT_OFF}")
        A(f"v_mov_b32 v24, s96\n v_mov_b32 v25, s97\n v_mov_b32 v26, s98\n v_mov_b32 v27, s99\n buffer_store_dwordx4 v[24:27], off, s[24:27], s50")
    A.label("L_end")
    A("s_endpgm")
    S = OOL
    S.label("L_slow")
    S(f"""
    s_waitcnt vmcnt(0) lgkmcnt(0)
    s_mul_i32 s40, s33, {64*TILE}
    s_add_u32 s40, s40, {RB}
    v_add_u32 v{vK1}, 0x1000, v{vX}
    v_mov_b32 v40, 0xff800000
    s_mov_b32 s41, s40
    s_mov_b32 s42, 0
    """)
    def slow_qk():
        for s in range(8): S(f"buffer_load_dwordx4 a[{64+4*s}:{67+4*s}], v{vX if s < 4 else vK1}, s[24:27], s41 offen offset:{(s%4)*1024} sc1")
        S("s_waitcnt vmcnt(0)")
        for s in range(8): S(f"v_mfma_f32_32x32x16_bf16 v[24:39], a[{64+4*s}:{67+4*s}], a[{4*s}:{4*s+3}], {'0' if s == 0 else 'v[24:39]'}")
        S("s_nop 15")
    S.label("L_slow1")
    slow_qk()
    for i in range(8): S(f"v_max3_f32 v40, v{24+2*i}, v{25+2*i}, v40")
    S(f"""
    s_add_u32 s41, s41, {TILE}
    s_add_u32 s42, s42, 1
    s_cmp_lt_u32 s42, 64
    s_cbranch_scc1 L_slow1
    v_mov_b32 v41, v40
    s_nop 1
    v_permlane32_swap_b32 v40, v41
    v_max_f32 v40, v40, v41
    v_mov_b32 v42, 0
    v_and_b32 v43, 7, v{vLANE}
    v_bfe_u32 v44, v{vLANE}, 3, 2
    v_lshl_add_u32 v43, v43, 2, v44
    v_lshl_add_u32 v43, v{vW}, 5, v43
    v_lshlrev_b32 v43, 2, v43
    v_lshrrev_b32 v44, 5, v{vLANE}
    s_lshl_b32 s52, s33, 11
    v_lshl_add_u32 v44, v44, 2, s52
    v_lshl_add_u32 v43, v44, 9, v43
    v_lshlrev_b32 v44, 1, v44
    s_mov_b32 s41, s40
    s_mov_b32 s42, 0
    """)
    for i in range(16): S(f"v_mov_b32 v{V_O0+i}, 0")
    S.label("L_slow2")
    for g in range(4):
        S(f"global_load_dwordx2 v[{64+2*g}:{65+2*g}], v44, s[14:15] offset:{16*g}")
        S(f"global_load_dwordx2 v[{72+2*g}:{73+2*g}], v44, s[16:17] offset:{16*g}")
        for b_ in range(4): S(f"global_load_dword v{48+4*g+b_}, v43, s[12:13] offset:{512*b_}")
        S("v_add_u32 v43, 0x1000, v43")
    S("v_add_u32 v44, 64, v44")
    slow_qk()
    for i in range(16): S(f"v_sub_f32 v{24+i}, v{24+i}, v40")
    for i in range(16): S(f"v_exp_f32 v{24+i}, v{24+i}")
    for i in range(16): S(f"v_add_f32 v42, v42, v{24+i}")
    for i in range(8): S(f"v_cvt_pk_bf16_f32 v{80+i}, v{24+2*i}, v{25+2*i}")
    for i in range(8):
        S(f"""
        v_cvt_f32_i32 v{48+2*i}, v{48+2*i}
        v_cvt_f32_i32 v{49+2*i}, v{49+2*i}
        v_lshlrev_b32 v45, 16, v{72+i}
        v_and_b32 v46, 0xffff0000, v{72+i}
        v_sub_f32 v{48+2*i}, v{48+2*i}, v45
        v_sub_f32 v{49+2*i}, v{49+2*i}, v46
        v_lshlrev_b32 v45, 16, v{64+i}
        v_and_b32 v46, 0xffff0000, v{64+i}
        v_mul_f32 v{48+2*i}, v{48+2*i}, v45
        v_mul_f32 v{49+2*i}, v{49+2*i}, v46
        v_cvt_pk_bf16_f32 v{88+i}, v{48+2*i}, v{49+2*i}
        """)
    S(f"""
    s_nop 1
    v_mfma_f32_32x32x16_bf16 v[{V_O0}:{V_O0+15}], v[88:91], v[80:83], v[{V_O0}:{V_O0+15}]
    v_mfma_f32_32x32x16_bf16 v[{V_O0}:{V_O0+15}], v[92:95], v[84:87], v[{V_O0}:{V_O0+15}]
    s_add_u32 s41, s41, {TILE}
    s_add_u32 s42, s42, 1
    s_cmp_lt_u32 s42, 64
    s_cbranch_scc1 L_slow2
    v_mov_b32 v41, v42
    s_nop 15
    v_permlane32_swap_b32 v42, v41
    v_add_f32 v42, v42, v41
    v_rcp_f32 v{V_TMP}, v42
    s_add_u32 s38, s56, 4096
    s_branch L_pack
    """)
    o = [HEADER, f"; @launch grid=(256,1,1) block=(256,1,1) lds={opt.get('lds', LDS_BYTES)}\n", TARGET, A.text() + OOL.text(),
         f".fill 2048, 4, 0xBF800000\nL_textend:\n.if (L_textend - {KN}) < 24704\n.error \"code prefetch would run past the end of the section\"\n.endif\n", kd(KN, 512, sgpr=102, accum=256)]
    if opt.get("rep"):
        import reporter
        o[1] = f"; @launch kernel={KN} grid=(256,1,1) block=(256,1,1) lds={LDS_BYTES}\n; @launch kernel=rep_kernel grid=(1,1,1) block=(64,1,1) lds=0\n"
        o[4] = o[4] + reporter.text(opt["rep"], RT_OFF, ST_OFF, opt.get("repi", 0), opt.get("repk", 20))
        o.append(kd("rep_kernel", 32))
    return "".join(o)

if __name__ == "__main__":
    opt = {}
    out = sys.argv[1]
    for a_ in sys.argv[2:]:
        k, v = a_.split("=")
        try: v = int(v)
        except:
            try: v = float(v)
            except: pass
        opt[k] = v
    opt.setdefault("pad", 1536); opt.setdefault("ihook", 3); opt.setdefault("chk", 76)
    import hazcheck, subprocess, re, os
    t, n = hazcheck.fix(gen(opt))
    if opt.get("abl"):
        L_ = t.split("\n"); o_ = []; nm = -1
        for ln in L_:
            if "v_mfma_f32_32" in ln: nm += 1
            if 64 <= nm < 192 and any(re.search(rx, ln) for rx in opt["abl"].split("+")): continue
            o_.append(ln)
        t = "\n".join(o_)
    if opt.get("ihook"):
        sys.path.insert(0, "cdna_kernels")
        import cdna_launch as cl
        lines = t.split("\n")
        go = lines.index("L_go:"); endl = lines.index("L_pack:")
        for h in range(opt["ihook"]):
            probe = list(lines)
            for i in range(go + 1, endl):
                if probe[i].strip() and not probe[i].endswith(":"): probe[i] = f"LP_{i}:\n" + probe[i]
            txt = "\n".join(probe)
            for k in range(h, opt["ihook"]): txt = txt.replace("L_end:", f"L_hook{k}:\nL_end:")
            open("_p.s", "w").write(cl.with_harness_metadata(txt, KN, 14, launch_lists=True))
            subprocess.run(["clang", "-x", "assembler", "-target", "amdgcn-amd-amdhsa", "-mcpu=gfx950", "-c", "_p.s", "-o", "_p.o"], check=True)
            assert opt.get("pad") is not None
            sy = subprocess.run(["llvm-objdump", "-t", "_p.o"], capture_output=True, text=True).stdout
            ad = sorted((int(m.group(1), 16) + opt.get("textva", 0), int(m.group(2))) for m in re.finditer(r"^([0-9a-f]+) .* LP_(\d+)$", sy, re.M))
            page = ad[0][0] // 4096 + 1 + h
            cand = [i for a_, i in ad if a_ >= page * 4096 + opt.get("hookoff", 0)]
            if not cand:
                lines.insert(lines.index("L_end:") + 2, f"L_hook{h}:\n  s_branch L_warmed"); continue
            lines.insert(cand[0], f"L_hook{h}:"); lines.insert(cand[0] + 1, "  s_cbranch_execz L_warmed"); endl += 2
        t = "\n".join(lines)
    print("nops inserted:", n)
    open(out, "w").write(t)
```
